```python
import torch

def _softmax(x, axis=-1):
    return torch.softmax(x, dim=axis)

def _gelu(x):
    return torch.nn.functional.gelu(x, approximate='tanh')

def _silu(x):
    return torch.nn.functional.silu(x)

def _sigmoid(x):
    return torch.sigmoid(x)

def _layernorm(x, axis=-1, eps=1e-05):
    m = x.mean(dim=axis, keepdim=True)
    v = x.var(dim=axis, keepdim=True, unbiased=False)
    return (x - m) / torch.sqrt(v + eps)

def _scatter_add(tgt, idx, src, axis=0):
    return tgt.clone().index_add_(axis, idx, src)

def _segment_sum(src, seg, n):
    out = torch.zeros((n,) + src.shape[1:], dtype=src.dtype)
    return out.index_add_(0, seg, src)

def _pad(x, pw):
    flat = tuple((v for pair in reversed(pw) for v in pair))
    return torch.nn.functional.pad(x, flat)
kernel_name = 'adaLN_cond__sliding_block_cached__glu_gated_bilinear__prompt'

def setup_inputs():

    _w = lambda a: (lambda t: t.to(torch.bfloat16) if t.is_floating_point() else t)(torch.as_tensor(a))

    def _A_setup():
        B, Sq, D = (1, 2048, 512)
        Hq, Hkv, Sk, Dh = (32, 32, 2048, 128)
        assert Hq % Hkv == 0, (Hq, Hkv)
        return {'x': _w((lambda *s: torch.randn(*s, dtype=torch.bfloat16) * 0.05)(B, Sq, D)), 'k_cache': _w((lambda *s: torch.randn(*s, dtype=torch.bfloat16) * 1.6)(B, Hkv, Sk, Dh)), 'v_cache': _w((lambda *s: torch.randn(*s, dtype=torch.bfloat16) * 0.8)(B, Hkv, Sk, Dh)), 'wq': _w((lambda *s: torch.randn(*s, dtype=torch.bfloat16) * 1.6)(D, Hq * Dh) * D ** (-0.5)), 'wo': _w((lambda *s: torch.randn(*s, dtype=torch.bfloat16) * 0.8)(Hq * Dh, D) * (Hq * Dh) ** (-0.5))}
    _A_in = _A_setup()

    def _B_setup():
        B, S, D, F = (1, 2048, 512, 1376)
        return {'x': _w((lambda *s: torch.randn(*s, dtype=torch.bfloat16) * 0.05)(B, S, D)), 'w_gate': _w((lambda *s: torch.randn(*s, dtype=torch.bfloat16) * 0.4)(D, F) * D ** (-0.5)), 'w_up': _w((lambda *s: torch.randn(*s, dtype=torch.bfloat16) * 0.4)(D, F) * D ** (-0.5)), 'w_down': _w((lambda *s: torch.randn(*s, dtype=torch.bfloat16) * 0.4)(F, D) * F ** (-0.5))}
    _B_in = _B_setup()
    return {'A_x': _A_in['x'], 'A_k_cache': _A_in['k_cache'], 'A_v_cache': _A_in['v_cache'], 'A_wq': _A_in['wq'], 'A_wo': _A_in['wo'], 'B_x': _B_in['x'], 'B_w_gate': _B_in['w_gate'], 'B_w_up': _B_in['w_up'], 'B_w_down': _B_in['w_down'], 'c': _w((lambda *s: torch.randn(*s, dtype=torch.bfloat16) * 0.2)(1, 512) * 8.0), 'w_mod': _w((lambda *s: torch.randn(*s, dtype=torch.bfloat16) * 0.2)(512, 6 * 512) * 512 ** (-0.5) * 8.0)}

def reference(A_x, A_k_cache, A_v_cache, A_wq, A_wo, B_x, B_w_gate, B_w_up, B_w_down, c, w_mod):

    def _A_ref(x, k_cache, v_cache, wq, wo):
        B, Sq, D = x.shape
        Hq, Dh = (32, 128)
        Hkv, Sk = (k_cache.shape[1], k_cache.shape[2])
        W = min(4096, max(256, Sk // 4))
        rep = Hq // Hkv
        q = (lambda x, *d: x.permute(*d))((x @ wq).reshape(B, Sq, Hq, Dh), 0, 2, 1, 3)
        k = (lambda x, n, axis: torch.repeat_interleave(x, n, dim=axis))(k_cache[:, :, Sk - W:, :], rep, axis=1)
        v = (lambda x, n, axis: torch.repeat_interleave(x, n, dim=axis))(v_cache[:, :, Sk - W:, :], rep, axis=1)
        scores = torch.einsum('bhqd,bhkd->bhqk', q, k) * Dh ** (-0.5)
        p = _softmax(scores, axis=-1)
        o = torch.einsum('bhqk,bhkd->bhqd', p, v)
        return (lambda x, *d: x.permute(*d))(o, 0, 2, 1, 3).reshape(B, Sq, Hq * Dh) @ wo

    def _B_ref(x, w_gate, w_up, w_down):
        g = torch.einsum('bsd,df->bsf', x, w_gate)
        u = torch.einsum('bsd,df->bsf', x, w_up)
        h = g * u
        return torch.einsum('bsf,fd->bsd', h, w_down)
    x = A_x
    mod = (_silu(c) @ w_mod).reshape(c.shape[0], 6, 1, -1)
    sa, ca, ga, sb, cb, gb = (mod[:, 0].clone(), mod[:, 1].clone(), mod[:, 2].clone(), mod[:, 3].clone(), mod[:, 4].clone(), mod[:, 5].clone())
    h = _layernorm(x, axis=-1) * (1 + ca) + sa
    x = x + ga * _A_ref(h, A_k_cache, A_v_cache, A_wq, A_wo)
    h = _layernorm(x, axis=-1) * (1 + cb) + sb
    x = x + gb * _B_ref(h, B_w_gate, B_w_up, B_w_down)
    return x
```

```python
import re


class Reg:
    __slots__ = ("k", "i", "n")

    def __init__(self, k, i, n=1):
        self.k, self.i, self.n = k, i, n

    def __getitem__(self, x):
        if isinstance(x, slice):
            a = x.start or 0
            b = self.n if x.stop is None else x.stop
            assert 0 <= a < b <= self.n, (self, x)
            return Reg(self.k, self.i + a, b - a)
        assert 0 <= x < self.n, (str(self), x)
        return Reg(self.k, self.i + x, 1)

    def sub(self, a, n):
        return self[a:a + n]

    def __str__(self):
        if self.k == "m0":
            return "m0"
        if self.k == "vcc":
            return "vcc"
        if self.k == "exec":
            return "exec"
        if self.n == 1:
            return f"{self.k}{self.i}"
        return f"{self.k}[{self.i}:{self.i + self.n - 1}]"

    __repr__ = __str__

    def units(self):
        return [(self.k, self.i + j) for j in range(self.n)]


class Neg(Reg):
    __slots__ = ()

    def __init__(self, r):
        Reg.__init__(self, r.k, r.i, r.n)

    def __str__(self):
        return "-" + Reg.__str__(self)

    __repr__ = __str__


def V(i, n=1):
    return Reg("v", i, n)


def A(i, n=1):
    return Reg("a", i, n)


def S(i, n=1):
    return Reg("s", i, n)


M0 = Reg("m0", 0)
VCC = Reg("vcc", 0)
EXEC = Reg("exec", 0)


def units(*ops):
    r = []
    for o in ops:
        if isinstance(o, Reg):
            r += o.units()
        elif isinstance(o, (list, tuple)):
            r += units(*o)
    return r


class I:
    __slots__ = ("t", "kind", "w", "r", "tag", "dep", "ovw", "meta")

    def __init__(self, t, kind, w=(), r=(), tag=None, dep=None, ovw=None, meta=None):
        self.t, self.kind = t, kind
        self.w, self.r = set(w), set(r)
        self.tag, self.dep, self.ovw, self.meta = tag, dep, ovw, meta or {}

    def __repr__(self):
        return self.t


TRANS = ("v_exp_f32", "v_log_f32", "v_rcp_f32", "v_rsq_f32", "v_sqrt_f32", "v_sin_f32", "v_cos_f32")


def fmt(x):
    if isinstance(x, float):
        if x in (0.5, 1.0, 2.0, 4.0, -0.5, -1.0, -2.0, -4.0):
            return repr(x)
        if x == 0.0:
            return "0"
        import struct
        return hex(struct.unpack("<I", struct.pack("<f", x))[0])
    if isinstance(x, int):
        return str(x) if -16 <= x <= 64 else hex(x & 0xFFFFFFFF)
    return str(x)


class Prog:
    def __init__(self):
        self.ins = []
        self.uid = 0

    def add(self, i):
        self.ins.append(i)
        return i

    def raw(self, text, kind="salu", w=(), r=()):
        return self.add(I(text, kind, units(*w), units(*r)))

    def comment(self, c):
        return self.add(I("; " + c, "comment"))

    def label(self, name):
        return self.add(I(name + ":", "label"))

    def newlabel(self, base):
        self.uid += 1
        return f"{base}_{self.uid}"

    def s(self, op, dst, *src):
        w = [dst] if isinstance(dst, Reg) else []
        ops = [dst] + list(src)
        r = [x for x in src if isinstance(x, Reg)]
        if op.startswith("s_cmp") or op.startswith("s_bitcmp"):
            r = [x for x in ops if isinstance(x, Reg)]
            w = []
        if op in ("s_addk_i32", "s_mulk_i32"):
            r = r + [dst]
        return self.add(I(f"{op} " + ", ".join(fmt(x) for x in ops), "salu", units(*w), units(*r)))

    def s_load(self, dst, base, off):
        op = {1: "s_load_dword", 2: "s_load_dwordx2", 4: "s_load_dwordx4", 8: "s_load_dwordx8", 16: "s_load_dwordx16"}[dst.n]
        return self.add(I(f"{op} {dst}, {base}, {off}", "smem", units(dst), units(base)))

    def stamp(self, dst, real=False):
        op = "s_memrealtime" if real else "s_memtime"
        return self.add(I(f"{op} {dst}", "smem", units(dst), ()))

    def wait(self, vm=None, lgkm=None):
        p = []
        if vm is not None:
            p.append(f"vmcnt({vm})")
        if lgkm is not None:
            p.append(f"lgkmcnt({lgkm})")
        return self.add(I("s_waitcnt " + " ".join(p), "wait", meta={"vm": vm, "lgkm": lgkm}))

    def nop(self, n=0):
        return self.add(I(f"s_nop {n}", "nop", meta={"n": n}))

    def barrier(self, dep=None, drain_lds=True):
        return self.add(I("s_barrier", "barrier", dep=dep, meta={"drain_lds": drain_lds}))

    def branch(self, op, label):
        return self.add(I(f"{op} {label}", "branch"))

    def need(self, dep):
        return self.add(I("", "need", dep=dep))

    def v(self, op, dst, *src, mods="", extra_w=(), extra_r=()):
        base = op.replace("_e32", "").replace("_e64", "")
        kind = "trans" if base in TRANS else "valu"
        w = [dst] + list(extra_w)
        r = [x for x in src if isinstance(x, Reg)] + list(extra_r)
        if base in ("v_fmac_f32", "v_dot2c_f32_bf16"):
            r.append(dst)
        if base.startswith("v_cmp"):
            pass
        if base in ("v_cndmask_b32",) and len(src) == 2:
            src = list(src) + [VCC]
            r.append(VCC)
        if base in ("v_permlane32_swap_b32", "v_permlane16_swap_b32"):
            kind = "permlane"
            w = [dst, src[0]]
            r = [dst, src[0]]
        if base in ("v_readfirstlane_b32", "v_readlane_b32"):
            kind = "readlane"
        meta = {}
        if "dpp" in op or "row_" in mods or "quad_perm" in mods:
            meta["dpp"] = True
        t = f"{op} {dst}, " + ", ".join(fmt(x) for x in src)
        if mods:
            t += " " + mods
        return self.add(I(t, kind, units(*w), units(*r), meta=meta))

    def mfma16(self, d, a, b, c):
        return self._mfma("v_mfma_f32_16x16x32_bf16", d, a, b, c, 4)

    def mfma32(self, d, a, b, c):
        return self._mfma("v_mfma_f32_32x32x16_bf16", d, a, b, c, 8)

    def _mfma(self, op, d, a, b, c, passes):
        cu = units(c) if isinstance(c, Reg) else []
        if isinstance(c, Reg):
            assert c.k == d.k, "C and D must be in the same register file"
        return self.add(I(f"{op} {d}, {a}, {b}, {fmt(c)}", "mfma", units(d), units(a, b) + cu,
                          meta={"passes": passes, "d": units(d), "ab": units(a, b), "c": cu}))

    def ds_read(self, op, dst, addr, off=0, dep=None):
        assert 0 <= off < 65536, off
        t = f"{op} {dst}, {addr}" + (f" offset:{off}" if off else "")
        return self.add(I(t, "ds_read", units(dst), units(addr), dep=dep))

    def ds_write(self, op, addr, src, off=0, tag=None, ovw=None):
        assert 0 <= off < 65536, off
        t = f"{op} {addr}, {src}" + (f" offset:{off}" if off else "")
        return self.add(I(t, "ds_write", (), units(addr, src), tag=tag, ovw=ovw))

    def ds_raw(self, text, w=(), r=(), kind="ds_read"):
        return self.add(I(text, kind, units(*w), units(*r)))

    @staticmethod
    def _bt(voff, srd, soff, off, flags):
        assert 0 <= off < 4096, off
        t = f"{voff}, {srd}, {fmt(soff)} offen"
        if off:
            t += f" offset:{off}"
        if flags:
            t += " " + flags
        return t

    def bload(self, dst, voff, srd, soff=0, off=0, flags="", tag=None):
        op = {1: "buffer_load_dword", 2: "buffer_load_dwordx2", 3: "buffer_load_dwordx3", 4: "buffer_load_dwordx4"}[dst.n]
        return self.add(I(f"{op} {dst}, " + self._bt(voff, srd, soff, off, flags), "vload",
                          units(dst), units(voff, srd, soff), tag=tag))

    def bload_raw(self, op, dst, voff, srd, soff=0, off=0, flags=""):
        return self.add(I(f"{op} {dst}, " + self._bt(voff, srd, soff, off, flags), "vload",
                          units(dst), units(voff, srd, soff)))

    def dma(self, voff, srd, soff=0, off=0, tag=None, ovw=None, flags=""):
        t = "buffer_load_dwordx4 " + self._bt(voff, srd, soff, off, flags) + " lds"
        return self.add(I(t, "dma", (), units(voff, srd, soff, M0), tag=tag, ovw=ovw))

    def bstore(self, src, voff, srd, soff=0, off=0, flags="", tag=None):
        op = {1: "buffer_store_dword", 2: "buffer_store_dwordx2", 4: "buffer_store_dwordx4"}[src.n]
        return self.add(I(f"{op} {src}, " + self._bt(voff, srd, soff, off, flags), "vstore",
                          (), units(src, voff, srd, soff), tag=tag, meta={"data": units(src), "wide": src.n >= 3}))

    def bstore_raw(self, op, src, voff, srd, soff=0, off=0, flags=""):
        return self.add(I(f"{op} {src}, " + self._bt(voff, srd, soff, off, flags), "vstore",
                          (), units(src, voff, srd, soff), meta={"data": units(src), "wide": False}))


def _matches(dep, tag):
    if dep is None or tag is None:
        return False
    if isinstance(dep, (list, set)):
        return tag in dep
    return dep == tag


class _St:
    __slots__ = ("vm", "lg", "smem")

    def __init__(self, vm=(), lg=(), smem=()):
        self.vm, self.lg, self.smem = list(vm), list(lg), list(smem)

    def copy(self):
        return _St(self.vm, self.lg, self.smem)

    def key(self):
        return (tuple(map(id, self.vm)), tuple(map(id, self.lg)), tuple(map(id, self.smem)))

    def apply(self, nvm, nlg):
        if nvm is not None:
            del self.vm[:max(0, len(self.vm) - nvm)]
        if nlg is not None:
            del self.lg[:max(0, len(self.lg) - nlg)]
            if nlg == 0:
                self.smem.clear()


def _branch_target(x):
    return x.t.split()[-1]


def insert_waits(ins, stats=None):
    out = []
    states = [_St()]
    pending = {}

    def emit_wait(nvm, nlg):
        p, meta = [], {"vm": None, "lgkm": None}
        if nvm is not None:
            nvm = min(nvm, 63)
            p.append(f"vmcnt({nvm})")
            meta["vm"] = nvm
        if nlg is not None:
            nlg = min(nlg, 15)
            p.append(f"lgkmcnt({nlg})")
            meta["lgkm"] = nlg
        for st in states:
            st.apply(nvm, nlg)
        out.append(I("s_waitcnt " + " ".join(p), "wait", meta=meta))
        if stats is not None:
            stats["waits"] = stats.get("waits", 0) + 1

    def mn(a, b):
        return b if a is None else (a if b is None else min(a, b))

    for x in ins:
        if x.kind == "wait":
            for st in states:
                st.apply(x.meta["vm"], x.meta["lgkm"])
            out.append(x)
            continue
        if x.kind == "label":
            name = x.t[:-1]
            states += pending.pop(name, [])
            uniq = {}
            for st in states:
                uniq.setdefault(st.key(), st)
            states = list(uniq.values())
            assert states, "unreachable label " + name
            out.append(x)
            continue
        if x.kind == "comment":
            out.append(x)
            continue
        touched = x.r | x.w
        nvm = nlg = None
        for st in states:
            vm, lg = st.vm, st.lg
            for j in range(len(vm) - 1, -1, -1):
                o = vm[j]
                if (o.kind == "vload" and o.w & touched) or _matches(x.dep, o.tag):
                    nvm = mn(nvm, len(vm) - 1 - j)
                    break
            for j in range(len(lg) - 1, -1, -1):
                o = lg[j]
                hit = (o.kind == "ds_read" and o.w & touched) or (o.kind == "ds_write" and _matches(x.dep, o.tag))
                if x.ovw is not None and o.kind == "ds_read" and _matches(x.ovw, o.dep):
                    hit = True
                if x.kind == "barrier" and x.meta.get("drain_lds"):
                    hit = True
                if hit:
                    nlg = mn(nlg, len(lg) - 1 - j)
                    break
            if any(o.w & touched for o in st.smem):
                nlg = 0
            if x.kind in ("ds_read", "ds_write") and st.smem:
                nlg = 0
        if nvm is not None or nlg is not None:
            emit_wait(nvm, nlg)
        if x.kind == "need":
            continue
        if x.kind in ("ds_read", "ds_write"):
            if max(len(st.lg) for st in states) >= 15:
                emit_wait(None, 14)
            for st in states:
                st.lg.append(x)
        elif x.kind in ("vload", "dma", "vstore"):
            if max(len(st.vm) for st in states) >= 63:
                emit_wait(62, None)
            for st in states:
                st.vm.append(x)
        elif x.kind == "smem":
            for st in states:
                st.smem.append(x)
        out.append(x)
        if x.kind == "branch":
            pending.setdefault(_branch_target(x), []).extend(st.copy() for st in states)
            if x.t.startswith("s_branch"):
                states = []
    return out


VALU_KINDS = ("valu", "trans", "permlane", "readlane")


def pad_hazards(ins, stats=None, window=24):
    out = []
    hist = []

    def required(x, p):
        need = 0
        pw = p.w
        if not pw and p.kind not in ("mfma", "vstore"):
            return 0
        xr, xw = x.r, x.w
        if p.kind in VALU_KINDS:
            vw = {u for u in pw if u[0] in "va"}
            sw = {u for u in pw if u[0] in ("s", "vcc")}
            if x.kind == "mfma" and vw & xr:
                need = max(need, 2)
            if x.kind == "permlane" and vw & xr:
                need = max(need, 2)
            if x.kind == "readlane" and vw & xr:
                need = max(need, 1)
            if x.meta.get("dpp") and vw & xr:
                need = max(need, 2)
            if p.kind == "trans" and x.kind in VALU_KINDS and x.kind != "trans" and vw & xr:
                need = max(need, 1)
            if p.kind == "trans" and x.kind == "trans" and vw & xr:
                need = max(need, 1)
            if sw & xr:
                if x.kind in VALU_KINDS:
                    need = max(need, 2)
                if x.kind in ("vload", "vstore", "dma"):
                    need = max(need, 5)
                if x.kind == "readlane":
                    need = max(need, 4)
                if x.kind in ("salu", "branch", "smem"):
                    need = max(need, 4)
        if p.kind == "salu" and ("m0", 0) in pw and x.kind == "dma":
            need = max(need, 1)
        if p.kind == "mfma":
            ps = p.meta["passes"]
            d = set(p.meta["d"])
            if x.kind == "mfma":
                if d & set(x.meta["ab"]):
                    need = max(need, ps + 4)
                c = set(x.meta["c"])
                if d & c:
                    exact = x.meta["c"] == p.meta["d"] and x.meta["passes"] == ps
                    if not exact:
                        need = max(need, ps + 2)
            elif x.kind in VALU_KINDS or x.kind in ("vload", "vstore", "ds_read", "ds_write", "dma"):
                if d & (xr | xw):
                    need = max(need, ps + 4)
            if x.kind in VALU_KINDS and set(p.meta["c"]) & xw:
                need = max(need, ps - 1)
        if p.kind == "vstore" and p.meta.get("wide"):
            data = set(p.meta["data"])
            if data & xw:
                need = max(need, 2 if x.kind in VALU_KINDS else 1)
        return need

    pend = {}
    for x in ins:
        if x.kind == "label":
            best = {}
            for p, d in hist + pend.pop(x.t[:-1], []):
                if id(p) not in best or d < best[id(p)][1]:
                    best[id(p)] = (p, d)
            hist = list(best.values())
            out.append(x)
            continue
        if x.kind in ("comment", "need"):
            out.append(x)
            continue
        short = 0
        for p, dist in hist:
            rq = required(x, p)
            if rq > dist:
                short = max(short, rq - dist)
        if short:
            if stats is not None:
                stats.setdefault("nops", []).append((short, x.t))
            n = short
            while n > 0:
                k = min(n, 16)
                out.append(I(f"s_nop {k - 1}", "nop", meta={"n": k - 1}))
                n -= k
            hist = [(p, d + short) for p, d in hist]
        out.append(x)
        step = x.meta["n"] + 1 if x.kind == "nop" else 1
        hist = [(p, d + step) for p, d in hist if d + step < window]
        if x.kind != "nop":
            hist.append((x, 0))
        if x.kind == "branch":
            pend.setdefault(_branch_target(x), []).extend(hist)
            if x.t.startswith("s_branch"):
                hist = []
    return out


MARK = "@@ITER"


def mark(prog, group, idx):
    prog.add(I(f"{MARK} {group} {idx}", "comment", meta={"mark": (group, idx)}))


def roll(ins, counters):
    out = []
    i = 0
    n = len(ins)
    uid = [0]
    while i < n:
        x = ins[i]
        m = x.meta.get("mark")
        if not m:
            out.append(x)
            i += 1
            continue
        group = m[0]
        iters = []
        cur = None
        while True:
            y = ins[i]
            mm = y.meta.get("mark")
            i += 1
            if mm and mm[0] == group:
                if cur is not None:
                    iters.append(cur)
                if mm[1] is None:
                    break
                cur = []
            else:
                cur.append(y)
        text = ["\n".join(z.t for z in it if z.kind != "comment") for it in iters]
        j = 0
        while j < len(iters):
            k = j
            while k + 1 < len(iters) and text[k + 1] == text[j]:
                k += 1
            cnt = k - j + 1
            body = iters[j]
            seen_cmp = False
            for z in body:
                if z.meta.get("tail") == "cmp":
                    seen_cmp = True
                elif z.meta.get("tail") == "br":
                    seen_cmp = False
                elif seen_cmp and z.kind == "salu" and not z.t.startswith("s_mov"):
                    raise AssertionError("SCC clobbered between loop compare and branch: " + z.t)
            if cnt >= 2:
                uid[0] += 1
                lab = f"L_{group}_{uid[0]}"
                c = counters[group]
                out.append(I(f"s_mov_b32 {c}, {cnt}", "salu", units(c)))
                out.append(I(f"{lab}:", "label"))
                for z in body:
                    if z.meta.get("tail") == "dec":
                        out.append(I(f"s_sub_u32 {c}, {c}, 1", "salu"))
                    elif z.meta.get("tail") == "cmp":
                        out.append(I(f"s_cmp_lg_u32 {c}, 0", "salu"))
                    elif z.meta.get("tail") == "br":
                        out.append(I(f"s_cbranch_scc1 {lab}", "branch"))
                    else:
                        out.append(z)
                out.append(I(f"; rolled {group} x{cnt}", "comment"))
            else:
                for z in body:
                    if not z.meta.get("tail"):
                        out.append(z)
                    elif z.meta.get("tail") == "br":
                        out.append(I("s_nop 0", "nop", meta={"n": 0}))
                    else:
                        out.append(I("s_nop 0", "nop", meta={"n": 0}))
            j = k + 1
    return out


def loop_dec(prog):
    prog.add(I("@tail_dec", "salu", meta={"tail": "dec"}))
    prog.add(I("@tail_cmp", "salu", meta={"tail": "cmp"}))


def loop_branch(prog):
    prog.add(I("@tail_br", "salu", meta={"tail": "br"}))


def finalize(prog, counters=None, verbose=False, name=""):
    stats = {}
    ins = insert_waits(prog.ins, stats)
    ins = pad_hazards(ins, stats)
    ins = roll(ins, counters or {})
    if verbose:
        nops = stats.get("nops", [])
        tot = sum(n for n, _ in nops)
        print(f"[{name}] instrs {sum(1 for x in ins if x.kind not in ('comment', 'label'))} waits {stats.get('waits', 0)} "
              f"nop sites {len(nops)} states {tot}")
        for n, t in nops[:verbose if isinstance(verbose, int) and verbose > 1 else 0]:
            print("    nop", n, "before", t)
    lines = []
    for x in ins:
        if x.kind == "need" or x.t.startswith(MARK):
            continue
        if x.kind == "label":
            lines.append(x.t)
        else:
            lines.append("  " + x.t)
    return "\n".join(lines)


def kernel_text(name, body, vgpr, accum, sgpr=102):
    return f""".text
.globl {name}
.p2align 8
.type {name},@function
{name}:
{body}
  s_endpgm
.section .rodata,"a"
.p2align 6
.amdhsa_kernel {name}
  .amdhsa_next_free_vgpr {vgpr}
  .amdhsa_next_free_sgpr {sgpr}
  .amdhsa_accum_offset {accum}
  .amdhsa_group_segment_fixed_size 0
  .amdhsa_kernarg_size 112
  .amdhsa_user_sgpr_count 2
  .amdhsa_user_sgpr_kernarg_segment_ptr 1
  .amdhsa_system_sgpr_workgroup_id_x 1
  .amdhsa_float_denorm_mode_32 3
.end_amdhsa_kernel
"""


from layout import WS_STAMP


class Stamps:
    def __init__(self, p, on, base=64):
        self.p, self.on, self.n, self.base = p, on, 0, base
        self.names = []

    def __call__(self, name, real=False):
        if not self.on:
            return
        self.p.stamp(S(self.base + 2 * self.n, 2), real)
        self.names.append(name)
        self.n += 1

    def flush(self, rws, swave, slot, vtmp0, vtmp1):
        if not self.on:
            return
        p = self.p
        p.wait(vm=0, lgkm=0)
        t = S(100)
        p.s("s_lshl_b32", t, S(2), 2)
        p.s("s_add_u32", t, t, swave)
        p.s("s_lshl_b32", t, t, 7)
        p.s("s_add_u32", t, t, WS_STAMP + slot * 0x20000)
        p.v("v_mov_b32", vtmp1, 0)
        for i in range(self.n):
            p.v("v_mov_b32", vtmp0, S(self.base + 2 * i))
            p.bstore(vtmp0, vtmp1, rws, soff=t, off=4 * i)
        p.wait(vm=0)
```

```python
from asmlib import *
from layout import *

LDS_SIL = 131072
LDS_PART = LDS_SIL + 1024
LDS_XP = LDS_PART + 2048
LDS_TAB = LDS_XP + 128
A_LDS = LDS_TAB + 512


def srd(p, s, base, size, add=0):
    if add:
        p.s("s_add_u32", s[0], base[0], add)
        p.s("s_addc_u32", s[1], base[1], 0)
    else:
        p.s("s_mov_b32", s[0], base[0])
        p.s("s_mov_b32", s[1], base[1])
    p.s("s_mov_b32", s[2], size)
    p.s("s_mov_b32", s[3], 0x20000)


def bf16_round_hi(p, dst, src):
    p.v("v_cvt_pk_bf16_f32", dst, src, src)
    p.v("v_lshlrev_b32", dst, 16, dst)


def gen_a(diag=False):
    p = Prog()
    T = Stamps(p, diag)
    sX, sC, sW, sWS = S(4, 2), S(6, 2), S(8, 2), S(10, 2)
    rX, rC, rW, rWS = S(12, 4), S(16, 4), S(20, 4), S(24, 4)
    sw, srg, scg, st0, st1, soff = S(28), S(29), S(30), S(31), S(32), S(33)
    sexec = S(34, 2)
    lab_end = "A_end"
    p.s("s_cmp_ge_u32", S(2), 256)
    p.branch("s_cbranch_scc1", lab_end)
    T("rt0", True)
    T("start")
    p.s_load(sX, S(0, 2), ARG["x"])
    p.s_load(sC, S(0, 2), ARG["c"])
    p.s_load(sW, S(0, 2), ARG["wmod"])
    p.s_load(sWS, S(0, 2), ARG["ws"])
    vl, vq, vg = V(1), V(2), V(3)
    vt0, vt1, vt2 = V(4), V(5), V(6)
    p.v("v_lshrrev_b32", vt0, 6, V(0))
    p.v("v_and_b32", vl, 63, V(0))
    p.v("v_readfirstlane_b32", sw, vt0)
    p.v("v_and_b32", vq, 15, vl)
    p.v("v_lshrrev_b32", vg, 4, vl)
    p.s("s_and_b32", st0, S(2), 7)
    p.s("s_lshl_b32", st0, st0, 2)
    p.s("s_lshr_b32", st1, S(2), 6)
    p.s("s_add_u32", srg, st0, st1)
    p.s("s_lshr_b32", scg, S(2), 3)
    p.s("s_and_b32", scg, scg, 7)
    p.wait(lgkm=0)
    srd(p, rX, sX, SZ["x"])
    srd(p, rC, sC, SZ["c"])
    srd(p, rW, sW, SZ["wmod"])
    srd(p, rWS, sWS, WS_DIAG_END if diag else WS_END)
    T("karg")

    vc, vcoff = V(7), V(8)
    p.v("v_lshlrev_b32", vcoff, 2, V(0))
    p.bload(vc, vcoff, rC)

    vd = V(10, 4)
    p.v("v_lshrrev_b32", vt0, 3, vl)
    p.s("s_mov_b32", st0, 6144)
    p.v("v_mul_lo_u32", vt0, vt0, st0)
    p.v("v_lshlrev_b32", vt1, 1, vg)
    p.v("v_and_b32", vt2, 7, vl)
    p.v("v_xor_b32", vt1, vt1, vt2)
    p.v("v_lshlrev_b32", vt1, 4, vt1)
    p.v("v_add_u32", vd[0], vt0, vt1)
    for j in range(1, 4):
        p.v("v_add_u32", vd[j], j * (8 * 6144 - 1024), vd[0])
    p.s("s_mul_i32", st0, sw, 128 * 6144)
    p.s("s_lshl_b32", st1, scg, 7)
    p.s("s_add_u32", soff, st0, st1)
    sm = S(36)
    p.s("s_lshl_b32", sm, sw, 15)
    so2 = S(37)
    for grp in range(4):
        for sl in range(2):
            p.s("s_add_u32", so2, soff, grp * 32 * 6144 + sl * 1024)
            p.s("s_add_u32", M0, sm, sl * 16384 + grp * 4096)
            for j in range(4):
                p.dma(vd[j], rW, so2, off=1024 * j, tag=("slab", grp))

    vx = V(64, 64)
    vxo = V(14)
    p.s("s_lshl_b32", st0, srg, 6)
    p.s("s_lshl_b32", st1, sw, 4)
    p.s("s_add_u32", st0, st0, st1)
    p.v("v_add_u32", vt0, st0, vq)
    p.v("v_lshlrev_b32", vt0, 10, vt0)
    p.v("v_lshlrev_b32", vt1, 4, vg)
    p.v("v_add_u32", vxo, vt0, vt1)
    for s_ in range(16):
        p.bload(vx[4 * s_:4 * s_ + 4], vxo, rX, off=64 * s_)
    vp = V(16, 8)
    vpo = V(15)
    p.v("v_lshlrev_b32", vt1, 3, vg)
    p.v("v_add_u32", vpo, vt0, vt1)
    p.s("s_lshl_b32", st0, scg, 7)
    for j in range(2):
        for h in range(2):
            p.bload(vp[4 * j + 2 * h:4 * j + 2 * h + 2], vpo, rX, soff=st0, off=64 * j + 32 * h)
    ve = V(24, 8)
    veo = V(9)
    p.s("s_mov_b32", st1, 2 * 6144)
    p.v("v_mul_lo_u32", veo, V(0), st1)
    p.s("s_and_b32", st0, S(2), 7)
    p.s("s_lshl_b32", st0, st0, 5)
    p.s("s_lshr_b32", st1, S(2), 3)
    p.s("s_add_u32", st0, st0, st1)
    sxc = S(38)
    p.s("s_mov_b32", sxc, st0)
    p.s("s_lshl_b32", st0, st0, 4)
    p.s("s_add_u32", st0, st0, 2048)
    p.bload(ve[0:4], veo, rW, soff=st0)
    p.s("s_add_u32", st1, st0, 6144)
    p.bload(ve[4:8], veo, rW, soff=st1)

    T("issued")
    s0, s1 = V(32), V(33)
    e0, e1 = V(34), V(35)
    p.v("v_lshlrev_b32", s0, 16, vc)
    p.v("v_and_b32", s1, 0xFFFF0000, vc)
    for s_, e_ in ((s0, e0), (s1, e1)):
        p.v("v_mul_f32", e_, -1.4426950408889634, s_)
        p.v("v_exp_f32", e_, e_)
    for s_, e_ in ((s0, e0), (s1, e1)):
        p.v("v_add_f32", e_, 1.0, e_)
        p.v("v_rcp_f32", e_, e_)
    for s_, e_ in ((s0, e0), (s1, e1)):
        p.v("v_mul_f32", s_, s_, e_)
    vpk = V(36)
    p.v("v_cvt_pk_bf16_f32", vpk, s0, s1)
    p.v("v_add_u32", vt0, LDS_SIL, vcoff)
    p.ds_write("ds_write_b32", vt0, vpk, tag="sil")
    p.v("v_lshlrev_b32", s0, 16, vpk)
    p.v("v_and_b32", s1, 0xFFFF0000, vpk)
    p.barrier()

    T("silu")
    vones = V(40, 4)
    for i in range(4):
        p.v("v_mov_b32", vones[i], 0x3F803F80)
    gram, rsum = V(44, 4), V(48, 4)
    for s_ in range(16):
        xs = vx[4 * s_:4 * s_ + 4]
        p.mfma16(gram, xs, xs, gram if s_ else 0)
        p.mfma16(rsum, vones, xs, rsum if s_ else 0)

    T("stats")
    vtr = V(52, 4)
    p.v("v_and_b32", vt0, 3, vl)
    p.v("v_lshrrev_b32", vt1, 2, vl)
    p.v("v_lshlrev_b32", vtr[0], 7, vt1)
    p.v("v_lshrrev_b32", vt1, 1, vt1)
    p.v("v_and_b32", vt1, 3, vt1)
    p.v("v_lshlrev_b32", vt1, 1, vt1)
    p.v("v_lshrrev_b32", vt2, 1, vt0)
    p.v("v_xor_b32", vt1, vt1, vt2)
    p.v("v_lshlrev_b32", vt1, 4, vt1)
    p.v("v_and_b32", vt0, 1, vt0)
    p.v("v_lshlrev_b32", vt0, 3, vt0)
    p.v("v_add3_u32", vtr[0], vtr[0], vt1, vt0)
    p.v("v_add_u32", vtr[0], sm, vtr[0])
    for t in range(1, 4):
        p.v("v_xor_b32", vtr[t], t << 5, vtr[0])
    vb = V(56)
    p.v("v_lshlrev_b32", vb, 3, vg)
    p.s("s_lshl_b32", st0, sw, 8)
    p.s("s_add_u32", st0, st0, LDS_SIL)
    p.v("v_add_u32", vb, st0, vb)
    acc = V(128, 32)
    bf = V(160, 16)
    af = V(176, 64)
    for ks in range(4):
        b = bf[4 * ks:4 * ks + 4]
        p.ds_read("ds_read_b64", b[0:2], vb, off=64 * ks)
        p.ds_read("ds_read_b64", b[2:4], vb, off=64 * ks + 32)
    for ks in range(4):
        for sl in range(2):
            for t in range(4):
                a = af[32 * (ks & 1) + 16 * sl + 4 * t:32 * (ks & 1) + 16 * sl + 4 * t + 4]
                p.ds_read("ds_read_b64_tr_b16", a[0:2], vtr[t], off=sl * 16384 + ks * 4096, dep=("slab", ks))
                p.ds_read("ds_read_b64_tr_b16", a[2:4], vtr[t], off=sl * 16384 + ks * 4096 + 2048, dep=("slab", ks))
        for sl in range(2):
            for t in range(4):
                a = af[32 * (ks & 1) + 16 * sl + 4 * t:32 * (ks & 1) + 16 * sl + 4 * t + 4]
                d = acc[16 * sl + 4 * t:16 * sl + 4 * t + 4]
                p.mfma16(d, a, bf[4 * ks:4 * ks + 4], d if ks else 0)

    T("gemv")
    ea = V(196, 8)
    tmp = V(204)
    for i in range(4):
        for hi in range(2):
            d = ea[2 * i + hi]
            for row, sv in ((0, s0), (1, s1)):
                src = ve[4 * row + i]
                if hi:
                    p.v("v_and_b32", tmp, 0xFFFF0000, src)
                else:
                    p.v("v_lshlrev_b32", tmp, 16, src)
                if row == 0:
                    p.v("v_mul_f32", d, tmp, sv)
                else:
                    p.v("v_fmac_f32", d, tmp, sv)
    for i in range(4):
        p.v("v_permlane32_swap_b32", ea[2 * i], ea[2 * i + 1])
        p.v("v_add_f32", ea[2 * i], ea[2 * i], ea[2 * i + 1])
    for i in range(2):
        p.v("v_permlane16_swap_b32", ea[4 * i], ea[4 * i + 2])
        p.v("v_add_f32", ea[4 * i], ea[4 * i], ea[4 * i + 2])
    for rot in (8, 4, 2, 1):
        for i in range(2):
            p.v("v_add_f32_dpp", ea[4 * i], ea[4 * i], ea[4 * i], mods=f"row_ror:{rot} row_mask:0xf bank_mask:0xf")
    p.v("v_and_b32", vt0, 1, vg)
    p.v("v_lshlrev_b32", vt0, 1, vt0)
    p.v("v_lshrrev_b32", vt1, 1, vg)
    p.v("v_add_u32", vt0, vt0, vt1)
    p.v("v_lshlrev_b32", vt0, 2, vt0)
    p.s("s_lshl_b32", st0, sw, 5)
    p.s("s_add_u32", st0, st0, LDS_XP)
    p.v("v_add_u32", vt0, st0, vt0)
    p.v("v_lshlrev_b32", vt1, 4, vg)
    p.s("s_lshl_b32", st0, sw, 9)
    p.s("s_add_u32", st0, st0, LDS_PART)
    p.v("v_add_u32", vt1, st0, vt1)
    p.s("s_mov_b64", sexec, EXEC)
    p.raw("s_mov_b32 exec_lo, 0x00010001")
    p.raw("s_mov_b32 exec_hi, 0x00010001")
    p.ds_write("ds_write_b32", vt0, ea[0])
    p.ds_write("ds_write_b32", vt0, ea[4], off=16)
    for sl in range(2):
        for t in range(4):
            p.ds_write("ds_write_b128", vt1, acc[16 * sl + 4 * t:16 * sl + 4 * t + 4], off=(sl * 64 + 16 * t) * 4)
    p.s("s_mov_b64", EXEC, sexec)

    mu, rs, sq = V(60), V(61), V(62)
    p.v("v_and_b32", vt0, 3, vq)
    p.v("v_cmp_eq_u32", VCC, 1, vt0)
    p.v("v_cndmask_b32", sq, gram[0], gram[1])
    p.v("v_cmp_eq_u32", VCC, 2, vt0)
    p.v("v_cndmask_b32", sq, sq, gram[2])
    p.v("v_cmp_eq_u32", VCC, 3, vt0)
    p.v("v_cndmask_b32", sq, sq, gram[3])
    p.v("v_lshrrev_b32", vt0, 2, vq)
    p.v("v_cmp_eq_u32", VCC, vt0, vg)
    p.v("v_cndmask_b32", sq, 0, sq)
    p.v("v_mov_b32", vt1, sq)
    p.v("v_permlane32_swap_b32", sq, vt1)
    p.v("v_add_f32", sq, sq, vt1)
    p.v("v_mov_b32", vt1, sq)
    p.v("v_permlane16_swap_b32", sq, vt1)
    p.v("v_add_f32", sq, sq, vt1)
    p.v("v_mul_f32", mu, 1.0 / 512, rsum[0])
    p.v("v_mul_f32", sq, 1.0 / 512, sq)
    p.v("v_fma_f32", sq, Neg(mu), mu, sq)
    p.v("v_max_f32", sq, 0, sq)
    p.v("v_add_f32", sq, 1e-5, sq)
    p.v("v_rsq_f32", rs, sq)
    nmr = V(63)
    p.v("v_mul_f32_e64", nmr, Neg(mu), rs)
    p.barrier()

    T("bar2")
    r4 = V(200, 4)
    p.s("s_cmp_ge_u32", sw, 3)
    p.branch("s_cbranch_scc1", "A_tab_done")
    p.s("s_cmp_eq_u32", sw, 2)
    p.branch("s_cbranch_scc1", "A_extra")
    p.v("v_lshlrev_b32", vt0, 2, V(0))
    p.v("v_add_u32", vt1, LDS_PART, vt0)
    for w in range(4):
        p.ds_read("ds_read_b32", r4[w], vt1, off=512 * w)
    p.v("v_add_f32", r4[0], r4[0], r4[1])
    p.v("v_add_f32", r4[2], r4[2], r4[3])
    p.v("v_add_f32", r4[0], r4[0], r4[2])
    bf16_round_hi(p, r4[0], r4[0])
    p.s("s_cmp_eq_u32", sw, 0)
    p.branch("s_cbranch_scc1", "A_is_sa")
    p.v("v_add_f32", r4[0], 1.0, r4[0])
    bf16_round_hi(p, r4[0], r4[0])
    p.label("A_is_sa")
    p.v("v_mul_f32", r4[0], QSCALE, r4[0])
    p.v("v_add_u32", vt1, LDS_TAB, vt0)
    p.ds_write("ds_write_b32", vt1, r4[0])
    p.wait(lgkm=0)
    p.branch("s_branch", "A_tab_done")
    p.label("A_extra")
    p.v("v_and_b32", vt0, 7, vl)
    p.v("v_lshlrev_b32", vt0, 2, vt0)
    p.v("v_add_u32", vt1, LDS_XP, vt0)
    for w in range(4):
        p.ds_read("ds_read_b32", r4[w], vt1, off=32 * w)
    p.v("v_add_f32", r4[0], r4[0], r4[1])
    p.v("v_add_f32", r4[2], r4[2], r4[3])
    p.v("v_add_f32", r4[0], r4[0], r4[2])
    bf16_round_hi(p, r4[0], r4[0])
    p.s("s_lshl_b32", st0, sxc, 5)
    p.s("s_add_u32", st0, st0, WS_MOD + 4096)
    p.s("s_mov_b64", sexec, EXEC)
    p.s("s_mov_b64", EXEC, 0xFF)
    p.bstore(r4[0], vt0, rWS, soff=st0)
    p.s("s_mov_b64", EXEC, sexec)
    p.wait(lgkm=0)
    p.label("A_tab_done")
    p.barrier()

    T("bar3")
    tb = V(128, 32)
    p.v("v_lshlrev_b32", vt0, 4, vg)
    p.v("v_add_u32", vt0, LDS_TAB, vt0)
    for j in range(2):
        for h in range(2):
            o = 16 * j + 8 * h
            p.ds_read("ds_read_b128", tb[o:o + 4], vt0, off=(32 * j + 16 * h) * 4)
            p.ds_read("ds_read_b128", tb[o + 4:o + 8], vt0, off=256 + (32 * j + 16 * h) * 4)
    vo = V(9)
    p.v("v_lshlrev_b32", vo, 4, vl)
    p.s("s_lshl_b32", st0, srg, 16)
    p.s("s_lshl_b32", st1, scg, 13)
    p.s("s_add_u32", st0, st0, st1)
    p.s("s_lshl_b32", st1, sw, 10)
    p.s("s_add_u32", st0, st0, st1)
    p.s("s_add_u32", st0, st0, WS_H)
    y = V(164, 8)
    for j in range(2):
        o4 = V(172 + 4 * j, 4)
        for h in range(2):
            src = vp[4 * j + 2 * h:4 * j + 2 * h + 2]
            o = 16 * j + 8 * h
            yy = y[4 * h:4 * h + 4]
            for i in range(2):
                p.v("v_lshlrev_b32", yy[2 * i], 16, src[i])
                p.v("v_and_b32", yy[2 * i + 1], 0xFFFF0000, src[i])
            for e in range(4):
                p.v("v_fma_f32", yy[e], yy[e], rs, nmr)
            for e in range(4):
                p.v("v_fma_f32", yy[e], yy[e], tb[o + 4 + e], tb[o + e])
            for i in range(2):
                p.v("v_cvt_pk_bf16_f32", o4[2 * h + i], yy[2 * i], yy[2 * i + 1])
        p.bstore(o4, vo, rWS, soff=st0, off=0)
        if j == 0:
            p.s("s_add_u32", st0, st0, 4096)
    T("stored")
    if diag:
        p.wait(vm=0)
    T("drained")
    T("rt1", True)
    T.flush(rWS, sw, 0, vt0, vt1)
    gen_a.stamp_names = T.names
    p.label(lab_end)
    return finalize(p, verbose=True, name="A"), 208


if __name__ == "__main__":
    txt, nv = gen_a()
    print(txt[:3000])
```

```python
from asmlib import *
from layout import *
from ka import srd

SLOT = 8192
WRING = 3 * SLOT
SH = 4 * WRING
B_LDS = SH + 65536
LIMIT = float(2 ** 40)

vtid, vl = V(0), V(1)
vdQ, vdK, vdV = V(2, 4), V(6, 4), V(10, 2)
vtr, vK, vB, vlin = V(12, 8), V(20, 4), V(24), V(25)
vt = V(26, 6)
vtmp = V(32, 32)
vQ = V(64, 64)
vACC = V(128, 128)
vS = [V(128, 32), V(160, 32)]
vP = V(192, 16)
vNM = V(208, 16)
aO, aL, aONE = A(0, 128), A(128, 16), A(144, 4)
aA, aK, aB = A(148, 16), A(164, 16), A(180, 48)
rWQ, rK, rV, rWO, rWS = S(4, 4), S(8, 4), S(12, 4), S(16, 4), S(20, 4)
sw, shg, srb, shead = S(24), S(25), S(26), S(27)
sMW, sMS = S(28), S(29)
sA, sK, sV = S(30, 2), S(32, 2), S(34, 2)
sLoop = S(36)
st = S(37, 6)
sPart = S(43)
sexec = S(44, 2)


def acc(t, qt):
    return vACC[16 * t + 4 * qt:16 * t + 4 * qt + 4]


def oacc(dt, qt):
    return aO[16 * dt + 4 * qt:16 * dt + 4 * qt + 4]


def sreg(buf, kt, qt):
    return vS[buf][16 * kt + 4 * qt:16 * kt + 4 * qt + 4]


def afrag(i):
    return aA[4 * (i % 4):4 * (i % 4) + 4]


def kfrag(i):
    return aK[4 * (i % 4):4 * (i % 4) + 4]


def bfrag(n, qt):
    o = 16 * (n % 3) + 4 * qt
    return aB[o:o + 4]


def dma_voffs(p, dst, stride, swz, n):
    p.v("v_lshrrev_b32", vt[0], 4, vl)
    p.v("v_and_b32", vt[1], 15, vl)
    p.s("s_mov_b32", st[0], stride)
    p.v("v_mul_lo_u32", vt[2], vt[0], st[0])
    for j in range(n):
        if swz == "tr":
            p.v("v_add_u32", vt[3], 4 * (j & 1), vt[0])
            p.v("v_lshlrev_b32", vt[3], 1, vt[3])
        else:
            p.v("v_add_u32", vt[3], 4 * (j & 3), vt[0])
        p.v("v_xor_b32", vt[3], vt[3], vt[1])
        p.v("v_lshlrev_b32", vt[3], 4, vt[3])
        p.v("v_add_u32", vt[3], vt[3], vt[2])
        k = 4 * j * stride - 1024 * j
        if k:
            p.v("v_add_u32", dst[j], k, vt[3])
        else:
            p.v("v_mov_b32", dst[j], vt[3])


def dma_elem(p, kind, n, j, split=False):
    q = Prog()
    if kind in ("wq", "wo"):
        pos = n % 3
        srd_, voff, so = (rWQ if kind == "wq" else rWO), vdQ[j & 3], sA[j >> 2]
        m0base, m0off = sMW, pos * SLOT + (j >> 2) * 4096
        tag, ovw = ("W", kind, n), ("Wpos", pos)
    elif kind == "k":
        pos = 1 + (n & 1)
        srd_, voff, so = rK, vdK[j & 3], sK[j >> 2]
        m0base, m0off = sMW, pos * SLOT + (j >> 2) * 4096
        tag, ovw = ("W", "k", n), ("Wpos", pos)
    else:
        pos = n & 1
        srd_, voff, so = rV, vdV[j & 1], sV[j >> 2]
        m0base, m0off = sMS, pos * SLOT + (j >> 2) * 4096
        tag, ovw = ("V", n), ("Vpos", pos)
    pre = []
    if (j & 3) == 0:
        q.s("s_add_u32", M0, m0base, m0off)
        if split:
            pre, q.ins = q.ins, []
    q.dma(voff, srd_, so, off=1024 * (j & 3), tag=tag, ovw=ovw)
    if j == 7:
        step = {"wq": 32 * 8192, "wo": 32 * 1024, "k": SLOT, "v": SLOT}[kind]
        pair = {"wq": sA, "wo": sA, "k": sK, "v": sV}[kind]
        q.s("s_add_u32", pair[0], pair[0], step)
        q.s("s_add_u32", pair[1], pair[1], step)
    return (pre, q.ins) if split else q.ins


def merge_dma(p, gaps, g, kind, n, j):
    pre, main = dma_elem(p, kind, n, j, split=True)
    merge(gaps, g - 1, pre)
    merge(gaps, g, main)


class Rd(I):
    pass


def rd_tr(kind, n, t, dst):
    q = Prog()
    if kind in ("wq", "wo"):
        base, tag, pos = (n % 3) * SLOT, ("W", kind, n), ("Wpos", n % 3)
    else:
        base, tag, pos = (n & 1) * SLOT, ("V", n), ("Vpos", n & 1)
    for h in range(2):
        i = q.ds_read("ds_read_b64_tr_b16", dst[2 * h:2 * h + 2], vtr[t], off=base + 4096 * h, dep=tag)
        i.meta["pos"] = pos
    return q.ins


def rd_k(n, f, dst):
    q = Prog()
    kt, s_ = f >> 2, f & 3
    pos = 1 + (n & 1)
    i = q.ds_read("ds_read_b128", dst, vK[s_], off=pos * SLOT + kt * 4096, dep=("W", "k", n))
    i.meta["pos"] = ("Wpos", pos)
    return q.ins


def rd_b(n, qt, base_step):
    q = Prog()
    q.ds_read("ds_read_b128", bfrag(n, qt), vB, off=(n - base_step) * 4096 + qt * 1024)
    return q.ins


def emit_groups(p, mf, gaps):
    for i, m in enumerate(mf):
        m()
        for x in gaps.get(i, []):
            p.add(x)


def merge(gaps, i, ins):
    gaps.setdefault(i, []).extend(ins)


def gemm_step(p, kind, n, nxt, base_step, first, last, extra=None):
    mf, gaps = [], {}
    for t in range(8):
        for qt in range(4):
            def m(t=t, qt=qt):
                p.mfma16(acc(t, qt), afrag(t), bfrag(n, qt), acc(t, qt) if not first else 0)
            mf.append(m)
    for t in range(8):
        g = 4 * t
        tn, nn = (t + 2) % 8, n + (t + 2) // 8
        if not (last and nn > n):
            r = rd_tr(kind, nn, tn, afrag(t + 2))
            merge(gaps, g, r[:1])
            merge(gaps, g + 1, r[1:])
        if nxt is not None:
            merge_dma(p, gaps, g + 2, nxt[0], nxt[1], t)
        if not last and t % 2 == 0:
            merge(gaps, g + 3, rd_b(n + 1, t // 2, base_step))
    if extra:
        for i, ins in extra.items():
            merge(gaps, i, ins)
    emit_groups(p, mf, gaps)


def gemm_stage(p, kind, nxt_of, extra_of=None, group="gq", zeroed=False):
    for qt in range(4):
        for x in rd_b(0, qt, 0):
            p.add(x)
    for t in range(2):
        for x in rd_tr(kind, 0, t, afrag(t)):
            p.add(x)
    for it in range(6):
        mark(p, group, it)
        steps = range(3 * it, min(3 * it + 3, 16))
        for n in steps:
            gemm_step(p, kind, n, nxt_of(n), 3 * it, n == 0 and not zeroed, n == 15, extra_of(n) if extra_of else None)
        p.v("v_add_u32", vB, 3 * 4096, vB)
        loop_dec(p)
        loop_branch(p)
    mark(p, group, None)
    p.v("v_subrev_u32", vB, 18 * 4096, vB)


def fix_ovw(ins):
    for x in ins:
        if x.kind == "ds_read" and "pos" in x.meta:
            x.meta["rdpos"] = x.meta["pos"]
    return ins


def exp_list(buf, start, stop):
    q = Prog()
    order = [(qt, kt, r) for qt in range(4) for kt in range(2) for r in range(4)]
    for qt, kt, r in order[start:stop]:
        x = sreg(buf, kt, qt)[r]
        q.v("v_exp_f32", x, x)
    return q.ins


def cvt_list(buf):
    q = Prog()
    for qt in range(4):
        for kt in range(2):
            s_ = sreg(buf, kt, qt)
            for i in range(2):
                q.v("v_cvt_pk_bf16_f32", vP[4 * qt + 2 * kt + i], s_[2 * i], s_[2 * i + 1])
    return q.ins


N1 = 20


def spread(gaps, slots, ins):
    n = len(ins)
    k = len(slots)
    for j, x in enumerate(ins):
        merge(gaps, slots[min(k - 1, j * k // n)], [x])


def phase_x(p, t, first=False, dma=None, vfirst=True):
    buf = (t + 1) & 1
    mf, gaps = [], {}
    for f in range(8):
        kt, s_ = f >> 2, f & 3
        for qt in range(4):
            def m(kt=kt, s_=s_, qt=qt, f=f):
                d = sreg(buf, kt, qt)
                c = d if s_ else (0 if first else vNM[4 * qt:4 * qt + 4])
                p.mfma16(d, kfrag(f), vQ[16 * qt + 4 * s_:16 * qt + 4 * s_ + 4], c)
            mf.append(m)
    for f in range(8):
        g = 4 * f
        if f + 2 < 8:
            merge(gaps, g, rd_k(t + 1, f + 2, kfrag(f + 2)))
        elif not first:
            r = rd_tr("v", t, f + 2 - 8, afrag(f + 2 - 8))
            merge(gaps, g, r[:1])
            merge(gaps, g + 1, r[1:])
        if dma is not None:
            merge_dma(p, gaps, g + 2, dma[0], dma[1], f)
    if not first:
        cur = t & 1
        ex = exp_list(cur, N1, 32)
        cv = cvt_list(cur)
        seq = cv[0:4] + ex[0:2] + cv[4:8] + ex[2:4] + cv[8:10] + ex[4:8] + cv[10:12] + ex[8:12] + cv[12:16]
        slots = [i for i in range(31) if i % 4 != 2]
        spread(gaps, slots, seq)
    emit_groups(p, mf, gaps)


def phase_y(p, t, last=False, dma=None):
    mf, gaps = [], {}
    first = t == 0
    for qt in range(4):
        def m(qt=qt):
            d = aL[4 * qt:4 * qt + 4]
            p.mfma16(d, aONE, vP[4 * qt:4 * qt + 4], d)
        mf.append(m)
    for dt in range(8):
        for qt in range(4):
            def m(dt=dt, qt=qt):
                d = oacc(dt, qt)
                p.mfma16(d, afrag(dt), vP[4 * qt:4 * qt + 4], d)
            mf.append(m)
    for dt in range(8):
        g = 4 + 4 * dt
        if dt + 2 < 8:
            r = rd_tr("v", t, dt + 2, afrag(dt + 2))
            merge(gaps, g, r[:1])
            merge(gaps, g + 1, r[1:])
        elif t + 2 <= 15:
            merge(gaps, g, rd_k(t + 2, dt + 2 - 8, kfrag(dt + 2 - 8)))
        if dma is not None:
            merge_dma(p, gaps, g + 2, dma[0], dma[1], dt)
    if not last:
        ex = exp_list((t + 1) & 1, 0, N1)
        slots = [1, 2, 3] + [i for i in range(4, 36) if i % 4 in (1, 3)] + [35]
        spread(gaps, slots, ex)
    emit_groups(p, mf, gaps)


def gen_b(stop=None, diag=False):
    p = Prog()
    T = Stamps(p, diag)
    p.s("s_cmp_ge_u32", S(2), 256)
    p.branch("s_cbranch_scc1", "B_end")
    T("rt0", True)
    T("start")
    ptr = {k: S(48 + 2 * i, 2) for i, k in enumerate(["k", "v", "wq", "wo", "ws"])}
    for k in ptr:
        p.s_load(ptr[k], S(0, 2), ARG[k])
    p.v("v_lshrrev_b32", vt[0], 6, vtid)
    p.v("v_and_b32", vl, 63, vtid)
    p.v("v_readfirstlane_b32", sw, vt[0])
    p.s("s_and_b32", shg, S(2), 7)
    p.s("s_lshr_b32", srb, S(2), 3)
    p.s("s_lshl_b32", shead, shg, 2)
    p.s("s_add_u32", shead, shead, sw)
    p.s("s_mul_i32", sMW, sw, WRING)
    p.s("s_lshl_b32", sMS, sw, 14)
    p.s("s_add_u32", sMS, sMS, SH)
    p.v("v_lshlrev_b32", vlin, 4, vl)
    p.wait(lgkm=0)
    srd(p, rWS, ptr["ws"], WS_DIAG_END if diag else WS_END)
    srd(p, rWQ, ptr["wq"], SZ["wq"])
    p.s("s_lshl_b32", st[1], srb, 16)
    p.s("s_lshl_b32", st[2], sw, 14)
    p.s("s_add_u32", st[1], st[1], st[2])
    p.s("s_add_u32", st[1], st[1], WS_H)
    dma_voffs(p, vdQ, 8192, "tr", 4)
    p.s("s_lshl_b32", sA[0], shead, 8)
    p.s("s_add_u32", sA[1], sA[0], 16 * 8192)
    for j in range(8):
        for x in dma_elem(p, "wq", 0, j):
            p.add(x)
    for i in range(4):
        p.s("s_add_u32", M0, sMS, 4096 * i)
        p.s("s_add_u32", st[2], st[1], 4096 * i)
        for j in range(4):
            p.dma(vlin, rWS, st[2], off=1024 * j, tag="H")
    for j in range(8):
        for x in dma_elem(p, "wq", 1, j):
            p.add(x)
    srd(p, rK, ptr["k"], 0)
    srd(p, rV, ptr["v"], 0)
    srd(p, rWO, ptr["wo"], SZ["wo"])
    p.s("s_add_u32", st[1], shead, 1)
    p.s("s_lshl_b32", st[1], st[1], 19)
    p.s("s_mov_b32", rK[2], st[1])
    p.s("s_mov_b32", rV[2], st[1])
    p.s("s_lshl_b32", sK[0], shead, 19)
    p.s("s_add_u32", sK[0], sK[0], 1536 * 256)
    p.s("s_add_u32", sK[1], sK[0], 4096)
    p.s("s_mov_b32", sV[0], sK[0])
    p.s("s_mov_b32", sV[1], sK[1])
    dma_voffs(p, vdK, 256, "k", 4)
    dma_voffs(p, vdV, 256, "tr", 2)
    p.v("v_lshrrev_b32", vt[0], 2, vl)
    p.v("v_and_b32", vt[1], 7, vt[0])
    p.v("v_lshlrev_b32", vt[1], 1, vt[1])
    p.v("v_and_b32", vt[2], 3, vl)
    p.v("v_lshrrev_b32", vt[3], 1, vt[2])
    p.v("v_xor_b32", vt[1], vt[1], vt[3])
    p.v("v_lshlrev_b32", vt[1], 4, vt[1])
    p.v("v_and_b32", vt[2], 1, vt[2])
    p.v("v_lshlrev_b32", vt[2], 3, vt[2])
    p.v("v_lshlrev_b32", vt[0], 8, vt[0])
    p.v("v_add3_u32", vt[0], vt[0], vt[1], vt[2])
    p.v("v_add_u32", vtr[0], sMW, vt[0])
    for t in range(1, 8):
        p.v("v_xor_b32", vtr[t], t << 5, vtr[0])
    p.v("v_and_b32", vt[0], 15, vl)
    p.v("v_lshrrev_b32", vt[1], 4, vl)
    p.v("v_xor_b32", vt[1], vt[1], vt[0])
    p.v("v_lshlrev_b32", vt[1], 4, vt[1])
    p.v("v_lshlrev_b32", vt[0], 8, vt[0])
    p.v("v_add3_u32", vK[0], vt[0], vt[1], sMW)
    for s_ in range(1, 4):
        p.v("v_xor_b32", vK[s_], s_ << 6, vK[0])
    p.v("v_add_u32", vB, SH, vlin)
    for i in range(4):
        p.v("v_mov_b32", vt[0], 0x3F803F80)
        p.v("v_accvgpr_write_b32", aONE[i], vt[0])
    p.s("s_mul_i32", sPart, shg, 32)
    p.s("s_add_u32", sPart, sPart, srb)
    p.s("s_mul_i32", sPart, sPart, PART_BLK)
    p.s("s_lshl_b32", st[1], sw, 14)
    p.s("s_add_u32", sPart, sPart, st[1])
    p.s("s_add_u32", sPart, sPart, WS_PART)
    for i in range(128):
        p.v("v_mov_b32", vACC[i], 0)
    for i in range(128):
        p.v("v_accvgpr_write_b32", aO[i], 0)
    for i in range(16):
        p.v("v_accvgpr_write_b32", aL[i], 0)
    T("issued")
    p.barrier(dep="H")
    T("h_ready")

    def nxt_q(n):
        if n + 2 < 16:
            return ("wq", n + 2)
        return ("k", n + 2 - 16)

    def extra_q(n):
        if n != 15:
            return None
        q = Prog()
        q.barrier(drain_lds=False)
        return {3: q.ins}

    gemm_stage(p, "wq", nxt_q, extra_q, "gq", zeroed=True)

    T("q_done")
    for j in range(8):
        for x in dma_elem(p, "v", 0, j):
            p.add(x)
    for s_ in range(4):
        for qt in range(4):
            d = vQ[16 * qt + 4 * s_:16 * qt + 4 * s_ + 4]
            a0, a1 = acc(2 * s_, qt), acc(2 * s_ + 1, qt)
            p.v("v_cvt_pk_bf16_f32", d[0], a0[0], a0[1])
            p.v("v_cvt_pk_bf16_f32", d[1], a0[2], a0[3])
            p.v("v_cvt_pk_bf16_f32", d[2], a1[0], a1[1])
            p.v("v_cvt_pk_bf16_f32", d[3], a1[2], a1[3])
        for qt in range(4):
            d = vQ[16 * qt + 4 * s_:16 * qt + 4 * s_ + 4]
            p.v("v_permlane32_swap_b32", d[0], d[2])
            p.v("v_permlane32_swap_b32", d[1], d[3])
        for qt in range(4):
            d = vQ[16 * qt + 4 * s_:16 * qt + 4 * s_ + 4]
            p.v("v_permlane16_swap_b32", d[0], d[2])
            p.v("v_permlane16_swap_b32", d[1], d[3])
    p.s("s_sub_u32", st[1], sMS, sMW)
    for t in range(8):
        p.v("v_add_u32", vtr[t], st[1], vtr[t])
    dma_voffs(p, vdQ, 1024, "tr", 4)
    p.s("s_lshl_b32", sA[0], shg, 19)
    p.s("s_lshl_b32", st[1], sw, 8)
    p.s("s_add_u32", sA[0], sA[0], st[1])
    p.s("s_add_u32", sA[1], sA[0], 16 * 1024)

    T("q_epi")
    p.label("B_attn")
    for f in range(2):
        for x in rd_k(0, f, kfrag(f)):
            p.add(x)
    phase_x(p, -1, first=True)
    for j in range(8):
        for x in dma_elem(p, "k", 2, j):
            p.add(x)
    for qt in range(4):
        a, b = sreg(0, 0, qt), sreg(0, 1, qt)
        m = vt[0]
        p.v("v_max3_f32", m, a[0], a[1], a[2])
        p.v("v_max3_f32", m, m, a[3], b[0])
        p.v("v_max3_f32", m, m, b[1], b[2])
        p.v("v_max_f32", m, m, b[3])
        p.v("v_mov_b32", vt[1], m)
        p.v("v_permlane32_swap_b32", m, vt[1])
        p.v("v_max_f32", m, m, vt[1])
        p.v("v_mov_b32", vt[1], m)
        p.v("v_permlane16_swap_b32", m, vt[1])
        p.v("v_max_f32", m, m, vt[1])
        for r in range(4):
            p.v("v_sub_f32", vNM[4 * qt + r], 0, m)
    p.label("B_attn_shifted")
    for qt in range(4):
        for kt in range(2):
            for r in range(4):
                x = sreg(0, kt, qt)[r]
                p.v("v_add_f32", x, x, vNM[4 * qt])
    for x in exp_list(0, 0, N1):
        p.add(x)
    for f in range(2):
        for x in rd_k(1, f, kfrag(f)):
            p.add(x)
    T("att_pro")
    for it in range(7):
        mark(p, "ga", it)
        for t in (2 * it, 2 * it + 1):
            phase_x(p, t, dma=("v", t + 1))
            phase_y(p, t, dma=("k", t + 3))
        loop_dec(p)
        loop_branch(p)
    mark(p, "ga", None)
    T("att_loop")
    phase_x(p, 14, dma=("v", 15))
    phase_y(p, 14, dma=("wo", 0))
    for x in exp_list(1, N1, 32) + cvt_list(1):
        p.add(x)
    for t in range(2):
        for x in rd_tr("v", 15, t, afrag(t)):
            p.add(x)
    phase_y(p, 15, last=True, dma=("wo", 1))

    T("att_done")
    rinv = vtmp[0:4]
    for qt in range(4):
        p.v("v_accvgpr_read_b32", rinv[qt], aL[4 * qt])
    for qt in range(4):
        p.v("v_rcp_f32", rinv[qt], rinv[qt])
    p.v("v_add_u32", vt[0], sMS, vlin)
    for s_ in range(4):
        for qt in range(4):
            k = (4 * s_ + qt) & 1
            x = vtmp[4 + 8 * k:12 + 8 * k]
            o4 = vtmp[20 + 4 * k:24 + 4 * k]
            for h in range(2):
                src = oacc(2 * s_ + h, qt)
                for r in range(4):
                    p.v("v_accvgpr_read_b32", x[4 * h + r], src[r])
            for e in range(8):
                p.v("v_mul_f32", x[e], x[e], rinv[qt])
            for i in range(4):
                p.v("v_cvt_pk_bf16_f32", o4[i], x[2 * i], x[2 * i + 1])
            p.ds_write("ds_write_b128", vt[0], o4, off=s_ * 4096 + qt * 1024, ovw=[("V", 14), ("V", 15)])
    p.s("s_sub_u32", st[1], sMW, sMS)
    for t in range(8):
        p.v("v_add_u32", vtr[t], st[1], vtr[t])
    p.barrier()
    T("o_xchg")

    gemm_stage(p, "wo", lambda n: ("wo", n + 2) if n + 2 < 16 else None, None, "go")

    T("o_done")
    for j in range(4):
        for qt in range(4):
            k = (4 * j + qt) & 3
            o4 = vtmp[4 * k:4 * k + 4]
            a0, a1 = acc(2 * j, qt), acc(2 * j + 1, qt)
            p.v("v_cvt_pk_bf16_f32", o4[0], a0[0], a0[1])
            p.v("v_cvt_pk_bf16_f32", o4[1], a0[2], a0[3])
            p.v("v_cvt_pk_bf16_f32", o4[2], a1[0], a1[1])
            p.v("v_cvt_pk_bf16_f32", o4[3], a1[2], a1[3])
            p.bstore(o4, vlin, rWS, soff=sPart, off=qt * 1024)
        if j < 3:
            p.s("s_add_u32", sPart, sPart, 4096)
    T("stored")
    if diag:
        p.wait(vm=0)
    T("drained")
    T("rt1", True)
    T.flush(rWS, sw, 1, vt[0], vt[1])
    gen_b.stamp_names = T.names
    p.label("B_end")
    resolve_ovw(p.ins)
    return finalize(p, {"gq": sLoop, "ga": sLoop, "go": sLoop}, verbose=12, name="BC")


def resolve_ovw(ins):
    last = {}
    for x in ins:
        if x.kind == "ds_read" and "pos" in x.meta:
            last[x.meta["pos"]] = x.dep
        elif x.kind == "dma" and isinstance(x.ovw, tuple) and x.ovw[0] in ("Wpos", "Vpos"):
            x.ovw = last.get(x.ovw)


if __name__ == "__main__":
    txt = gen_b()
    open("kb.s", "w").write(txt)
    print(len(txt.splitlines()))
```

```python
from asmlib import *
from layout import *
from ka import srd

D_VGPR = 224
D_ACC = 224
D_LDS = 98304
ROWB = 2752


def gen_d(diag=False):
    p = Prog()
    T = Stamps(p, diag)
    p.s("s_cmp_ge_u32", S(2), 232)
    p.branch("s_cbranch_scc1", "D_end")
    T("rt0", True)
    T("start")
    sG, sU, sWS = S(4, 2), S(6, 2), S(8, 2)
    rG, rU, rWS = S(12, 4), S(16, 4), S(20, 4)
    sw, srb, scg, st0, st1 = S(24), S(25), S(26), S(27), S(28)
    sH, sWo, sAct, sLoop = S(29), S(30), S(31), S(32)
    p.s_load(sG, S(0, 2), ARG["wg"])
    p.s_load(sU, S(0, 2), ARG["wu"])
    p.s_load(sWS, S(0, 2), ARG["ws"])
    vl, vlin = V(1), V(2)
    vt = V(3, 5)
    vd = V(8, 3)
    vtr = V(12, 2)
    p.v("v_lshrrev_b32", vt[0], 6, V(0))
    p.v("v_and_b32", vl, 63, V(0))
    p.v("v_readfirstlane_b32", sw, vt[0])
    p.v("v_lshlrev_b32", vlin, 4, vl)
    p.s("s_and_b32", srb, S(2), 7)
    p.s("s_lshr_b32", scg, S(2), 3)
    smag = S(33)
    p.s("s_mov_b32", smag, 0xAAAB)
    p.s("s_mov_b32", st0, ROWB)
    for k in range(3):
        p.v("v_add_u32", vt[0], 64 * k, vl)
        p.v("v_mul_lo_u32", vt[1], vt[0], smag)
        p.v("v_lshrrev_b32", vt[1], 18, vt[1])
        p.v("v_mul_u32_u24", vt[2], 6, vt[1])
        p.v("v_sub_u32", vt[2], vt[0], vt[2])
        p.v("v_lshlrev_b32", vt[2], 4, vt[2])
        p.v("v_mul_lo_u32", vt[1], vt[1], st0)
        p.v("v_add_u32", vd[k], vt[1], vt[2])
        if k:
            p.v("v_subrev_u32", vd[k], 1024 * k, vd[k])
    p.wait(lgkm=0)
    srd(p, rG, sG, SZ["wg"])
    srd(p, rU, sU, SZ["wu"])
    srd(p, rWS, sWS, WS_DIAG_END if diag else WS_END)
    p.s("s_mul_i32", sWo, sw, 32 * ROWB)
    p.s("s_mul_i32", st0, scg, 96)
    p.s("s_add_u32", sWo, sWo, st0)
    sL = S(34)
    p.s("s_mul_i32", sL, sw, 3072)
    p.s("s_lshl_b32", sH, srb, 2)
    p.s("s_add_u32", sH, sH, sw)
    p.s("s_mul_i32", sAct, sH, ACT_RB)
    p.s("s_lshl_b32", sH, sH, 16)
    p.s("s_add_u32", sH, sH, WS_H2)
    p.s("s_mul_i32", st0, scg, 6144)
    p.s("s_add_u32", sAct, sAct, st0)
    p.s("s_add_u32", sAct, sAct, WS_ACT)
    NB = 6
    vB = V(128, 16 * NB)

    def bfr(ks, qt):
        o = 16 * (ks % NB) + 4 * qt
        return vB[o:o + 4]

    def load_b(ks):
        q = Prog()
        q.s("s_add_u32", st1, sH, ks * 4096)
        for qt in range(4):
            q.bload(bfr(ks, qt), vlin, rWS, soff=st1, off=1024 * qt)
        return q.ins

    def load_w(i):
        for m, r_ in enumerate((rG, rU)):
            p.s("s_add_u32", st0, sWo, i * 4 * 32 * ROWB)
            p.s("s_add_u32", M0, sL, m * 49152 + i * 4 * 3072)
            for k in range(3):
                p.dma(vd[k], r_, st0, off=1024 * k, tag=("w", i))

    load_w(0)
    for ks in range(2):
        for x in load_b(ks):
            p.add(x)
    load_w(1)
    for ks in range(2, 4):
        for x in load_b(ks):
            p.add(x)
    load_w(2)
    load_w(3)
    for ks in range(4, NB):
        for x in load_b(ks):
            p.add(x)
    p.v("v_lshrrev_b32", vt[0], 2, vl)
    p.v("v_mul_u32_u24", vt[0], 96, vt[0])
    p.v("v_and_b32", vt[1], 3, vl)
    p.v("v_lshlrev_b32", vt[1], 3, vt[1])
    p.v("v_add_u32", vtr[0], vt[0], vt[1])
    p.v("v_add_u32", vtr[1], 49152, vtr[0])
    acc = V(16, 96)
    vA = V(112, 16)

    def accr(m, t, qt):
        o = 48 * m + 16 * t + 4 * qt
        return acc[o:o + 4]

    def afr(i):
        return vA[4 * (i % 4):4 * (i % 4) + 4]

    def rd_a(ks, f):
        q = Prog()
        m, t = f // 3, f % 3
        for h in range(2):
            q.ds_read("ds_read_b64_tr_b16", afr(6 * ks + f)[2 * h:2 * h + 2], vtr[m], off=ks * 3072 + 1536 * h + 32 * t)
        return q.ins

    T("issued")
    for ks in range(16):
        if ks % 4 == 0:
            p.barrier(dep=("w", ks // 4), drain_lds=False)
            if ks == 0:
                T("w0")
            for f in range(2):
                for x in rd_a(ks, f):
                    p.add(x)
        for f in range(6):
            m, t = f // 3, f % 3
            nf, nks = (f + 2) % 6, ks + (f + 2) // 6
            pre = rd_a(nks, nf) if (nks == ks or (nks < 16 and nks % 4 != 0)) else []
            for qt in range(4):
                d = accr(m, t, qt)
                p.mfma16(d, afr(6 * ks + f), bfr(ks, qt), d if ks else 0)
                if qt < 2 and pre:
                    p.add(pre[qt])
            if f == 5 and ks + NB < 16:
                for x in load_b(ks + NB):
                    p.add(x)
    T("mma")
    o = V(128, 32)
    for qt in range(4):
        for t in range(3):
            g_, u_ = accr(0, t, qt), accr(1, t, qt)
            for r in range(4):
                p.v("v_mul_f32", g_[r], g_[r], u_[r])
        full = o[8 * qt:8 * qt + 4]
        half = o[8 * qt + 4:8 * qt + 6]
        for t in range(3):
            g_ = accr(0, t, qt)
            dst = full[2 * t:2 * t + 2] if t < 2 else half
            p.v("v_cvt_pk_bf16_f32", dst[0], g_[0], g_[1])
            p.v("v_cvt_pk_bf16_f32", dst[1], g_[2], g_[3])
        p.bstore(full, vlin, rWS, soff=sAct, off=1024 * qt)
    vh = vt[0]
    p.v("v_lshlrev_b32", vh, 3, vl)
    p.s("s_add_u32", st0, sAct, 4096)
    p.s("s_cmp_eq_u32", scg, 28)
    p.branch("s_cbranch_scc1", "D_skip_half")
    for qt in range(4):
        p.bstore(o[8 * qt + 4:8 * qt + 6], vh, rWS, soff=st0, off=512 * qt)
    p.label("D_skip_half")
    T("stored")
    if diag:
        p.wait(vm=0)
    T("drained")
    T("rt1", True)
    T.flush(rWS, sw, 3, vt[0], vt[1])
    gen_d.stamp_names = T.names
    p.label("D_end")
    return finalize(p, {}, verbose=True, name="D")
```

```python
from asmlib import *
from layout import *
from ka import srd, bf16_round_hi

E_VGPR = 200
E_ACC = 200
NSLOT = 6
RING = NSLOT * 4096
E_LDS = 4 * RING


def gen_e(diag=False):
    p = Prog()
    T = Stamps(p, diag)
    p.s("s_cmp_ge_u32", S(2), 256)
    p.branch("s_cbranch_scc1", "E_end")
    T("rt0", True)
    T("start")
    sD, sWS, sO = S(4, 2), S(6, 2), S(8, 2)
    rD, rWS, rO = S(12, 4), S(16, 4), S(20, 4)
    sw, srb, scb, st0, st1 = S(24), S(25), S(26), S(27), S(28)
    sRing, sAct, sWd, sLoop, sN = S(29), S(30), S(31), S(32), S(33)
    p.s_load(sD, S(0, 2), ARG["wd"])
    p.s_load(sWS, S(0, 2), ARG["ws"])
    p.s_load(sO, S(0, 2), ARG["out"])
    vl, vlin, vlin8 = V(1), V(2), V(3)
    vt = V(4, 4)
    vd = V(8, 2)
    vtr = V(10, 4)
    p.v("v_lshrrev_b32", vt[0], 6, V(0))
    p.v("v_and_b32", vl, 63, V(0))
    p.v("v_readfirstlane_b32", sw, vt[0])
    p.v("v_lshlrev_b32", vlin, 4, vl)
    p.v("v_lshlrev_b32", vlin8, 3, vl)
    p.s("s_and_b32", st0, S(2), 7)
    p.s("s_lshl_b32", st0, st0, 2)
    p.s("s_lshr_b32", st1, S(2), 6)
    p.s("s_add_u32", srb, st0, st1)
    p.s("s_lshr_b32", scb, S(2), 3)
    p.s("s_and_b32", scb, scb, 7)
    p.s("s_mul_i32", sRing, sw, RING)
    p.v("v_lshrrev_b32", vt[0], 3, vl)
    p.v("v_lshlrev_b32", vt[1], 10, vt[0])
    p.v("v_lshrrev_b32", vt[0], 1, vt[0])
    p.v("v_and_b32", vt[0], 3, vt[0])
    p.v("v_lshlrev_b32", vt[0], 1, vt[0])
    p.v("v_and_b32", vt[2], 7, vl)
    p.v("v_xor_b32", vt[0], vt[0], vt[2])
    p.v("v_lshlrev_b32", vt[0], 4, vt[0])
    p.v("v_add_u32", vd[0], vt[0], vt[1])
    p.v("v_add_u32", vd[1], 8 * 1024 - 1024, vd[0])
    p.v("v_lshrrev_b32", vt[0], 2, vl)
    p.v("v_lshlrev_b32", vt[1], 7, vt[0])
    p.v("v_lshrrev_b32", vt[0], 1, vt[0])
    p.v("v_and_b32", vt[0], 3, vt[0])
    p.v("v_lshlrev_b32", vt[0], 1, vt[0])
    p.v("v_and_b32", vt[2], 3, vl)
    p.v("v_lshrrev_b32", vt[3], 1, vt[2])
    p.v("v_xor_b32", vt[0], vt[0], vt[3])
    p.v("v_lshlrev_b32", vt[0], 4, vt[0])
    p.v("v_and_b32", vt[2], 1, vt[2])
    p.v("v_lshlrev_b32", vt[2], 3, vt[2])
    p.v("v_add3_u32", vtr[0], vt[0], vt[1], vt[2])
    p.v("v_add_u32", vtr[0], sRing, vtr[0])
    for t in range(1, 4):
        p.v("v_xor_b32", vtr[t], t << 5, vtr[0])
    p.wait(lgkm=0)
    srd(p, rD, sD, SZ["wd"])
    srd(p, rWS, sWS, WS_DIAG_END if diag else WS_END)
    srd(p, rO, sO, SZ["out"])
    p.s("s_mul_i32", sAct, srb, ACT_RB)
    p.s("s_mul_i32", st0, sw, 2 * 6144)
    p.s("s_add_u32", sAct, sAct, st0)
    p.s("s_add_u32", sAct, sAct, WS_ACT)
    p.s("s_mul_i32", sWd, sw, 96 * 1024)
    p.s("s_lshl_b32", st0, scb, 7)
    p.s("s_add_u32", sWd, sWd, st0)

    acc = V(16, 64)
    vA = V(80, 16)
    NB = NSLOT
    vB = V(96, 16 * NB)

    def accr(t, qt):
        return acc[16 * t + 4 * qt:16 * t + 4 * qt + 4]

    def afr(i):
        return vA[4 * (i % 4):4 * (i % 4) + 4]

    def bfr(n, qt):
        o = 16 * (n % NB) + 4 * qt
        return vB[o:o + 4]

    sa_, sd_ = S(34), S(35)

    def issue(n, kind, pair_off):
        q = Prog()
        aoff = pair_off * 8 * 6144
        doff = pair_off * 4 * 96 * 1024
        slot = (n % NSLOT) * 4096
        tag = ("e", n)
        if kind < 2:
            q.s("s_add_u32", sa_, sAct, aoff + kind * 6144)
            for qt in range(4):
                q.bload(bfr(n, qt), vlin, rWS, soff=sa_, off=1024 * qt)
            rows = [doff + (48 * kind) * 1024, doff + (48 * kind + 16) * 1024]
        else:
            for hf in range(2):
                q.s("s_add_u32", sa_, sAct, aoff + hf * 6144 + 4096)
                for qt in range(4):
                    q.bload(bfr(n, qt)[2 * hf:2 * hf + 2], vlin8, rWS, soff=sa_, off=512 * qt)
            rows = [doff + 32 * 1024, doff + (48 + 32) * 1024]
        for hf in range(2):
            q.s("s_add_u32", sd_, sWd, rows[hf])
            q.s("s_add_u32", M0, sRing, slot + 2048 * hf)
            for j in range(2):
                q.dma(vd[j], rD, sd_, off=1024 * j, tag=tag, ovw=("e", n - NSLOT))
        return q.ins

    def rd_a(n, t):
        q = Prog()
        for h in range(2):
            q.ds_read("ds_read_b64_tr_b16", afr(4 * n + t)[2 * h:2 * h + 2], vtr[t], off=(n % NSLOT) * 4096 + 2048 * h, dep=("e", n))
        return q.ins

    def step(n, first, nxt, have_next):
        for t in range(4):
            tn, nn = (t + 2) % 4, n + (t + 2) // 4
            pre = rd_a(nn, tn) if (nn == n or have_next) else []
            for qt in range(4):
                d = accr(t, qt)
                p.mfma16(d, afr(4 * n + t), bfr(n, qt), d if not first else 0)
                if qt < 2 and pre:
                    p.add(pre[qt])
        for x in nxt:
            p.add(x)

    for n in range(NSLOT):
        for x in issue(n, n % 3, n // 3):
            p.add(x)
    T("issued")
    for t in range(2):
        for x in rd_a(0, t):
            p.add(x)
    for n in range(9):
        nxt = []
        if n + NSLOT < 9:
            nxt = issue(n + NSLOT, (n + NSLOT) % 3, (n + NSLOT) // 3)
        step(n, n == 0, nxt, n < 8)
    T("main")
    p.s("s_cmp_lt_u32", sw, 2)
    p.branch("s_cbranch_scc1", "E_four")
    p.s("s_cmp_eq_u32", sw, 3)
    p.branch("s_cbranch_scc1", "E_red")
    q = Prog()
    n = 9
    p.s("s_sub_u32", sAct, sAct, 2 * 2 * 6144 - 28 * 6144)
    p.s("s_sub_u32", sWd, sWd, 2 * 96 * 1024 - 1344 * 1024)
    for x in issue(n, 0, 0):
        p.add(x)
    for t in range(2):
        for x in rd_a(n, t):
            p.add(x)
    step(n, False, [], False)
    p.branch("s_branch", "E_red")
    p.label("E_four")
    for n in range(9, 12):
        for x in issue(n, n % 3, 3):
            p.add(x)
    for t in range(2):
        for x in rd_a(9, t):
            p.add(x)
    for n in range(9, 12):
        step(n, False, [], n < 11)
    p.label("E_red")
    T("tail")
    p.wait(vm=0, lgkm=0)
    p.barrier()
    p.s("s_lshl_b32", st0, sw, 12)
    p.v("v_add_u32", vt[0], st0, vlin)
    for qt in range(4):
        for t in range(4):
            p.ds_write("ds_write_b128", vt[0], accr(t, qt), off=qt * 16384 + t * 1024)
    x1 = V(80, 8)
    gb = V(88, 16)
    p.s("s_lshl_b32", st0, srb, 16)
    p.s("s_lshl_b32", st1, scb, 13)
    p.s("s_add_u32", st0, st0, st1)
    p.s("s_lshl_b32", st1, sw, 10)
    p.s("s_add_u32", st0, st0, st1)
    p.s("s_add_u32", st0, st0, WS_X1)
    p.bload(x1[0:4], vlin, rWS, soff=st0)
    p.s("s_add_u32", st0, st0, 4096)
    p.bload(x1[4:8], vlin, rWS, soff=st0)
    p.v("v_lshrrev_b32", vt[1], 4, vl)
    p.v("v_lshlrev_b32", vt[1], 4, vt[1])
    p.s("s_lshl_b32", st0, scb, 8)
    p.s("s_add_u32", st0, st0, WS_MOD + 5 * 2048)
    for t in range(4):
        p.bload(gb[4 * t:4 * t + 4], vt[1], rWS, soff=st0, off=64 * t)
    p.barrier()
    red = V(104, 64)
    p.s("s_lshl_b32", st0, sw, 14)
    p.v("v_add_u32", vt[0], st0, vlin)
    for w in range(4):
        for t in range(4):
            p.ds_read("ds_read_b128", red[16 * w + 4 * t:16 * w + 4 * t + 4], vt[0], off=w * 4096 + t * 1024)
    for k in range(16):
        p.v("v_add_f32", red[k], red[k], red[16 + k])
        p.v("v_add_f32", red[32 + k], red[32 + k], red[48 + k])
    for k in range(16):
        p.v("v_add_f32", red[k], red[k], red[32 + k])
    xf = V(168, 16)
    for j in range(2):
        for h in range(2):
            for i in range(2):
                src = x1[4 * j + 2 * h + i]
                k = 8 * j + 4 * h + 2 * i
                p.v("v_lshlrev_b32", xf[k], 16, src)
                p.v("v_and_b32", xf[k + 1], 0xFFFF0000, src)
    for k in range(16):
        p.v("v_fmac_f32", xf[k], red[k], gb[k])
    op = V(184, 8)
    for k in range(8):
        p.v("v_cvt_pk_bf16_f32", op[k], xf[2 * k], xf[2 * k + 1])
    p.v("v_and_b32", vt[0], 15, vl)
    p.v("v_lshlrev_b32", vt[0], 10, vt[0])
    p.v("v_lshrrev_b32", vt[1], 4, vl)
    p.v("v_lshlrev_b32", vt[1], 3, vt[1])
    p.v("v_add_u32", vt[0], vt[0], vt[1])
    p.s("s_lshl_b32", st0, srb, 6)
    p.s("s_lshl_b32", st1, sw, 4)
    p.s("s_add_u32", st0, st0, st1)
    p.s("s_lshl_b32", st0, st0, 10)
    p.s("s_lshl_b32", st1, scb, 7)
    p.s("s_add_u32", st0, st0, st1)
    for t in range(4):
        p.bstore(op[2 * t:2 * t + 2], vt[0], rO, soff=st0, off=32 * t)
    T("stored")
    if diag:
        p.wait(vm=0)
    T("drained")
    T("rt1", True)
    T.flush(rWS, sw, 4, vt[0], vt[1])
    gen_e.stamp_names = T.names
    p.label("E_end")
    return finalize(p, {}, verbose=True, name="E")
```

```python
from asmlib import *
from layout import *
from ka import srd, bf16_round_hi

R_VGPR = 168
R_LDS = 512


def gen_r(diag=False):
    p = Prog()
    T = Stamps(p, diag)
    p.s("s_cmp_ge_u32", S(2), 256)
    p.branch("s_cbranch_scc1", "R_end")
    T("rt0", True)
    T("start")
    sX, sWS = S(4, 2), S(6, 2)
    rX, rWS = S(8, 4), S(12, 4)
    sw, srb, sqt, shalf, st0, st1, sb0 = S(16), S(17), S(18), S(19), S(20), S(21), S(22)
    p.s_load(sX, S(0, 2), ARG["x"])
    p.s_load(sWS, S(0, 2), ARG["ws"])
    vl, vg, vq, vf = V(1), V(2), V(3), V(4)
    vt0, vt1, vt2 = V(5), V(6), V(7)
    p.v("v_lshrrev_b32", vt0, 6, V(0))
    p.v("v_and_b32", vl, 63, V(0))
    p.v("v_readfirstlane_b32", sw, vt0)
    p.v("v_and_b32", vq, 7, vl)
    p.v("v_lshrrev_b32", vg, 3, vl)
    p.v("v_and_b32", vg, 3, vg)
    p.v("v_lshrrev_b32", vf, 5, vl)
    p.s("s_lshr_b32", srb, S(2), 3)
    p.s("s_lshr_b32", sqt, S(2), 1)
    p.s("s_and_b32", sqt, sqt, 3)
    p.s("s_and_b32", shalf, S(2), 1)
    p.wait(lgkm=0)
    srd(p, rX, sX, SZ["x"])
    srd(p, rWS, sWS, WS_DIAG_END if diag else WS_END)
    vfr = V(8)
    p.v("v_lshlrev_b32", vt0, 4, vg)
    p.v("v_add_u32", vt0, vt0, vq)
    p.s("s_lshl_b32", st0, shalf, 3)
    p.v("v_add_u32", vt0, st0, vt0)
    p.v("v_lshlrev_b32", vt0, 4, vt0)
    p.v("v_lshlrev_b32", vt1, 12, vf)
    p.v("v_add_u32", vfr, vt0, vt1)
    vp = V(16, 64)
    p.s("s_mul_i32", sb0, srb, PART_BLK)
    p.s("s_lshl_b32", st0, sw, 14)
    p.s("s_add_u32", sb0, sb0, st0)
    p.s("s_lshl_b32", st0, sqt, 10)
    p.s("s_add_u32", sb0, sb0, st0)
    p.s("s_add_u32", sb0, sb0, WS_PART)
    for hg in range(8):
        for i in range(2):
            p.s("s_add_u32", st0, sb0, hg * 32 * PART_BLK + i * 8192)
            p.bload(vp[8 * hg + 4 * i:8 * hg + 4 * i + 4], vfr, rWS, soff=st0)
    vx = V(80, 8)
    vxo = V(9)
    p.s("s_lshl_b32", st0, srb, 6)
    p.s("s_lshl_b32", st1, sqt, 4)
    p.s("s_add_u32", st0, st0, st1)
    p.s("s_lshl_b32", st1, shalf, 3)
    p.s("s_add_u32", st0, st0, st1)
    p.v("v_add_u32", vt0, st0, vq)
    p.v("v_lshlrev_b32", vt0, 10, vt0)
    p.v("v_lshlrev_b32", vt1, 6, vf)
    p.v("v_lshlrev_b32", vt2, 3, vg)
    p.v("v_add3_u32", vxo, vt0, vt1, vt2)
    p.s("s_lshl_b32", st0, sw, 8)
    for i in range(2):
        for h in range(2):
            p.bload(vx[4 * i + 2 * h:4 * i + 2 * h + 2], vxo, rX, soff=st0, off=128 * i + 32 * h)
    vm = V(88, 48)
    vmo = V(10)
    p.v("v_lshlrev_b32", vt1, 7, vf)
    p.v("v_lshlrev_b32", vt2, 4, vg)
    p.v("v_add_u32", vmo, vt1, vt2)
    p.s("s_lshl_b32", st0, sw, 9)
    for k, vec in enumerate((2, 3, 4)):
        p.s("s_add_u32", st1, st0, WS_MOD + vec * 2048)
        for i in range(2):
            for h in range(2):
                o = 16 * k + 8 * i + 4 * h
                p.bload(vm[o:o + 4], vmo, rWS, soff=st1, off=256 * i + 64 * h)
    T("issued")
    a = V(136, 16)
    slo, shi = S(24), S(25)
    p.s("s_mov_b32", slo, 0x00003F80)
    p.s("s_mov_b32", shi, 0x3F800000)
    for hg in range(8):
        for i in range(2):
            for r in range(4):
                src = vp[8 * hg + 4 * i + r]
                for hi, sel in ((0, slo), (1, shi)):
                    d = a[8 * i + 2 * r + hi]
                    p.v("v_dot2_f32_bf16", d, src, sel, d if hg else 0)
    T("sum")
    xf = V(152, 16)
    for i in range(2):
        for h in range(2):
            for j in range(2):
                src = vx[4 * i + 2 * h + j]
                p.v("v_lshlrev_b32", xf[8 * i + 4 * h + 2 * j], 16, src)
                p.v("v_and_b32", xf[8 * i + 4 * h + 2 * j + 1], 0xFFFF0000, src)
    for i in range(2):
        for e in range(8):
            k = 8 * i + e
            bf16_round_hi(p, a[k], a[k])
    for i in range(2):
        for e in range(8):
            k = 8 * i + e
            p.v("v_mul_f32", a[k], a[k], vm[8 * i + e])
        for e in range(8):
            k = 8 * i + e
            bf16_round_hi(p, a[k], a[k])
        for e in range(8):
            k = 8 * i + e
            p.v("v_add_f32", xf[k], xf[k], a[k])
    x1p = V(16, 8)
    for i in range(2):
        for j in range(4):
            p.v("v_cvt_pk_bf16_f32", x1p[4 * i + j], xf[8 * i + 2 * j], xf[8 * i + 2 * j + 1])
    so = S(26)
    p.s("s_lshl_b32", so, srb, 16)
    p.s("s_lshl_b32", st0, sw, 14)
    p.s("s_add_u32", so, so, st0)
    p.s("s_lshl_b32", st0, sqt, 10)
    p.s("s_add_u32", so, so, st0)
    for i in range(2):
        p.s("s_add_u32", st0, so, WS_X1 + i * 8192)
        p.bstore(x1p[4 * i:4 * i + 4], vfr, rWS, soff=st0)
    for i in range(2):
        for j in range(4):
            p.v("v_lshlrev_b32", xf[8 * i + 2 * j], 16, x1p[4 * i + j])
            p.v("v_and_b32", xf[8 * i + 2 * j + 1], 0xFFFF0000, x1p[4 * i + j])
    s1, s2 = V(24), V(25)
    p.v("v_add_f32", s1, xf[0], xf[1])
    p.v("v_mul_f32", s2, xf[0], xf[0])
    p.v("v_fmac_f32", s2, xf[1], xf[1])
    for k in range(2, 16):
        p.v("v_add_f32", s1, s1, xf[k])
        p.v("v_fmac_f32", s2, xf[k], xf[k])
    for s_ in (s1, s2):
        p.v("v_add_f32_dpp", s_, s_, s_, mods="row_ror:8 row_mask:0xf bank_mask:0xf")
    for op in ("v_permlane16_swap_b32", "v_permlane32_swap_b32"):
        for s_, t_ in ((s1, vt0), (s2, vt1)):
            p.v("v_mov_b32", t_, s_)
            p.v(op, s_, t_)
            p.v("v_add_f32", s_, s_, t_)
    p.v("v_lshlrev_b32", vt0, 3, vq)
    p.s("s_lshl_b32", st0, sw, 6)
    p.v("v_add_u32", vt1, st0, vt0)
    s12 = V(26, 2)
    p.v("v_mov_b32", s12[0], s1)
    p.v("v_mov_b32", s12[1], s2)
    p.ds_write("ds_write_b64", vt1, s12)
    p.barrier()
    rr = V(28, 8)
    for w in range(4):
        p.ds_read("ds_read_b64", rr[2 * w:2 * w + 2], vt0, off=64 * w)
    p.v("v_add_f32", s1, rr[0], rr[2])
    p.v("v_add_f32", s2, rr[1], rr[3])
    p.v("v_add_f32", rr[4], rr[4], rr[6])
    p.v("v_add_f32", rr[5], rr[5], rr[7])
    p.v("v_add_f32", s1, s1, rr[4])
    p.v("v_add_f32", s2, s2, rr[5])
    mu, rs, nmr = V(36), V(37), V(38)
    p.v("v_mul_f32", mu, 1.0 / 512, s1)
    p.v("v_mul_f32", s2, 1.0 / 512, s2)
    p.v("v_fma_f32", s2, Neg(mu), mu, s2)
    p.v("v_max_f32", s2, 0, s2)
    p.v("v_add_f32", s2, 1e-5, s2)
    p.v("v_rsq_f32", rs, s2)
    p.v("v_mul_f32_e64", nmr, Neg(mu), rs)
    T("stats")
    for k in range(16):
        c = vm[32 + k]
        p.v("v_add_f32", c, 1.0, c)
        bf16_round_hi(p, c, c)
    for k in range(16):
        p.v("v_fma_f32", xf[k], xf[k], rs, nmr)
    for k in range(16):
        p.v("v_fma_f32", xf[k], xf[k], vm[32 + k], vm[16 + k])
    h2p = V(40, 8)
    for i in range(2):
        for j in range(4):
            p.v("v_cvt_pk_bf16_f32", h2p[4 * i + j], xf[8 * i + 2 * j], xf[8 * i + 2 * j + 1])
        p.s("s_add_u32", st0, so, WS_H2 + i * 8192)
        p.bstore(h2p[4 * i:4 * i + 4], vfr, rWS, soff=st0)
    T("stored")
    if diag:
        p.wait(vm=0)
    T("drained")
    T("rt1", True)
    T.flush(rWS, sw, 2, vt0, vt1)
    gen_r.stamp_names = T.names
    p.label("R_end")
    return finalize(p, verbose=True, name="R")
```

```python
NAME = "adaLN_cond__sliding_block_cached__glu_gated_bilinear__prompt"
ARG = dict(x=0, k=8, v=16, wq=24, wo=32, bx=40, wg=48, wu=56, wd=64, c=72, wmod=80, out=88, dbg=96, ws=104)
SZ = dict(x=2097152, k=16777216, v=16777216, wq=4194304, wo=4194304, wg=1409024, wu=1409024, wd=1409024,
          c=1024, wmod=3145728, out=2097152)
WS_MOD = 0
WS_CNT = 0x8000
WS_H = 0x10000
WS_X1 = WS_H + 0x200000 + 0x1000
WS_H2 = WS_X1 + 0x200000 + 0x1000
WS_ACT = WS_H2 + 0x200000 + 0x1000
ACT_RB = 29 * 6144
WS_PART = WS_ACT + 32 * ACT_RB + 0x1000
WS_PART = (WS_PART + 0xFFF) & ~0xFFF
PART_BLK = 65536 + 4096
WS_END = WS_PART + 256 * PART_BLK
QSCALE = 1.4426950408889634 / (128 ** 0.5)
WS_STAMP = (WS_END + 0xFFFF) & ~0xFFFF
WS_DIAG_END = WS_STAMP + 0x100000
```

```python
import sys
sys.path.insert(0, "dev")
from asmlib import kernel_text
from layout import *

HEAD = open("cdna_kernels/" + NAME + ".s.ref").read().split("; Override launch geometry")[0]


def assemble(parts):
    s = HEAD
    for label, body, vgpr, accum, grid, block, lds in parts:
        s += f"; @launch kernel={label} grid=({grid},1,1) block=({block},1,1) lds={lds}\n"
    s += '.amdgcn_target "amdgcn-amd-amdhsa--gfx950"\n'
    for label, body, vgpr, accum, grid, block, lds in parts:
        s += kernel_text(label, body, vgpr, accum)
    return s


def all_parts(which="ABRDE", **opt):
    parts = []
    if "A" in which:
        import ka
        body, nv = ka.gen_a(**opt)
        parts.append(("a_kernel", body, 256, 256, 256, 256, ka.A_LDS))
    if "B" in which:
        import kb
        body = kb.gen_b(**opt)
        parts.append(("b_kernel", body, 512, 256, 256, 256, kb.B_LDS))
    if "R" in which:
        import kr
        body = kr.gen_r(**opt)
        parts.append(("r_kernel", body, kr.R_VGPR, kr.R_VGPR, 256, 256, kr.R_LDS))
    if "D" in which:
        import kd
        body = kd.gen_d(**opt)
        parts.append(("d_kernel", body, kd.D_VGPR, kd.D_ACC, 232, 256, kd.D_LDS))
    if "E" in which:
        import ke
        body = ke.gen_e(**opt)
        parts.append(("e_kernel", body, ke.E_VGPR, ke.E_ACC, 256, 256, ke.E_LDS))
    return parts


if __name__ == "__main__":
    which = sys.argv[1] if len(sys.argv) > 1 else "ABRDE"
    out = sys.argv[2] if len(sys.argv) > 2 else "out.s"
    opt = {"diag": True} if len(sys.argv) > 3 and sys.argv[3] == "diag" else {}
    txt = assemble(all_parts(which, **opt))
    open(out, "w").write(txt)
    print("wrote", out, len(txt), "bytes")
```

```python
import re


class Reg:
    __slots__ = ("k", "i", "n")

    def __init__(self, k, i, n=1):
        self.k, self.i, self.n = k, i, n

    def __getitem__(self, x):
        if isinstance(x, slice):
            a = x.start or 0
            b = self.n if x.stop is None else x.stop
            assert 0 <= a < b <= self.n, (self, x)
            return Reg(self.k, self.i + a, b - a)
        assert 0 <= x < self.n, (str(self), x)
        return Reg(self.k, self.i + x, 1)

    def sub(self, a, n):
        return self[a:a + n]

    def __str__(self):
        if self.k == "m0":
            return "m0"
        if self.k == "vcc":
            return "vcc"
        if self.k == "exec":
            return "exec"
        if self.n == 1:
            return f"{self.k}{self.i}"
        return f"{self.k}[{self.i}:{self.i + self.n - 1}]"

    __repr__ = __str__

    def units(self):
        return [(self.k, self.i + j) for j in range(self.n)]


class Neg(Reg):
    __slots__ = ()

    def __init__(self, r):
        Reg.__init__(self, r.k, r.i, r.n)

    def __str__(self):
        return "-" + Reg.__str__(self)

    __repr__ = __str__


def V(i, n=1):
    return Reg("v", i, n)


def A(i, n=1):
    return Reg("a", i, n)


def S(i, n=1):
    return Reg("s", i, n)


M0 = Reg("m0", 0)
VCC = Reg("vcc", 0)
EXEC = Reg("exec", 0)


def units(*ops):
    r = []
    for o in ops:
        if isinstance(o, Reg):
            r += o.units()
        elif isinstance(o, (list, tuple)):
            r += units(*o)
    return r


class I:
    __slots__ = ("t", "kind", "w", "r", "tag", "dep", "ovw", "meta")

    def __init__(self, t, kind, w=(), r=(), tag=None, dep=None, ovw=None, meta=None):
        self.t, self.kind = t, kind
        self.w, self.r = set(w), set(r)
        self.tag, self.dep, self.ovw, self.meta = tag, dep, ovw, meta or {}

    def __repr__(self):
        return self.t


TRANS = ("v_exp_f32", "v_log_f32", "v_rcp_f32", "v_rsq_f32", "v_sqrt_f32", "v_sin_f32", "v_cos_f32")


def fmt(x):
    if isinstance(x, float):
        if x in (0.5, 1.0, 2.0, 4.0, -0.5, -1.0, -2.0, -4.0):
            return repr(x)
        if x == 0.0:
            return "0"
        import struct
        return hex(struct.unpack("<I", struct.pack("<f", x))[0])
    if isinstance(x, int):
        return str(x) if -16 <= x <= 64 else hex(x & 0xFFFFFFFF)
    return str(x)


class Prog:
    def __init__(self):
        self.ins = []
        self.uid = 0

    def add(self, i):
        self.ins.append(i)
        return i

    def raw(self, text, kind="salu", w=(), r=()):
        return self.add(I(text, kind, units(*w), units(*r)))

    def comment(self, c):
        return self.add(I("; " + c, "comment"))

    def label(self, name):
        return self.add(I(name + ":", "label"))

    def newlabel(self, base):
        self.uid += 1
        return f"{base}_{self.uid}"

    def s(self, op, dst, *src):
        w = [dst] if isinstance(dst, Reg) else []
        ops = [dst] + list(src)
        r = [x for x in src if isinstance(x, Reg)]
        if op.startswith("s_cmp") or op.startswith("s_bitcmp"):
            r = [x for x in ops if isinstance(x, Reg)]
            w = []
        if op in ("s_addk_i32", "s_mulk_i32"):
            r = r + [dst]
        return self.add(I(f"{op} " + ", ".join(fmt(x) for x in ops), "salu", units(*w), units(*r)))

    def s_load(self, dst, base, off):
        op = {1: "s_load_dword", 2: "s_load_dwordx2", 4: "s_load_dwordx4", 8: "s_load_dwordx8", 16: "s_load_dwordx16"}[dst.n]
        return self.add(I(f"{op} {dst}, {base}, {off}", "smem", units(dst), units(base)))

    def stamp(self, dst, real=False):
        op = "s_memrealtime" if real else "s_memtime"
        return self.add(I(f"{op} {dst}", "smem", units(dst), ()))

    def wait(self, vm=None, lgkm=None):
        p = []
        if vm is not None:
            p.append(f"vmcnt({vm})")
        if lgkm is not None:
            p.append(f"lgkmcnt({lgkm})")
        return self.add(I("s_waitcnt " + " ".join(p), "wait", meta={"vm": vm, "lgkm": lgkm}))

    def nop(self, n=0):
        return self.add(I(f"s_nop {n}", "nop", meta={"n": n}))

    def barrier(self, dep=None, drain_lds=True):
        return self.add(I("s_barrier", "barrier", dep=dep, meta={"drain_lds": drain_lds}))

    def branch(self, op, label):
        return self.add(I(f"{op} {label}", "branch"))

    def need(self, dep):
        return self.add(I("", "need", dep=dep))

    def v(self, op, dst, *src, mods="", extra_w=(), extra_r=()):
        base = op.replace("_e32", "").replace("_e64", "")
        kind = "trans" if base in TRANS else "valu"
        w = [dst] + list(extra_w)
        r = [x for x in src if isinstance(x, Reg)] + list(extra_r)
        if base in ("v_fmac_f32", "v_dot2c_f32_bf16"):
            r.append(dst)
        if base.startswith("v_cmp"):
            pass
        if base in ("v_cndmask_b32",) and len(src) == 2:
            src = list(src) + [VCC]
            r.append(VCC)
        if base in ("v_permlane32_swap_b32", "v_permlane16_swap_b32"):
            kind = "permlane"
            w = [dst, src[0]]
            r = [dst, src[0]]
        if base in ("v_readfirstlane_b32", "v_readlane_b32"):
            kind = "readlane"
        meta = {}
        if "dpp" in op or "row_" in mods or "quad_perm" in mods:
            meta["dpp"] = True
        t = f"{op} {dst}, " + ", ".join(fmt(x) for x in src)
        if mods:
            t += " " + mods
        return self.add(I(t, kind, units(*w), units(*r), meta=meta))

    def mfma16(self, d, a, b, c):
        return self._mfma("v_mfma_f32_16x16x32_bf16", d, a, b, c, 4)

    def mfma32(self, d, a, b, c):
        return self._mfma("v_mfma_f32_32x32x16_bf16", d, a, b, c, 8)

    def _mfma(self, op, d, a, b, c, passes):
        cu = units(c) if isinstance(c, Reg) else []
        if isinstance(c, Reg):
            assert c.k == d.k, "C and D must be in the same register file"
        return self.add(I(f"{op} {d}, {a}, {b}, {fmt(c)}", "mfma", units(d), units(a, b) + cu,
                          meta={"passes": passes, "d": units(d), "ab": units(a, b), "c": cu}))

    def ds_read(self, op, dst, addr, off=0, dep=None):
        assert 0 <= off < 65536, off
        t = f"{op} {dst}, {addr}" + (f" offset:{off}" if off else "")
        return self.add(I(t, "ds_read", units(dst), units(addr), dep=dep))

    def ds_write(self, op, addr, src, off=0, tag=None, ovw=None):
        assert 0 <= off < 65536, off
        t = f"{op} {addr}, {src}" + (f" offset:{off}" if off else "")
        return self.add(I(t, "ds_write", (), units(addr, src), tag=tag, ovw=ovw))

    def ds_raw(self, text, w=(), r=(), kind="ds_read"):
        return self.add(I(text, kind, units(*w), units(*r)))

    @staticmethod
    def _bt(voff, srd, soff, off, flags):
        assert 0 <= off < 4096, off
        t = f"{voff}, {srd}, {fmt(soff)} offen"
        if off:
            t += f" offset:{off}"
        if flags:
            t += " " + flags
        return t

    def bload(self, dst, voff, srd, soff=0, off=0, flags="", tag=None):
        op = {1: "buffer_load_dword", 2: "buffer_load_dwordx2", 3: "buffer_load_dwordx3", 4: "buffer_load_dwordx4"}[dst.n]
        return self.add(I(f"{op} {dst}, " + self._bt(voff, srd, soff, off, flags), "vload",
                          units(dst), units(voff, srd, soff), tag=tag))

    def bload_raw(self, op, dst, voff, srd, soff=0, off=0, flags=""):
        return self.add(I(f"{op} {dst}, " + self._bt(voff, srd, soff, off, flags), "vload",
                          units(dst), units(voff, srd, soff)))

    def dma(self, voff, srd, soff=0, off=0, tag=None, ovw=None, flags=""):
        t = "buffer_load_dwordx4 " + self._bt(voff, srd, soff, off, flags) + " lds"
        return self.add(I(t, "dma", (), units(voff, srd, soff, M0), tag=tag, ovw=ovw))

    def bstore(self, src, voff, srd, soff=0, off=0, flags="", tag=None):
        op = {1: "buffer_store_dword", 2: "buffer_store_dwordx2", 4: "buffer_store_dwordx4"}[src.n]
        return self.add(I(f"{op} {src}, " + self._bt(voff, srd, soff, off, flags), "vstore",
                          (), units(src, voff, srd, soff), tag=tag, meta={"data": units(src), "wide": src.n >= 3}))

    def bstore_raw(self, op, src, voff, srd, soff=0, off=0, flags=""):
        return self.add(I(f"{op} {src}, " + self._bt(voff, srd, soff, off, flags), "vstore",
                          (), units(src, voff, srd, soff), meta={"data": units(src), "wide": False}))


def _matches(dep, tag):
    if dep is None or tag is None:
        return False
    if isinstance(dep, (list, set)):
        return tag in dep
    return dep == tag


class _St:
    __slots__ = ("vm", "lg", "smem")

    def __init__(self, vm=(), lg=(), smem=()):
        self.vm, self.lg, self.smem = list(vm), list(lg), list(smem)

    def copy(self):
        return _St(self.vm, self.lg, self.smem)

    def key(self):
        return (tuple(map(id, self.vm)), tuple(map(id, self.lg)), tuple(map(id, self.smem)))

    def apply(self, nvm, nlg):
        if nvm is not None:
            del self.vm[:max(0, len(self.vm) - nvm)]
        if nlg is not None:
            del self.lg[:max(0, len(self.lg) - nlg)]
            if nlg == 0:
                self.smem.clear()


def _branch_target(x):
    return x.t.split()[-1]


def insert_waits(ins, stats=None):
    out = []
    states = [_St()]
    pending = {}

    def emit_wait(nvm, nlg):
        p, meta = [], {"vm": None, "lgkm": None}
        if nvm is not None:
            nvm = min(nvm, 63)
            p.append(f"vmcnt({nvm})")
            meta["vm"] = nvm
        if nlg is not None:
            nlg = min(nlg, 15)
            p.append(f"lgkmcnt({nlg})")
            meta["lgkm"] = nlg
        for st in states:
            st.apply(nvm, nlg)
        out.append(I("s_waitcnt " + " ".join(p), "wait", meta=meta))
        if stats is not None:
            stats["waits"] = stats.get("waits", 0) + 1

    def mn(a, b):
        return b if a is None else (a if b is None else min(a, b))

    for x in ins:
        if x.kind == "wait":
            for st in states:
                st.apply(x.meta["vm"], x.meta["lgkm"])
            out.append(x)
            continue
        if x.kind == "label":
            name = x.t[:-1]
            states += pending.pop(name, [])
            uniq = {}
            for st in states:
                uniq.setdefault(st.key(), st)
            states = list(uniq.values())
            assert states, "unreachable label " + name
            out.append(x)
            continue
        if x.kind == "comment":
            out.append(x)
            continue
        touched = x.r | x.w
        nvm = nlg = None
        for st in states:
            vm, lg = st.vm, st.lg
            for j in range(len(vm) - 1, -1, -1):
                o = vm[j]
                if (o.kind == "vload" and o.w & touched) or _matches(x.dep, o.tag):
                    nvm = mn(nvm, len(vm) - 1 - j)
                    break
            for j in range(len(lg) - 1, -1, -1):
                o = lg[j]
                hit = (o.kind == "ds_read" and o.w & touched) or (o.kind == "ds_write" and _matches(x.dep, o.tag))
                if x.ovw is not None and o.kind == "ds_read" and _matches(x.ovw, o.dep):
                    hit = True
                if x.kind == "barrier" and x.meta.get("drain_lds"):
                    hit = True
                if hit:
                    nlg = mn(nlg, len(lg) - 1 - j)
                    break
            if any(o.w & touched for o in st.smem):
                nlg = 0
            if x.kind in ("ds_read", "ds_write") and st.smem:
                nlg = 0
        if nvm is not None or nlg is not None:
            emit_wait(nvm, nlg)
        if x.kind == "need":
            continue
        if x.kind in ("ds_read", "ds_write"):
            if max(len(st.lg) for st in states) >= 15:
                emit_wait(None, 14)
            for st in states:
                st.lg.append(x)
        elif x.kind in ("vload", "dma", "vstore"):
            if max(len(st.vm) for st in states) >= 63:
                emit_wait(62, None)
            for st in states:
                st.vm.append(x)
        elif x.kind == "smem":
            for st in states:
                st.smem.append(x)
        out.append(x)
        if x.kind == "branch":
            pending.setdefault(_branch_target(x), []).extend(st.copy() for st in states)
            if x.t.startswith("s_branch"):
                states = []
    return out


VALU_KINDS = ("valu", "trans", "permlane", "readlane")


def pad_hazards(ins, stats=None, window=24):
    out = []
    hist = []

    def required(x, p):
        need = 0
        pw = p.w
        if not pw and p.kind not in ("mfma", "vstore"):
            return 0
        xr, xw = x.r, x.w
        if p.kind in VALU_KINDS:
            vw = {u for u in pw if u[0] in "va"}
            sw = {u for u in pw if u[0] in ("s", "vcc")}
            if x.kind == "mfma" and vw & xr:
                need = max(need, 2)
            if x.kind == "permlane" and vw & xr:
                need = max(need, 2)
            if x.kind == "readlane" and vw & xr:
                need = max(need, 1)
            if x.meta.get("dpp") and vw & xr:
                need = max(need, 2)
            if p.kind == "trans" and x.kind in VALU_KINDS and x.kind != "trans" and vw & xr:
                need = max(need, 1)
            if p.kind == "trans" and x.kind == "trans" and vw & xr:
                need = max(need, 1)
            if sw & xr:
                if x.kind in VALU_KINDS:
                    need = max(need, 2)
                if x.kind in ("vload", "vstore", "dma"):
                    need = max(need, 5)
                if x.kind == "readlane":
                    need = max(need, 4)
                if x.kind in ("salu", "branch", "smem"):
                    need = max(need, 4)
        if p.kind == "salu" and ("m0", 0) in pw and x.kind == "dma":
            need = max(need, 1)
        if p.kind == "mfma":
            ps = p.meta["passes"]
            d = set(p.meta["d"])
            if x.kind == "mfma":
                if d & set(x.meta["ab"]):
                    need = max(need, ps + 4)
                c = set(x.meta["c"])
                if d & c:
                    exact = x.meta["c"] == p.meta["d"] and x.meta["passes"] == ps
                    if not exact:
                        need = max(need, ps + 2)
            elif x.kind in VALU_KINDS or x.kind in ("vload", "vstore", "ds_read", "ds_write", "dma"):
                if d & (xr | xw):
                    need = max(need, ps + 4)
            if x.kind in VALU_KINDS and set(p.meta["c"]) & xw:
                need = max(need, ps - 1)
        if p.kind == "vstore" and p.meta.get("wide"):
            data = set(p.meta["data"])
            if data & xw:
                need = max(need, 2 if x.kind in VALU_KINDS else 1)
        return need

    pend = {}
    for x in ins:
        if x.kind == "label":
            best = {}
            for p, d in hist + pend.pop(x.t[:-1], []):
                if id(p) not in best or d < best[id(p)][1]:
                    best[id(p)] = (p, d)
            hist = list(best.values())
            out.append(x)
            continue
        if x.kind in ("comment", "need"):
            out.append(x)
            continue
        short = 0
        for p, dist in hist:
            rq = required(x, p)
            if rq > dist:
                short = max(short, rq - dist)
        if short:
            if stats is not None:
                stats.setdefault("nops", []).append((short, x.t))
            n = short
            while n > 0:
                k = min(n, 16)
                out.append(I(f"s_nop {k - 1}", "nop", meta={"n": k - 1}))
                n -= k
            hist = [(p, d + short) for p, d in hist]
        out.append(x)
        step = x.meta["n"] + 1 if x.kind == "nop" else 1
        hist = [(p, d + step) for p, d in hist if d + step < window]
        if x.kind != "nop":
            hist.append((x, 0))
        if x.kind == "branch":
            pend.setdefault(_branch_target(x), []).extend(hist)
            if x.t.startswith("s_branch"):
                hist = []
    return out


MARK = "@@ITER"


def mark(prog, group, idx):
    prog.add(I(f"{MARK} {group} {idx}", "comment", meta={"mark": (group, idx)}))


def roll(ins, counters):
    out = []
    i = 0
    n = len(ins)
    uid = [0]
    while i < n:
        x = ins[i]
        m = x.meta.get("mark")
        if not m:
            out.append(x)
            i += 1
            continue
        group = m[0]
        iters = []
        cur = None
        while True:
            y = ins[i]
            mm = y.meta.get("mark")
            i += 1
            if mm and mm[0] == group:
                if cur is not None:
                    iters.append(cur)
                if mm[1] is None:
                    break
                cur = []
            else:
                cur.append(y)
        text = ["\n".join(z.t for z in it if z.kind != "comment") for it in iters]
        j = 0
        while j < len(iters):
            k = j
            while k + 1 < len(iters) and text[k + 1] == text[j]:
                k += 1
            cnt = k - j + 1
            body = iters[j]
            seen_cmp = False
            for z in body:
                if z.meta.get("tail") == "cmp":
                    seen_cmp = True
                elif z.meta.get("tail") == "br":
                    seen_cmp = False
                elif seen_cmp and z.kind == "salu" and not z.t.startswith("s_mov"):
                    raise AssertionError("SCC clobbered between loop compare and branch: " + z.t)
            if cnt >= 2:
                uid[0] += 1
                lab = f"L_{group}_{uid[0]}"
                c = counters[group]
                out.append(I(f"s_mov_b32 {c}, {cnt}", "salu", units(c)))
                out.append(I(f"{lab}:", "label"))
                for z in body:
                    if z.meta.get("tail") == "dec":
                        out.append(I(f"s_sub_u32 {c}, {c}, 1", "salu"))
                    elif z.meta.get("tail") == "cmp":
                        out.append(I(f"s_cmp_lg_u32 {c}, 0", "salu"))
                    elif z.meta.get("tail") == "br":
                        out.append(I(f"s_cbranch_scc1 {lab}", "branch"))
                    else:
                        out.append(z)
                out.append(I(f"; rolled {group} x{cnt}", "comment"))
            else:
                for z in body:
                    if not z.meta.get("tail"):
                        out.append(z)
                    elif z.meta.get("tail") == "br":
                        out.append(I("s_nop 0", "nop", meta={"n": 0}))
                    else:
                        out.append(I("s_nop 0", "nop", meta={"n": 0}))
            j = k + 1
    return out


def loop_dec(prog):
    prog.add(I("@tail_dec", "salu", meta={"tail": "dec"}))
    prog.add(I("@tail_cmp", "salu", meta={"tail": "cmp"}))


def loop_branch(prog):
    prog.add(I("@tail_br", "salu", meta={"tail": "br"}))


def finalize(prog, counters=None, verbose=False, name=""):
    stats = {}
    ins = insert_waits(prog.ins, stats)
    ins = pad_hazards(ins, stats)
    ins = roll(ins, counters or {})
    if verbose:
        nops = stats.get("nops", [])
        tot = sum(n for n, _ in nops)
        print(f"[{name}] instrs {sum(1 for x in ins if x.kind not in ('comment', 'label'))} waits {stats.get('waits', 0)} "
              f"nop sites {len(nops)} states {tot}")
        for n, t in nops[:verbose if isinstance(verbose, int) and verbose > 1 else 0]:
            print("    nop", n, "before", t)
    lines = []
    for x in ins:
        if x.kind == "need" or x.t.startswith(MARK):
            continue
        if x.kind == "label":
            lines.append(x.t)
        else:
            lines.append("  " + x.t)
    return "\n".join(lines)


def kernel_text(name, body, vgpr, accum, sgpr=102):
    return f""".text
.globl {name}
.p2align 8
.type {name},@function
{name}:
{body}
  s_endpgm
.section .rodata,"a"
.p2align 6
.amdhsa_kernel {name}
  .amdhsa_next_free_vgpr {vgpr}
  .amdhsa_next_free_sgpr {sgpr}
  .amdhsa_accum_offset {accum}
  .amdhsa_group_segment_fixed_size 0
  .amdhsa_kernarg_size 112
  .amdhsa_user_sgpr_count 2
  .amdhsa_user_sgpr_kernarg_segment_ptr 1
  .amdhsa_system_sgpr_workgroup_id_x 1
  .amdhsa_float_denorm_mode_32 3
.end_amdhsa_kernel
"""


from layout import WS_STAMP


class Stamps:
    def __init__(self, p, on, base=64, vreg=None, early=3):
        self.p, self.on, self.n, self.base = p, on, 0, base
        self.vreg, self.early = vreg, early
        self.names = []

    def __call__(self, name, real=False):
        if not self.on:
            return
        p = self.p
        if self.vreg is None or self.n < self.early:
            p.stamp(S(self.base + 2 * self.n, 2), real)
        else:
            k = self.base + 2 * self.early
            p.stamp(S(k, 2), real)
            p.wait(lgkm=0)
            if self.n == self.early and self.early:
                for i in range(self.early):
                    p.v("v_writelane_b32", self.vreg, S(self.base + 2 * i), i, extra_r=[self.vreg])
            p.v("v_writelane_b32", self.vreg, S(k), self.n, extra_r=[self.vreg])
        self.names.append(name)
        self.n += 1

    def flush(self, rws, swave, slot, vtmp0, vtmp1):
        if not self.on:
            return
        p = self.p
        p.wait(vm=0, lgkm=0)
        t = S(100)
        p.s("s_lshl_b32", t, S(2), 2)
        p.s("s_add_u32", t, t, swave)
        if self.vreg is None:
            p.s("s_lshl_b32", t, t, 7)
            p.s("s_add_u32", t, t, WS_STAMP + slot * 0x20000)
            p.v("v_mov_b32", vtmp1, 0)
            for i in range(self.n):
                p.v("v_mov_b32", vtmp0, S(self.base + 2 * i))
                p.bstore(vtmp0, vtmp1, rws, soff=t, off=4 * i)
        else:
            p.s("s_lshl_b32", t, t, 8)
            p.s("s_add_u32", t, t, WS_STAMP)
            p.v("v_mbcnt_lo_u32_b32", vtmp1, -1, 0)
            p.v("v_mbcnt_hi_u32_b32", vtmp1, -1, vtmp1)
            p.v("v_lshlrev_b32", vtmp1, 2, vtmp1)
            p.bstore(self.vreg, vtmp1, rws, soff=t)
        p.wait(vm=0)
```

```python
import sys
sys.path.insert(0, "dev")
from asmlib import kernel_text
from layout import *

HEAD = open("cdna_kernels/" + NAME + ".s.ref").read().split("; Override launch geometry")[0]


def assemble(parts, order=None):
    s = HEAD
    seq = parts if order is None else [next(x for x in parts if x[0][0] == ch) for ch in order]
    for label, body, vgpr, accum, grid, block, lds in seq:
        s += f"; @launch kernel={label} grid=({grid},1,1) block=({block},1,1) lds={lds}\n"
    s += '.amdgcn_target "amdgcn-amd-amdhsa--gfx950"\n'
    for label, body, vgpr, accum, grid, block, lds in parts:
        s += kernel_text(label, body, vgpr, accum)
    return s


def all_parts(which="ABRDE", **opt):
    parts = []
    if "A" in which:
        import ka0
        body = ka0.gen_a0(**opt)
        parts.append(("a_kernel", body, 128, 128, 48, 256, ka0.A0_LDS))
    if "B" in which:
        import kb2 as kb
        body = kb.gen_b(**opt)
        parts.append(("b_kernel", body, 512, 256, 256, 256, kb.B_LDS))
    if "R" in which:
        import kr
        body = kr.gen_r(**opt)
        parts.append(("r_kernel", body, kr.R_VGPR, kr.R_VGPR, 256, 256, kr.R_LDS))
    if "D" in which:
        import kd
        body = kd.gen_d(**opt)
        parts.append(("d_kernel", body, kd.D_VGPR, kd.D_ACC, 232, 256, kd.D_LDS))
    if "E" in which:
        import ke
        body = ke.gen_e(**opt)
        parts.append(("e_kernel", body, ke.E_VGPR, ke.E_ACC, 256, 256, ke.E_LDS))
    return parts


if __name__ == "__main__":
    which = sys.argv[1] if len(sys.argv) > 1 else "ABRDE"
    out = sys.argv[2] if len(sys.argv) > 2 else "out.s"
    opt = {"diag": True} if len(sys.argv) > 3 and sys.argv[3] == "diag" else {}
    order = sys.argv[4] if len(sys.argv) > 4 else None
    txt = assemble(all_parts(which, **opt), order)
    open(out, "w").write(txt)
    print("wrote", out, len(txt), "bytes")
```

```python
from asmlib import *
from layout import *
from ka import srd, bf16_round_hi

A0_LDS = 65536 + 1024 + 1024


def mod_slab(p, rW, rC, rWS, sw, sslab, vtid, vl, lds_slab, lds_sil, lds_part, regs, sregs, flags=""):
    st0, st1, so, sm, sexec = sregs[0], sregs[1], sregs[2], sregs[3], sregs[4:6]
    vt0, vt1, vt2, vc, vcoff = regs[0], regs[1], regs[2], regs[3], regs[4]
    vd = regs[8:12]
    p.v("v_lshlrev_b32", vcoff, 2, vtid)
    p.bload(vc, vcoff, rC)
    p.v("v_lshrrev_b32", vt0, 3, vl)
    p.s("s_mov_b32", st0, 6144)
    p.v("v_mul_lo_u32", vt0, vt0, st0)
    p.v("v_lshrrev_b32", vt1, 4, vl)
    p.v("v_lshlrev_b32", vt1, 1, vt1)
    p.v("v_and_b32", vt2, 7, vl)
    p.v("v_xor_b32", vt1, vt1, vt2)
    p.v("v_lshlrev_b32", vt1, 4, vt1)
    p.v("v_add_u32", vd[0], vt0, vt1)
    for j in range(1, 4):
        p.v("v_add_u32", vd[j], j * (8 * 6144 - 1024), vd[0])
    p.s("s_mul_i32", st0, sw, 128 * 6144)
    p.s("s_lshl_b32", st1, sslab, 7)
    p.s("s_add_u32", so, st0, st1)
    p.s("s_lshl_b32", sm, sw, 14)
    p.s("s_add_u32", sm, sm, lds_slab)
    for grp in range(4):
        p.s("s_add_u32", M0, sm, grp * 4096)
        if grp:
            p.s("s_add_u32", so, so, 32 * 6144)
        else:
            p.nop(0)
        for j in range(4):
            p.dma(vd[j], rW, so, off=1024 * j, tag=("slab", grp))
    s0, s1, e0, e1, vpk = regs[12], regs[13], regs[14], regs[15], regs[5]
    p.v("v_lshlrev_b32", s0, 16, vc)
    p.v("v_and_b32", s1, 0xFFFF0000, vc)
    for s_, e_ in ((s0, e0), (s1, e1)):
        p.v("v_mul_f32", e_, -1.4426950408889634, s_)
    for s_, e_ in ((s0, e0), (s1, e1)):
        p.v("v_exp_f32", e_, e_)
    for s_, e_ in ((s0, e0), (s1, e1)):
        p.v("v_add_f32", e_, 1.0, e_)
    for s_, e_ in ((s0, e0), (s1, e1)):
        p.v("v_rcp_f32", e_, e_)
    for s_, e_ in ((s0, e0), (s1, e1)):
        p.v("v_mul_f32", s_, s_, e_)
    p.v("v_cvt_pk_bf16_f32", vpk, s0, s1)
    p.v("v_add_u32", vt0, lds_sil, vcoff)
    p.ds_write("ds_write_b32", vt0, vpk)
    vtr = regs[16:20]
    p.v("v_and_b32", vt0, 3, vl)
    p.v("v_lshrrev_b32", vt1, 2, vl)
    p.v("v_lshlrev_b32", vtr[0], 7, vt1)
    p.v("v_lshrrev_b32", vt1, 1, vt1)
    p.v("v_and_b32", vt1, 3, vt1)
    p.v("v_lshlrev_b32", vt1, 1, vt1)
    p.v("v_lshrrev_b32", vt2, 1, vt0)
    p.v("v_xor_b32", vt1, vt1, vt2)
    p.v("v_lshlrev_b32", vt1, 4, vt1)
    p.v("v_and_b32", vt0, 1, vt0)
    p.v("v_lshlrev_b32", vt0, 3, vt0)
    p.v("v_add3_u32", vtr[0], vtr[0], vt1, vt0)
    p.v("v_add_u32", vtr[0], sm, vtr[0])
    for t in range(1, 4):
        p.v("v_xor_b32", vtr[t], t << 5, vtr[0])
    vb = regs[6]
    p.v("v_lshrrev_b32", vb, 4, vl)
    p.v("v_lshlrev_b32", vb, 3, vb)
    p.s("s_lshl_b32", st0, sw, 8)
    p.s("s_add_u32", st0, st0, lds_sil)
    p.v("v_add_u32", vb, st0, vb)
    p.barrier()
    acc = regs[20:36]
    bf = regs[36:52]
    af = regs[52:84]
    for ks in range(4):
        b = bf[4 * ks:4 * ks + 4]
        p.ds_read("ds_read_b64", b[0:2], vb, off=64 * ks)
        p.ds_read("ds_read_b64", b[2:4], vb, off=64 * ks + 32)
    for ks in range(4):
        for t in range(4):
            a = af[16 * (ks & 1) + 4 * t:16 * (ks & 1) + 4 * t + 4]
            p.ds_read("ds_read_b64_tr_b16", a[0:2], vtr[t], off=ks * 4096, dep=("slab", ks))
            p.ds_read("ds_read_b64_tr_b16", a[2:4], vtr[t], off=ks * 4096 + 2048, dep=("slab", ks))
        for t in range(4):
            a = af[16 * (ks & 1) + 4 * t:16 * (ks & 1) + 4 * t + 4]
            d = acc[4 * t:4 * t + 4]
            p.mfma16(d, a, bf[4 * ks:4 * ks + 4], d if ks else 0)
    p.v("v_lshrrev_b32", vt1, 4, vl)
    p.v("v_lshlrev_b32", vt1, 4, vt1)
    p.s("s_lshl_b32", st0, sw, 8)
    p.s("s_add_u32", st0, st0, lds_part)
    p.v("v_add_u32", vt1, st0, vt1)
    for t in range(4):
        p.ds_write("ds_write_b128", vt1, acc[4 * t:4 * t + 4], off=64 * t)
    p.barrier()
    lab = p.newlabel("mod_done")
    p.s("s_cmp_lg_u32", sw, 0)
    p.branch("s_cbranch_scc1", lab)
    r4 = regs[20:24]
    p.v("v_lshlrev_b32", vt0, 2, vl)
    p.v("v_add_u32", vt1, lds_part, vt0)
    for w in range(4):
        p.ds_read("ds_read_b32", r4[w], vt1, off=256 * w)
    p.v("v_add_f32", r4[0], r4[0], r4[1])
    p.v("v_add_f32", r4[2], r4[2], r4[3])
    p.v("v_add_f32", r4[0], r4[0], r4[2])
    bf16_round_hi(p, r4[0], r4[0])
    p.v("v_add_f32", r4[1], 1.0, r4[0])
    bf16_round_hi(p, r4[1], r4[1])
    p.s("s_lshr_b32", st0, sslab, 3)
    p.s("s_cmp_eq_u32", st0, 1)
    p.s("s_cselect_b32", st1, 1, 0)
    p.s("s_cmp_eq_u32", st0, 4)
    p.s("s_cselect_b32", st1, 1, st1)
    p.v("v_cmp_eq_u32", VCC, 1, st1) if False else None
    p.v("v_mov_b32", vt2, st1)
    p.v("v_cmp_eq_u32", VCC, 1, vt2)
    p.v("v_cndmask_b32", r4[0], r4[0], r4[1])
    p.s("s_cmp_lt_u32", st0, 2)
    p.s("s_mov_b32", st1, QSCALE)
    p.s("s_cselect_b32", st1, st1, 1.0)
    p.v("v_mul_f32", r4[0], st1, r4[0])
    p.s("s_lshl_b32", st0, sslab, 8)
    p.s("s_add_u32", st0, st0, WS_MOD)
    p.bstore(r4[0], vt0, rWS, soff=st0, flags=flags, tag="modst")
    p.label(lab)


def gen_a0(diag=False):
    p = Prog()
    T = Stamps(p, diag)
    p.s("s_cmp_ge_u32", S(2), 48)
    p.branch("s_cbranch_scc1", "A0_end")
    T("rt0", True)
    T("start")
    sC, sW, sWS = S(4, 2), S(6, 2), S(8, 2)
    rC, rW, rWS = S(12, 4), S(16, 4), S(20, 4)
    sw = S(24)
    p.s_load(sC, S(0, 2), ARG["c"])
    p.s_load(sW, S(0, 2), ARG["wmod"])
    p.s_load(sWS, S(0, 2), ARG["ws"])
    vl = V(1)
    p.v("v_lshrrev_b32", V(2), 6, V(0))
    p.v("v_and_b32", vl, 63, V(0))
    p.v("v_readfirstlane_b32", sw, V(2))
    p.wait(lgkm=0)
    srd(p, rC, sC, SZ["c"])
    srd(p, rW, sW, SZ["wmod"])
    srd(p, rWS, sWS, WS_DIAG_END if diag else WS_END)
    mod_slab(p, rW, rC, rWS, sw, S(2), V(0), vl, 0, 65536, 65536 + 1024, V(4, 100), S(26, 6))
    T("done")
    T("rt1", True)
    T.flush(rWS, sw, 0, V(4), V(5))
    gen_a0.stamp_names = T.names
    p.label("A0_end")
    return finalize(p, verbose=True, name="A0")


if __name__ == "__main__":
    print(gen_a0()[-1500:])
```

```python
from asmlib import *
from layout import *
from ka import srd

SLOT = 8192
WRING = 3 * SLOT
SH = 4 * WRING
B_LDS = SH + 65536
TAB = 2 * SLOT
LIMIT = float(2 ** 40)

vtid, vl = V(0), V(1)
vdQ, vdK, vdV = V(2, 8), V(10, 8), V(18, 4)
vtr, vK, vB, vlin = V(22, 8), V(30, 4), V(34), V(35)
vt = V(36, 8)
vtrP = V(44)
vtmp = V(46, 18)
vQ = V(64, 64)
vACC = V(128, 128)
vS = [V(128, 32), V(160, 32)]
vP = V(192, 16)
vNM = V(208, 16)
vW = V(224, 32)
aO, aL, aONE = A(0, 128), A(128, 16), A(144, 4)
aA, aK, aB = A(148, 16), A(164, 16), A(180, 48)
rWQ, rK, rV, rWO, rWS, rX = S(4, 4), S(8, 4), S(12, 4), S(16, 4), S(20, 4), S(24, 4)
sw, shg, srb, shead, srot = S(28), S(29), S(30), S(31), S(32)
sMW, sMS = S(33), S(34)
sA, sK, sV = S(35), S(36), S(37)
sLoop = S(38)
st = S(39, 6)
sPart = S(45)
sHi = S(46)
sexec = S(48, 2)


def acc(t, qt):
    return vACC[16 * t + 4 * qt:16 * t + 4 * qt + 4]


def oacc(dt, qt):
    return aO[16 * dt + 4 * qt:16 * dt + 4 * qt + 4]


def sreg(buf, kt, qt):
    return vS[buf][16 * kt + 4 * qt:16 * kt + 4 * qt + 4]


def afrag(i):
    return aA[4 * (i % 4):4 * (i % 4) + 4]


def kfrag(i):
    return aK[4 * (i % 4):4 * (i % 4) + 4]


def bfrag(n, qt):
    o = 16 * (n % 3) + 4 * qt
    return aB[o:o + 4]


def qfrag(qt, s_):
    return vQ[16 * qt + 4 * s_:16 * qt + 4 * s_ + 4]


def dma_voffs(p, dst, stride, swz, n):
    p.v("v_lshrrev_b32", vt[0], 4, vl)
    p.v("v_and_b32", vt[1], 15, vl)
    p.s("s_mov_b32", st[0], stride)
    p.v("v_mul_lo_u32", vt[2], vt[0], st[0])
    npat = {"tr": 2, "n8": 4, "k": 4}[swz]
    for j in range(min(n, npat)):
        if swz == "tr":
            p.v("v_add_u32", vt[3], 4 * (j & 1), vt[0])
            p.v("v_lshlrev_b32", vt[3], 1, vt[3])
        elif swz == "n8":
            p.v("v_add_u32", vt[3], 4 * ((j >> 1) & 1), vt[0])
            p.v("v_lshlrev_b32", vt[3], 1, vt[3])
        else:
            p.v("v_add_u32", vt[3], 4 * (j & 3), vt[0])
        p.v("v_xor_b32", vt[3], vt[3], vt[1])
        p.v("v_lshlrev_b32", vt[3], 4, vt[3])
        p.v("v_add_u32", vt[4 + j], vt[3], vt[2])
    for j in range(n):
        k = 4 * j * stride - 1024 * (j & 3)
        src = vt[4 + j % npat]
        if k:
            p.v("v_add_u32", dst[j], k, src)
        else:
            p.v("v_mov_b32", dst[j], src)


KIND = {
    "wq": (rWQ, vdQ, sA, 32 * 8192, 0x3FFFFF),
    "wo": (rWO, vdQ, sA, 32 * 1024, 0x7FFFF),
    "k": (rK, vdK, sK, SLOT, 0x1FFFF),
    "v": (rV, vdV, sV, SLOT, 0x1FFFF),
}


def ring_pos(kind, n):
    if kind in ("wq", "wo"):
        return ("W", n % 3)
    if kind == "k":
        return ("W", 1 + (n & 1))
    return ("V", n & 1)


def dma_piece(kind, n, j):
    srd_, voffs, so, step, mask = KIND[kind]
    ring, pos = ring_pos(kind, n)
    q = Prog()
    pre = []
    if (j & 3) == 0:
        q.s("s_add_u32", M0, sMW if ring == "W" else sMS, pos * SLOT + (j >> 2) * 4096)
        pre, q.ins = q.ins, []
    voff = voffs[j] if kind != "v" else voffs[(j & 1) + 2 * (j >> 2)]
    x = q.dma(voff, srd_, so, off=1024 * (j & 3), tag=(kind, n))
    x.meta["into"] = (ring, pos)
    if j == 7:
        q.s("s_add_u32", so, so, step)
        q.s("s_and_b32", so, so, mask)
    return pre, q.ins


def dma_now(p, kind, n):
    for j in range(8):
        pre, main = dma_piece(kind, n, j)
        for x in pre:
            p.add(x)
        if pre:
            p.nop(0)
        for x in main:
            p.add(x)


def rd_tr(kind, n, t, dst):
    q = Prog()
    ring, pos = ring_pos(kind, n)
    second = 1024 if kind == "wq" else 4096
    for h in range(2):
        i = q.ds_read("ds_read_b64_tr_b16", dst[2 * h:2 * h + 2], vtr[t], off=pos * SLOT + second * h, dep=(kind, n))
        i.meta["from"] = (ring, pos)
    return q.ins


def rd_k(n, f, dst):
    q = Prog()
    kt, s_ = f >> 2, f & 3
    ring, pos = ring_pos("k", n)
    i = q.ds_read("ds_read_b128", dst, vK[s_], off=pos * SLOT + kt * 4096, dep=("k", n))
    i.meta["from"] = (ring, pos)
    return q.ins


def rd_b(n, qt, base_step):
    q = Prog()
    q.ds_read("ds_read_b128", bfrag(n, qt), vB, off=(n - base_step) * 4096 + qt * 1024)
    return q.ins


def resolve_ovw(ins):
    last = {}
    for x in ins:
        if x.kind == "ds_read" and "from" in x.meta:
            last[x.meta["from"]] = x.dep
        elif x.kind == "dma" and "into" in x.meta:
            x.ovw = last.get(x.meta["into"])


def cost(x):
    if x.kind == "trans":
        return 8
    if x.kind in ("comment", "label", "need"):
        return 0
    return 4


class Sched:
    def __init__(self, mf):
        self.mf = mf
        n = len(mf)
        self.mem = [[] for _ in range(n)]
        self.oth = [[] for _ in range(n)]
        self.res = [0] * n

    def fixed(self, g, ins):
        g = max(0, min(g, len(self.mf) - 1))
        for x in ins:
            (self.mem if x.kind in ("ds_read", "dma", "vstore", "ds_write", "vload") else self.oth)[g].append(x)

    def reserve(self, g, c=4):
        if 0 <= g < len(self.mf):
            self.res[g] += c

    def used(self, g):
        return sum(map(cost, self.mem[g] + self.oth[g])) + self.res[g]

    def flow(self, seq, first=0, last=None, budget=8):
        n = len(self.mf) if last is None else last + 1
        rem = sum(cost(x) for x, _ in seq)
        i = 0
        for g in range(first, n):
            cap_after = sum(max(0, budget - self.used(h)) for h in range(g + 1, n))
            while i < len(seq) and seq[i][1] <= g:
                c = cost(seq[i][0])
                u = self.used(g)
                if u + c <= budget or (rem > cap_after and u + c <= budget + 4) or g == n - 1:
                    self.oth[g].append(seq[i][0])
                    rem -= c
                    i += 1
                else:
                    break
        assert i == len(seq), "unplaced fillers"

    def pack(self, exps, cvts, first=0, last=None):
        n = len(self.mf) if last is None else last + 1
        ei = ci = 0
        for g in range(first, n):
            done = ei
            while True:
                u = self.used(g)
                e_ok = ei < len(exps) and exps[ei][1] <= g
                c_ok = ci < len(cvts) and cvts[ci][1] <= done
                free8 = sum(1 for h in range(g + 1, n) if self.used(h) == 0)
                free4 = sum(max(0, 8 - self.used(h)) // 4 for h in range(g + 1, n))
                need8 = len(exps) - ei
                need4 = len(cvts) - ci
                behind = need8 * 2 + need4 > free4 or need8 > free8
                lastg = g == n - 1
                if e_ok and (u == 0 or lastg or (behind and u <= 4 and not (c_ok and u == 4))):
                    self.oth[g].append(exps[ei][0])
                    ei += 1
                elif c_ok and (u + 4 <= 8 or lastg or (behind and u <= 8 and need8 * 2 + need4 > free4 + 1)):
                    self.oth[g].append(cvts[ci][0])
                    ci += 1
                else:
                    break
        while ei < len(exps):
            self.oth[n - 1].append(exps[ei][0])
            ei += 1
        while ci < len(cvts):
            self.oth[n - 1].append(cvts[ci][0])
            ci += 1

    def profile(self):
        return [self.used(g) for g in range(len(self.mf))]

    def emit(self, p):
        for g, m in enumerate(self.mf):
            m()
            for x in self.mem[g] + self.oth[g]:
                p.add(x)


def put_dma(sc, kind, n, gaps):
    for j in range(8):
        pre, main = dma_piece(kind, n, j)
        sc.fixed(gaps[j] - 1, pre)
        sc.fixed(gaps[j], main)


def gemm_step(p, kind, n, nxt, base_step, first, last, extra=None, tail=None):
    mf = []
    for t in range(8):
        for qt in range(4):
            def m(t=t, qt=qt):
                x = p.mfma16(acc(t, qt), afrag(t), bfrag(n, qt), acc(t, qt) if not first else 0)
                if qt == 0 and t % 2 == 0:
                    also(x, afrag(t + 1))
                if qt == 0 and t == 0:
                    also(x, [bfrag(n, k) for k in range(4)])
            mf.append(m)
    sc = Sched(mf)
    for t in range(0, 8, 2):
        g = 4 * t
        for k in range(2):
            tn, nn = (t + 2 + k) % 8, n + (t + 2 + k) // 8
            if not (last and nn > n):
                r = rd_tr(kind, nn, tn, afrag(t + 2 + k))
                sc.fixed(g + 2 * k, r[:1])
                sc.fixed(g + 2 * k + 1, r[1:])
        sc.reserve(g + 7)
        if not last:
            sc.fixed(g + 5, rd_b(n + 1, t // 2, base_step))
    if nxt is not None:
        put_dma(sc, nxt[0], nxt[1], [4 * t + (4 if t % 2 == 0 else 2) for t in range(8)])
    if extra:
        for g, ins in extra.items():
            sc.fixed(g, ins)
    if tail:
        sc.flow(tail, budget=12)
    sc.emit(p)


def gemm_stage(p, kind, nxt_of, extra_of=None, group="gq", zeroed=False, tail=None):
    for qt in range(4):
        for x in rd_b(0, qt, 0):
            p.add(x)
    for t in range(2):
        for x in rd_tr(kind, 0, t, afrag(t)):
            p.add(x)
    for it in range(6):
        mark(p, group, it)
        for n in range(3 * it, min(3 * it + 3, 16)):
            gemm_step(p, kind, n, nxt_of(n), 3 * it, n == 0 and not zeroed, n == 15,
                      extra_of(n) if extra_of else None, tail if n == 15 else None)
        if it < 5:
            p.v("v_add_u32", vB, 3 * 4096, vB)
        loop_dec(p)
        loop_branch(p)
    mark(p, group, None)
    p.v("v_subrev_u32", vB, 15 * 4096, vB)


def exp_list(buf, start, stop):
    q = Prog()
    order = [(qt, kt, r) for qt in range(4) for kt in range(2) for r in range(4)]
    for qt, kt, r in order[start:stop]:
        x = sreg(buf, kt, qt)[r]
        q.v("v_exp_f32", x, x)
    return q.ins


def cvt_list(buf):
    q = Prog()
    for qt in range(4):
        for kt in range(2):
            s_ = sreg(buf, kt, qt)
            for i in range(2):
                q.v("v_cvt_pk_bf16_f32", vP[4 * qt + 2 * kt + i], s_[2 * i], s_[2 * i + 1])
    return q.ins


N1 = 20


def x_tail_seq(cur):
    ex = exp_list(cur, N1, 32)
    cv = cvt_list(cur)
    return cv[0:4] + ex[0:2] + cv[4:8] + ex[2:4] + cv[8:10] + ex[4:8] + cv[10:12] + ex[8:12] + cv[12:16]


def also(x, regs):
    x.r |= set(units(regs))


def phase_x(p, t, first=False, dma=None):
    buf = (t + 1) & 1
    mf = []
    for f in range(8):
        kt, s_ = f >> 2, f & 3
        for qt in range(4):
            def m(kt=kt, s_=s_, qt=qt, f=f):
                d = sreg(buf, kt, qt)
                c = d if s_ else (0 if first else vNM[4 * qt:4 * qt + 4])
                x = p.mfma16(d, kfrag(f), qfrag(qt, s_), c)
                if qt == 0 and f % 2 == 0:
                    also(x, kfrag(f + 1))
            mf.append(m)
    sc = Sched(mf)
    for f in range(0, 8, 2):
        g = 4 * f
        if f < 6:
            sc.fixed(g, rd_k(t + 1, f + 2, kfrag(f + 2)) + rd_k(t + 1, f + 3, kfrag(f + 3)))
        elif not first:
            sc.fixed(g, rd_tr("v", t, 0, afrag(0)))
            sc.fixed(g + 1, rd_tr("v", t, 1, afrag(1)))
            sc.reserve(g - 1)
        sc.reserve(g + 7)
    if dma is not None:
        put_dma(sc, dma[0], dma[1], [2, 7, 10, 15, 18, 22, 27, 30])
    if not first:
        ex = exp_list(t & 1, N1, 32)
        cv = cvt_list(t & 1)
        need = [0] * 10 + [4, 4] + [8, 8, 12, 12]
        sc.pack([(x, 0) for x in ex], list(zip(cv, need)), last=30)
    if PROFILE:
        print("X", sc.profile())
    sc.emit(p)


PROFILE = False


def phase_y(p, t, last=False, dma=None, tail=None):
    mf = []
    for qt in range(4):
        def m(qt=qt):
            d = aL[4 * qt:4 * qt + 4]
            p.mfma16(d, aONE, vP[4 * qt:4 * qt + 4], d)
        mf.append(m)
    for dt in range(8):
        for qt in range(4):
            def m(dt=dt, qt=qt):
                d = oacc(dt, qt)
                x = p.mfma16(d, afrag(dt), vP[4 * qt:4 * qt + 4], d)
                if qt == 0 and dt % 2 == 0:
                    also(x, afrag(dt + 1))
            mf.append(m)
    sc = Sched(mf)
    for dt in range(0, 8, 2):
        g = 4 + 4 * dt
        if dt < 6:
            sc.fixed(g, rd_tr("v", t, dt + 2, afrag(dt + 2)))
            sc.fixed(g + 1, rd_tr("v", t, dt + 3, afrag(dt + 3)))
        elif t + 2 <= 15:
            sc.fixed(g, rd_k(t + 2, 0, kfrag(0)) + rd_k(t + 2, 1, kfrag(1)))
            sc.reserve(g - 1)
        sc.reserve(g + 7)
    sc.reserve(3)
    if dma is not None:
        put_dma(sc, dma[0], dma[1], [3, 8, 11, 16, 19, 24, 27, 32])
    if not last:
        sc.pack([(x, 1) for x in exp_list((t + 1) & 1, 0, N1)], [])
    if tail:
        sc.flow(tail, budget=12)
    if PROFILE:
        print("Y", sc.profile())
    sc.emit(p)


def zero16(p, dst, vz):
    p.mfma32(dst, vz, vz, 0)


def tr_pattern(p, dst, natural):
    p.v("v_lshrrev_b32", vt[0], 4, vl)
    p.v("v_lshrrev_b32", vt[1], 2, vl)
    p.v("v_and_b32", vt[1], 3, vt[1])
    if natural:
        p.v("v_lshl_add_u32", vt[2], vt[0], 3, vt[1])
        p.v("v_and_b32", vt[0], 1, vt[0])
        p.v("v_lshl_add_u32", vt[3], vt[0], 2, vt[1])
    else:
        p.v("v_lshl_add_u32", vt[2], vt[0], 2, vt[1])
        p.v("v_and_b32", vt[3], 7, vt[2])
    p.v("v_lshlrev_b32", vt[3], 1, vt[3])
    p.v("v_and_b32", vt[4], 3, vl)
    p.v("v_lshrrev_b32", vt[5], 1, vt[4])
    p.v("v_xor_b32", vt[3], vt[3], vt[5])
    p.v("v_lshlrev_b32", vt[3], 4, vt[3])
    p.v("v_and_b32", vt[4], 1, vt[4])
    p.v("v_lshlrev_b32", vt[4], 3, vt[4])
    p.v("v_lshlrev_b32", vt[2], 8, vt[2])
    p.v("v_add3_u32", dst, vt[2], vt[3], vt[4])


def set_vtr(p, pattern, base):
    p.v("v_add_u32", vtr[0], base, pattern)
    for t in range(1, 8):
        p.v("v_xor_b32", vtr[t], t << 5, vtr[0])


def row_stats(p, gram, rsum, vq, vg, mu, rs, nmr, t0, t1):
    sq = t1
    p.v("v_and_b32", t0, 3, vq)
    p.v("v_cmp_eq_u32", VCC, 1, t0)
    p.v("v_cndmask_b32", sq, gram[0], gram[1])
    p.v("v_cmp_eq_u32", VCC, 2, t0)
    p.v("v_cndmask_b32", sq, sq, gram[2])
    p.v("v_cmp_eq_u32", VCC, 3, t0)
    p.v("v_cndmask_b32", sq, sq, gram[3])
    p.v("v_lshrrev_b32", t0, 2, vq)
    p.v("v_cmp_eq_u32", VCC, t0, vg)
    p.v("v_cndmask_b32", sq, 0, sq)
    for op in ("v_permlane32_swap_b32", "v_permlane16_swap_b32"):
        p.v("v_mov_b32", t0, sq)
        p.v(op, sq, t0)
        p.v("v_add_f32", sq, sq, t0)
    p.v("v_mul_f32", mu, 1.0 / 512, rsum[0])
    p.v("v_mul_f32", sq, 1.0 / 512, sq)
    p.v("v_fma_f32", sq, Neg(mu), mu, sq)
    p.v("v_max_f32", sq, 0, sq)
    p.v("v_add_f32", sq, 1e-5, sq)
    p.v("v_rsq_f32", rs, sq)
    p.v("v_mul_f32_e64", nmr, Neg(mu), rs)


def slow_attention(p):
    q = p
    q.label("B_slow")
    q.wait(vm=0, lgkm=0)
    vM = vW[0:4]
    for qt in range(4):
        q.v("v_mov_b32", vM[qt], 0xFF800000)
    vz = vW[4:8]
    for i in range(4):
        q.v("v_mov_b32", vz[i], 0)
    sT = st[4]

    def load_tile(with_v):
        q.s("s_lshl_b32", sK, sT, 13)
        q.s("s_mov_b32", sV, sK)
        dma_now(q, "k", 1)
        if with_v:
            dma_now(q, "v", 0)
        q.wait(vm=0)

    def scores(cinit):
        for f in range(8):
            kt, s_ = f >> 2, f & 3
            for x in rd_k(1, f, kfrag(f)):
                q.add(x)
            for qt in range(4):
                d = sreg(0, kt, qt)
                q.mfma16(d, kfrag(f), qfrag(qt, s_), d if s_ else cinit(qt))

    q.s("s_mov_b32", sT, 0)
    q.label("B_slow_p1")
    load_tile(False)
    scores(lambda qt: 0)
    for qt in range(4):
        a, b = sreg(0, 0, qt), sreg(0, 1, qt)
        q.v("v_max3_f32", vM[qt], vM[qt], a[0], a[1])
        q.v("v_max3_f32", vM[qt], vM[qt], a[2], a[3])
        q.v("v_max3_f32", vM[qt], vM[qt], b[0], b[1])
        q.v("v_max3_f32", vM[qt], vM[qt], b[2], b[3])
    q.wait(vm=0, lgkm=0)
    q.s("s_add_u32", sT, sT, 1)
    q.s("s_cmp_lt_u32", sT, 16)
    q.add(I("s_cbranch_scc1 B_slow_p1", "salu"))
    for qt in range(4):
        m = vM[qt]
        for op in ("v_permlane32_swap_b32", "v_permlane16_swap_b32"):
            q.v("v_mov_b32", vW[8], m)
            q.v(op, m, vW[8])
            q.v("v_max_f32", m, m, vW[8])
        for r in range(4):
            q.v("v_sub_f32", vNM[4 * qt + r], 0, m)
    for i in range(8):
        zero16(q, aO[16 * i:16 * i + 16], vz)
    zero16(q, aL, vz)
    q.s("s_mov_b32", sT, 0)
    q.label("B_slow_p2")
    load_tile(True)
    scores(lambda qt: vNM[4 * qt:4 * qt + 4])
    for x in exp_list(0, 0, 32) + cvt_list(0):
        q.add(x)
    for qt in range(4):
        d = aL[4 * qt:4 * qt + 4]
        q.mfma16(d, aONE, vP[4 * qt:4 * qt + 4], d)
    for dt in range(8):
        for x in rd_tr("v", 0, dt, afrag(dt)):
            q.add(x)
        for qt in range(4):
            d = oacc(dt, qt)
            q.mfma16(d, afrag(dt), vP[4 * qt:4 * qt + 4], d)
    q.wait(vm=0, lgkm=0)
    q.nop(15)
    q.s("s_add_u32", sT, sT, 1)
    q.s("s_cmp_lt_u32", sT, 16)
    q.add(I("s_cbranch_scc1 B_slow_p2", "salu"))
    q.nop(15)
    q.add(I("s_branch B_norm", "salu"))


def bc_setup(p, ptr):
    vq, vg = vtmp[0], vtmp[1]
    p.s("s_lshl_b32", st[1], shead, 19)
    p.s("s_add_u32", st[1], st[1], 1536 * 256)
    for r_, k in ((rK, "k"), (rV, "v")):
        p.s("s_add_u32", r_[0], ptr[k][0], st[1])
        p.s("s_addc_u32", r_[1], ptr[k][1], 0)
        p.s("s_mov_b32", r_[2], 16 * SLOT)
        p.s("s_mov_b32", r_[3], 0x20000)
    p.s("s_lshl_b32", st[1], shg, 19)
    p.s("s_add_u32", rWO[0], ptr["wo"][0], st[1])
    p.s("s_addc_u32", rWO[1], ptr["wo"][1], 0)
    p.s("s_mov_b32", rWO[2], 512 * 1024)
    p.s("s_mov_b32", rWO[3], 0x20000)
    p.s("s_lshl_b32", sK, srot, 13)
    p.s("s_mov_b32", sV, sK)
    dma_voffs(p, vdK, 256, "k", 8)
    dma_voffs(p, vt[0:8] if False else vdV, 256, "tr", 2)
    p.v("v_add_u32", vdV[2], 4096, vdV[0])
    p.v("v_add_u32", vdV[3], 4096, vdV[1])
    tr_pattern(p, vtrP, False)
    tr_pattern(p, vtr[0], True)
    set_vtr(p, vtr[0], sMW)
    p.v("v_xor_b32", vt[1], vg, vq)
    p.v("v_lshlrev_b32", vt[1], 4, vt[1])
    p.v("v_lshlrev_b32", vt[0], 8, vq)
    p.v("v_add3_u32", vK[0], vt[0], vt[1], sMW)
    for s_ in range(1, 4):
        p.v("v_xor_b32", vK[s_], s_ << 6, vK[0])
    p.v("v_add_u32", vB, SH, vlin)
    vone = vtmp[4:8]
    vz = vtmp[8:12]
    for i in range(4):
        p.v("v_mov_b32", vone[i], 0x3F803F80)
        p.v("v_mov_b32", vz[i], 0)
    for i in range(4):
        p.v("v_accvgpr_write_b32", aONE[i], vone[i])
    for i in range(8):
        zero16(p, aO[16 * i:16 * i + 16], vz)
    zero16(p, aL, vz)
    p.s("s_mul_i32", sPart, shg, 32)
    p.s("s_add_u32", sPart, sPart, srb)
    p.s("s_mul_i32", sPart, sPart, PART_BLK)
    p.s("s_lshl_b32", st[1], sw, 14)
    p.s("s_add_u32", sPart, sPart, st[1])
    p.s("s_add_u32", sPart, sPart, WS_PART)


def bc_main(p, T, store_flags="", after_q=None):
    def nxt_q(n):
        return ("wq", n + 2) if n + 2 < 16 else ("k", n + 2 - 16)

    def extra_q(n):
        if n != 15:
            return None
        q = Prog()
        q.barrier(drain_lds=False)
        return {3: q.ins}

    gemm_stage(p, "wq", nxt_q, extra_q, "gq", zeroed=True)
    T("q_done")
    dma_now(p, "v", 0)
    for s_ in range(4):
        for qt in range(4):
            d = qfrag(qt, s_)
            a0, a1 = acc(2 * s_, qt), acc(2 * s_ + 1, qt)
            p.v("v_cvt_pk_bf16_f32", d[0], a0[0], a0[1])
            p.v("v_cvt_pk_bf16_f32", d[1], a0[2], a0[3])
            p.v("v_cvt_pk_bf16_f32", d[2], a1[0], a1[1])
            p.v("v_cvt_pk_bf16_f32", d[3], a1[2], a1[3])
        for op in ("v_permlane32_swap_b32", "v_permlane16_swap_b32"):
            for qt in range(4):
                d = qfrag(qt, s_)
                p.v(op, d[0], d[2])
                p.v(op, d[1], d[3])
        if s_ == 0:
            for f in range(2):
                for x in rd_k(0, f, kfrag(f)):
                    p.add(x)
    set_vtr(p, vtrP, sMS)
    dma_voffs(p, vdQ, 1024, "tr", 8)
    p.s("s_lshl_b32", sA, srot, 15)
    p.s("s_lshl_b32", st[1], sw, 8)
    p.s("s_add_u32", sA, sA, st[1])

    T("q_epi")
    if after_q:
        after_q(p)
    phase_x(p, -1, first=True)
    dma_now(p, "k", 2)
    for qt in range(4):
        a, b = sreg(0, 0, qt), sreg(0, 1, qt)
        m = vt[qt]
        p.v("v_max3_f32", m, a[0], a[1], a[2])
        p.v("v_max3_f32", m, m, a[3], b[0])
        p.v("v_max3_f32", m, m, b[1], b[2])
        p.v("v_max_f32", m, m, b[3])
    for op in ("v_permlane32_swap_b32", "v_permlane16_swap_b32"):
        for qt in range(4):
            p.v("v_mov_b32", vt[4 + qt], vt[qt])
        for qt in range(4):
            p.v(op, vt[qt], vt[4 + qt])
        for qt in range(4):
            p.v("v_max_f32", vt[qt], vt[qt], vt[4 + qt])
    for qt in range(4):
        for r in range(4):
            p.v("v_sub_f32", vNM[4 * qt + r], 0, vt[qt])
    for qt in range(4):
        for kt in range(2):
            for r in range(4):
                x = sreg(0, kt, qt)[r]
                p.v("v_sub_f32", x, x, vt[qt])
    for f in range(2):
        for x in rd_k(1, f, kfrag(f)):
            p.add(x)
    for x in exp_list(0, 0, N1):
        p.add(x)
    T("att_pro")
    for it in range(7):
        mark(p, "ga", it)
        for t in (2 * it, 2 * it + 1):
            phase_x(p, t, dma=("v", t + 1))
            phase_y(p, t, dma=("k", t + 3))
        loop_dec(p)
        loop_branch(p)
    mark(p, "ga", None)
    T("att_loop")
    phase_x(p, 14, dma=("v", 15))
    phase_y(p, 14, dma=("wo", 0))
    for i, x in enumerate(x_tail_seq(1)):
        p.add(x)
        if i == 4:
            for t in range(2):
                for y in rd_tr("v", 15, t, afrag(t)):
                    p.add(y)
    phase_y(p, 15, last=True, dma=("wo", 1))

    T("att_done")
    rinv = vW[0:4]
    for qt in range(4):
        p.v("v_accvgpr_read_b32", rinv[qt], aL[4 * qt])
    p.v("v_add_f32", vt[0], rinv[0], rinv[1])
    p.v("v_add_f32", vt[1], rinv[2], rinv[3])
    p.v("v_add_f32", vt[0], vt[0], vt[1])
    p.v("v_cmp_gt_f32", VCC, LIMIT, vt[0])
    p.add(I("s_cmp_eq_u64 vcc, exec", "salu", (), units(VCC)))
    p.branch("s_cbranch_scc0", "B_slow")
    p.label("B_norm")
    for qt in range(4):
        p.v("v_accvgpr_read_b32", rinv[qt], aL[4 * qt])
    for qt in range(4):
        p.v("v_rcp_f32", rinv[qt], rinv[qt])
    r2 = vW[4:12]
    for qt in range(4):
        p.v("v_mov_b32", r2[2 * qt], rinv[qt])
        p.v("v_mov_b32", r2[2 * qt + 1], rinv[qt])
    vow = vW[12:16]
    for s_ in range(4):
        p.s("s_lshl_b32", st[1], sw, 2)
        p.s("s_add_u32", st[1], st[1], s_ + 16)
        p.s("s_sub_u32", st[1], st[1], srot)
        p.s("s_and_b32", st[1], st[1], 15)
        p.s("s_lshl_b32", st[1], st[1], 12)
        p.s("s_add_u32", st[1], st[1], SH)
        p.v("v_add_u32", vow[s_], st[1], vlin)
    first = True
    for s_ in range(4):
        for qt in range(4):
            k = (4 * s_ + qt) & 3
            x = V(128 + 8 * k, 8)
            o4 = V(160 + 4 * (4 * s_ + qt), 4)
            for h in range(2):
                src = oacc(2 * s_ + h, qt)
                for r in range(4):
                    p.v("v_accvgpr_read_b32", x[4 * h + r], src[r])
            for e in range(4):
                p.v("v_pk_mul_f32", x[2 * e:2 * e + 2], x[2 * e:2 * e + 2], r2[2 * qt:2 * qt + 2])
            for i in range(4):
                p.v("v_cvt_pk_bf16_f32", o4[i], x[2 * i], x[2 * i + 1])
    T("norm")
    p.barrier()
    for s_ in range(4):
        for qt in range(4):
            p.ds_write("ds_write_b128", vow[s_], V(160 + 4 * (4 * s_ + qt), 4), off=qt * 1024)
    set_vtr(p, vtrP, sMW)
    p.barrier()
    T("o_xchg")

    q = Prog()
    tail = []
    for j in range(4):
        for qt in range(4):
            k = (4 * j + qt) & 3
            o4 = vtmp[4 * k:4 * k + 4]
            a0, a1 = acc(2 * j, qt), acc(2 * j + 1, qt)
            g0 = 4 * (2 * j + 1) + qt + 3
            q.v("v_cvt_pk_bf16_f32", o4[0], a0[0], a0[1])
            q.v("v_cvt_pk_bf16_f32", o4[1], a0[2], a0[3])
            q.v("v_cvt_pk_bf16_f32", o4[2], a1[0], a1[1])
            q.v("v_cvt_pk_bf16_f32", o4[3], a1[2], a1[3])
            q.bstore(o4, vlin, rWS, soff=sPart, off=qt * 1024, flags=store_flags)
            if qt == 3 and j < 3:
                q.s("s_add_u32", sPart, sPart, 4096)
            tail += [(x, min(g0, 31)) for x in q.ins]
            q.ins = []
    gemm_stage(p, "wo", lambda n: ("wo", n + 2) if n + 2 < 16 else None, None, "go", tail=tail)


def gen_b(diag=False):
    p = Prog()
    T = Stamps(p, diag)
    p.s("s_cmp_ge_u32", S(2), 256)
    p.branch("s_cbranch_scc1", "B_end")
    T("rt0", True)
    T("start")
    ptr = {k: S(52 + 2 * i, 2) for i, k in enumerate(["x", "wq", "ws", "k", "v", "wo"])}
    for k in ptr:
        p.s_load(ptr[k], S(0, 2), ARG[k])
    p.v("v_lshrrev_b32", vt[0], 6, vtid)
    p.v("v_and_b32", vl, 63, vtid)
    p.v("v_readfirstlane_b32", sw, vt[0])
    p.s("s_and_b32", shg, S(2), 7)
    p.s("s_lshr_b32", srb, S(2), 3)
    p.s("s_and_b32", srot, srb, 15)
    p.s("s_lshl_b32", shead, shg, 2)
    p.s("s_mov_b32", sHi, 0xFFFF0000)
    vq, vg = vtmp[0], vtmp[1]
    p.v("v_and_b32", vq, 15, vl)
    p.v("v_lshrrev_b32", vg, 4, vl)
    p.v("v_lshlrev_b32", vlin, 4, vl)
    p.s("s_add_u32", shead, shead, sw)
    p.s("s_mul_i32", sMW, sw, WRING)
    p.s("s_lshl_b32", sMS, sw, 14)
    p.s("s_add_u32", sMS, sMS, SH)
    vxo = vtmp[2]
    p.s("s_lshl_b32", st[0], srb, 6)
    p.s("s_lshl_b32", st[1], sw, 4)
    p.s("s_add_u32", st[0], st[0], st[1])
    p.v("v_add_u32", vxo, st[0], vq)
    p.v("v_lshlrev_b32", vxo, 10, vxo)
    p.v("v_lshl_add_u32", vxo, vg, 4, vxo)
    p.wait(lgkm=0)
    srd(p, rX, ptr["x"], SZ["x"])
    vX = V(64, 64)
    p.s("s_lshl_b32", st[0], srot, 6)
    for n in range(16):
        p.bload(vX[4 * n:4 * n + 4], vxo, rX, soff=st[0])
        if n < 15:
            p.s("s_add_u32", st[0], st[0], 64)
            p.s("s_and_b32", st[0], st[0], 0x3FF)
    T("issued")
    bc_setup(p, ptr)
    vone, vz = vtmp[4:8], vtmp[8:12]
    srd(p, rWQ, ptr["wq"], SZ["wq"])
    srd(p, rWS, ptr["ws"], WS_DIAG_END if diag else WS_END)
    dma_voffs(p, vdQ, 8192, "n8", 8)
    p.s("s_lshl_b32", sA, srot, 18)
    p.s("s_lshl_b32", st[1], shead, 8)
    p.s("s_add_u32", sA, sA, st[1])
    dma_now(p, "wq", 0)
    p.s("s_lshl_b32", st[1], sw, 2)
    p.s("s_add_u32", st[1], st[1], srot)
    p.v("v_add_u32", vt[0], st[1], vg)
    p.v("v_and_b32", vt[0], 15, vt[0])
    p.v("v_lshlrev_b32", vt[0], 7, vt[0])
    p.v("v_lshrrev_b32", vt[1], 3, vq)
    p.v("v_lshl_add_u32", vt[0], vt[1], 11, vt[0])
    p.v("v_and_b32", vt[1], 7, vq)
    p.v("v_lshl_add_u32", vt[0], vt[1], 4, vt[0])
    p.s("s_lshl_b32", st[1], sw, 10)
    p.s("s_add_u32", M0, st[1], TAB)
    p.s("s_mov_b32", st[1], WS_MOD)
    p.dma(vt[0], rWS, st[1], tag="tab")
    dma_now(p, "wq", 1)
    T("setup")

    gram, rsum = vtmp[12:16], V(224, 4)
    for n in range(16):
        xs = vX[4 * n:4 * n + 4]
        p.mfma16(gram, xs, xs, gram if n else 0)
        p.mfma16(rsum, vone, xs, rsum if n else 0)
    vwu = A(240, 8)
    p.v("v_lshlrev_b32", vt[0], 6, vl)
    p.s("s_add_u32", st[1], sK, 4096)
    p.bload(vwu[0], vt[0], rK, soff=sK)
    p.bload(vwu[1], vt[0], rK, soff=st[1])
    p.bload(vwu[2], vt[0], rV, soff=sK)
    p.bload(vwu[3], vt[0], rV, soff=st[1])
    p.v("v_lshrrev_b32", vt[0], 2, vl)
    p.v("v_lshlrev_b32", vt[0], 10, vt[0])
    p.v("v_and_b32", vt[1], 3, vl)
    p.v("v_lshl_add_u32", vt[0], vt[1], 6, vt[0])
    p.s("s_lshl_b32", st[1], srot, 15)
    p.s("s_lshl_b32", st[2], sw, 8)
    p.s("s_add_u32", st[1], st[1], st[2])
    p.bload(vwu[4], vt[0], rWO, soff=st[1])
    p.s("s_add_u32", st[1], st[1], 16384)
    p.bload(vwu[5], vt[0], rWO, soff=st[1])
    mu, rs2, nm2 = V(236), V(238, 2), V(240, 2)
    row_stats(p, gram, rsum, vq, vg, mu, rs2[0], nm2[0], vt[0], vt[1])
    p.v("v_mov_b32", rs2[1], rs2[0])
    p.v("v_mov_b32", nm2[1], nm2[0])
    T("stats")
    p.barrier(dep="tab")
    T("tab")
    vtab = vt[2]
    p.v("v_lshlrev_b32", vtab, 5, vg)
    p.v("v_add_u32", vtab, TAB, vtab)
    vhw = vt[3]
    p.s("s_lshl_b32", st[1], sw, 10)
    p.s("s_add_u32", st[1], st[1], SH)
    p.v("v_add_u32", vhw, st[1], vlin)
    def rd_tab(n):
        tb = V(128 + 16 * (n % 3), 16)
        for i, o in enumerate((0, 16, 128, 144)):
            p.ds_read("ds_read_b128", tb[4 * i:4 * i + 4], vtab, off=n * 256 + o)

    rd_tab(0)
    rd_tab(1)
    for n in range(16):
        k = n & 1
        tb = V(128 + 16 * (n % 3), 16)
        y = V(176 + 8 * k, 8)
        o4 = V(192 + 4 * k, 4)
        if n + 2 < 16:
            rd_tab(n + 2)
        xs = vX[4 * n:4 * n + 4]
        for i in range(4):
            p.v("v_lshlrev_b32", y[2 * i], 16, xs[i])
            p.v("v_and_b32", y[2 * i + 1], sHi, xs[i])
        for i in range(4):
            p.v("v_pk_fma_f32", y[2 * i:2 * i + 2], y[2 * i:2 * i + 2], rs2, nm2)
        for i in range(4):
            p.v("v_pk_fma_f32", y[2 * i:2 * i + 2], y[2 * i:2 * i + 2], tb[8 + 2 * i:10 + 2 * i], tb[2 * i:2 * i + 2])
        for i in range(4):
            p.v("v_cvt_pk_bf16_f32", o4[i], y[2 * i], y[2 * i + 1])
        p.ds_write("ds_write_b128", vhw, o4, off=n * 4096)
    for i in range(8):
        zero16(p, vACC[16 * i:16 * i + 16], vz)
    T("h")
    p.barrier()
    T("h_ready")

    bc_main(p, T)
    T("o_done")
    if diag:
        p.wait(vm=0)
    T("drained")
    T("rt1", True)
    T.flush(rWS, sw, 1, vt[0], vt[1])
    gen_b.stamp_names = T.names
    p.branch("s_branch", "B_end")
    slow_attention(p)
    p.label("B_end")
    resolve_ovw(p.ins)
    return finalize(p, {"gq": sLoop, "ga": sLoop, "go": sLoop}, verbose=8, name="BC")


if __name__ == "__main__":
    txt = gen_b()
    open("kb2.s", "w").write(txt)
    print(len(txt.splitlines()))
```

```python
from asmlib import *
from layout import *
from ka import srd, bf16_round_hi

R_VGPR = 168
R_LDS = 512


def gen_r(diag=False):
    p = Prog()
    T = Stamps(p, diag)
    p.s("s_cmp_ge_u32", S(2), 256)
    p.branch("s_cbranch_scc1", "R_end")
    T("rt0", True)
    T("start")
    sX, sWS = S(4, 2), S(6, 2)
    rX, rWS = S(8, 4), S(12, 4)
    sw, srb, sqt, shalf, st0, st1, sb0 = S(16), S(17), S(18), S(19), S(20), S(21), S(22)
    p.s_load(sX, S(0, 2), ARG["x"])
    p.s_load(sWS, S(0, 2), ARG["ws"])
    vl, vg, vq, vf = V(1), V(2), V(3), V(4)
    vt0, vt1, vt2 = V(5), V(6), V(7)
    p.v("v_lshrrev_b32", vt0, 6, V(0))
    p.v("v_and_b32", vl, 63, V(0))
    p.v("v_readfirstlane_b32", sw, vt0)
    p.v("v_and_b32", vq, 7, vl)
    p.v("v_lshrrev_b32", vg, 3, vl)
    p.v("v_and_b32", vg, 3, vg)
    p.v("v_lshrrev_b32", vf, 5, vl)
    p.s("s_lshr_b32", srb, S(2), 3)
    p.s("s_lshr_b32", sqt, S(2), 1)
    p.s("s_and_b32", sqt, sqt, 3)
    p.s("s_and_b32", shalf, S(2), 1)
    p.wait(lgkm=0)
    srd(p, rX, sX, SZ["x"])
    srd(p, rWS, sWS, WS_DIAG_END if diag else WS_END)
    vfr = V(8)
    p.v("v_lshlrev_b32", vt0, 4, vg)
    p.v("v_add_u32", vt0, vt0, vq)
    p.s("s_lshl_b32", st0, shalf, 3)
    p.v("v_add_u32", vt0, st0, vt0)
    p.v("v_lshlrev_b32", vt0, 4, vt0)
    p.v("v_lshlrev_b32", vt1, 12, vf)
    p.v("v_add_u32", vfr, vt0, vt1)
    vp = V(16, 64)
    p.s("s_mul_i32", sb0, srb, PART_BLK)
    p.s("s_lshl_b32", st0, sw, 14)
    p.s("s_add_u32", sb0, sb0, st0)
    p.s("s_lshl_b32", st0, sqt, 10)
    p.s("s_add_u32", sb0, sb0, st0)
    p.s("s_add_u32", sb0, sb0, WS_PART)
    for hg in range(8):
        for i in range(2):
            p.s("s_add_u32", st0, sb0, hg * 32 * PART_BLK + i * 8192)
            p.bload(vp[8 * hg + 4 * i:8 * hg + 4 * i + 4], vfr, rWS, soff=st0)
    vx = V(80, 8)
    vxo = V(9)
    p.s("s_lshl_b32", st0, srb, 6)
    p.s("s_lshl_b32", st1, sqt, 4)
    p.s("s_add_u32", st0, st0, st1)
    p.s("s_lshl_b32", st1, shalf, 3)
    p.s("s_add_u32", st0, st0, st1)
    p.v("v_add_u32", vt0, st0, vq)
    p.v("v_lshlrev_b32", vt0, 10, vt0)
    p.v("v_lshlrev_b32", vt1, 6, vf)
    p.v("v_lshlrev_b32", vt2, 3, vg)
    p.v("v_add3_u32", vxo, vt0, vt1, vt2)
    p.s("s_lshl_b32", st0, sw, 8)
    for i in range(2):
        for h in range(2):
            p.bload(vx[4 * i + 2 * h:4 * i + 2 * h + 2], vxo, rX, soff=st0, off=128 * i + 32 * h)
    vm = V(88, 48)
    vmo = V(10)
    p.v("v_lshlrev_b32", vt1, 7, vf)
    p.v("v_lshlrev_b32", vt2, 4, vg)
    p.v("v_add_u32", vmo, vt1, vt2)
    p.s("s_lshl_b32", st0, sw, 9)
    for k, vec in enumerate((2, 3, 4)):
        p.s("s_add_u32", st1, st0, WS_MOD + vec * 2048)
        for i in range(2):
            for h in range(2):
                o = 16 * k + 8 * i + 4 * h
                p.bload(vm[o:o + 4], vmo, rWS, soff=st1, off=256 * i + 64 * h)
    T("issued")
    a = V(136, 16)
    slo, shi = S(24), S(25)
    p.s("s_mov_b32", slo, 0x00003F80)
    p.s("s_mov_b32", shi, 0x3F800000)
    for hg in range(8):
        for i in range(2):
            for r in range(4):
                src = vp[8 * hg + 4 * i + r]
                for hi, sel in ((0, slo), (1, shi)):
                    d = a[8 * i + 2 * r + hi]
                    p.v("v_dot2_f32_bf16", d, src, sel, d if hg else 0)
    T("sum")
    xf = V(152, 16)
    for i in range(2):
        for h in range(2):
            for j in range(2):
                src = vx[4 * i + 2 * h + j]
                p.v("v_lshlrev_b32", xf[8 * i + 4 * h + 2 * j], 16, src)
                p.v("v_and_b32", xf[8 * i + 4 * h + 2 * j + 1], 0xFFFF0000, src)
    for i in range(2):
        for e in range(8):
            k = 8 * i + e
            bf16_round_hi(p, a[k], a[k])
    for i in range(2):
        for e in range(8):
            k = 8 * i + e
            p.v("v_mul_f32", a[k], a[k], vm[8 * i + e])
        for e in range(8):
            k = 8 * i + e
            bf16_round_hi(p, a[k], a[k])
        for e in range(8):
            k = 8 * i + e
            p.v("v_add_f32", xf[k], xf[k], a[k])
    x1p = V(16, 8)
    for i in range(2):
        for j in range(4):
            p.v("v_cvt_pk_bf16_f32", x1p[4 * i + j], xf[8 * i + 2 * j], xf[8 * i + 2 * j + 1])
    so = S(26)
    p.s("s_lshl_b32", so, srb, 16)
    p.s("s_lshl_b32", st0, sw, 14)
    p.s("s_add_u32", so, so, st0)
    p.s("s_lshl_b32", st0, sqt, 10)
    p.s("s_add_u32", so, so, st0)
    for i in range(2):
        p.s("s_add_u32", st0, so, WS_X1 + i * 8192)
        p.bstore(x1p[4 * i:4 * i + 4], vfr, rWS, soff=st0)
    for i in range(2):
        for j in range(4):
            p.v("v_lshlrev_b32", xf[8 * i + 2 * j], 16, x1p[4 * i + j])
            p.v("v_and_b32", xf[8 * i + 2 * j + 1], 0xFFFF0000, x1p[4 * i + j])
    s1, s2 = V(24), V(25)
    p.v("v_add_f32", s1, xf[0], xf[1])
    p.v("v_mul_f32", s2, xf[0], xf[0])
    p.v("v_fmac_f32", s2, xf[1], xf[1])
    for k in range(2, 16):
        p.v("v_add_f32", s1, s1, xf[k])
        p.v("v_fmac_f32", s2, xf[k], xf[k])
    for s_ in (s1, s2):
        p.v("v_add_f32_dpp", s_, s_, s_, mods="row_ror:8 row_mask:0xf bank_mask:0xf")
    for op in ("v_permlane16_swap_b32", "v_permlane32_swap_b32"):
        for s_, t_ in ((s1, vt0), (s2, vt1)):
            p.v("v_mov_b32", t_, s_)
            p.v(op, s_, t_)
            p.v("v_add_f32", s_, s_, t_)
    p.v("v_lshlrev_b32", vt0, 3, vq)
    p.s("s_lshl_b32", st0, sw, 6)
    p.v("v_add_u32", vt1, st0, vt0)
    s12 = V(26, 2)
    p.v("v_mov_b32", s12[0], s1)
    p.v("v_mov_b32", s12[1], s2)
    p.ds_write("ds_write_b64", vt1, s12)
    p.barrier()
    rr = V(28, 8)
    for w in range(4):
        p.ds_read("ds_read_b64", rr[2 * w:2 * w + 2], vt0, off=64 * w)
    p.v("v_add_f32", s1, rr[0], rr[2])
    p.v("v_add_f32", s2, rr[1], rr[3])
    p.v("v_add_f32", rr[4], rr[4], rr[6])
    p.v("v_add_f32", rr[5], rr[5], rr[7])
    p.v("v_add_f32", s1, s1, rr[4])
    p.v("v_add_f32", s2, s2, rr[5])
    mu, rs, nmr = V(36), V(37), V(38)
    p.v("v_mul_f32", mu, 1.0 / 512, s1)
    p.v("v_mul_f32", s2, 1.0 / 512, s2)
    p.v("v_fma_f32", s2, Neg(mu), mu, s2)
    p.v("v_max_f32", s2, 0, s2)
    p.v("v_add_f32", s2, 1e-5, s2)
    p.v("v_rsq_f32", rs, s2)
    p.v("v_mul_f32_e64", nmr, Neg(mu), rs)
    T("stats")
    for k in range(16):
        p.v("v_fma_f32", xf[k], xf[k], rs, nmr)
    for k in range(16):
        p.v("v_fma_f32", xf[k], xf[k], vm[32 + k], vm[16 + k])
    h2p = V(40, 8)
    for i in range(2):
        for j in range(4):
            p.v("v_cvt_pk_bf16_f32", h2p[4 * i + j], xf[8 * i + 2 * j], xf[8 * i + 2 * j + 1])
        p.s("s_add_u32", st0, so, WS_H2 + i * 8192)
        p.bstore(h2p[4 * i:4 * i + 4], vfr, rWS, soff=st0)
    T("stored")
    if diag:
        p.wait(vm=0)
    T("drained")
    T("rt1", True)
    T.flush(rWS, sw, 2, vt0, vt1)
    gen_r.stamp_names = T.names
    p.label("R_end")
    return finalize(p, verbose=True, name="R")
```

```python
from asmlib import *
from layout import *
from ka import srd, bf16_round_hi
import kb2
from kb2 import *

KNAME = NAME + "_kernel"
M_LDS = B_LDS
SC1 = "sc1"

DBG_MOD0 = 0
DBG_MOD1 = 128
DBG_CLR = 132
N_CNT = 48
CNT_PART, CNT_H2, CNT_ACT = 0, 32, 40

rDBG = S(96, 4)
sp0, sp1 = S(50), S(51)
rG, rU, rD, rOut = rWQ, rK, rV, rWO
vpoll = V(63)


def poll(p, srd_, off, target, name):
    lab, done = f"P_{name}", f"P_{name}_done"
    p.s("s_cmp_lg_u32", sw, 0)
    p.branch("s_cbranch_scc1", done)
    p.s("s_mov_b32", sp1, 0)
    p.v("v_mov_b32", vpoll, 0)
    p.label(lab)
    if isinstance(off, int):
        p.bload(V(62), vpoll, srd_, soff=0, off=off, flags=SC1)
    else:
        p.bload(V(62), vpoll, srd_, soff=off, flags=SC1)
    p.wait(vm=0)
    p.v("v_readfirstlane_b32", sp0, V(62))
    p.s("s_cmp_ge_u32", sp0, target)
    p.branch("s_cbranch_scc1", done)
    p.s("s_add_u32", sp1, sp1, 1)
    p.s("s_cmp_lt_u32", sp1, 0x40000)
    p.raw("s_sleep 1")
    p.add(I(f"s_cbranch_scc1 {lab}", "salu"))
    p.label(done)
    p.barrier(drain_lds=True)


def spin(p, srd_, off, target, name):
    lab, done = f"W_{name}", f"W_{name}_done"
    p.s("s_mov_b32", sp1, 0)
    p.label(lab)
    p.bload(V(62), vpoll, srd_, soff=0, off=off, flags=SC1)
    p.wait(vm=0)
    p.v("v_readfirstlane_b32", sp0, V(62))
    p.s("s_cmp_ge_u32", sp0, target)
    p.branch("s_cbranch_scc1", done)
    p.s("s_add_u32", sp1, sp1, 1)
    p.s("s_cmp_lt_u32", sp1, 0x40000)
    p.raw("s_sleep 1")
    p.add(I(f"s_cbranch_scc1 {lab}", "salu"))
    p.label(done)


aEarly = A(248, 2)


def early_sample(p):
    p.bload(aEarly, vpoll, rDBG, soff=0, off=DBG_MOD1, flags=SC1)


def confirm_early(p):
    for k, (off, target) in enumerate(((DBG_MOD1, 32), (DBG_CLR, N_CNT))):
        ok = f"C_early{k}_ok"
        p.v("v_accvgpr_read_b32", V(62), aEarly[k])
        p.v("v_readfirstlane_b32", sp0, V(62))
        p.s("s_cmp_ge_u32", sp0, target)
        p.branch("s_cbranch_scc1", ok)
        spin(p, rDBG, off, target, f"early{k}")
        p.label(ok)


def signal(p, srd_, off, name, pre=None):
    done = f"S_{name}_done"
    p.wait(vm=0)
    if pre:
        p.s("s_cmp_lg_u32", sw, 0)
        p.branch("s_cbranch_scc1", f"S_{name}_pre")
        pre(p)
        p.label(f"S_{name}_pre")
    p.barrier(drain_lds=True)
    p.s("s_cmp_lg_u32", sw, 0)
    p.branch("s_cbranch_scc1", done)
    add_one(p, srd_, off)
    p.label(done)


def add_one(p, srd_, off):
    p.v("v_mov_b32", V(62), 1)
    p.v("v_mov_b32", vpoll, 0)
    p.s("s_mov_b64", EXEC, 1)
    so, io = (off, 0) if not isinstance(off, int) else (0, off)
    t = f"buffer_atomic_add {V(62)}, " + Prog._bt(vpoll, srd_, so, io, SC1)
    p.add(I(t, "vstore", (), units(V(62), vpoll, srd_, so), meta={"data": units(V(62)), "wide": False}))
    p.s("s_mov_b64", EXEC, -1)


def cnt_off(p, dst, index_sgpr, base):
    p.s("s_add_u32", dst, index_sgpr, base)
    p.s("s_lshl_b32", dst, dst, 7)
    p.s("s_add_u32", dst, dst, WS_CNT)


SIL = WRING + 2 * SLOT
MPART = SIL + 1024
mreg = V(128, 100)


def slab_issue(p, rW, rC):
    regs = mreg
    st0, st1, so, sm = st[0], st[1], st[2], st[3]
    vt0, vt1, vt2, vc, vcoff = regs[0], regs[1], regs[2], regs[3], regs[4]
    vd = regs[8:12]
    p.v("v_lshlrev_b32", vcoff, 2, vtid)
    p.bload(vc, vcoff, rC)
    p.v("v_lshrrev_b32", vt0, 3, vl)
    p.s("s_mov_b32", st0, 6144)
    p.v("v_mul_lo_u32", vt0, vt0, st0)
    p.v("v_lshrrev_b32", vt1, 4, vl)
    p.v("v_lshlrev_b32", vt1, 1, vt1)
    p.v("v_and_b32", vt2, 7, vl)
    p.v("v_xor_b32", vt1, vt1, vt2)
    p.v("v_lshlrev_b32", vt1, 4, vt1)
    p.v("v_add_u32", vd[0], vt0, vt1)
    for j in range(1, 4):
        p.v("v_add_u32", vd[j], j * (8 * 6144 - 1024), vd[0])
    p.s("s_mul_i32", st0, sw, 128 * 6144)
    p.s("s_lshl_b32", st1, S(2), 7)
    p.s("s_add_u32", so, st0, st1)
    for grp in range(4):
        p.s("s_add_u32", M0, sMS, grp * 4096)
        if grp:
            p.s("s_add_u32", so, so, 32 * 6144)
        else:
            p.nop(0)
        for j in range(4):
            p.dma(vd[j], rW, so, off=1024 * j, tag=("slab", grp))


def slab_finish(p):
    regs = mreg
    st0, st1 = st[0], st[1]
    vt0, vt1, vt2, vc, vcoff = regs[0], regs[1], regs[2], regs[3], regs[4]
    s0, s1, e0, e1, vpk = regs[12], regs[13], regs[14], regs[15], regs[5]
    p.v("v_lshlrev_b32", s0, 16, vc)
    p.v("v_and_b32", s1, sHi, vc)
    for s_, e_ in ((s0, e0), (s1, e1)):
        p.v("v_mul_f32", e_, -1.4426950408889634, s_)
    for s_, e_ in ((s0, e0), (s1, e1)):
        p.v("v_exp_f32", e_, e_)
    for s_, e_ in ((s0, e0), (s1, e1)):
        p.v("v_add_f32", e_, 1.0, e_)
    for s_, e_ in ((s0, e0), (s1, e1)):
        p.v("v_rcp_f32", e_, e_)
    for s_, e_ in ((s0, e0), (s1, e1)):
        p.v("v_mul_f32", s_, s_, e_)
    p.v("v_cvt_pk_bf16_f32", vpk, s0, s1)
    p.v("v_add_u32", vt0, SIL, vcoff)
    p.ds_write("ds_write_b32", vt0, vpk)
    vtr_ = regs[16:20]
    p.v("v_and_b32", vt0, 3, vl)
    p.v("v_lshrrev_b32", vt1, 2, vl)
    p.v("v_lshlrev_b32", vtr_[0], 7, vt1)
    p.v("v_lshrrev_b32", vt1, 1, vt1)
    p.v("v_and_b32", vt1, 3, vt1)
    p.v("v_lshlrev_b32", vt1, 1, vt1)
    p.v("v_lshrrev_b32", vt2, 1, vt0)
    p.v("v_xor_b32", vt1, vt1, vt2)
    p.v("v_lshlrev_b32", vt1, 4, vt1)
    p.v("v_and_b32", vt0, 1, vt0)
    p.v("v_lshlrev_b32", vt0, 3, vt0)
    p.v("v_add3_u32", vtr_[0], vtr_[0], vt1, vt0)
    p.v("v_add_u32", vtr_[0], sMS, vtr_[0])
    for t in range(1, 4):
        p.v("v_xor_b32", vtr_[t], t << 5, vtr_[0])
    vb = regs[6]
    p.v("v_lshrrev_b32", vb, 4, vl)
    p.v("v_lshlrev_b32", vb, 3, vb)
    p.s("s_lshl_b32", st0, sw, 8)
    p.s("s_add_u32", st0, st0, SIL)
    p.v("v_add_u32", vb, st0, vb)
    p.barrier()
    acc_ = regs[20:36]
    bf = regs[36:52]
    af = regs[52:84]
    for ks in range(4):
        b = bf[4 * ks:4 * ks + 4]
        p.ds_read("ds_read_b64", b[0:2], vb, off=64 * ks)
        p.ds_read("ds_read_b64", b[2:4], vb, off=64 * ks + 32)
    for ks in range(4):
        for t in range(4):
            a = af[16 * (ks & 1) + 4 * t:16 * (ks & 1) + 4 * t + 4]
            p.ds_read("ds_read_b64_tr_b16", a[0:2], vtr_[t], off=ks * 4096, dep=("slab", ks))
            p.ds_read("ds_read_b64_tr_b16", a[2:4], vtr_[t], off=ks * 4096 + 2048, dep=("slab", ks))
        for t in range(4):
            a = af[16 * (ks & 1) + 4 * t:16 * (ks & 1) + 4 * t + 4]
            d = acc_[4 * t:4 * t + 4]
            p.mfma16(d, a, bf[4 * ks:4 * ks + 4], d if ks else 0)
    p.v("v_lshrrev_b32", vt1, 4, vl)
    p.v("v_lshlrev_b32", vt1, 4, vt1)
    p.s("s_lshl_b32", st0, sw, 8)
    p.s("s_add_u32", st0, st0, MPART)
    p.v("v_add_u32", vt1, st0, vt1)
    for t in range(4):
        p.ds_write("ds_write_b128", vt1, acc_[4 * t:4 * t + 4], off=64 * t)
    p.barrier()
    p.s("s_cmp_lg_u32", sw, 0)
    p.branch("s_cbranch_scc1", "M_slab_done")
    r4 = regs[20:24]
    p.v("v_lshlrev_b32", vt0, 2, vl)
    p.v("v_add_u32", vt1, MPART, vt0)
    for w in range(4):
        p.ds_read("ds_read_b32", r4[w], vt1, off=256 * w)
    p.v("v_add_f32", r4[0], r4[0], r4[1])
    p.v("v_add_f32", r4[2], r4[2], r4[3])
    p.v("v_add_f32", r4[0], r4[0], r4[2])
    bf16_round_hi(p, r4[0], r4[0])
    p.v("v_add_f32", r4[1], 1.0, r4[0])
    bf16_round_hi(p, r4[1], r4[1])
    p.s("s_lshr_b32", st0, S(2), 3)
    p.s("s_cmp_eq_u32", st0, 1)
    p.s("s_cselect_b32", st1, 1, 0)
    p.s("s_cmp_eq_u32", st0, 4)
    p.s("s_cselect_b32", st1, 1, st1)
    p.v("v_mov_b32", vt2, st1)
    p.v("v_cmp_eq_u32", VCC, 1, vt2)
    p.v("v_cndmask_b32", r4[0], r4[0], r4[1])
    p.s("s_cmp_lt_u32", st0, 2)
    p.s("s_mov_b32", st1, QSCALE)
    p.s("s_cselect_b32", st1, st1, 1.0)
    p.v("v_mul_f32", r4[0], st1, r4[0])
    p.s("s_lshl_b32", st0, S(2), 8)
    p.s("s_add_u32", st0, st0, WS_MOD)
    p.bstore(r4[0], vt0, rWS, soff=st0, flags=SC1)
    p.wait(vm=0)
    p.s("s_cmp_lt_u32", S(2), 16)
    p.s("s_cselect_b32", st0, DBG_MOD0, DBG_MOD1)
    add_one(p, rDBG, st0)
    add_one(p, rDBG, DBG_CLR)
    p.label("M_slab_done")


R_LDS = SH + 65536 - 512


def phase_r_issue(p):
    sqt, shalf, st0, st1, sb0 = st[2], st[3], st[0], st[1], st[4]
    vg, vq, vf = V(2), V(3), V(4)
    vt0, vt1, vt2 = V(5), V(6), V(7)
    p.v("v_and_b32", vq, 7, vl)
    p.v("v_lshrrev_b32", vg, 3, vl)
    p.v("v_and_b32", vg, 3, vg)
    p.v("v_lshrrev_b32", vf, 5, vl)
    p.s("s_lshr_b32", sqt, shg, 1)
    p.s("s_and_b32", shalf, shg, 1)
    vfr = V(8)
    p.v("v_lshlrev_b32", vt0, 4, vg)
    p.v("v_add_u32", vt0, vt0, vq)
    p.s("s_lshl_b32", st0, shalf, 3)
    p.v("v_add_u32", vt0, st0, vt0)
    p.v("v_lshlrev_b32", vt0, 4, vt0)
    p.v("v_lshlrev_b32", vt1, 12, vf)
    p.v("v_add_u32", vfr, vt0, vt1)
    p.s("s_mul_i32", sb0, srb, PART_BLK)
    p.s("s_lshl_b32", st0, sw, 14)
    p.s("s_add_u32", sb0, sb0, st0)
    p.s("s_lshl_b32", st0, sqt, 10)
    p.s("s_add_u32", sb0, sb0, st0)
    p.s("s_add_u32", sb0, sb0, WS_PART)
    vx = V(80, 8)
    vxo = V(9)
    p.s("s_lshl_b32", st0, srb, 6)
    p.s("s_lshl_b32", st1, sqt, 4)
    p.s("s_add_u32", st0, st0, st1)
    p.s("s_lshl_b32", st1, shalf, 3)
    p.s("s_add_u32", st0, st0, st1)
    p.v("v_add_u32", vt0, st0, vq)
    p.v("v_lshlrev_b32", vt0, 10, vt0)
    p.v("v_lshlrev_b32", vt1, 6, vf)
    p.v("v_lshlrev_b32", vt2, 3, vg)
    p.v("v_add3_u32", vxo, vt0, vt1, vt2)
    p.s("s_lshl_b32", st0, sw, 8)
    for i in range(2):
        for h in range(2):
            p.bload(vx[4 * i + 2 * h:4 * i + 2 * h + 2], vxo, rX, soff=st0, off=128 * i + 32 * h)
    vm = V(88, 48)
    vmo = V(10)
    p.v("v_lshlrev_b32", vt1, 7, vf)
    p.v("v_lshlrev_b32", vt2, 4, vg)
    p.v("v_add_u32", vmo, vt1, vt2)
    p.s("s_lshl_b32", st0, sw, 9)
    for k, vec in enumerate((2, 3, 4)):
        p.s("s_add_u32", st1, st0, WS_MOD + vec * 2048)
        for i in range(2):
            for h in range(2):
                o = 16 * k + 8 * i + 4 * h
                p.bload(vm[o:o + 4], vmo, rWS, soff=st1, off=256 * i + 64 * h, flags=SC1)


def phase_r_partials(p):
    st0, sb0 = st[0], st[4]
    vp = V(16, 64)
    vfr = V(8)
    for hg in range(8):
        for i in range(2):
            p.s("s_add_u32", st0, sb0, hg * 32 * PART_BLK + i * 8192)
            p.bload(vp[8 * hg + 4 * i:8 * hg + 4 * i + 4], vfr, rWS, soff=st0, flags=SC1)


def phase_r_compute(p, T):
    sqt, st0 = st[2], st[0]
    vq = V(3)
    vt0, vt1 = V(5), V(6)
    vfr = V(8)
    vp, vx, vm = V(16, 64), V(80, 8), V(88, 48)
    a = V(136, 16)
    slo, so = st[1], st[5]
    p.s("s_mov_b32", slo, 0x00003F80)
    p.s("s_mov_b32", sp1, 0x3F800000)
    for hg in range(8):
        for i in range(2):
            for r in range(4):
                src = vp[8 * hg + 4 * i + r]
                for hi, sel in ((0, slo), (1, sp1)):
                    d = a[8 * i + 2 * r + hi]
                    p.v("v_dot2_f32_bf16", d, src, sel, d if hg else 0)
    T("r_sum")
    xf = V(152, 16)
    for i in range(2):
        for h in range(2):
            for j in range(2):
                src = vx[4 * i + 2 * h + j]
                p.v("v_lshlrev_b32", xf[8 * i + 4 * h + 2 * j], 16, src)
                p.v("v_and_b32", xf[8 * i + 4 * h + 2 * j + 1], sHi, src)
    for k in range(16):
        p.v("v_fmac_f32", xf[k], a[k], vm[k])
    x1p = V(16, 8)
    for i in range(2):
        for j in range(4):
            p.v("v_cvt_pk_bf16_f32", x1p[4 * i + j], xf[8 * i + 2 * j], xf[8 * i + 2 * j + 1])
    p.s("s_lshl_b32", so, srb, 16)
    p.s("s_lshl_b32", st0, sw, 14)
    p.s("s_add_u32", so, so, st0)
    p.s("s_lshl_b32", st0, sqt, 10)
    p.s("s_add_u32", so, so, st0)
    for i in range(2):
        p.s("s_add_u32", st0, so, WS_X1 + i * 8192)
        p.bstore(x1p[4 * i:4 * i + 4], vfr, rWS, soff=st0, flags=SC1)
    for i in range(2):
        for j in range(4):
            p.v("v_lshlrev_b32", xf[8 * i + 2 * j], 16, x1p[4 * i + j])
            p.v("v_and_b32", xf[8 * i + 2 * j + 1], sHi, x1p[4 * i + j])
    s1, s2 = V(24), V(25)
    p.v("v_add_f32", s1, xf[0], xf[1])
    p.v("v_mul_f32", s2, xf[0], xf[0])
    p.v("v_fmac_f32", s2, xf[1], xf[1])
    for k in range(2, 16):
        p.v("v_add_f32", s1, s1, xf[k])
        p.v("v_fmac_f32", s2, xf[k], xf[k])
    for s_ in (s1, s2):
        p.v("v_add_f32_dpp", s_, s_, s_, mods="row_ror:8 row_mask:0xf bank_mask:0xf")
    for op in ("v_permlane16_swap_b32", "v_permlane32_swap_b32"):
        for s_, t_ in ((s1, vt0), (s2, vt1)):
            p.v("v_mov_b32", t_, s_)
        for s_, t_ in ((s1, vt0), (s2, vt1)):
            p.v(op, s_, t_)
        for s_, t_ in ((s1, vt0), (s2, vt1)):
            p.v("v_add_f32", s_, s_, t_)
    p.v("v_lshlrev_b32", vt0, 3, vq)
    p.v("v_add_u32", vt0, R_LDS, vt0)
    p.s("s_lshl_b32", st0, sw, 6)
    p.v("v_add_u32", vt1, st0, vt0)
    s12 = V(26, 2)
    p.v("v_mov_b32", s12[0], s1)
    p.v("v_mov_b32", s12[1], s2)
    p.ds_write("ds_write_b64", vt1, s12)
    p.barrier()
    rr = V(28, 8)
    for w in range(4):
        p.ds_read("ds_read_b64", rr[2 * w:2 * w + 2], vt0, off=64 * w)
    p.v("v_add_f32", s1, rr[0], rr[2])
    p.v("v_add_f32", s2, rr[1], rr[3])
    p.v("v_add_f32", rr[4], rr[4], rr[6])
    p.v("v_add_f32", rr[5], rr[5], rr[7])
    p.v("v_add_f32", s1, s1, rr[4])
    p.v("v_add_f32", s2, s2, rr[5])
    mu, rs2, nm2 = V(36), V(38, 2), V(40, 2)
    p.v("v_mul_f32", mu, 1.0 / 512, s1)
    p.v("v_mul_f32", s2, 1.0 / 512, s2)
    p.v("v_fma_f32", s2, Neg(mu), mu, s2)
    p.v("v_max_f32", s2, 0, s2)
    p.v("v_add_f32", s2, 1e-5, s2)
    p.v("v_rsq_f32", rs2[0], s2)
    p.v("v_mul_f32_e64", nm2[0], Neg(mu), rs2[0])
    p.v("v_mov_b32", rs2[1], rs2[0])
    p.v("v_mov_b32", nm2[1], nm2[0])
    for k in range(8):
        p.v("v_pk_fma_f32", xf[2 * k:2 * k + 2], xf[2 * k:2 * k + 2], rs2, nm2)
    for k in range(8):
        p.v("v_pk_fma_f32", xf[2 * k:2 * k + 2], xf[2 * k:2 * k + 2], vm[32 + 2 * k:34 + 2 * k], vm[16 + 2 * k:18 + 2 * k])
    h2p = V(44, 8)
    for i in range(2):
        for j in range(4):
            p.v("v_cvt_pk_bf16_f32", h2p[4 * i + j], xf[8 * i + 2 * j], xf[8 * i + 2 * j + 1])
        p.s("s_add_u32", st0, so, WS_H2 + i * 8192)
        p.bstore(h2p[4 * i:4 * i + 4], vfr, rWS, soff=st0, flags=SC1)


ROWB = 2752
sDrb, sDcg, sDact, sDH = S(40 + 12), S(40 + 13), S(40 + 14), S(40 + 15)
sErb, sEcb, sEact, sEwd = S(56), S(57), S(58), S(59)


def d_ids(p):
    st0, st1 = st[0], st[1]
    p.s("s_and_b32", st0, shg, 1)
    p.s("s_lshl_b32", st0, st0, 2)
    p.s("s_and_b32", st1, srb, 3)
    p.s("s_add_u32", sDrb, st0, st1)
    p.s("s_lshr_b32", st0, shg, 1)
    p.s("s_mul_i32", st1, st0, 7)
    p.s("s_add_u32", st1, st1, 1)
    p.s("s_cmp_eq_u32", st0, 0)
    p.s("s_cselect_b32", sDcg, 0, st1)
    p.s("s_cselect_b32", st0, 8, 7)
    p.s("s_lshr_b32", st1, srb, 2)
    p.s("s_add_u32", sDcg, sDcg, st1)
    p.s("s_cmp_lt_u32", st1, st0)
    p.s("s_cselect_b32", sDact, 1, 0)


def d_weights(p):
    st0, st1 = st[0], st[1]
    vt_ = V(170, 5)
    vd = V(176, 3)
    smag = S(61)
    p.s("s_mov_b32", smag, 0xAAAB)
    p.s("s_mov_b32", st0, ROWB)
    for k in range(3):
        p.v("v_add_u32", vt_[0], 64 * k, vl)
        p.v("v_mul_lo_u32", vt_[1], vt_[0], smag)
        p.v("v_lshrrev_b32", vt_[1], 18, vt_[1])
        p.v("v_mul_u32_u24", vt_[2], 6, vt_[1])
        p.v("v_sub_u32", vt_[2], vt_[0], vt_[2])
        p.v("v_lshlrev_b32", vt_[2], 4, vt_[2])
        p.v("v_mul_lo_u32", vt_[1], vt_[1], st0)
        p.v("v_add_u32", vd[k], vt_[1], vt_[2])
        if k:
            p.v("v_subrev_u32", vd[k], 1024 * k, vd[k])
    sWo, sL = S(62), S(63)
    p.s("s_mul_i32", sWo, sw, 32 * ROWB)
    p.s("s_mul_i32", st0, sDcg, 96)
    p.s("s_add_u32", sWo, sWo, st0)
    p.s("s_mul_i32", sL, sw, 3072)
    for i in range(4):
        for m, r_ in enumerate((rG, rU)):
            p.s("s_add_u32", st0, sWo, i * 4 * 32 * ROWB)
            p.s("s_add_u32", M0, sL, m * 49152 + i * 4 * 3072)
            p.nop(0)
            for k in range(3):
                p.dma(vd[k], r_, st0, off=1024 * k, tag="dw")


E_RING = SH
E_NSLOT = 4


def phase_d(p, T, e_prefetch):
    st0, st1 = st[0], st[1]
    sH, sAct = st[2], st[3]
    vlin_ = V(2)
    vt_ = V(3, 5)
    vtr_ = V(12, 2)
    p.v("v_lshlrev_b32", vlin_, 4, vl)
    p.s("s_lshl_b32", sH, sDrb, 2)
    p.s("s_add_u32", sH, sH, sw)
    p.s("s_mul_i32", sAct, sH, ACT_RB)
    p.s("s_lshl_b32", sH, sH, 16)
    p.s("s_add_u32", sH, sH, WS_H2)
    p.s("s_mul_i32", st0, sDcg, 6144)
    p.s("s_add_u32", sAct, sAct, st0)
    p.s("s_add_u32", sAct, sAct, WS_ACT)
    NB = 6
    vB_ = V(128, 16 * NB)

    def bfr(ks, qt):
        o = 16 * (ks % NB) + 4 * qt
        return vB_[o:o + 4]

    def load_b(ks):
        q = Prog()
        q.s("s_add_u32", st1, sH, ks * 4096)
        for qt in range(4):
            q.bload(bfr(ks, qt), vlin_, rWS, soff=st1, off=1024 * qt, flags=SC1)
        return q.ins

    p.v("v_lshrrev_b32", vt_[0], 2, vl)
    p.v("v_mul_u32_u24", vt_[0], 96, vt_[0])
    p.v("v_and_b32", vt_[1], 3, vl)
    p.v("v_lshlrev_b32", vt_[1], 3, vt_[1])
    p.v("v_add_u32", vtr_[0], vt_[0], vt_[1])
    p.v("v_add_u32", vtr_[1], 49152, vtr_[0])
    cnt_off(p, st[4], sDrb, CNT_H2)
    p.wait(vm=0)
    poll(p, rWS, st[4], 32, "h2")
    T("d_go")
    for ks in range(NB):
        for x in load_b(ks):
            p.add(x)
    e_prefetch()
    accd = V(16, 96)
    vA = V(112, 16)

    def accr(m, t, qt):
        o = 48 * m + 16 * t + 4 * qt
        return accd[o:o + 4]

    def afr(i):
        return vA[4 * (i % 4):4 * (i % 4) + 4]

    def rd_a(ks, f):
        q = Prog()
        m, t = f // 3, f % 3
        for h in range(2):
            q.ds_read("ds_read_b64_tr_b16", afr(6 * ks + f)[2 * h:2 * h + 2], vtr_[m], off=ks * 3072 + 1536 * h + 32 * t)
        return q.ins

    for f in range(2):
        for x in rd_a(0, f):
            p.add(x)
    for ks in range(16):
        for f in range(6):
            m, t = f // 3, f % 3
            nf, nks = (f + 2) % 6, ks + (f + 2) // 6
            pre = rd_a(nks, nf) if nks < 16 else []
            for qt in range(4):
                d = accr(m, t, qt)
                p.mfma16(d, afr(6 * ks + f), bfr(ks, qt), d if ks else 0)
                if qt < 2 and pre:
                    p.add(pre[qt])
            if f == 5 and ks + NB < 16:
                for x in load_b(ks + NB):
                    p.add(x)
    T("d_mma")
    o = V(128, 32)
    for qt in range(4):
        for t in range(3):
            g_, u_ = accr(0, t, qt), accr(1, t, qt)
            for r in range(4):
                p.v("v_mul_f32", g_[r], g_[r], u_[r])
        full = o[8 * qt:8 * qt + 4]
        half = o[8 * qt + 4:8 * qt + 6]
        for t in range(3):
            g_ = accr(0, t, qt)
            dst = full[2 * t:2 * t + 2] if t < 2 else half
            p.v("v_cvt_pk_bf16_f32", dst[0], g_[0], g_[1])
            p.v("v_cvt_pk_bf16_f32", dst[1], g_[2], g_[3])
        p.bstore(full, vlin_, rWS, soff=sAct, off=1024 * qt, flags=SC1)
    vh = vt_[0]
    p.v("v_lshlrev_b32", vh, 3, vl)
    p.s("s_add_u32", st0, sAct, 4096)
    p.s("s_cmp_eq_u32", sDcg, 28)
    p.branch("s_cbranch_scc1", "D_skip_half")
    for qt in range(4):
        p.bstore(o[8 * qt + 4:8 * qt + 6], vh, rWS, soff=st0, off=512 * qt, flags=SC1)
    p.label("D_skip_half")
    cnt_off(p, st[4], sDrb, CNT_ACT)
    signal(p, rWS, st[4], "act")


eRing, eSa, eSd = S(60), S(61), S(62)
eVd, eVtr, eLin, eLin8 = V(232, 2), V(234, 4), V(238), V(239)
eAcc, eA, eB = V(16, 64), V(80, 16), V(96, 16 * E_NSLOT)


def e_setup(p):
    st0, st1 = st[0], st[1]
    vt_ = V(240, 4)
    p.v("v_lshlrev_b32", eLin, 4, vl)
    p.v("v_lshlrev_b32", eLin8, 3, vl)
    p.s("s_lshl_b32", st0, shg, 2)
    p.s("s_lshr_b32", st1, S(2), 6)
    p.s("s_add_u32", sErb, st0, st1)
    p.s("s_and_b32", sEcb, srb, 7)
    p.s("s_lshl_b32", eRing, sw, 14)
    p.s("s_add_u32", eRing, eRing, E_RING)
    p.v("v_lshrrev_b32", vt_[0], 3, vl)
    p.v("v_lshlrev_b32", vt_[1], 10, vt_[0])
    p.v("v_lshrrev_b32", vt_[0], 1, vt_[0])
    p.v("v_and_b32", vt_[0], 3, vt_[0])
    p.v("v_lshlrev_b32", vt_[0], 1, vt_[0])
    p.v("v_and_b32", vt_[2], 7, vl)
    p.v("v_xor_b32", vt_[0], vt_[0], vt_[2])
    p.v("v_lshlrev_b32", vt_[0], 4, vt_[0])
    p.v("v_add_u32", eVd[0], vt_[0], vt_[1])
    p.v("v_add_u32", eVd[1], 8 * 1024 - 1024, eVd[0])
    p.v("v_lshrrev_b32", vt_[0], 2, vl)
    p.v("v_lshlrev_b32", vt_[1], 7, vt_[0])
    p.v("v_lshrrev_b32", vt_[0], 1, vt_[0])
    p.v("v_and_b32", vt_[0], 3, vt_[0])
    p.v("v_lshlrev_b32", vt_[0], 1, vt_[0])
    p.v("v_and_b32", vt_[2], 3, vl)
    p.v("v_lshrrev_b32", vt_[3], 1, vt_[2])
    p.v("v_xor_b32", vt_[0], vt_[0], vt_[3])
    p.v("v_lshlrev_b32", vt_[0], 4, vt_[0])
    p.v("v_and_b32", vt_[2], 1, vt_[2])
    p.v("v_lshlrev_b32", vt_[2], 3, vt_[2])
    p.v("v_add3_u32", eVtr[0], vt_[0], vt_[1], vt_[2])
    p.v("v_add_u32", eVtr[0], eRing, eVtr[0])
    for t in range(1, 4):
        p.v("v_xor_b32", eVtr[t], t << 5, eVtr[0])
    p.s("s_mul_i32", sEact, sErb, ACT_RB)
    p.s("s_mul_i32", st0, sw, 2 * 6144)
    p.s("s_add_u32", sEact, sEact, st0)
    p.s("s_add_u32", sEact, sEact, WS_ACT)
    p.s("s_mul_i32", sEwd, sw, 96 * 1024)
    p.s("s_lshl_b32", st0, sEcb, 7)
    p.s("s_add_u32", sEwd, sEwd, st0)


def e_issue_w(q, n, kind, pair_off):
    doff = pair_off * 4 * 96 * 1024
    slot = (n % E_NSLOT) * 4096
    if kind < 2:
        rows = [doff + (48 * kind) * 1024, doff + (48 * kind + 16) * 1024]
    else:
        rows = [doff + 32 * 1024, doff + (48 + 32) * 1024]
    for hf in range(2):
        q.s("s_add_u32", eSd, sEwd, rows[hf])
        q.s("s_add_u32", M0, eRing, slot + 2048 * hf)
        q.nop(0)
        for j in range(2):
            q.dma(eVd[j], rD, eSd, off=1024 * j, tag=("e", n), ovw=("e", n - E_NSLOT))


def e_bfr(n, qt):
    o = 16 * (n % E_NSLOT) + 4 * qt
    return eB[o:o + 4]


def e_issue_b(q, n, kind, pair_off):
    aoff = pair_off * 8 * 6144
    if kind < 2:
        q.s("s_add_u32", eSa, sEact, aoff + kind * 6144)
        for qt in range(4):
            q.bload(e_bfr(n, qt), eLin, rWS, soff=eSa, off=1024 * qt, flags=SC1)
    else:
        for hf in range(2):
            q.s("s_add_u32", eSa, sEact, aoff + hf * 6144 + 4096)
            for qt in range(4):
                q.bload(e_bfr(n, qt)[2 * hf:2 * hf + 2], eLin8, rWS, soff=eSa, off=512 * qt, flags=SC1)


def phase_e(p, T):
    st0, st1 = st[0], st[1]
    vt_ = V(240, 4)

    def accr(t, qt):
        return eAcc[16 * t + 4 * qt:16 * t + 4 * qt + 4]

    def afr(i):
        return eA[4 * (i % 4):4 * (i % 4) + 4]

    def rd_a(n, t):
        q = Prog()
        for h in range(2):
            q.ds_read("ds_read_b64_tr_b16", afr(4 * n + t)[2 * h:2 * h + 2], eVtr[t],
                      off=(n % E_NSLOT) * 4096 + 2048 * h, dep=("e", n))
        return q.ins

    def step(n, first, nxt, have_next):
        for t in range(4):
            tn, nn = (t + 2) % 4, n + (t + 2) // 4
            pre = rd_a(nn, tn) if (nn == n or have_next) else []
            for qt in range(4):
                d = accr(t, qt)
                p.mfma16(d, afr(4 * n + t), e_bfr(n, qt), d if not first else 0)
                if qt < 2 and pre:
                    p.add(pre[qt])
        for x in nxt:
            p.add(x)

    x1 = V(160, 8)
    gb = V(168, 16)
    p.s("s_add_u32", st[4], shg, CNT_ACT)
    p.s("s_lshl_b32", st[4], st[4], 7)
    p.s("s_add_u32", st[4], st[4], WS_CNT)
    poll(p, rWS, st[4], 29, "act")
    T("e_go")
    for n in range(E_NSLOT):
        e_issue_b(p, n, n % 3, n // 3)
    p.s("s_lshl_b32", st0, sErb, 16)
    p.s("s_lshl_b32", st1, sEcb, 13)
    p.s("s_add_u32", st0, st0, st1)
    p.s("s_lshl_b32", st1, sw, 10)
    p.s("s_add_u32", st0, st0, st1)
    p.s("s_add_u32", st0, st0, WS_X1)
    p.bload(x1[0:4], eLin, rWS, soff=st0, flags=SC1)
    p.s("s_add_u32", st0, st0, 4096)
    p.bload(x1[4:8], eLin, rWS, soff=st0, flags=SC1)
    p.v("v_lshrrev_b32", vt_[1], 4, vl)
    p.v("v_lshlrev_b32", vt_[1], 4, vt_[1])
    p.s("s_lshl_b32", st0, sEcb, 8)
    p.s("s_add_u32", st0, st0, WS_MOD + 5 * 2048)
    for t in range(4):
        p.bload(gb[4 * t:4 * t + 4], vt_[1], rWS, soff=st0, off=64 * t, flags=SC1)
    for t in range(2):
        for x in rd_a(0, t):
            p.add(x)
    for n in range(9):
        q = Prog()
        m = n + E_NSLOT
        if m < 9:
            e_issue_w(q, m, m % 3, m // 3)
            e_issue_b(q, m, m % 3, m // 3)
        step(n, n == 0, q.ins, n < 8)
    T("e_main")
    p.s("s_cmp_lt_u32", sw, 2)
    p.branch("s_cbranch_scc1", "E_four")
    p.s("s_cmp_eq_u32", sw, 3)
    p.branch("s_cbranch_scc1", "E_red")
    n = 9
    p.s("s_sub_u32", sEact, sEact, 2 * 2 * 6144 - 28 * 6144)
    p.s("s_sub_u32", sEwd, sEwd, 2 * 96 * 1024 - 1344 * 1024)
    e_issue_w(p, n, 0, 0)
    e_issue_b(p, n, 0, 0)
    for t in range(2):
        for x in rd_a(n, t):
            p.add(x)
    step(n, False, [], False)
    p.branch("s_branch", "E_red")
    p.label("E_four")
    for n in range(9, 12):
        e_issue_w(p, n, n % 3, 3)
        e_issue_b(p, n, n % 3, 3)
    for t in range(2):
        for x in rd_a(9, t):
            p.add(x)
    for n in range(9, 12):
        step(n, False, [], n < 11)
    p.label("E_red")
    T("e_tail")
    p.wait(vm=0, lgkm=0)
    p.s("s_lshl_b32", st0, sw, 12)
    p.v("v_add_u32", vt_[0], st0, eLin)
    for qt in range(4):
        for t in range(4):
            p.ds_write("ds_write_b128", vt_[0], accr(t, qt), off=qt * 16384 + t * 1024)
    p.barrier()
    red = V(96, 64)
    p.s("s_lshl_b32", st0, sw, 14)
    p.v("v_add_u32", vt_[0], st0, eLin)
    for w in range(4):
        for t in range(4):
            p.ds_read("ds_read_b128", red[16 * w + 4 * t:16 * w + 4 * t + 4], vt_[0], off=w * 4096 + t * 1024)
    for k in range(8):
        p.v("v_pk_add_f32", red[2 * k:2 * k + 2], red[2 * k:2 * k + 2], red[16 + 2 * k:18 + 2 * k])
        p.v("v_pk_add_f32", red[32 + 2 * k:34 + 2 * k], red[32 + 2 * k:34 + 2 * k], red[48 + 2 * k:50 + 2 * k])
    for k in range(8):
        p.v("v_pk_add_f32", red[2 * k:2 * k + 2], red[2 * k:2 * k + 2], red[32 + 2 * k:34 + 2 * k])
    xf = V(184, 16)
    for j in range(2):
        for h in range(2):
            for i in range(2):
                src = x1[4 * j + 2 * h + i]
                k = 8 * j + 4 * h + 2 * i
                p.v("v_lshlrev_b32", xf[k], 16, src)
                p.v("v_and_b32", xf[k + 1], sHi, src)
    for k in range(16):
        p.v("v_fmac_f32", xf[k], red[k], gb[k])
    op = V(200, 8)
    for k in range(8):
        p.v("v_cvt_pk_bf16_f32", op[k], xf[2 * k], xf[2 * k + 1])
    p.v("v_and_b32", vt_[0], 15, vl)
    p.v("v_lshlrev_b32", vt_[0], 10, vt_[0])
    p.v("v_lshrrev_b32", vt_[1], 4, vl)
    p.v("v_lshlrev_b32", vt_[1], 3, vt_[1])
    p.v("v_add_u32", vt_[0], vt_[0], vt_[1])
    p.s("s_lshl_b32", st0, sErb, 6)
    p.s("s_lshl_b32", st1, sw, 4)
    p.s("s_add_u32", st0, st0, st1)
    p.s("s_lshl_b32", st0, st0, 10)
    p.s("s_lshl_b32", st1, sEcb, 7)
    p.s("s_add_u32", st0, st0, st1)
    for t in range(4):
        p.bstore(op[2 * t:2 * t + 2], vt_[0], rOut, soff=st0, off=32 * t)


def gen_mega(diag=False):
    p = Prog()
    T = Stamps(p, diag, vreg=V(0))
    p.s("s_cmp_ge_u32", S(2), 256)
    p.branch("s_cbranch_scc1", "B_end")
    T("rt0", True)
    T("start")
    ptr = {k: S(52 + 2 * i, 2) for i, k in enumerate(["x", "ws", "dbg", "wmod", "c", "wq"])}
    for k in ptr:
        p.s_load(ptr[k], S(0, 2), ARG[k])
    p.v("v_lshrrev_b32", vt[0], 6, vtid)
    p.v("v_and_b32", vl, 63, vtid)
    p.v("v_readfirstlane_b32", sw, vt[0])
    p.s("s_and_b32", shg, S(2), 7)
    p.s("s_lshr_b32", srb, S(2), 3)
    p.s("s_and_b32", srot, srb, 15)
    p.s("s_lshl_b32", shead, shg, 2)
    p.s("s_mov_b32", sHi, 0xFFFF0000)
    vq, vg = vtmp[0], vtmp[1]
    p.v("v_and_b32", vq, 15, vl)
    p.v("v_lshrrev_b32", vg, 4, vl)
    p.v("v_lshlrev_b32", vlin, 4, vl)
    p.v("v_mov_b32", vpoll, 0)
    p.s("s_add_u32", shead, shead, sw)
    p.s("s_mul_i32", sMW, sw, WRING)
    p.s("s_lshl_b32", sMS, sw, 14)
    p.s("s_add_u32", sMS, sMS, SH)
    vxo = vtmp[2]
    p.s("s_lshl_b32", st[0], srb, 6)
    p.s("s_lshl_b32", st[1], sw, 4)
    p.s("s_add_u32", st[0], st[0], st[1])
    p.v("v_add_u32", vxo, st[0], vq)
    p.v("v_lshlrev_b32", vxo, 10, vxo)
    p.v("v_lshl_add_u32", vxo, vg, 4, vxo)
    p.wait(lgkm=0)
    srd(p, rX, ptr["x"], SZ["x"])
    srd(p, rWS, ptr["ws"], WS_DIAG_END if diag else WS_END)
    srd(p, rDBG, ptr["dbg"], 256)
    srd(p, rWQ, ptr["wq"], SZ["wq"])
    p.s("s_cmp_ge_u32", S(2), N_CNT)
    p.branch("s_cbranch_scc1", "M_no_slab")
    srd(p, rV, ptr["wmod"], SZ["wmod"])
    srd(p, rWO, ptr["c"], SZ["c"])
    slab_issue(p, rV, rWO)
    p.v("v_mov_b32", V(62), 0)
    p.v("v_mov_b32", vpoll, 0)
    p.s("s_lshl_b32", st[0], S(2), 7)
    p.s("s_add_u32", st[0], st[0], WS_CNT)
    p.bstore(V(62), vpoll, rWS, soff=st[0], flags=SC1)
    p.label("M_no_slab")
    ptr2 = {k: S(52 + 2 * i, 2) for i, k in enumerate(["k", "v", "wo"])}
    for k in ptr2:
        p.s_load(ptr2[k], S(0, 2), ARG[k])
    vX = V(64, 64)
    p.s("s_lshl_b32", st[0], srot, 6)
    for n in range(16):
        p.bload(vX[4 * n:4 * n + 4], vxo, rX, soff=st[0])
        if n < 15:
            p.s("s_add_u32", st[0], st[0], 64)
            p.s("s_and_b32", st[0], st[0], 0x3FF)
    T("issued")
    p.wait(lgkm=0)
    dma_voffs(p, vdQ, 8192, "n8", 8)
    p.s("s_lshl_b32", sA, srot, 18)
    p.s("s_lshl_b32", st[1], shead, 8)
    p.s("s_add_u32", sA, sA, st[1])
    dma_now(p, "wq", 0)
    dma_now(p, "wq", 1)
    p.s("s_cmp_ge_u32", S(2), N_CNT)
    p.branch("s_cbranch_scc1", "M_no_slab2")
    slab_finish(p)
    p.label("M_no_slab2")
    bc_setup(p, ptr2)
    vone, vz = vtmp[4:8], vtmp[8:12]
    T("setup")

    gram, rsum = vtmp[12:16], A(232, 4)
    for n in range(16):
        xs = vX[4 * n:4 * n + 4]
        p.mfma16(gram, xs, xs, gram if n else 0)
        p.mfma16(rsum, vone, xs, rsum if n else 0)
    rs0 = vt[6]
    p.v("v_accvgpr_read_b32", rs0, rsum[0])
    mu, rs2, nm2 = vt[7], V(50, 2), V(52, 2)
    row_stats(p, gram, [rs0], vq, vg, mu, rs2[0], nm2[0], vt[0], vt[1])
    p.v("v_mov_b32", rs2[1], rs2[0])
    p.v("v_mov_b32", nm2[1], nm2[0])
    vY = V(128, 128)
    for n in range(16):
        xs = vX[4 * n:4 * n + 4]
        y = vY[8 * n:8 * n + 8]
        for i in range(4):
            p.v("v_lshlrev_b32", y[2 * i], 16, xs[i])
            p.v("v_and_b32", y[2 * i + 1], sHi, xs[i])
        for i in range(4):
            p.v("v_pk_fma_f32", y[2 * i:2 * i + 2], y[2 * i:2 * i + 2], rs2, nm2)
    vts = vt[5]
    p.s("s_lshl_b32", st[1], sw, 2)
    p.s("s_add_u32", st[1], st[1], srot)
    p.v("v_add_u32", vt[0], st[1], vg)
    p.v("v_and_b32", vt[0], 15, vt[0])
    p.v("v_lshlrev_b32", vt[0], 7, vt[0])
    p.v("v_lshrrev_b32", vt[1], 3, vq)
    p.v("v_lshl_add_u32", vt[0], vt[1], 11, vt[0])
    p.v("v_and_b32", vt[1], 7, vq)
    p.v("v_lshl_add_u32", vts, vt[1], 4, vt[0])
    T("ln")
    poll(p, rDBG, DBG_MOD0, 16, "mod0")
    T("mod0")
    p.s("s_lshl_b32", st[1], sw, 10)
    p.s("s_add_u32", M0, st[1], TAB)
    p.s("s_mov_b32", st[1], WS_MOD)
    p.dma(vts, rWS, st[1], tag="tab", flags=SC1)
    vwu = A(240, 8)
    p.v("v_lshlrev_b32", vt[0], 6, vl)
    p.s("s_add_u32", st[1], sK, 4096)
    p.bload(vwu[0], vt[0], rK, soff=sK)
    p.bload(vwu[1], vt[0], rK, soff=st[1])
    p.bload(vwu[2], vt[0], rV, soff=sK)
    p.bload(vwu[3], vt[0], rV, soff=st[1])
    p.v("v_lshrrev_b32", vt[0], 2, vl)
    p.v("v_lshlrev_b32", vt[0], 10, vt[0])
    p.v("v_and_b32", vt[1], 3, vl)
    p.v("v_lshl_add_u32", vt[0], vt[1], 6, vt[0])
    p.s("s_lshl_b32", st[1], srot, 15)
    p.s("s_lshl_b32", st[2], sw, 8)
    p.s("s_add_u32", st[1], st[1], st[2])
    p.bload(vwu[4], vt[0], rWO, soff=st[1])
    p.s("s_add_u32", st[1], st[1], 16384)
    p.bload(vwu[5], vt[0], rWO, soff=st[1])
    vtab, vhw = vt[2], vt[3]
    p.v("v_lshlrev_b32", vtab, 5, vg)
    p.v("v_add_u32", vtab, TAB, vtab)
    p.s("s_lshl_b32", st[1], sw, 10)
    p.s("s_add_u32", st[1], st[1], SH)
    p.v("v_add_u32", vhw, st[1], vlin)
    p.barrier(dep="tab")
    T("tab")

    def rd_tab(n):
        tb = V(64 + 16 * (n % 3), 16)
        for i, o in enumerate((0, 16, 128, 144)):
            p.ds_read("ds_read_b128", tb[4 * i:4 * i + 4], vtab, off=n * 256 + o)

    rd_tab(0)
    rd_tab(1)
    for n in range(16):
        tb = V(64 + 16 * (n % 3), 16)
        y = vY[8 * n:8 * n + 8]
        o4 = V(112 + 4 * (n & 3), 4)
        if n + 2 < 16:
            rd_tab(n + 2)
        for i in range(4):
            p.v("v_pk_fma_f32", y[2 * i:2 * i + 2], y[2 * i:2 * i + 2], tb[8 + 2 * i:10 + 2 * i], tb[2 * i:2 * i + 2])
        for i in range(4):
            p.v("v_cvt_pk_bf16_f32", o4[i], y[2 * i], y[2 * i + 1])
        p.ds_write("ds_write_b128", vhw, o4, off=n * 4096)
    for i in range(8):
        zero16(p, vACC[16 * i:16 * i + 16], vz)
    p.barrier()
    T("h_ready")

    bc_main(p, T, store_flags=SC1, after_q=early_sample)
    T("o_done")

    ptr3 = {k: S(52 + 2 * i, 2) for i, k in enumerate(["wg", "wu", "wd", "out"])}
    for k in ptr3:
        p.s_load(ptr3[k], S(0, 2), ARG[k])
    p.wait(lgkm=0)
    srd(p, rG, ptr3["wg"], SZ["wg"])
    srd(p, rU, ptr3["wu"], SZ["wu"])
    srd(p, rD, ptr3["wd"], SZ["wd"])
    srd(p, rOut, ptr3["out"], SZ["out"])
    d_ids(p)
    cnt_off(p, st[5], srb, CNT_PART)
    signal(p, rWS, st[5], "part", pre=confirm_early)
    phase_r_issue(p)
    cnt_off(p, st[5], srb, CNT_PART)
    poll(p, rWS, st[5], 8, "part")
    T("r_go")
    phase_r_partials(p)
    p.s("s_cmp_eq_u32", sDact, 0)
    p.branch("s_cbranch_scc1", "M_no_dw")
    save = st[4]
    d_weights(p)
    p.label("M_no_dw")
    phase_r_compute(p, T)
    p.s("s_lshr_b32", st[0], srb, 2)
    cnt_off(p, st[4], st[0], CNT_H2)
    signal(p, rWS, st[4], "h2")
    T("r_done")
    e_setup(p)

    def e_prefetch():
        for n in range(E_NSLOT):
            e_issue_w(p, n, n % 3, n // 3)

    p.s("s_cmp_eq_u32", sDact, 0)
    p.branch("s_cbranch_scc1", "M_no_d")
    phase_d(p, T, e_prefetch)
    p.branch("s_branch", "M_e")
    p.label("M_no_d")
    p.barrier()
    e_prefetch()
    p.label("M_e")
    T("d_done")
    phase_e(p, T)
    T("e_done")
    if diag:
        p.wait(vm=0)
    T("rt1", True)
    T.flush(rWS, sw, 1, vt[0], vt[1])
    gen_mega.stamp_names = T.names
    p.branch("s_branch", "B_end")
    slow_attention(p)
    p.label("B_end")
    resolve_ovw(p.ins)
    return finalize(p, {"gq": sLoop, "ga": sLoop, "go": sLoop}, verbose=4, name="MEGA")


def assemble_mega(diag=False):
    from build import HEAD
    body = gen_mega(diag)
    s = HEAD + f"; @launch grid=(256,1,1) block=(256,1,1) lds={M_LDS}\n"
    s += '.amdgcn_target "amdgcn-amd-amdhsa--gfx950"\n'
    s += kernel_text(KNAME, body, 512, 256)
    return s


if __name__ == "__main__":
    import sys
    diag = len(sys.argv) > 2 and sys.argv[2] == "diag"
    txt = assemble_mega(diag)
    open(sys.argv[1], "w").write(txt)
    print("wrote", sys.argv[1], len(txt))
    if diag:
        print(",".join(gen_mega.stamp_names))
```

```python
from asmlib import *
from layout import *
from ka import srd

SLOT = 8192
WRING = 3 * SLOT
SH = 4 * WRING
B_LDS = SH + 65536
TAB = 2 * SLOT
LIMIT = float(2 ** 40)

vtid, vl = V(0), V(1)
vdQ, vdK, vdV = V(2, 8), V(10, 8), V(18, 4)
vtr, vK, vB, vlin = V(22, 8), V(30, 4), V(34), V(35)
vt = V(36, 8)
vtrP = V(44)
vtmp = V(46, 18)
vQ = V(64, 64)
vACC = V(128, 128)
vS = [V(128, 32), V(160, 32)]
vP = V(192, 16)
vNM = V(208, 16)
vW = V(224, 32)
aO, aL, aONE = A(0, 128), A(128, 16), A(144, 4)
aA, aK, aB = A(148, 16), A(164, 16), A(180, 48)
rWQ, rK, rV, rWO, rWS, rX = S(4, 4), S(8, 4), S(12, 4), S(16, 4), S(20, 4), S(24, 4)
sw, shg, srb, shead, srot = S(28), S(29), S(30), S(31), S(32)
sMW, sMS = S(33), S(34)
sA, sK, sV = S(35), S(36), S(37)
sLoop = S(38)
st = S(39, 6)
sPart = S(45)
sHi = S(46)
sexec = S(48, 2)


def acc(t, qt):
    return vACC[16 * t + 4 * qt:16 * t + 4 * qt + 4]


def oacc(dt, qt):
    return aO[16 * dt + 4 * qt:16 * dt + 4 * qt + 4]


def sreg(buf, kt, qt):
    return vS[buf][16 * kt + 4 * qt:16 * kt + 4 * qt + 4]


def afrag(i):
    return aA[4 * (i % 4):4 * (i % 4) + 4]


def kfrag(i):
    return aK[4 * (i % 4):4 * (i % 4) + 4]


def bfrag(n, qt):
    o = 16 * (n % 3) + 4 * qt
    return aB[o:o + 4]


def qfrag(qt, s_):
    return vQ[16 * qt + 4 * s_:16 * qt + 4 * s_ + 4]


def dma_voffs(p, dst, stride, swz, n):
    p.v("v_lshrrev_b32", vt[0], 4, vl)
    p.v("v_and_b32", vt[1], 15, vl)
    p.s("s_mov_b32", st[0], stride)
    p.v("v_mul_lo_u32", vt[2], vt[0], st[0])
    npat = {"tr": 2, "n8": 4, "k": 4}[swz]
    for j in range(min(n, npat)):
        if swz == "tr":
            p.v("v_add_u32", vt[3], 4 * (j & 1), vt[0])
            p.v("v_lshlrev_b32", vt[3], 1, vt[3])
        elif swz == "n8":
            p.v("v_add_u32", vt[3], 4 * ((j >> 1) & 1), vt[0])
            p.v("v_lshlrev_b32", vt[3], 1, vt[3])
        else:
            p.v("v_add_u32", vt[3], 4 * (j & 3), vt[0])
        p.v("v_xor_b32", vt[3], vt[3], vt[1])
        p.v("v_lshlrev_b32", vt[3], 4, vt[3])
        p.v("v_add_u32", vt[4 + j], vt[3], vt[2])
    for j in range(n):
        k = 4 * j * stride - 1024 * (j & 3)
        src = vt[4 + j % npat]
        if k:
            p.v("v_add_u32", dst[j], k, src)
        else:
            p.v("v_mov_b32", dst[j], src)


KIND = {
    "wq": (rWQ, vdQ, sA, 32 * 8192, 0x3FFFFF),
    "wo": (rWO, vdQ, sA, 32 * 1024, 0x7FFFF),
    "k": (rK, vdK, sK, SLOT, 0x1FFFF),
    "v": (rV, vdV, sV, SLOT, 0x1FFFF),
}


def ring_pos(kind, n):
    if kind in ("wq", "wo"):
        return ("W", n % 3)
    if kind == "k":
        return ("W", 1 + (n & 1))
    return ("V", n & 1)


def dma_piece(kind, n, j):
    srd_, voffs, so, step, mask = KIND[kind]
    ring, pos = ring_pos(kind, n)
    q = Prog()
    pre = []
    if (j & 3) == 0:
        q.s("s_add_u32", M0, sMW if ring == "W" else sMS, pos * SLOT + (j >> 2) * 4096)
        pre, q.ins = q.ins, []
    voff = voffs[j] if kind != "v" else voffs[(j & 1) + 2 * (j >> 2)]
    x = q.dma(voff, srd_, so, off=1024 * (j & 3), tag=(kind, n))
    x.meta["into"] = (ring, pos)
    if j == 7:
        q.s("s_add_u32", so, so, step)
        q.s("s_and_b32", so, so, mask)
    return pre, q.ins


def dma_now(p, kind, n):
    for j in range(8):
        pre, main = dma_piece(kind, n, j)
        for x in pre:
            p.add(x)
        if pre:
            p.nop(0)
        for x in main:
            p.add(x)


def rd_tr(kind, n, t, dst):
    q = Prog()
    ring, pos = ring_pos(kind, n)
    second = 1024 if kind == "wq" else 4096
    for h in range(2):
        i = q.ds_read("ds_read_b64_tr_b16", dst[2 * h:2 * h + 2], vtr[t], off=pos * SLOT + second * h, dep=(kind, n))
        i.meta["from"] = (ring, pos)
    return q.ins


def rd_k(n, f, dst):
    q = Prog()
    kt, s_ = f >> 2, f & 3
    ring, pos = ring_pos("k", n)
    i = q.ds_read("ds_read_b128", dst, vK[s_], off=pos * SLOT + kt * 4096, dep=("k", n))
    i.meta["from"] = (ring, pos)
    return q.ins


def rd_b(n, qt, base_step):
    q = Prog()
    q.ds_read("ds_read_b128", bfrag(n, qt), vB, off=(n - base_step) * 4096 + qt * 1024)
    return q.ins


def resolve_ovw(ins):
    last = {}
    for x in ins:
        if x.kind == "ds_read" and "from" in x.meta:
            last[x.meta["from"]] = x.dep
        elif x.kind == "dma" and "into" in x.meta:
            x.ovw = last.get(x.meta["into"])


def cost(x):
    if x.kind == "trans":
        return 8
    if x.kind in ("comment", "label", "need"):
        return 0
    return 4


class Sched:
    def __init__(self, mf):
        self.mf = mf
        n = len(mf)
        self.mem = [[] for _ in range(n)]
        self.oth = [[] for _ in range(n)]
        self.res = [0] * n

    def fixed(self, g, ins):
        g = max(0, min(g, len(self.mf) - 1))
        for x in ins:
            (self.mem if x.kind in ("ds_read", "dma", "vstore", "ds_write", "vload") else self.oth)[g].append(x)

    def reserve(self, g, c=4):
        if 0 <= g < len(self.mf):
            self.res[g] += c

    def used(self, g):
        return sum(map(cost, self.mem[g] + self.oth[g])) + self.res[g]

    def flow(self, seq, first=0, last=None, budget=8):
        n = len(self.mf) if last is None else last + 1
        rem = sum(cost(x) for x, _ in seq)
        i = 0
        for g in range(first, n):
            cap_after = sum(max(0, budget - self.used(h)) for h in range(g + 1, n))
            while i < len(seq) and seq[i][1] <= g:
                c = cost(seq[i][0])
                u = self.used(g)
                if u + c <= budget or (rem > cap_after and u + c <= budget + 4) or g == n - 1:
                    self.oth[g].append(seq[i][0])
                    rem -= c
                    i += 1
                else:
                    break
        assert i == len(seq), "unplaced fillers"

    def pack(self, exps, cvts, first=0, last=None):
        n = len(self.mf) if last is None else last + 1
        ei = ci = 0
        for g in range(first, n):
            done = ei
            while True:
                u = self.used(g)
                e_ok = ei < len(exps) and exps[ei][1] <= g
                c_ok = ci < len(cvts) and cvts[ci][1] <= done
                free8 = sum(1 for h in range(g + 1, n) if self.used(h) == 0)
                free4 = sum(max(0, 8 - self.used(h)) // 4 for h in range(g + 1, n))
                need8 = len(exps) - ei
                need4 = len(cvts) - ci
                behind = need8 * 2 + need4 > free4 or need8 > free8
                lastg = g == n - 1
                if e_ok and (u == 0 or lastg or (behind and u <= 4 and not (c_ok and u == 4))):
                    self.oth[g].append(exps[ei][0])
                    ei += 1
                elif c_ok and (u + 4 <= 8 or lastg or (behind and u <= 8 and need8 * 2 + need4 > free4 + 1)):
                    self.oth[g].append(cvts[ci][0])
                    ci += 1
                else:
                    break
        while ei < len(exps):
            self.oth[n - 1].append(exps[ei][0])
            ei += 1
        while ci < len(cvts):
            self.oth[n - 1].append(cvts[ci][0])
            ci += 1

    def profile(self):
        return [self.used(g) for g in range(len(self.mf))]

    def emit(self, p):
        for g, m in enumerate(self.mf):
            m()
            for x in self.mem[g] + self.oth[g]:
                p.add(x)


def put_dma(sc, kind, n, gaps):
    for j in range(8):
        pre, main = dma_piece(kind, n, j)
        sc.fixed(gaps[j] - 1, pre)
        sc.fixed(gaps[j], main)


def gemm_step(p, kind, n, nxt, base_step, first, last, extra=None, tail=None):
    mf = []
    for t in range(8):
        for qt in range(4):
            def m(t=t, qt=qt):
                x = p.mfma16(acc(t, qt), afrag(t), bfrag(n, qt), acc(t, qt) if not first else 0)
                if qt == 0 and t % 2 == 0:
                    also(x, afrag(t + 1))
                if qt == 0 and t == 0:
                    also(x, [bfrag(n, k) for k in range(4)])
            mf.append(m)
    sc = Sched(mf)
    for t in range(0, 8, 2):
        g = 4 * t
        for k in range(2):
            tn, nn = (t + 2 + k) % 8, n + (t + 2 + k) // 8
            if not (last and nn > n):
                r = rd_tr(kind, nn, tn, afrag(t + 2 + k))
                sc.fixed(g + 2 * k, r[:1])
                sc.fixed(g + 2 * k + 1, r[1:])
        sc.reserve(g + 7)
        if not last:
            sc.fixed(g + 5, rd_b(n + 1, t // 2, base_step))
    if nxt is not None:
        put_dma(sc, nxt[0], nxt[1], [4 * t + (4 if t % 2 == 0 else 2) for t in range(8)])
    if extra:
        for g, ins in extra.items():
            sc.fixed(g, ins)
    if tail:
        sc.flow(tail, budget=12)
    sc.emit(p)


def gemm_stage(p, kind, nxt_of, extra_of=None, group="gq", zeroed=False, tail=None):
    for qt in range(4):
        for x in rd_b(0, qt, 0):
            p.add(x)
    for t in range(2):
        for x in rd_tr(kind, 0, t, afrag(t)):
            p.add(x)
    for it in range(6):
        mark(p, group, it)
        for n in range(3 * it, min(3 * it + 3, 16)):
            gemm_step(p, kind, n, nxt_of(n), 3 * it, n == 0 and not zeroed, n == 15,
                      extra_of(n) if extra_of else None, tail if n == 15 else None)
        if it < 5:
            p.v("v_add_u32", vB, 3 * 4096, vB)
        loop_dec(p)
        loop_branch(p)
    mark(p, group, None)
    p.v("v_subrev_u32", vB, 15 * 4096, vB)


def exp_list(buf, start, stop):
    q = Prog()
    order = [(qt, kt, r) for qt in range(4) for kt in range(2) for r in range(4)]
    for qt, kt, r in order[start:stop]:
        x = sreg(buf, kt, qt)[r]
        q.v("v_exp_f32", x, x)
    return q.ins


def cvt_list(buf):
    q = Prog()
    for qt in range(4):
        for kt in range(2):
            s_ = sreg(buf, kt, qt)
            for i in range(2):
                q.v("v_cvt_pk_bf16_f32", vP[4 * qt + 2 * kt + i], s_[2 * i], s_[2 * i + 1])
    return q.ins


N1 = 20


def x_tail_seq(cur):
    ex = exp_list(cur, N1, 32)
    cv = cvt_list(cur)
    return cv[0:4] + ex[0:2] + cv[4:8] + ex[2:4] + cv[8:10] + ex[4:8] + cv[10:12] + ex[8:12] + cv[12:16]


def also(x, regs):
    x.r |= set(units(regs))


def phase_x(p, t, first=False, dma=None):
    buf = (t + 1) & 1
    mf = []
    for f in range(8):
        kt, s_ = f >> 2, f & 3
        for qt in range(4):
            def m(kt=kt, s_=s_, qt=qt, f=f):
                d = sreg(buf, kt, qt)
                c = d if s_ else (0 if first else vNM[4 * qt:4 * qt + 4])
                x = p.mfma16(d, kfrag(f), qfrag(qt, s_), c)
                if qt == 0 and f % 2 == 0:
                    also(x, kfrag(f + 1))
            mf.append(m)
    sc = Sched(mf)
    for f in range(0, 8, 2):
        g = 4 * f
        if f < 6:
            sc.fixed(g, rd_k(t + 1, f + 2, kfrag(f + 2)) + rd_k(t + 1, f + 3, kfrag(f + 3)))
        elif not first:
            sc.fixed(g, rd_tr("v", t, 0, afrag(0)))
            sc.fixed(g + 1, rd_tr("v", t, 1, afrag(1)))
            sc.reserve(g - 1)
        sc.reserve(g + 7)
    if dma is not None:
        put_dma(sc, dma[0], dma[1], [2, 7, 10, 15, 18, 22, 27, 30])
    if not first:
        ex = exp_list(t & 1, N1, 32)
        cv = cvt_list(t & 1)
        need = [0] * 10 + [4, 4] + [8, 8, 12, 12]
        sc.pack([(x, 0) for x in ex], list(zip(cv, need)), last=30)
    if PROFILE:
        print("X", sc.profile())
    sc.emit(p)


PROFILE = False


def phase_y(p, t, last=False, dma=None, tail=None):
    mf = []
    for qt in range(4):
        def m(qt=qt):
            d = aL[4 * qt:4 * qt + 4]
            p.mfma16(d, aONE, vP[4 * qt:4 * qt + 4], d)
        mf.append(m)
    for dt in range(8):
        for qt in range(4):
            def m(dt=dt, qt=qt):
                d = oacc(dt, qt)
                x = p.mfma16(d, afrag(dt), vP[4 * qt:4 * qt + 4], d)
                if qt == 0 and dt % 2 == 0:
                    also(x, afrag(dt + 1))
            mf.append(m)
    sc = Sched(mf)
    for dt in range(0, 8, 2):
        g = 4 + 4 * dt
        if dt < 6:
            sc.fixed(g, rd_tr("v", t, dt + 2, afrag(dt + 2)))
            sc.fixed(g + 1, rd_tr("v", t, dt + 3, afrag(dt + 3)))
        elif t + 2 <= 15:
            sc.fixed(g, rd_k(t + 2, 0, kfrag(0)) + rd_k(t + 2, 1, kfrag(1)))
            sc.reserve(g - 1)
        sc.reserve(g + 7)
    sc.reserve(3)
    if dma is not None:
        put_dma(sc, dma[0], dma[1], [3, 8, 11, 16, 19, 24, 27, 32])
    if not last:
        sc.pack([(x, 1) for x in exp_list((t + 1) & 1, 0, N1)], [])
    if tail:
        sc.flow(tail, budget=12)
    if PROFILE:
        print("Y", sc.profile())
    sc.emit(p)


def zero16(p, dst, vz):
    p.mfma32(dst, vz, vz, 0)


def tr_pattern(p, dst, natural):
    p.v("v_lshrrev_b32", vt[0], 4, vl)
    p.v("v_lshrrev_b32", vt[1], 2, vl)
    p.v("v_and_b32", vt[1], 3, vt[1])
    if natural:
        p.v("v_lshl_add_u32", vt[2], vt[0], 3, vt[1])
        p.v("v_and_b32", vt[0], 1, vt[0])
        p.v("v_lshl_add_u32", vt[3], vt[0], 2, vt[1])
    else:
        p.v("v_lshl_add_u32", vt[2], vt[0], 2, vt[1])
        p.v("v_and_b32", vt[3], 7, vt[2])
    p.v("v_lshlrev_b32", vt[3], 1, vt[3])
    p.v("v_and_b32", vt[4], 3, vl)
    p.v("v_lshrrev_b32", vt[5], 1, vt[4])
    p.v("v_xor_b32", vt[3], vt[3], vt[5])
    p.v("v_lshlrev_b32", vt[3], 4, vt[3])
    p.v("v_and_b32", vt[4], 1, vt[4])
    p.v("v_lshlrev_b32", vt[4], 3, vt[4])
    p.v("v_lshlrev_b32", vt[2], 8, vt[2])
    p.v("v_add3_u32", dst, vt[2], vt[3], vt[4])


def set_vtr(p, pattern, base):
    p.v("v_add_u32", vtr[0], base, pattern)
    for t in range(1, 8):
        p.v("v_xor_b32", vtr[t], t << 5, vtr[0])


def row_stats(p, gram, rsum, vq, vg, mu, rs, nmr, t0, t1):
    sq = t1
    p.v("v_and_b32", t0, 3, vq)
    p.v("v_cmp_eq_u32", VCC, 1, t0)
    p.v("v_cndmask_b32", sq, gram[0], gram[1])
    p.v("v_cmp_eq_u32", VCC, 2, t0)
    p.v("v_cndmask_b32", sq, sq, gram[2])
    p.v("v_cmp_eq_u32", VCC, 3, t0)
    p.v("v_cndmask_b32", sq, sq, gram[3])
    p.v("v_lshrrev_b32", t0, 2, vq)
    p.v("v_cmp_eq_u32", VCC, t0, vg)
    p.v("v_cndmask_b32", sq, 0, sq)
    for op in ("v_permlane32_swap_b32", "v_permlane16_swap_b32"):
        p.v("v_mov_b32", t0, sq)
        p.v(op, sq, t0)
        p.v("v_add_f32", sq, sq, t0)
    p.v("v_mul_f32", mu, 1.0 / 512, rsum[0])
    p.v("v_mul_f32", sq, 1.0 / 512, sq)
    p.v("v_fma_f32", sq, Neg(mu), mu, sq)
    p.v("v_max_f32", sq, 0, sq)
    p.v("v_add_f32", sq, 1e-5, sq)
    p.v("v_rsq_f32", rs, sq)
    p.v("v_mul_f32_e64", nmr, Neg(mu), rs)


def slow_attention(p):
    q = p
    q.label("B_slow")
    q.wait(vm=0, lgkm=0)
    vM = vW[0:4]
    for qt in range(4):
        q.v("v_mov_b32", vM[qt], 0xFF800000)
    vz = vW[4:8]
    for i in range(4):
        q.v("v_mov_b32", vz[i], 0)
    sT = st[4]

    def load_tile(with_v):
        q.s("s_lshl_b32", sK, sT, 13)
        q.s("s_mov_b32", sV, sK)
        dma_now(q, "k", 1)
        if with_v:
            dma_now(q, "v", 0)
        q.wait(vm=0)

    def scores(cinit):
        for f in range(8):
            kt, s_ = f >> 2, f & 3
            for x in rd_k(1, f, kfrag(f)):
                q.add(x)
            for qt in range(4):
                d = sreg(0, kt, qt)
                q.mfma16(d, kfrag(f), qfrag(qt, s_), d if s_ else cinit(qt))

    q.s("s_mov_b32", sT, 0)
    q.label("B_slow_p1")
    load_tile(False)
    scores(lambda qt: 0)
    for qt in range(4):
        a, b = sreg(0, 0, qt), sreg(0, 1, qt)
        q.v("v_max3_f32", vM[qt], vM[qt], a[0], a[1])
        q.v("v_max3_f32", vM[qt], vM[qt], a[2], a[3])
        q.v("v_max3_f32", vM[qt], vM[qt], b[0], b[1])
        q.v("v_max3_f32", vM[qt], vM[qt], b[2], b[3])
    q.wait(vm=0, lgkm=0)
    q.s("s_add_u32", sT, sT, 1)
    q.s("s_cmp_lt_u32", sT, 16)
    q.add(I("s_cbranch_scc1 B_slow_p1", "salu"))
    for qt in range(4):
        m = vM[qt]
        for op in ("v_permlane32_swap_b32", "v_permlane16_swap_b32"):
            q.v("v_mov_b32", vW[8], m)
            q.v(op, m, vW[8])
            q.v("v_max_f32", m, m, vW[8])
        for r in range(4):
            q.v("v_sub_f32", vNM[4 * qt + r], 0, m)
    for i in range(8):
        zero16(q, aO[16 * i:16 * i + 16], vz)
    zero16(q, aL, vz)
    q.s("s_mov_b32", sT, 0)
    q.label("B_slow_p2")
    load_tile(True)
    scores(lambda qt: vNM[4 * qt:4 * qt + 4])
    for x in exp_list(0, 0, 32) + cvt_list(0):
        q.add(x)
    for qt in range(4):
        d = aL[4 * qt:4 * qt + 4]
        q.mfma16(d, aONE, vP[4 * qt:4 * qt + 4], d)
    for dt in range(8):
        for x in rd_tr("v", 0, dt, afrag(dt)):
            q.add(x)
        for qt in range(4):
            d = oacc(dt, qt)
            q.mfma16(d, afrag(dt), vP[4 * qt:4 * qt + 4], d)
    q.wait(vm=0, lgkm=0)
    q.nop(15)
    q.s("s_add_u32", sT, sT, 1)
    q.s("s_cmp_lt_u32", sT, 16)
    q.add(I("s_cbranch_scc1 B_slow_p2", "salu"))
    q.nop(15)
    q.add(I("s_branch B_norm", "salu"))


def bc_setup(p, ptr):
    vq, vg = vtmp[0], vtmp[1]
    p.s("s_lshl_b32", st[1], shead, 19)
    p.s("s_add_u32", st[1], st[1], 1536 * 256)
    for r_, k in ((rK, "k"), (rV, "v")):
        p.s("s_add_u32", r_[0], ptr[k][0], st[1])
        p.s("s_addc_u32", r_[1], ptr[k][1], 0)
        p.s("s_mov_b32", r_[2], 16 * SLOT)
        p.s("s_mov_b32", r_[3], 0x20000)
    p.s("s_lshl_b32", st[1], shg, 19)
    p.s("s_add_u32", rWO[0], ptr["wo"][0], st[1])
    p.s("s_addc_u32", rWO[1], ptr["wo"][1], 0)
    p.s("s_mov_b32", rWO[2], 512 * 1024)
    p.s("s_mov_b32", rWO[3], 0x20000)
    p.s("s_lshl_b32", sK, srot, 13)
    p.s("s_mov_b32", sV, sK)
    dma_voffs(p, vdK, 256, "k", 8)
    dma_voffs(p, vt[0:8] if False else vdV, 256, "tr", 2)
    p.v("v_add_u32", vdV[2], 4096, vdV[0])
    p.v("v_add_u32", vdV[3], 4096, vdV[1])
    tr_pattern(p, vtrP, False)
    tr_pattern(p, vtr[0], True)
    set_vtr(p, vtr[0], sMW)
    p.v("v_xor_b32", vt[1], vg, vq)
    p.v("v_lshlrev_b32", vt[1], 4, vt[1])
    p.v("v_lshlrev_b32", vt[0], 8, vq)
    p.v("v_add3_u32", vK[0], vt[0], vt[1], sMW)
    for s_ in range(1, 4):
        p.v("v_xor_b32", vK[s_], s_ << 6, vK[0])
    p.v("v_add_u32", vB, SH, vlin)
    vone = vtmp[4:8]
    vz = vtmp[8:12]
    for i in range(4):
        p.v("v_mov_b32", vone[i], 0x3F803F80)
        p.v("v_mov_b32", vz[i], 0)
    for i in range(4):
        p.v("v_accvgpr_write_b32", aONE[i], vone[i])
    for i in range(8):
        zero16(p, aO[16 * i:16 * i + 16], vz)
    zero16(p, aL, vz)
    p.s("s_mul_i32", sPart, shg, 32)
    p.s("s_add_u32", sPart, sPart, srb)
    p.s("s_mul_i32", sPart, sPart, PART_BLK)
    p.s("s_lshl_b32", st[1], sw, 14)
    p.s("s_add_u32", sPart, sPart, st[1])
    p.s("s_add_u32", sPart, sPart, WS_PART)


def bc_main(p, T, store_flags="", after_q=None, at_q_done=None, before_norm=None):
    def nxt_q(n):
        return ("wq", n + 2) if n + 2 < 16 else ("k", n + 2 - 16)

    def extra_q(n):
        if n != 15:
            return None
        q = Prog()
        q.barrier(drain_lds=False)
        return {3: q.ins}

    gemm_stage(p, "wq", nxt_q, extra_q, "gq", zeroed=True)
    T("q_done")
    if at_q_done:
        at_q_done(p)
    dma_now(p, "v", 0)
    for s_ in range(4):
        for qt in range(4):
            d = qfrag(qt, s_)
            a0, a1 = acc(2 * s_, qt), acc(2 * s_ + 1, qt)
            p.v("v_cvt_pk_bf16_f32", d[0], a0[0], a0[1])
            p.v("v_cvt_pk_bf16_f32", d[1], a0[2], a0[3])
            p.v("v_cvt_pk_bf16_f32", d[2], a1[0], a1[1])
            p.v("v_cvt_pk_bf16_f32", d[3], a1[2], a1[3])
        for op in ("v_permlane32_swap_b32", "v_permlane16_swap_b32"):
            for qt in range(4):
                d = qfrag(qt, s_)
                p.v(op, d[0], d[2])
                p.v(op, d[1], d[3])
        if s_ == 0:
            for f in range(2):
                for x in rd_k(0, f, kfrag(f)):
                    p.add(x)
    set_vtr(p, vtrP, sMS)
    dma_voffs(p, vdQ, 1024, "tr", 8)
    p.s("s_lshl_b32", sA, srot, 15)
    p.s("s_lshl_b32", st[1], sw, 8)
    p.s("s_add_u32", sA, sA, st[1])

    T("q_epi")
    if after_q:
        after_q(p)
    phase_x(p, -1, first=True)
    dma_now(p, "k", 2)
    for qt in range(4):
        a, b = sreg(0, 0, qt), sreg(0, 1, qt)
        m = vt[qt]
        p.v("v_max3_f32", m, a[0], a[1], a[2])
        p.v("v_max3_f32", m, m, a[3], b[0])
        p.v("v_max3_f32", m, m, b[1], b[2])
        p.v("v_max_f32", m, m, b[3])
    for op in ("v_permlane32_swap_b32", "v_permlane16_swap_b32"):
        for qt in range(4):
            p.v("v_mov_b32", vt[4 + qt], vt[qt])
        for qt in range(4):
            p.v(op, vt[qt], vt[4 + qt])
        for qt in range(4):
            p.v("v_max_f32", vt[qt], vt[qt], vt[4 + qt])
    for qt in range(4):
        for r in range(4):
            p.v("v_sub_f32", vNM[4 * qt + r], 0, vt[qt])
    for qt in range(4):
        for kt in range(2):
            for r in range(4):
                x = sreg(0, kt, qt)[r]
                p.v("v_sub_f32", x, x, vt[qt])
    for f in range(2):
        for x in rd_k(1, f, kfrag(f)):
            p.add(x)
    for x in exp_list(0, 0, N1):
        p.add(x)
    T("att_pro")
    for it in range(7):
        mark(p, "ga", it)
        for t in (2 * it, 2 * it + 1):
            phase_x(p, t, dma=("v", t + 1))
            phase_y(p, t, dma=("k", t + 3))
        loop_dec(p)
        loop_branch(p)
    mark(p, "ga", None)
    T("att_loop")
    phase_x(p, 14, dma=("v", 15))
    phase_y(p, 14, dma=("wo", 0))
    for i, x in enumerate(x_tail_seq(1)):
        p.add(x)
        if i == 4:
            for t in range(2):
                for y in rd_tr("v", 15, t, afrag(t)):
                    p.add(y)
    phase_y(p, 15, last=True, dma=("wo", 1))

    T("att_done")
    if before_norm:
        before_norm(p)
    rinv = vW[0:4]
    for qt in range(4):
        p.v("v_accvgpr_read_b32", rinv[qt], aL[4 * qt])
    p.v("v_add_f32", vt[0], rinv[0], rinv[1])
    p.v("v_add_f32", vt[1], rinv[2], rinv[3])
    p.v("v_add_f32", vt[0], vt[0], vt[1])
    p.v("v_cmp_gt_f32", VCC, LIMIT, vt[0])
    p.add(I("s_cmp_eq_u64 vcc, exec", "salu", (), units(VCC)))
    p.branch("s_cbranch_scc0", "B_slow")
    p.label("B_norm")
    for qt in range(4):
        p.v("v_accvgpr_read_b32", rinv[qt], aL[4 * qt])
    for qt in range(4):
        p.v("v_rcp_f32", rinv[qt], rinv[qt])
    r2 = vW[4:12]
    for qt in range(4):
        p.v("v_mov_b32", r2[2 * qt], rinv[qt])
        p.v("v_mov_b32", r2[2 * qt + 1], rinv[qt])
    vow = vW[12:16]
    for s_ in range(4):
        p.s("s_lshl_b32", st[1], sw, 2)
        p.s("s_add_u32", st[1], st[1], s_ + 16)
        p.s("s_sub_u32", st[1], st[1], srot)
        p.s("s_and_b32", st[1], st[1], 15)
        p.s("s_lshl_b32", st[1], st[1], 12)
        p.s("s_add_u32", st[1], st[1], SH)
        p.v("v_add_u32", vow[s_], st[1], vlin)
    first = True
    for s_ in range(4):
        for qt in range(4):
            k = (4 * s_ + qt) & 3
            x = V(128 + 8 * k, 8)
            o4 = V(160 + 4 * (4 * s_ + qt), 4)
            for h in range(2):
                src = oacc(2 * s_ + h, qt)
                for r in range(4):
                    p.v("v_accvgpr_read_b32", x[4 * h + r], src[r])
            for e in range(4):
                p.v("v_pk_mul_f32", x[2 * e:2 * e + 2], x[2 * e:2 * e + 2], r2[2 * qt:2 * qt + 2])
            for i in range(4):
                p.v("v_cvt_pk_bf16_f32", o4[i], x[2 * i], x[2 * i + 1])
    T("norm")
    p.barrier()
    for s_ in range(4):
        for qt in range(4):
            p.ds_write("ds_write_b128", vow[s_], V(160 + 4 * (4 * s_ + qt), 4), off=qt * 1024)
    set_vtr(p, vtrP, sMW)
    p.barrier()
    T("o_xchg")

    q = Prog()
    tail = []
    for j in range(4):
        for qt in range(4):
            k = (4 * j + qt) & 3
            o4 = vtmp[4 * k:4 * k + 4]
            a0, a1 = acc(2 * j, qt), acc(2 * j + 1, qt)
            g0 = 4 * (2 * j + 1) + qt + 3
            q.v("v_cvt_pk_bf16_f32", o4[0], a0[0], a0[1])
            q.v("v_cvt_pk_bf16_f32", o4[1], a0[2], a0[3])
            q.v("v_cvt_pk_bf16_f32", o4[2], a1[0], a1[1])
            q.v("v_cvt_pk_bf16_f32", o4[3], a1[2], a1[3])
            q.bstore(o4, vlin, rWS, soff=sPart, off=qt * 1024, flags=store_flags)
            if qt == 3 and j < 3:
                q.s("s_add_u32", sPart, sPart, 4096)
            tail += [(x, min(g0, 31)) for x in q.ins]
            q.ins = []
    gemm_stage(p, "wo", lambda n: ("wo", n + 2) if n + 2 < 16 else None, None, "go", tail=tail)


def gen_b(diag=False):
    p = Prog()
    T = Stamps(p, diag)
    p.s("s_cmp_ge_u32", S(2), 256)
    p.branch("s_cbranch_scc1", "B_end")
    T("rt0", True)
    T("start")
    ptr = {k: S(52 + 2 * i, 2) for i, k in enumerate(["x", "wq", "ws", "k", "v", "wo"])}
    for k in ptr:
        p.s_load(ptr[k], S(0, 2), ARG[k])
    p.v("v_lshrrev_b32", vt[0], 6, vtid)
    p.v("v_and_b32", vl, 63, vtid)
    p.v("v_readfirstlane_b32", sw, vt[0])
    p.s("s_and_b32", shg, S(2), 7)
    p.s("s_lshr_b32", srb, S(2), 3)
    p.s("s_and_b32", srot, srb, 15)
    p.s("s_lshl_b32", shead, shg, 2)
    p.s("s_mov_b32", sHi, 0xFFFF0000)
    vq, vg = vtmp[0], vtmp[1]
    p.v("v_and_b32", vq, 15, vl)
    p.v("v_lshrrev_b32", vg, 4, vl)
    p.v("v_lshlrev_b32", vlin, 4, vl)
    p.s("s_add_u32", shead, shead, sw)
    p.s("s_mul_i32", sMW, sw, WRING)
    p.s("s_lshl_b32", sMS, sw, 14)
    p.s("s_add_u32", sMS, sMS, SH)
    vxo = vtmp[2]
    p.s("s_lshl_b32", st[0], srb, 6)
    p.s("s_lshl_b32", st[1], sw, 4)
    p.s("s_add_u32", st[0], st[0], st[1])
    p.v("v_add_u32", vxo, st[0], vq)
    p.v("v_lshlrev_b32", vxo, 10, vxo)
    p.v("v_lshl_add_u32", vxo, vg, 4, vxo)
    p.wait(lgkm=0)
    srd(p, rX, ptr["x"], SZ["x"])
    vX = V(64, 64)
    p.s("s_lshl_b32", st[0], srot, 6)
    for n in range(16):
        p.bload(vX[4 * n:4 * n + 4], vxo, rX, soff=st[0])
        if n < 15:
            p.s("s_add_u32", st[0], st[0], 64)
            p.s("s_and_b32", st[0], st[0], 0x3FF)
    T("issued")
    bc_setup(p, ptr)
    vone, vz = vtmp[4:8], vtmp[8:12]
    srd(p, rWQ, ptr["wq"], SZ["wq"])
    srd(p, rWS, ptr["ws"], WS_DIAG_END if diag else WS_END)
    dma_voffs(p, vdQ, 8192, "n8", 8)
    p.s("s_lshl_b32", sA, srot, 18)
    p.s("s_lshl_b32", st[1], shead, 8)
    p.s("s_add_u32", sA, sA, st[1])
    dma_now(p, "wq", 0)
    p.s("s_lshl_b32", st[1], sw, 2)
    p.s("s_add_u32", st[1], st[1], srot)
    p.v("v_add_u32", vt[0], st[1], vg)
    p.v("v_and_b32", vt[0], 15, vt[0])
    p.v("v_lshlrev_b32", vt[0], 7, vt[0])
    p.v("v_lshrrev_b32", vt[1], 3, vq)
    p.v("v_lshl_add_u32", vt[0], vt[1], 11, vt[0])
    p.v("v_and_b32", vt[1], 7, vq)
    p.v("v_lshl_add_u32", vt[0], vt[1], 4, vt[0])
    p.s("s_lshl_b32", st[1], sw, 10)
    p.s("s_add_u32", M0, st[1], TAB)
    p.s("s_mov_b32", st[1], WS_MOD)
    p.dma(vt[0], rWS, st[1], tag="tab")
    dma_now(p, "wq", 1)
    T("setup")

    gram, rsum = vtmp[12:16], V(224, 4)
    for n in range(16):
        xs = vX[4 * n:4 * n + 4]
        p.mfma16(gram, xs, xs, gram if n else 0)
        p.mfma16(rsum, vone, xs, rsum if n else 0)
    vwu = A(240, 8)
    p.v("v_lshlrev_b32", vt[0], 6, vl)
    p.s("s_add_u32", st[1], sK, 4096)
    p.bload(vwu[0], vt[0], rK, soff=sK)
    p.bload(vwu[1], vt[0], rK, soff=st[1])
    p.bload(vwu[2], vt[0], rV, soff=sK)
    p.bload(vwu[3], vt[0], rV, soff=st[1])
    p.v("v_lshrrev_b32", vt[0], 2, vl)
    p.v("v_lshlrev_b32", vt[0], 10, vt[0])
    p.v("v_and_b32", vt[1], 3, vl)
    p.v("v_lshl_add_u32", vt[0], vt[1], 6, vt[0])
    p.s("s_lshl_b32", st[1], srot, 15)
    p.s("s_lshl_b32", st[2], sw, 8)
    p.s("s_add_u32", st[1], st[1], st[2])
    p.bload(vwu[4], vt[0], rWO, soff=st[1])
    p.s("s_add_u32", st[1], st[1], 16384)
    p.bload(vwu[5], vt[0], rWO, soff=st[1])
    mu, rs2, nm2 = V(236), V(238, 2), V(240, 2)
    row_stats(p, gram, rsum, vq, vg, mu, rs2[0], nm2[0], vt[0], vt[1])
    p.v("v_mov_b32", rs2[1], rs2[0])
    p.v("v_mov_b32", nm2[1], nm2[0])
    T("stats")
    p.barrier(dep="tab")
    T("tab")
    vtab = vt[2]
    p.v("v_lshlrev_b32", vtab, 5, vg)
    p.v("v_add_u32", vtab, TAB, vtab)
    vhw = vt[3]
    p.s("s_lshl_b32", st[1], sw, 10)
    p.s("s_add_u32", st[1], st[1], SH)
    p.v("v_add_u32", vhw, st[1], vlin)
    def rd_tab(n):
        tb = V(128 + 16 * (n % 3), 16)
        for i, o in enumerate((0, 16, 128, 144)):
            p.ds_read("ds_read_b128", tb[4 * i:4 * i + 4], vtab, off=n * 256 + o)

    rd_tab(0)
    rd_tab(1)
    for n in range(16):
        k = n & 1
        tb = V(128 + 16 * (n % 3), 16)
        y = V(176 + 8 * k, 8)
        o4 = V(192 + 4 * k, 4)
        if n + 2 < 16:
            rd_tab(n + 2)
        xs = vX[4 * n:4 * n + 4]
        for i in range(4):
            p.v("v_lshlrev_b32", y[2 * i], 16, xs[i])
            p.v("v_and_b32", y[2 * i + 1], sHi, xs[i])
        for i in range(4):
            p.v("v_pk_fma_f32", y[2 * i:2 * i + 2], y[2 * i:2 * i + 2], rs2, nm2)
        for i in range(4):
            p.v("v_pk_fma_f32", y[2 * i:2 * i + 2], y[2 * i:2 * i + 2], tb[8 + 2 * i:10 + 2 * i], tb[2 * i:2 * i + 2])
        for i in range(4):
            p.v("v_cvt_pk_bf16_f32", o4[i], y[2 * i], y[2 * i + 1])
        p.ds_write("ds_write_b128", vhw, o4, off=n * 4096)
    for i in range(8):
        zero16(p, vACC[16 * i:16 * i + 16], vz)
    T("h")
    p.barrier()
    T("h_ready")

    bc_main(p, T)
    T("o_done")
    if diag:
        p.wait(vm=0)
    T("drained")
    T("rt1", True)
    T.flush(rWS, sw, 1, vt[0], vt[1])
    gen_b.stamp_names = T.names
    p.branch("s_branch", "B_end")
    slow_attention(p)
    p.label("B_end")
    resolve_ovw(p.ins)
    return finalize(p, {"gq": sLoop, "ga": sLoop, "go": sLoop}, verbose=8, name="BC")


if __name__ == "__main__":
    txt = gen_b()
    open("kb2.s", "w").write(txt)
    print(len(txt.splitlines()))
```

```python
NAME = "adaLN_cond__sliding_block_cached__glu_gated_bilinear__prompt"
ARG = dict(x=0, k=8, v=16, wq=24, wo=32, bx=40, wg=48, wu=56, wd=64, c=72, wmod=80, out=88, dbg=96, ws=104)
SZ = dict(x=2097152, k=16777216, v=16777216, wq=4194304, wo=4194304, wg=1409024, wu=1409024, wd=1409024,
          c=1024, wmod=3145728, out=2097152)
WS_MOD = 0
WS_FLAG = 0x2000000
WS_MODG = 0x4000
WS_EPOCH = 0xF000
WS_H = 0x10000
WS_X1 = WS_H + 0x200000 + 0x1000
WS_H2 = WS_X1 + 0x200000 + 0x1000
WS_ACT = WS_H2 + 0x200000 + 0x1000
ACT_RB = 29 * 6144
WS_PART = WS_ACT + 32 * ACT_RB + 0x1000
WS_PART = (WS_PART + 0xFFF) & ~0xFFF
PART_BLK = 65536 + 4096
WS_END = WS_FLAG + 4 * 256 * 128
assert WS_PART + 256 * PART_BLK <= WS_FLAG
QSCALE = 1.4426950408889634 / (128 ** 0.5)
WS_STAMP = (WS_END + 0xFFFF) & ~0xFFFF
WS_DIAG_END = WS_STAMP + 0x100000
```

```python
from asmlib import *
from layout import *
from ka import srd, bf16_round_hi
import kb2
from kb2 import *

KNAME = NAME + "_kernel"
M_LDS = B_LDS
SC1 = "sc1"

DBG_MOD0 = 0
DBG_MOD1 = 8
DBG_CLR = 12
DBG_FLAG0 = 128
N_CNT = 256
N_MOD0, N_MOD1 = 32, 64
F_PART, F_H2, F_ACT = 0, 1, 2

rDBG = S(96, 4)
rTMP = S(92, 4)
rTMP2 = S(72, 4)
sTag = S(90)
aT = A(253)
sp0, sp1 = S(50), S(51)
rG, rU, rD, rOut = rWQ, rK, rV, rWO
vpoll = V(63)
vtid2 = V(45)


def poll(p, srd_, off, target, name, sleep=16):
    lab, done = f"P_{name}", f"P_{name}_done"
    p.s("s_cmp_lg_u32", sw, 0)
    p.branch("s_cbranch_scc1", done)
    p.s("s_mov_b32", sp1, 0)
    p.label(lab)
    p.bload(V(62), vpoll, srd_, soff=0, off=off, flags=SC1)
    p.wait(vm=0)
    p.v("v_readfirstlane_b32", sp0, V(62))
    p.s("s_cmp_ge_u32", sp0, target)
    p.branch("s_cbranch_scc1", done)
    p.s("s_add_u32", sp1, sp1, 1)
    p.s("s_cmp_lt_u32", sp1, 0x20000)
    p.raw(f"s_sleep {sleep}")
    p.add(I(f"s_cbranch_scc1 {lab}", "salu"))
    p.label(done)
    p.barrier(drain_lds=True)


vflag = V(61)


def poll_flags(p, kind, sfirst, count, name):
    lab, done = f"P_{name}", f"P_{name}_done"
    p.s("s_cmp_lg_u32", sw, 0)
    p.branch("s_cbranch_scc1", done)
    p.s("s_mov_b32", sp1, 0)
    p.v("v_min_u32", vflag, count - 1, vl)
    p.v("v_lshlrev_b32", vflag, 7, vflag)
    p.s("s_lshl_b32", sp0, sfirst, 7)
    p.s("s_add_u32", S(47), sp0, WS_FLAG + kind * 256 * 128)
    p.label(lab)
    p.bload(V(62), vflag, rWS, soff=S(47), flags=SC1)
    p.wait(vm=0)
    p.v("v_cmp_eq_u32", VCC, sTag, V(62))
    p.add(I("s_cmp_eq_u64 vcc, exec", "salu", (), units(VCC)))
    p.branch("s_cbranch_scc1", done)
    p.s("s_add_u32", sp1, sp1, 1)
    p.s("s_cmp_lt_u32", sp1, 0x40000)
    p.raw("s_sleep 2")
    p.add(I(f"s_cbranch_scc1 {lab}", "salu"))
    p.label(done)
    p.barrier(drain_lds=True)


def set_flag(p, kind, sindex, value):
    p.v("v_mov_b32", V(62), value)
    p.v("v_mov_b32", vpoll, 0)
    p.s("s_lshl_b32", sp0, sindex, 7)
    p.s("s_add_u32", sp0, sp0, WS_FLAG + kind * 256 * 128)
    p.s("s_mov_b64", EXEC, 1)
    p.bstore(V(62), vpoll, rWS, soff=sp0, flags=SC1)
    p.s("s_mov_b64", EXEC, -1)


def spin(p, srd_, off, target, name):
    lab, done = f"W_{name}", f"W_{name}_done"
    p.s("s_mov_b32", sp1, 0)
    p.label(lab)
    p.bload(V(62), vpoll, srd_, soff=0, off=off, flags=SC1)
    p.wait(vm=0)
    p.v("v_readfirstlane_b32", sp0, V(62))
    p.s("s_cmp_ge_u32", sp0, target)
    p.branch("s_cbranch_scc1", done)
    p.s("s_add_u32", sp1, sp1, 1)
    p.s("s_cmp_lt_u32", sp1, 0x40000)
    p.raw("s_sleep 1")
    p.add(I(f"s_cbranch_scc1 {lab}", "salu"))
    p.label(done)


aEarly = A(248, 2)


def early_sample(p):
    p.bload(aEarly, vpoll, rDBG, soff=0, off=DBG_MOD1, flags=SC1)


def confirm_early(p):
    for k, (off, target) in enumerate(((DBG_MOD1, N_MOD1), (DBG_CLR, N_CNT))):
        ok = f"C_early{k}_ok"
        p.v("v_accvgpr_read_b32", V(62), aEarly[k])
        p.v("v_readfirstlane_b32", sp0, V(62))
        p.s("s_cmp_ge_u32", sp0, target)
        p.branch("s_cbranch_scc1", ok)
        spin(p, rDBG, off, target, f"early{k}")
        p.label(ok)
    p.s("s_cmp_lg_u32", S(2), 0)
    p.branch("s_cbranch_scc1", "C_epoch_done")
    p.v("v_mov_b32", V(62), sTag)
    p.s("s_mov_b32", sp0, WS_EPOCH)
    p.s("s_mov_b64", EXEC, 1)
    p.bstore(V(62), vpoll, rWS, soff=sp0, flags=SC1)
    p.s("s_mov_b64", EXEC, -1)
    p.label("C_epoch_done")


def signal(p, kind, sindex, name, pre=None):
    done = f"S_{name}_done"
    p.wait(vm=0)
    if pre:
        p.s("s_cmp_lg_u32", sw, 0)
        p.branch("s_cbranch_scc1", f"S_{name}_pre")
        pre(p)
        p.label(f"S_{name}_pre")
    p.barrier(drain_lds=True)
    p.s("s_cmp_lg_u32", sw, 0)
    p.branch("s_cbranch_scc1", done)
    set_flag(p, kind, sindex, sTag)
    p.label(done)


def add_one(p, srd_, off):
    p.v("v_mov_b32", V(62), 1)
    p.v("v_mov_b32", vpoll, 0)
    p.s("s_mov_b64", EXEC, 1)
    so, io = (off, 0) if not isinstance(off, int) else (0, off)
    t = f"buffer_atomic_add {V(62)}, " + Prog._bt(vpoll, srd_, so, io, SC1)
    p.add(I(t, "vstore", (), units(V(62), vpoll, srd_, so), meta={"data": units(V(62)), "wide": False}))
    p.s("s_mov_b64", EXEC, -1)


SIL = WRING + 2 * SLOT
MPART = SIL + 1024
mreg = V(64, 64)
aC = A(250)


def slab_issue(p, sslab):
    regs = V(128, 8)
    st0, st1, so = st[0], st[1], st[2]
    vt0, vt1, vcoff = regs[0], regs[1], regs[2]
    vd = regs[4:8]
    p.v("v_lshlrev_b32", vcoff, 2, vtid2)
    p.bload(aC, vcoff, rTMP2)
    p.v("v_lshrrev_b32", vt0, 2, vl)
    p.s("s_mov_b32", st0, 6144)
    p.v("v_mul_lo_u32", vt0, vt0, st0)
    p.v("v_and_b32", vt1, 3, vl)
    p.v("v_lshl_add_u32", vd[0], vt1, 4, vt0)
    for j in range(1, 4):
        p.v("v_add_u32", vd[j], j * (16 * 6144 - 1024), vd[0])
    p.s("s_mul_i32", st0, sw, 128 * 6144)
    p.s("s_lshl_b32", st1, sslab, 6)
    p.s("s_add_u32", so, st0, st1)
    for grp in range(2):
        p.s("s_add_u32", M0, sMS, grp * 4096)
        if grp:
            p.s("s_add_u32", so, so, 64 * 6144)
        else:
            p.nop(0)
        for j in range(4):
            p.dma(vd[j], rTMP, so, off=1024 * j, tag=("slab", grp))


def slab_finish(p, T, sslab, name):
    regs = V(136, 64) if name == "slab0" else mreg
    st0, st1 = st[0], st[1]
    vt0, vt1, vt2, vc, vcoff = regs[0], regs[1], regs[2], regs[3], regs[4]
    s0, s1, e0, e1, vpk = regs[12], regs[13], regs[14], regs[15], regs[5]
    p.v("v_lshlrev_b32", vcoff, 2, vtid2)
    p.v("v_accvgpr_read_b32", vc, aC)
    p.v("v_lshlrev_b32", s0, 16, vc)
    p.v("v_and_b32", s1, sHi, vc)
    for s_, e_ in ((s0, e0), (s1, e1)):
        p.v("v_mul_f32", e_, -1.4426950408889634, s_)
    for s_, e_ in ((s0, e0), (s1, e1)):
        p.v("v_exp_f32", e_, e_)
    for s_, e_ in ((s0, e0), (s1, e1)):
        p.v("v_add_f32", e_, 1.0, e_)
    for s_, e_ in ((s0, e0), (s1, e1)):
        p.v("v_rcp_f32", e_, e_)
    for s_, e_ in ((s0, e0), (s1, e1)):
        p.v("v_mul_f32", s_, s_, e_)
    p.v("v_cvt_pk_bf16_f32", vpk, s0, s1)
    p.v("v_add_u32", vt0, SIL, vcoff)
    p.ds_write("ds_write_b32", vt0, vpk)
    vtr_ = regs[7]
    p.v("v_lshrrev_b32", vt1, 2, vl)
    p.v("v_lshlrev_b32", vt1, 6, vt1)
    p.v("v_and_b32", vt0, 3, vl)
    p.v("v_lshl_add_u32", vt0, vt0, 3, vt1)
    p.v("v_add_u32", vtr_, sMS, vt0)
    vb = regs[6]
    p.v("v_lshrrev_b32", vb, 4, vl)
    p.v("v_lshlrev_b32", vb, 3, vb)
    p.s("s_lshl_b32", st0, sw, 8)
    p.s("s_add_u32", st0, st0, SIL)
    p.v("v_add_u32", vb, st0, vb)
    p.barrier()
    if name == "slab0":
        T("s_sil")
    acc_ = regs[16:24]
    bf = regs[24:40]
    af = regs[40:56]
    for ks in range(4):
        b = bf[4 * ks:4 * ks + 4]
        p.ds_read("ds_read_b64", b[0:2], vb, off=64 * ks)
        p.ds_read("ds_read_b64", b[2:4], vb, off=64 * ks + 32)
    for k2 in range(2):
        for ks in (2 * k2, 2 * k2 + 1):
            for t in range(2):
                a = af[8 * (ks & 1) + 4 * t:8 * (ks & 1) + 4 * t + 4]
                for h in range(2):
                    p.ds_read("ds_read_b64_tr_b16", a[2 * h:2 * h + 2], vtr_, off=ks * 2048 + 1024 * h + 32 * t,
                              dep=("slab", ks >> 1))
        for ks in (2 * k2, 2 * k2 + 1):
            for t in range(2):
                d = acc_[4 * t:4 * t + 4]
                p.mfma16(d, af[8 * (ks & 1) + 4 * t:8 * (ks & 1) + 4 * t + 4], bf[4 * ks:4 * ks + 4], d if ks else 0)
    p.v("v_lshrrev_b32", vt1, 4, vl)
    p.v("v_lshlrev_b32", vt1, 4, vt1)
    p.s("s_lshl_b32", st0, sw, 7)
    p.s("s_add_u32", st0, st0, MPART)
    p.v("v_add_u32", vt1, st0, vt1)
    for t in range(2):
        p.ds_write("ds_write_b128", vt1, acc_[4 * t:4 * t + 4], off=64 * t)
    p.barrier()
    if name == "slab0":
        T("s_gemv")
    p.s("s_cmp_lg_u32", sw, 0 if name == "slab0" else 3)
    p.branch("s_cbranch_scc1", f"M_{name}_done")
    r4 = regs[16:20]
    p.v("v_and_b32", vt0, 31, vl)
    p.v("v_lshlrev_b32", vt0, 2, vt0)
    p.v("v_add_u32", vt1, MPART, vt0)
    for w in range(4):
        p.ds_read("ds_read_b32", r4[w], vt1, off=128 * w)
    p.v("v_add_f32", r4[0], r4[0], r4[1])
    p.v("v_add_f32", r4[2], r4[2], r4[3])
    p.v("v_add_f32", r4[0], r4[0], r4[2])
    bf16_round_hi(p, r4[0], r4[0])
    p.v("v_add_f32", r4[1], 1.0, r4[0])
    bf16_round_hi(p, r4[1], r4[1])
    p.s("s_lshr_b32", st0, sslab, 4)
    p.s("s_cmp_eq_u32", st0, 1)
    p.s("s_cselect_b32", st1, 1, 0)
    p.s("s_cmp_eq_u32", st0, 4)
    p.s("s_cselect_b32", st1, 1, st1)
    p.v("v_mov_b32", vt2, st1)
    p.v("v_cmp_eq_u32", VCC, 1, vt2)
    p.v("v_cndmask_b32", r4[0], r4[0], r4[1])
    p.s("s_cmp_lt_u32", st0, 2)
    p.s("s_mov_b32", st1, QSCALE)
    p.s("s_cselect_b32", st1, st1, 1.0)
    p.v("v_mul_f32", r4[0], st1, r4[0])
    p.s("s_mov_b64", EXEC, 0xFFFFFFFF)
    if name == "slab0":
        get_tag(p)
        p.v("v_mov_b32", r4[1], sTag)
        p.v("v_lshlrev_b32", vt0, 1, vt0)
        p.s("s_lshl_b32", st0, sslab, 8)
        p.s("s_add_u32", st0, st0, WS_MODG)
        p.bstore(r4[0:2], vt0, rWS, soff=st0, flags=SC1)
        T("s_st")
    else:
        p.s("s_lshl_b32", st0, sslab, 7)
        p.s("s_add_u32", st0, st0, WS_MOD)
        p.bstore(r4[0], vt0, rWS, soff=st0, flags=SC1)
    p.s("s_mov_b64", EXEC, -1)
    p.label(f"M_{name}_done")


def late_signals(p):
    p.s("s_cmp_lg_u32", sw, 3)
    p.branch("s_cbranch_scc1", "M_late_done")
    p.wait(vm=0)
    add_one(p, rDBG, DBG_CLR)
    p.s("s_sub_u32", sp0, S(2), N_MOD0)
    p.s("s_cmp_ge_u32", sp0, N_MOD1)
    p.branch("s_cbranch_scc1", "M_late_done")
    add_one(p, rDBG, DBG_MOD1)
    p.label("M_late_done")


R_LDS = SH + 65536 - 512


def phase_r_issue(p):
    sqt, shalf, st0, st1, sb0 = st[2], st[3], st[0], st[1], st[4]
    vg, vq, vf = V(2), V(3), V(4)
    vt0, vt1, vt2 = V(5), V(6), V(7)
    p.v("v_and_b32", vq, 7, vl)
    p.v("v_lshrrev_b32", vg, 3, vl)
    p.v("v_and_b32", vg, 3, vg)
    p.v("v_lshrrev_b32", vf, 5, vl)
    p.s("s_lshr_b32", sqt, shg, 1)
    p.s("s_and_b32", shalf, shg, 1)
    vfr = V(8)
    p.v("v_lshlrev_b32", vt0, 4, vg)
    p.v("v_add_u32", vt0, vt0, vq)
    p.s("s_lshl_b32", st0, shalf, 3)
    p.v("v_add_u32", vt0, st0, vt0)
    p.v("v_lshlrev_b32", vt0, 4, vt0)
    p.v("v_lshlrev_b32", vt1, 12, vf)
    p.v("v_add_u32", vfr, vt0, vt1)
    p.s("s_mul_i32", sb0, srb, PART_BLK)
    p.s("s_lshl_b32", st0, sw, 14)
    p.s("s_add_u32", sb0, sb0, st0)
    p.s("s_lshl_b32", st0, sqt, 10)
    p.s("s_add_u32", sb0, sb0, st0)
    p.s("s_add_u32", sb0, sb0, WS_PART)
    vx = V(80, 8)
    vxo = V(9)
    p.s("s_lshl_b32", st0, srb, 6)
    p.s("s_lshl_b32", st1, sqt, 4)
    p.s("s_add_u32", st0, st0, st1)
    p.s("s_lshl_b32", st1, shalf, 3)
    p.s("s_add_u32", st0, st0, st1)
    p.v("v_add_u32", vt0, st0, vq)
    p.v("v_lshlrev_b32", vt0, 10, vt0)
    p.v("v_lshlrev_b32", vt1, 6, vf)
    p.v("v_lshlrev_b32", vt2, 3, vg)
    p.v("v_add3_u32", vxo, vt0, vt1, vt2)
    p.s("s_lshl_b32", st0, sw, 8)
    for i in range(2):
        for h in range(2):
            p.bload(vx[4 * i + 2 * h:4 * i + 2 * h + 2], vxo, rX, soff=st0, off=128 * i + 32 * h)
    vm = V(88, 48)
    vmo = V(10)
    p.v("v_lshlrev_b32", vt1, 7, vf)
    p.v("v_lshlrev_b32", vt2, 4, vg)
    p.v("v_add_u32", vmo, vt1, vt2)
    p.s("s_lshl_b32", st0, sw, 9)
    for k, vec in enumerate((2, 3, 4)):
        p.s("s_add_u32", st1, st0, WS_MOD + vec * 2048)
        for i in range(2):
            for h in range(2):
                o = 16 * k + 8 * i + 4 * h
                p.bload(vm[o:o + 4], vmo, rWS, soff=st1, off=256 * i + 64 * h, flags=SC1)


def phase_r_partials(p):
    st0, sb0 = st[0], st[4]
    vp = V(16, 64)
    vfr = V(8)
    for hg in range(8):
        for i in range(2):
            p.s("s_add_u32", st0, sb0, hg * 32 * PART_BLK + i * 8192)
            p.bload(vp[8 * hg + 4 * i:8 * hg + 4 * i + 4], vfr, rWS, soff=st0, flags=SC1)


def phase_r_compute(p, T, after_sum):
    sqt, st0 = st[2], st[0]
    vq = V(3)
    vt0, vt1 = V(5), V(6)
    vfr = V(8)
    vp, vx, vm = V(16, 64), V(80, 8), V(88, 48)
    a = V(136, 16)
    slo, so = st[1], st[5]
    p.s("s_mov_b32", slo, 0x00003F80)
    p.s("s_mov_b32", sp1, 0x3F800000)
    for hg in range(8):
        for i in range(2):
            for r in range(4):
                src = vp[8 * hg + 4 * i + r]
                for hi, sel in ((0, slo), (1, sp1)):
                    d = a[8 * i + 2 * r + hi]
                    p.v("v_dot2_f32_bf16", d, src, sel, d if hg else 0)
    T("r_sum")
    after_sum()
    p.s("s_lshr_b32", sqt, shg, 1)
    xf = V(152, 16)
    for i in range(2):
        for h in range(2):
            for j in range(2):
                src = vx[4 * i + 2 * h + j]
                p.v("v_lshlrev_b32", xf[8 * i + 4 * h + 2 * j], 16, src)
                p.v("v_and_b32", xf[8 * i + 4 * h + 2 * j + 1], sHi, src)
    for k in range(16):
        p.v("v_fmac_f32", xf[k], a[k], vm[k])
    x1p = V(16, 8)
    for i in range(2):
        for j in range(4):
            p.v("v_cvt_pk_bf16_f32", x1p[4 * i + j], xf[8 * i + 2 * j], xf[8 * i + 2 * j + 1])
    p.s("s_lshl_b32", so, srb, 16)
    p.s("s_lshl_b32", st0, sw, 14)
    p.s("s_add_u32", so, so, st0)
    p.s("s_lshl_b32", st0, sqt, 10)
    p.s("s_add_u32", so, so, st0)
    for i in range(2):
        p.s("s_add_u32", st0, so, WS_X1 + i * 8192)
        p.bstore(x1p[4 * i:4 * i + 4], vfr, rWS, soff=st0, flags=SC1)
    for i in range(2):
        for j in range(4):
            p.v("v_lshlrev_b32", xf[8 * i + 2 * j], 16, x1p[4 * i + j])
            p.v("v_and_b32", xf[8 * i + 2 * j + 1], sHi, x1p[4 * i + j])
    s1, s2 = V(24), V(25)
    p.v("v_add_f32", s1, xf[0], xf[1])
    p.v("v_mul_f32", s2, xf[0], xf[0])
    p.v("v_fmac_f32", s2, xf[1], xf[1])
    for k in range(2, 16):
        p.v("v_add_f32", s1, s1, xf[k])
        p.v("v_fmac_f32", s2, xf[k], xf[k])
    for s_ in (s1, s2):
        p.v("v_add_f32_dpp", s_, s_, s_, mods="row_ror:8 row_mask:0xf bank_mask:0xf")
    for op in ("v_permlane16_swap_b32", "v_permlane32_swap_b32"):
        for s_, t_ in ((s1, vt0), (s2, vt1)):
            p.v("v_mov_b32", t_, s_)
        for s_, t_ in ((s1, vt0), (s2, vt1)):
            p.v(op, s_, t_)
        for s_, t_ in ((s1, vt0), (s2, vt1)):
            p.v("v_add_f32", s_, s_, t_)
    p.v("v_lshlrev_b32", vt0, 3, vq)
    p.v("v_add_u32", vt0, R_LDS, vt0)
    p.s("s_lshl_b32", st0, sw, 6)
    p.v("v_add_u32", vt1, st0, vt0)
    s12 = V(26, 2)
    p.v("v_mov_b32", s12[0], s1)
    p.v("v_mov_b32", s12[1], s2)
    p.ds_write("ds_write_b64", vt1, s12)
    p.barrier()
    rr = V(28, 8)
    for w in range(4):
        p.ds_read("ds_read_b64", rr[2 * w:2 * w + 2], vt0, off=64 * w)
    p.v("v_add_f32", s1, rr[0], rr[2])
    p.v("v_add_f32", s2, rr[1], rr[3])
    p.v("v_add_f32", rr[4], rr[4], rr[6])
    p.v("v_add_f32", rr[5], rr[5], rr[7])
    p.v("v_add_f32", s1, s1, rr[4])
    p.v("v_add_f32", s2, s2, rr[5])
    mu, rs2, nm2 = V(36), V(38, 2), V(40, 2)
    p.v("v_mul_f32", mu, 1.0 / 512, s1)
    p.v("v_mul_f32", s2, 1.0 / 512, s2)
    p.v("v_fma_f32", s2, Neg(mu), mu, s2)
    p.v("v_max_f32", s2, 0, s2)
    p.v("v_add_f32", s2, 1e-5, s2)
    p.v("v_rsq_f32", rs2[0], s2)
    p.v("v_mul_f32_e64", nm2[0], Neg(mu), rs2[0])
    p.v("v_mov_b32", rs2[1], rs2[0])
    p.v("v_mov_b32", nm2[1], nm2[0])
    for k in range(8):
        p.v("v_pk_fma_f32", xf[2 * k:2 * k + 2], xf[2 * k:2 * k + 2], rs2, nm2)
    for k in range(8):
        p.v("v_pk_fma_f32", xf[2 * k:2 * k + 2], xf[2 * k:2 * k + 2], vm[32 + 2 * k:34 + 2 * k], vm[16 + 2 * k:18 + 2 * k])
    h2p = V(44, 8)
    for i in range(2):
        for j in range(4):
            p.v("v_cvt_pk_bf16_f32", h2p[4 * i + j], xf[8 * i + 2 * j], xf[8 * i + 2 * j + 1])
        p.s("s_add_u32", st0, so, WS_H2 + i * 8192)
        p.bstore(h2p[4 * i:4 * i + 4], vfr, rWS, soff=st0, flags=SC1)


ROWB = 2752
sDrb, sDcg, sDact, sDH = S(40 + 12), S(40 + 13), S(40 + 14), S(40 + 15)
sErb, sEcb, sEact, sEwd = S(56), S(57), S(58), S(59)


def d_ids(p):
    st0, st1 = st[0], st[1]
    p.s("s_and_b32", st0, shg, 1)
    p.s("s_lshl_b32", st0, st0, 2)
    p.s("s_and_b32", st1, srb, 3)
    p.s("s_add_u32", sDrb, st0, st1)
    p.s("s_lshr_b32", st0, shg, 1)
    p.s("s_mul_i32", st1, st0, 7)
    p.s("s_add_u32", st1, st1, 1)
    p.s("s_cmp_eq_u32", st0, 0)
    p.s("s_cselect_b32", sDcg, 0, st1)
    p.s("s_cselect_b32", st0, 8, 7)
    p.s("s_lshr_b32", st1, srb, 2)
    p.s("s_add_u32", sDcg, sDcg, st1)
    p.s("s_cmp_lt_u32", st1, st0)
    p.s("s_cselect_b32", sDact, 1, 0)


def d_weights(p):
    st0, st1 = st[0], st[1]
    vt_ = V(170, 5)
    vd = V(176, 3)
    smag = S(61)
    p.s("s_mov_b32", smag, 0xAAAB)
    p.s("s_mov_b32", st0, ROWB)
    for k in range(3):
        p.v("v_add_u32", vt_[0], 64 * k, vl)
        p.v("v_mul_lo_u32", vt_[1], vt_[0], smag)
        p.v("v_lshrrev_b32", vt_[1], 18, vt_[1])
        p.v("v_mul_u32_u24", vt_[2], 6, vt_[1])
        p.v("v_sub_u32", vt_[2], vt_[0], vt_[2])
        p.v("v_lshlrev_b32", vt_[2], 4, vt_[2])
        p.v("v_mul_lo_u32", vt_[1], vt_[1], st0)
        p.v("v_add_u32", vd[k], vt_[1], vt_[2])
        if k:
            p.v("v_subrev_u32", vd[k], 1024 * k, vd[k])
    sWo, sL = S(62), S(63)
    p.s("s_mul_i32", sWo, sw, 32 * ROWB)
    p.s("s_mul_i32", st0, sDcg, 96)
    p.s("s_add_u32", sWo, sWo, st0)
    p.s("s_mul_i32", sL, sw, 3072)
    for i in range(4):
        for m, r_ in enumerate((rG, rU)):
            p.s("s_add_u32", st0, sWo, i * 4 * 32 * ROWB)
            p.s("s_add_u32", M0, sL, m * 49152 + i * 4 * 3072)
            p.nop(0)
            for k in range(3):
                p.dma(vd[k], r_, st0, off=1024 * k, tag="dw")


E_RING = SH
E_NSLOT = 4


def phase_d(p, T, e_prefetch):
    st0, st1 = st[0], st[1]
    sH, sAct = st[2], st[3]
    vlin_ = V(2)
    vt_ = V(3, 5)
    vtr_ = V(12, 2)
    p.v("v_lshlrev_b32", vlin_, 4, vl)
    p.s("s_lshl_b32", sH, sDrb, 2)
    p.s("s_add_u32", sH, sH, sw)
    p.s("s_mul_i32", sAct, sH, ACT_RB)
    p.s("s_lshl_b32", sH, sH, 16)
    p.s("s_add_u32", sH, sH, WS_H2)
    p.s("s_mul_i32", st0, sDcg, 6144)
    p.s("s_add_u32", sAct, sAct, st0)
    p.s("s_add_u32", sAct, sAct, WS_ACT)
    NB = 6
    vB_ = V(128, 16 * NB)

    def bfr(ks, qt):
        o = 16 * (ks % NB) + 4 * qt
        return vB_[o:o + 4]

    def load_b(ks):
        q = Prog()
        q.s("s_add_u32", st1, sH, ks * 4096)
        for qt in range(4):
            q.bload(bfr(ks, qt), vlin_, rWS, soff=st1, off=1024 * qt, flags=SC1)
        return q.ins

    p.v("v_lshrrev_b32", vt_[0], 2, vl)
    p.v("v_mul_u32_u24", vt_[0], 96, vt_[0])
    p.v("v_and_b32", vt_[1], 3, vl)
    p.v("v_lshlrev_b32", vt_[1], 3, vt_[1])
    p.v("v_add_u32", vtr_[0], vt_[0], vt_[1])
    p.v("v_add_u32", vtr_[1], 49152, vtr_[0])
    p.s("s_lshl_b32", st[4], sDrb, 5)
    p.wait(vm=0)
    poll_flags(p, F_H2, st[4], 32, "h2")
    T("d_go")
    for ks in range(NB):
        for x in load_b(ks):
            p.add(x)
    e_prefetch()
    accd = V(16, 96)
    vA = V(112, 16)

    def accr(m, t, qt):
        o = 48 * m + 16 * t + 4 * qt
        return accd[o:o + 4]

    def afr(i):
        return vA[4 * (i % 4):4 * (i % 4) + 4]

    def rd_a(ks, f):
        q = Prog()
        m, t = f // 3, f % 3
        for h in range(2):
            q.ds_read("ds_read_b64_tr_b16", afr(6 * ks + f)[2 * h:2 * h + 2], vtr_[m], off=ks * 3072 + 1536 * h + 32 * t)
        return q.ins

    for f in range(2):
        for x in rd_a(0, f):
            p.add(x)
    for ks in range(16):
        for f in range(6):
            m, t = f // 3, f % 3
            nf, nks = (f + 2) % 6, ks + (f + 2) // 6
            pre = rd_a(nks, nf) if nks < 16 else []
            for qt in range(4):
                d = accr(m, t, qt)
                p.mfma16(d, afr(6 * ks + f), bfr(ks, qt), d if ks else 0)
                if qt < 2 and pre:
                    p.add(pre[qt])
            if f == 5 and ks + NB < 16:
                for x in load_b(ks + NB):
                    p.add(x)
    T("d_mma")
    o = V(128, 32)
    for qt in range(4):
        for t in range(3):
            g_, u_ = accr(0, t, qt), accr(1, t, qt)
            for r in range(4):
                p.v("v_mul_f32", g_[r], g_[r], u_[r])
        full = o[8 * qt:8 * qt + 4]
        half = o[8 * qt + 4:8 * qt + 6]
        for t in range(3):
            g_ = accr(0, t, qt)
            dst = full[2 * t:2 * t + 2] if t < 2 else half
            p.v("v_cvt_pk_bf16_f32", dst[0], g_[0], g_[1])
            p.v("v_cvt_pk_bf16_f32", dst[1], g_[2], g_[3])
        p.bstore(full, vlin_, rWS, soff=sAct, off=1024 * qt, flags=SC1)
    vh = vt_[0]
    p.v("v_lshlrev_b32", vh, 3, vl)
    p.s("s_add_u32", st0, sAct, 4096)
    p.s("s_cmp_eq_u32", sDcg, 28)
    p.branch("s_cbranch_scc1", "D_skip_half")
    for qt in range(4):
        p.bstore(o[8 * qt + 4:8 * qt + 6], vh, rWS, soff=st0, off=512 * qt, flags=SC1)
    p.label("D_skip_half")
    p.s("s_lshl_b32", st[4], sDrb, 5)
    p.s("s_add_u32", st[4], st[4], sDcg)
    signal(p, F_ACT, st[4], "act")


eRing, eSa, eSd = S(60), S(61), S(62)
eVd, eVtr, eLin, eLin8 = V(232, 2), V(234, 4), V(238), V(239)
eAcc, eA, eB = V(16, 64), V(80, 16), V(96, 16 * E_NSLOT)


def e_setup(p):
    st0, st1 = st[0], st[1]
    vt_ = V(240, 4)
    p.v("v_lshlrev_b32", eLin, 4, vl)
    p.v("v_lshlrev_b32", eLin8, 3, vl)
    p.s("s_lshl_b32", st0, shg, 2)
    p.s("s_lshr_b32", st1, S(2), 6)
    p.s("s_add_u32", sErb, st0, st1)
    p.s("s_and_b32", sEcb, srb, 7)
    p.s("s_lshl_b32", eRing, sw, 14)
    p.s("s_add_u32", eRing, eRing, E_RING)
    p.v("v_lshrrev_b32", vt_[0], 3, vl)
    p.v("v_lshlrev_b32", vt_[1], 10, vt_[0])
    p.v("v_lshrrev_b32", vt_[0], 1, vt_[0])
    p.v("v_and_b32", vt_[0], 3, vt_[0])
    p.v("v_lshlrev_b32", vt_[0], 1, vt_[0])
    p.v("v_and_b32", vt_[2], 7, vl)
    p.v("v_xor_b32", vt_[0], vt_[0], vt_[2])
    p.v("v_lshlrev_b32", vt_[0], 4, vt_[0])
    p.v("v_add_u32", eVd[0], vt_[0], vt_[1])
    p.v("v_add_u32", eVd[1], 8 * 1024 - 1024, eVd[0])
    p.v("v_lshrrev_b32", vt_[0], 2, vl)
    p.v("v_lshlrev_b32", vt_[1], 7, vt_[0])
    p.v("v_lshrrev_b32", vt_[0], 1, vt_[0])
    p.v("v_and_b32", vt_[0], 3, vt_[0])
    p.v("v_lshlrev_b32", vt_[0], 1, vt_[0])
    p.v("v_and_b32", vt_[2], 3, vl)
    p.v("v_lshrrev_b32", vt_[3], 1, vt_[2])
    p.v("v_xor_b32", vt_[0], vt_[0], vt_[3])
    p.v("v_lshlrev_b32", vt_[0], 4, vt_[0])
    p.v("v_and_b32", vt_[2], 1, vt_[2])
    p.v("v_lshlrev_b32", vt_[2], 3, vt_[2])
    p.v("v_add3_u32", eVtr[0], vt_[0], vt_[1], vt_[2])
    p.v("v_add_u32", eVtr[0], eRing, eVtr[0])
    for t in range(1, 4):
        p.v("v_xor_b32", eVtr[t], t << 5, eVtr[0])
    p.s("s_mul_i32", sEact, sErb, ACT_RB)
    p.s("s_mul_i32", st0, sw, 2 * 6144)
    p.s("s_add_u32", sEact, sEact, st0)
    p.s("s_add_u32", sEact, sEact, WS_ACT)
    p.s("s_mul_i32", sEwd, sw, 96 * 1024)
    p.s("s_lshl_b32", st0, sEcb, 7)
    p.s("s_add_u32", sEwd, sEwd, st0)


def e_issue_w(q, n, kind, pair_off):
    doff = pair_off * 4 * 96 * 1024
    slot = (n % E_NSLOT) * 4096
    if kind < 2:
        rows = [doff + (48 * kind) * 1024, doff + (48 * kind + 16) * 1024]
    else:
        rows = [doff + 32 * 1024, doff + (48 + 32) * 1024]
    for hf in range(2):
        q.s("s_add_u32", eSd, sEwd, rows[hf])
        q.s("s_add_u32", M0, eRing, slot + 2048 * hf)
        q.nop(0)
        for j in range(2):
            q.dma(eVd[j], rD, eSd, off=1024 * j, tag=("e", n), ovw=("e", n - E_NSLOT))


def e_bfr(n, qt):
    o = 16 * (n % E_NSLOT) + 4 * qt
    return eB[o:o + 4]


def e_issue_b(q, n, kind, pair_off):
    aoff = pair_off * 8 * 6144
    if kind < 2:
        q.s("s_add_u32", eSa, sEact, aoff + kind * 6144)
        for qt in range(4):
            q.bload(e_bfr(n, qt), eLin, rWS, soff=eSa, off=1024 * qt, flags=SC1)
    else:
        for hf in range(2):
            q.s("s_add_u32", eSa, sEact, aoff + hf * 6144 + 4096)
            for qt in range(4):
                q.bload(e_bfr(n, qt)[2 * hf:2 * hf + 2], eLin8, rWS, soff=eSa, off=512 * qt, flags=SC1)


def phase_e(p, T):
    st0, st1 = st[0], st[1]
    vt_ = V(240, 4)

    def accr(t, qt):
        return eAcc[16 * t + 4 * qt:16 * t + 4 * qt + 4]

    def afr(i):
        return eA[4 * (i % 4):4 * (i % 4) + 4]

    def rd_a(n, t):
        q = Prog()
        for h in range(2):
            q.ds_read("ds_read_b64_tr_b16", afr(4 * n + t)[2 * h:2 * h + 2], eVtr[t],
                      off=(n % E_NSLOT) * 4096 + 2048 * h, dep=("e", n))
        return q.ins

    def step(n, first, nxt, have_next):
        for t in range(4):
            tn, nn = (t + 2) % 4, n + (t + 2) // 4
            pre = rd_a(nn, tn) if (nn == n or have_next) else []
            for qt in range(4):
                d = accr(t, qt)
                p.mfma16(d, afr(4 * n + t), e_bfr(n, qt), d if not first else 0)
                if qt < 2 and pre:
                    p.add(pre[qt])
        for x in nxt:
            p.add(x)

    x1 = V(160, 8)
    gb = V(168, 16)
    p.s("s_lshl_b32", st[4], shg, 5)
    poll_flags(p, F_ACT, st[4], 29, "act")
    T("e_go")
    for n in range(E_NSLOT):
        e_issue_b(p, n, n % 3, n // 3)
    p.s("s_lshl_b32", st0, sErb, 16)
    p.s("s_lshl_b32", st1, sEcb, 13)
    p.s("s_add_u32", st0, st0, st1)
    p.s("s_lshl_b32", st1, sw, 10)
    p.s("s_add_u32", st0, st0, st1)
    p.s("s_add_u32", st0, st0, WS_X1)
    p.bload(x1[0:4], eLin, rWS, soff=st0, flags=SC1)
    p.s("s_add_u32", st0, st0, 4096)
    p.bload(x1[4:8], eLin, rWS, soff=st0, flags=SC1)
    p.v("v_lshrrev_b32", vt_[1], 4, vl)
    p.v("v_lshlrev_b32", vt_[1], 4, vt_[1])
    p.s("s_lshl_b32", st0, sEcb, 8)
    p.s("s_add_u32", st0, st0, WS_MOD + 5 * 2048)
    for t in range(4):
        p.bload(gb[4 * t:4 * t + 4], vt_[1], rWS, soff=st0, off=64 * t, flags=SC1)
    for t in range(2):
        for x in rd_a(0, t):
            p.add(x)
    for n in range(9):
        q = Prog()
        m = n + E_NSLOT
        if m < 9:
            e_issue_w(q, m, m % 3, m // 3)
            e_issue_b(q, m, m % 3, m // 3)
        step(n, n == 0, q.ins, n < 8)
    T("e_main")
    p.s("s_cmp_lt_u32", sw, 2)
    p.branch("s_cbranch_scc1", "E_four")
    p.s("s_cmp_eq_u32", sw, 3)
    p.branch("s_cbranch_scc1", "E_red")
    n = 9
    p.s("s_sub_u32", sEact, sEact, 2 * 2 * 6144 - 28 * 6144)
    p.s("s_sub_u32", sEwd, sEwd, 2 * 96 * 1024 - 1344 * 1024)
    e_issue_w(p, n, 0, 0)
    e_issue_b(p, n, 0, 0)
    for t in range(2):
        for x in rd_a(n, t):
            p.add(x)
    step(n, False, [], False)
    p.branch("s_branch", "E_red")
    p.label("E_four")
    for n in range(9, 12):
        e_issue_w(p, n, n % 3, 3)
        e_issue_b(p, n, n % 3, 3)
    for t in range(2):
        for x in rd_a(9, t):
            p.add(x)
    for n in range(9, 12):
        step(n, False, [], n < 11)
    p.label("E_red")
    T("e_tail")
    p.wait(vm=0, lgkm=0)
    p.s("s_lshl_b32", st0, sw, 12)
    p.v("v_add_u32", vt_[0], st0, eLin)
    for qt in range(4):
        for t in range(4):
            p.ds_write("ds_write_b128", vt_[0], accr(t, qt), off=qt * 16384 + t * 1024)
    p.barrier()
    red = V(96, 64)
    p.s("s_lshl_b32", st0, sw, 14)
    p.v("v_add_u32", vt_[0], st0, eLin)
    for w in range(4):
        for t in range(4):
            p.ds_read("ds_read_b128", red[16 * w + 4 * t:16 * w + 4 * t + 4], vt_[0], off=w * 4096 + t * 1024)
    for k in range(8):
        p.v("v_pk_add_f32", red[2 * k:2 * k + 2], red[2 * k:2 * k + 2], red[16 + 2 * k:18 + 2 * k])
        p.v("v_pk_add_f32", red[32 + 2 * k:34 + 2 * k], red[32 + 2 * k:34 + 2 * k], red[48 + 2 * k:50 + 2 * k])
    for k in range(8):
        p.v("v_pk_add_f32", red[2 * k:2 * k + 2], red[2 * k:2 * k + 2], red[32 + 2 * k:34 + 2 * k])
    xf = V(184, 16)
    for j in range(2):
        for h in range(2):
            for i in range(2):
                src = x1[4 * j + 2 * h + i]
                k = 8 * j + 4 * h + 2 * i
                p.v("v_lshlrev_b32", xf[k], 16, src)
                p.v("v_and_b32", xf[k + 1], sHi, src)
    for k in range(16):
        p.v("v_fmac_f32", xf[k], red[k], gb[k])
    op = V(200, 8)
    for k in range(8):
        p.v("v_cvt_pk_bf16_f32", op[k], xf[2 * k], xf[2 * k + 1])
    p.v("v_and_b32", vt_[0], 15, vl)
    p.v("v_lshlrev_b32", vt_[0], 10, vt_[0])
    p.v("v_lshrrev_b32", vt_[1], 4, vl)
    p.v("v_lshlrev_b32", vt_[1], 3, vt_[1])
    p.v("v_add_u32", vt_[0], vt_[0], vt_[1])
    p.s("s_lshl_b32", st0, sErb, 6)
    p.s("s_lshl_b32", st1, sw, 4)
    p.s("s_add_u32", st0, st0, st1)
    p.s("s_lshl_b32", st0, st0, 10)
    p.s("s_lshl_b32", st1, sEcb, 7)
    p.s("s_add_u32", st0, st0, st1)
    for t in range(4):
        p.bstore(op[2 * t:2 * t + 2], vt_[0], rOut, soff=st0, off=32 * t, flags=SC1)


aTouch = A(240, 8)


def get_tag(p):
    p.v("v_accvgpr_read_b32", V(62), aT)
    p.v("v_readfirstlane_b32", sTag, V(62))
    p.s("s_add_u32", sTag, sTag, 1)


def touch_streams(p, ptr2):
    p.s("s_cmp_eq_u32", sw, 0)
    p.branch("s_cbranch_scc1", "M_no_touch")
    vo = vt[0]
    p.v("v_lshlrev_b32", vo, 6, vl)
    p.s("s_cmp_lt_u32", srb, 16)
    p.s("s_cselect_b32", rTMP[0], ptr2["k"][0], ptr2["v"][0])
    p.s("s_cselect_b32", rTMP[1], ptr2["k"][1], ptr2["v"][1])
    p.s("s_lshl_b32", st[1], shg, 21)
    p.s("s_add_u32", st[1], st[1], 1536 * 256)
    p.s("s_add_u32", rTMP[0], rTMP[0], st[1])
    p.s("s_addc_u32", rTMP[1], rTMP[1], 0)
    p.s("s_mov_b32", rTMP[2], 4 << 19)
    p.s("s_mov_b32", rTMP[3], 0x20000)
    p.s("s_lshl_b32", st[2], srot, 13)
    for m in range(3):
        p.s("s_add_u32", st[1], sw, 3 * m - 1)
        p.s("s_lshr_b32", st[3], st[1], 1)
        p.s("s_lshl_b32", st[3], st[3], 19)
        p.s("s_and_b32", st[1], st[1], 1)
        p.s("s_lshl_b32", st[1], st[1], 12)
        p.s("s_add_u32", st[1], st[1], st[3])
        p.s("s_add_u32", st[1], st[1], st[2])
        p.bload(aTouch[m], vo, rTMP, soff=st[1])
    srd(p, rTMP, ptr2["wd"], SZ["wd"])
    p.s("s_lshl_b32", st[1], S(2), 12)
    p.s("s_cmp_eq_u32", sw, 3)
    p.s("s_cselect_b32", st[2], st[1], SZ["wd"])
    p.bload(aTouch[3], vo, rTMP, soff=st[2])
    p.s("s_add_u32", st[2], st[2], 256 * 4096)
    p.bload(aTouch[4], vo, rTMP, soff=st[2])
    p.label("M_no_touch")


def touch_d_weights(p):
    p.s("s_cmp_eq_u32", sw, 0)
    p.branch("s_cbranch_scc1", "M_no_touch_d")
    p.s("s_cmp_eq_u32", sDact, 0)
    p.branch("s_cbranch_scc1", "M_no_touch_d")
    vo = V(170)
    p.v("v_lshrrev_b32", V(171), 1, vl)
    p.s("s_mov_b32", st[0], ROWB)
    p.v("v_mul_lo_u32", V(171), V(171), st[0])
    p.v("v_and_b32", vo, 1, vl)
    p.v("v_lshlrev_b32", vo, 6, vo)
    p.v("v_add_u32", vo, vo, V(171))
    p.s("s_and_b32", st[0], srb, 3)
    p.s("s_mul_i32", st[0], st[0], 128 * ROWB)
    p.s("s_mul_i32", st[1], sDcg, 96)
    p.s("s_add_u32", st[0], st[0], st[1])
    p.s("s_sub_u32", st[1], sw, 1)
    p.s("s_mul_i32", st[1], st[1], 32 * ROWB)
    p.s("s_add_u32", st[1], st[1], st[0])
    p.bload(aTouch[0], vo, rG, soff=st[1])
    p.bload(aTouch[1], vo, rU, soff=st[1])
    p.s("s_add_u32", st[1], st[0], 3 * 32 * ROWB)
    p.s("s_cmp_eq_u32", sw, 3)
    p.s("s_cselect_b32", st[1], st[1], SZ["wg"])
    p.bload(aTouch[2], vo, rG, soff=st[1])
    p.bload(aTouch[3], vo, rU, soff=st[1])
    p.label("M_no_touch_d")


def gen_mega(diag=False):
    p = Prog()
    T = Stamps(p, diag, vreg=V(0), early=0)
    p.s("s_cmp_ge_u32", S(2), 256)
    p.branch("s_cbranch_scc1", "B_end")
    p.v("v_mov_b32", vtid2, V(0))
    T("rt0", True)
    T("start")
    ptr = {k: S(52 + 2 * i, 2) for i, k in enumerate(["x", "ws", "dbg", "wmod", "c", "wq"])}
    for k in ptr:
        p.s_load(ptr[k], S(0, 2), ARG[k])
    p.v("v_lshrrev_b32", vt[0], 6, vtid2)
    p.v("v_and_b32", vl, 63, vtid2)
    p.v("v_readfirstlane_b32", sw, vt[0])
    p.s("s_and_b32", shg, S(2), 7)
    p.s("s_lshr_b32", srb, S(2), 3)
    p.s("s_and_b32", srot, srb, 15)
    p.s("s_lshl_b32", shead, shg, 2)
    p.s("s_mov_b32", sHi, 0xFFFF0000)
    vq, vg = vtmp[0], vtmp[1]
    p.v("v_and_b32", vq, 15, vl)
    p.v("v_lshrrev_b32", vg, 4, vl)
    p.v("v_lshlrev_b32", vlin, 4, vl)
    p.v("v_mov_b32", vpoll, 0)
    p.s("s_add_u32", shead, shead, sw)
    p.s("s_mul_i32", sMW, sw, WRING)
    p.s("s_lshl_b32", sMS, sw, 14)
    p.s("s_add_u32", sMS, sMS, SH)
    vxo = vtmp[2]
    p.s("s_lshl_b32", st[0], srb, 6)
    p.s("s_lshl_b32", st[1], sw, 4)
    p.s("s_add_u32", st[0], st[0], st[1])
    p.v("v_add_u32", vxo, st[0], vq)
    p.v("v_lshlrev_b32", vxo, 10, vxo)
    p.v("v_lshl_add_u32", vxo, vg, 4, vxo)
    p.wait(lgkm=0)
    srd(p, rX, ptr["x"], SZ["x"])
    srd(p, rWS, ptr["ws"], WS_DIAG_END if diag else WS_END)
    srd(p, rDBG, ptr["dbg"], 256)
    srd(p, rWQ, ptr["wq"], SZ["wq"])
    ptr2 = {k: S(64 + 12 + 2 * i, 2) for i, k in enumerate(["k", "v", "wo", "wg", "wu", "wd", "out"])}
    for k in ptr2:
        p.s_load(ptr2[k], S(0, 2), ARG[k])
    p.s("s_mov_b32", st[0], WS_EPOCH)
    p.bload(aT, vpoll, rWS, soff=st[0], flags=SC1)
    srd(p, rTMP, ptr["wmod"], SZ["wmod"])
    srd(p, rTMP2, ptr["c"], SZ["c"])
    p.s("s_cmp_ge_u32", S(2), N_MOD0)
    p.branch("s_cbranch_scc1", "M_no_slab")
    slab_issue(p, S(2))
    p.label("M_no_slab")
    T("s_iss")
    p.wait(lgkm=0)
    bc_setup(p, ptr2)
    vone, vz = vtmp[4:8], vtmp[8:12]
    dma_voffs(p, vdQ, 8192, "n8", 8)
    p.s("s_lshl_b32", sA, srot, 18)
    p.s("s_lshl_b32", st[1], shead, 8)
    p.s("s_add_u32", sA, sA, st[1])
    vX = V(64, 64)
    sX = S(91)

    def x_loads(lo, hi):
        for n in range(lo, hi):
            p.bload(vX[4 * n:4 * n + 4], vxo, rX, soff=sX)
            if n < 15:
                p.s("s_add_u32", sX, sX, 64)
                p.s("s_and_b32", sX, sX, 0x3FF)

    p.s("s_lshl_b32", sX, srot, 6)
    p.s("s_cmp_ge_u32", S(2), N_MOD0)
    p.branch("s_cbranch_scc1", "M_no_slab_f")
    slab_finish(p, T, S(2), "slab0")
    p.barrier()
    p.label("M_no_slab_f")
    x_loads(0, 16)
    T("issued")
    p.s("s_sub_u32", st[5], S(2), N_MOD0)
    p.s("s_cmp_ge_u32", st[5], N_MOD1)
    p.branch("s_cbranch_scc1", "M_no_slab1i")
    slab_issue(p, S(2))
    p.label("M_no_slab1i")
    dma_now(p, "wq", 0)
    T("setup")

    gram, rsum = vtmp[12:16], A(232, 4)
    for n in range(16):
        xs = vX[4 * n:4 * n + 4]
        p.mfma16(gram, xs, xs, gram if n else 0)
        p.mfma16(rsum, vone, xs, rsum if n else 0)
    rs0 = vt[6]
    p.v("v_accvgpr_read_b32", rs0, rsum[0])
    mu, rs2, nm2 = vt[7], V(50, 2), V(52, 2)
    row_stats(p, gram, [rs0], vq, vg, mu, rs2[0], nm2[0], vt[0], vt[1])
    p.v("v_mov_b32", rs2[1], rs2[0])
    p.v("v_mov_b32", nm2[1], nm2[0])
    vY = V(128, 128)
    for n in range(16):
        xs = vX[4 * n:4 * n + 4]
        y = vY[8 * n:8 * n + 8]
        for i in range(4):
            p.v("v_lshlrev_b32", y[2 * i], 16, xs[i])
            p.v("v_and_b32", y[2 * i + 1], sHi, xs[i])
        for i in range(4):
            p.v("v_pk_fma_f32", y[2 * i:2 * i + 2], y[2 * i:2 * i + 2], rs2, nm2)
    T("ln")
    p.s("s_sub_u32", st[5], S(2), N_MOD0)
    p.s("s_cmp_ge_u32", st[5], N_MOD1)
    p.branch("s_cbranch_scc1", "M_no_slab1")
    slab_finish(p, T, S(2), "slab1")
    p.label("M_no_slab1")
    vts = vt[5]
    p.s("s_lshl_b32", st[1], sw, 2)
    p.s("s_add_u32", st[1], st[1], srot)
    p.v("v_add_u32", vt[0], st[1], vg)
    p.v("v_and_b32", vt[0], 15, vt[0])
    p.v("v_lshlrev_b32", vt[0], 8, vt[0])
    p.v("v_lshrrev_b32", vt[1], 3, vq)
    p.v("v_lshl_add_u32", vt[0], vt[1], 12, vt[0])
    p.v("v_and_b32", vt[1], 7, vq)
    p.v("v_lshl_add_u32", vts, vt[1], 5, vt[0])
    get_tag(p)
    g8 = V(64, 8)
    p.s("s_mov_b32", sp1, 0)
    p.s("s_mov_b32", st[1], WS_MODG)
    p.label("P_modg")
    p.bload(g8[0:4], vts, rWS, soff=st[1], flags=SC1)
    p.bload(g8[4:8], vts, rWS, soff=st[1], off=16, flags=SC1)
    p.v("v_cmp_eq_u32", VCC, sTag, g8[1])
    p.s("s_mov_b64", sexec, VCC)
    for k in (3, 5, 7):
        p.v("v_cmp_eq_u32", VCC, sTag, g8[k])
        p.s("s_and_b64", sexec, sexec, VCC)
    p.add(I(f"s_cmp_eq_u64 {sexec}, exec", "salu", (), units(sexec)))
    p.branch("s_cbranch_scc1", "P_modg_done")
    p.s("s_add_u32", sp1, sp1, 1)
    p.s("s_cmp_lt_u32", sp1, 0x40000)
    p.raw("s_sleep 2")
    p.add(I("s_cbranch_scc1 P_modg", "salu"))
    p.label("P_modg_done")
    T("mod0")
    dma_now(p, "wq", 1)
    touch_streams(p, ptr2)
    p.v("v_mov_b32", g8[1], g8[2])
    p.v("v_mov_b32", g8[2], g8[4])
    p.v("v_mov_b32", g8[3], g8[6])
    p.s("s_lshl_b32", st[1], sw, 10)
    p.s("s_add_u32", st[1], st[1], TAB)
    p.v("v_add_u32", vt[4], st[1], vlin)
    p.ds_write("ds_write_b128", vt[4], g8[0:4])
    vtab, vhw = vt[2], vt[3]
    p.v("v_lshlrev_b32", vtab, 5, vg)
    p.v("v_add_u32", vtab, TAB, vtab)
    p.s("s_lshl_b32", st[1], sw, 10)
    p.s("s_add_u32", st[1], st[1], SH)
    p.v("v_add_u32", vhw, st[1], vlin)
    p.barrier()
    T("tab")

    def rd_tab(n):
        tb = V(64 + 16 * (n % 3), 16)
        for i, o in enumerate((0, 16, 128, 144)):
            p.ds_read("ds_read_b128", tb[4 * i:4 * i + 4], vtab, off=n * 256 + o)

    rd_tab(0)
    rd_tab(1)
    for n in range(16):
        tb = V(64 + 16 * (n % 3), 16)
        y = vY[8 * n:8 * n + 8]
        o4 = V(112 + 4 * (n & 3), 4)
        if n + 2 < 16:
            rd_tab(n + 2)
        for i in range(4):
            p.v("v_pk_fma_f32", y[2 * i:2 * i + 2], y[2 * i:2 * i + 2], tb[8 + 2 * i:10 + 2 * i], tb[2 * i:2 * i + 2])
        for i in range(4):
            p.v("v_cvt_pk_bf16_f32", o4[i], y[2 * i], y[2 * i + 1])
        p.ds_write("ds_write_b128", vhw, o4, off=n * 4096)
    for i in range(8):
        zero16(p, vACC[16 * i:16 * i + 16], vz)
    p.barrier()
    T("h_ready")

    bc_main(p, T, store_flags=SC1, at_q_done=late_signals, before_norm=early_sample)
    T("o_done")

    ptr3 = ptr2
    srd(p, rG, ptr3["wg"], SZ["wg"])
    srd(p, rU, ptr3["wu"], SZ["wu"])
    srd(p, rD, ptr3["wd"], SZ["wd"])
    srd(p, rOut, ptr3["out"], SZ["out"])
    d_ids(p)
    signal(p, F_PART, S(2), "part", pre=confirm_early)
    touch_d_weights(p)
    phase_r_issue(p)
    p.s("s_lshl_b32", st[5], srb, 3)
    poll_flags(p, F_PART, st[5], 8, "part")
    T("r_go")
    phase_r_partials(p)

    def after_sum():
        p.s("s_cmp_eq_u32", sDact, 0)
        p.branch("s_cbranch_scc1", "M_no_dw")
        d_weights(p)
        p.label("M_no_dw")

    phase_r_compute(p, T, after_sum)
    signal(p, F_H2, S(2), "h2")
    T("r_done")
    e_setup(p)

    def e_prefetch():
        for n in range(E_NSLOT):
            e_issue_w(p, n, n % 3, n // 3)

    p.s("s_cmp_eq_u32", sDact, 0)
    p.branch("s_cbranch_scc1", "M_no_d")
    phase_d(p, T, e_prefetch)
    p.branch("s_branch", "M_e")
    p.label("M_no_d")
    p.barrier()
    e_prefetch()
    p.label("M_e")
    T("d_done")
    phase_e(p, T)
    T("e_done")
    if diag:
        p.wait(vm=0)
    T("rt1", True)
    T.flush(rWS, sw, 1, vt[0], vt[1])
    gen_mega.stamp_names = T.names
    p.branch("s_branch", "B_end")
    slow_attention(p)
    p.label("B_end")
    resolve_ovw(p.ins)
    return finalize(p, {"gq": sLoop, "ga": sLoop, "go": sLoop}, verbose=4, name="MEGA")


def assemble_mega(diag=False):
    from build import HEAD
    body = gen_mega(diag)
    s = HEAD + f"; @launch grid=(256,1,1) block=(256,1,1) lds={M_LDS}\n"
    s += '.amdgcn_target "amdgcn-amd-amdhsa--gfx950"\n'
    s += kernel_text(KNAME, body, 512, 256)
    return s


if __name__ == "__main__":
    import sys
    diag = len(sys.argv) > 2 and sys.argv[2] == "diag"
    txt = assemble_mega(diag)
    open(sys.argv[1], "w").write(txt)
    print("wrote", sys.argv[1], len(txt))
    if diag:
        print(",".join(gen_mega.stamp_names))
```

```python
import re


class Reg:
    __slots__ = ("k", "i", "n")

    def __init__(self, k, i, n=1):
        self.k, self.i, self.n = k, i, n

    def __getitem__(self, x):
        if isinstance(x, slice):
            a = x.start or 0
            b = self.n if x.stop is None else x.stop
            assert 0 <= a < b <= self.n, (self, x)
            return Reg(self.k, self.i + a, b - a)
        assert 0 <= x < self.n, (str(self), x)
        return Reg(self.k, self.i + x, 1)

    def sub(self, a, n):
        return self[a:a + n]

    def __str__(self):
        if self.k == "m0":
            return "m0"
        if self.k == "vcc":
            return "vcc"
        if self.k == "exec":
            return "exec"
        if self.n == 1:
            return f"{self.k}{self.i}"
        return f"{self.k}[{self.i}:{self.i + self.n - 1}]"

    __repr__ = __str__

    def units(self):
        return [(self.k, self.i + j) for j in range(self.n)]


class Neg(Reg):
    __slots__ = ()

    def __init__(self, r):
        Reg.__init__(self, r.k, r.i, r.n)

    def __str__(self):
        return "-" + Reg.__str__(self)

    __repr__ = __str__


def V(i, n=1):
    return Reg("v", i, n)


def A(i, n=1):
    return Reg("a", i, n)


def S(i, n=1):
    return Reg("s", i, n)


M0 = Reg("m0", 0)
VCC = Reg("vcc", 0)
EXEC = Reg("exec", 0)


def units(*ops):
    r = []
    for o in ops:
        if isinstance(o, Reg):
            r += o.units()
        elif isinstance(o, (list, tuple)):
            r += units(*o)
    return r


class I:
    __slots__ = ("t", "kind", "w", "r", "tag", "dep", "ovw", "meta")

    def __init__(self, t, kind, w=(), r=(), tag=None, dep=None, ovw=None, meta=None):
        self.t, self.kind = t, kind
        self.w, self.r = set(w), set(r)
        self.tag, self.dep, self.ovw, self.meta = tag, dep, ovw, meta or {}

    def __repr__(self):
        return self.t


TRANS = ("v_exp_f32", "v_log_f32", "v_rcp_f32", "v_rsq_f32", "v_sqrt_f32", "v_sin_f32", "v_cos_f32")


def fmt(x):
    if isinstance(x, float):
        if x in (0.5, 1.0, 2.0, 4.0, -0.5, -1.0, -2.0, -4.0):
            return repr(x)
        if x == 0.0:
            return "0"
        import struct
        return hex(struct.unpack("<I", struct.pack("<f", x))[0])
    if isinstance(x, int):
        return str(x) if -16 <= x <= 64 else hex(x & 0xFFFFFFFF)
    return str(x)


class Prog:
    def __init__(self):
        self.ins = []
        self.uid = 0

    def add(self, i):
        self.ins.append(i)
        return i

    def raw(self, text, kind="salu", w=(), r=()):
        return self.add(I(text, kind, units(*w), units(*r)))

    def comment(self, c):
        return self.add(I("; " + c, "comment"))

    def label(self, name):
        return self.add(I(name + ":", "label"))

    def newlabel(self, base):
        self.uid += 1
        return f"{base}_{self.uid}"

    def s(self, op, dst, *src):
        w = [dst] if isinstance(dst, Reg) else []
        ops = [dst] + list(src)
        r = [x for x in src if isinstance(x, Reg)]
        if op.startswith("s_cmp") or op.startswith("s_bitcmp"):
            r = [x for x in ops if isinstance(x, Reg)]
            w = []
        if op in ("s_addk_i32", "s_mulk_i32"):
            r = r + [dst]
        return self.add(I(f"{op} " + ", ".join(fmt(x) for x in ops), "salu", units(*w), units(*r)))

    def s_load(self, dst, base, off):
        op = {1: "s_load_dword", 2: "s_load_dwordx2", 4: "s_load_dwordx4", 8: "s_load_dwordx8", 16: "s_load_dwordx16"}[dst.n]
        return self.add(I(f"{op} {dst}, {base}, {off}", "smem", units(dst), units(base)))

    def stamp(self, dst, real=False):
        op = "s_memrealtime" if real else "s_memtime"
        return self.add(I(f"{op} {dst}", "smem", units(dst), ()))

    def wait(self, vm=None, lgkm=None):
        p = []
        if vm is not None:
            p.append(f"vmcnt({vm})")
        if lgkm is not None:
            p.append(f"lgkmcnt({lgkm})")
        return self.add(I("s_waitcnt " + " ".join(p), "wait", meta={"vm": vm, "lgkm": lgkm}))

    def nop(self, n=0):
        return self.add(I(f"s_nop {n}", "nop", meta={"n": n}))

    def barrier(self, dep=None, drain_lds=True):
        return self.add(I("s_barrier", "barrier", dep=dep, meta={"drain_lds": drain_lds}))

    def branch(self, op, label):
        return self.add(I(f"{op} {label}", "branch"))

    def need(self, dep):
        return self.add(I("", "need", dep=dep))

    def v(self, op, dst, *src, mods="", extra_w=(), extra_r=()):
        base = op.replace("_e32", "").replace("_e64", "")
        kind = "trans" if base in TRANS else "valu"
        w = [dst] + list(extra_w)
        r = [x for x in src if isinstance(x, Reg)] + list(extra_r)
        if base in ("v_fmac_f32", "v_dot2c_f32_bf16"):
            r.append(dst)
        if base.startswith("v_cmp"):
            pass
        if base in ("v_cndmask_b32",) and len(src) == 2:
            src = list(src) + [VCC]
            r.append(VCC)
        if base in ("v_permlane32_swap_b32", "v_permlane16_swap_b32"):
            kind = "permlane"
            w = [dst, src[0]]
            r = [dst, src[0]]
        if base in ("v_readfirstlane_b32", "v_readlane_b32"):
            kind = "readlane"
        meta = {}
        if "dpp" in op or "row_" in mods or "quad_perm" in mods:
            meta["dpp"] = True
        t = f"{op} {dst}, " + ", ".join(fmt(x) for x in src)
        if mods:
            t += " " + mods
        return self.add(I(t, kind, units(*w), units(*r), meta=meta))

    def mfma16(self, d, a, b, c):
        return self._mfma("v_mfma_f32_16x16x32_bf16", d, a, b, c, 4)

    def mfma32(self, d, a, b, c):
        return self._mfma("v_mfma_f32_32x32x16_bf16", d, a, b, c, 8)

    def _mfma(self, op, d, a, b, c, passes):
        cu = units(c) if isinstance(c, Reg) else []
        if isinstance(c, Reg):
            assert c.k == d.k, "C and D must be in the same register file"
        return self.add(I(f"{op} {d}, {a}, {b}, {fmt(c)}", "mfma", units(d), units(a, b) + cu,
                          meta={"passes": passes, "d": units(d), "ab": units(a, b), "c": cu}))

    def ds_read(self, op, dst, addr, off=0, dep=None):
        assert 0 <= off < 65536, off
        t = f"{op} {dst}, {addr}" + (f" offset:{off}" if off else "")
        return self.add(I(t, "ds_read", units(dst), units(addr), dep=dep))

    def ds_write(self, op, addr, src, off=0, tag=None, ovw=None):
        assert 0 <= off < 65536, off
        t = f"{op} {addr}, {src}" + (f" offset:{off}" if off else "")
        return self.add(I(t, "ds_write", (), units(addr, src), tag=tag, ovw=ovw))

    def ds_raw(self, text, w=(), r=(), kind="ds_read"):
        return self.add(I(text, kind, units(*w), units(*r)))

    @staticmethod
    def _bt(voff, srd, soff, off, flags):
        assert 0 <= off < 4096, off
        t = f"{voff}, {srd}, {fmt(soff)} offen"
        if off:
            t += f" offset:{off}"
        if flags:
            t += " " + flags
        return t

    def bload(self, dst, voff, srd, soff=0, off=0, flags="", tag=None):
        op = {1: "buffer_load_dword", 2: "buffer_load_dwordx2", 3: "buffer_load_dwordx3", 4: "buffer_load_dwordx4"}[dst.n]
        return self.add(I(f"{op} {dst}, " + self._bt(voff, srd, soff, off, flags), "vload",
                          units(dst), units(voff, srd, soff), tag=tag))

    def bload_raw(self, op, dst, voff, srd, soff=0, off=0, flags=""):
        return self.add(I(f"{op} {dst}, " + self._bt(voff, srd, soff, off, flags), "vload",
                          units(dst), units(voff, srd, soff)))

    def dma(self, voff, srd, soff=0, off=0, tag=None, ovw=None, flags=""):
        t = "buffer_load_dwordx4 " + self._bt(voff, srd, soff, off, flags) + " lds"
        return self.add(I(t, "dma", (), units(voff, srd, soff, M0), tag=tag, ovw=ovw))

    def bstore(self, src, voff, srd, soff=0, off=0, flags="", tag=None):
        op = {1: "buffer_store_dword", 2: "buffer_store_dwordx2", 4: "buffer_store_dwordx4"}[src.n]
        return self.add(I(f"{op} {src}, " + self._bt(voff, srd, soff, off, flags), "vstore",
                          (), units(src, voff, srd, soff), tag=tag, meta={"data": units(src), "wide": src.n >= 3}))

    def bstore_raw(self, op, src, voff, srd, soff=0, off=0, flags=""):
        return self.add(I(f"{op} {src}, " + self._bt(voff, srd, soff, off, flags), "vstore",
                          (), units(src, voff, srd, soff), meta={"data": units(src), "wide": False}))


def _matches(dep, tag):
    if dep is None or tag is None:
        return False
    if isinstance(dep, (list, set)):
        return tag in dep
    return dep == tag


class _St:
    __slots__ = ("vm", "lg", "smem")

    def __init__(self, vm=(), lg=(), smem=()):
        self.vm, self.lg, self.smem = list(vm), list(lg), list(smem)

    def copy(self):
        return _St(self.vm, self.lg, self.smem)

    def key(self):
        return (tuple(map(id, self.vm)), tuple(map(id, self.lg)), tuple(map(id, self.smem)))

    def apply(self, nvm, nlg):
        if nvm is not None:
            del self.vm[:max(0, len(self.vm) - nvm)]
        if nlg is not None:
            del self.lg[:max(0, len(self.lg) - nlg)]
            if nlg == 0:
                self.smem.clear()


def _branch_target(x):
    return x.t.split()[-1]


def insert_waits(ins, stats=None):
    out = []
    states = [_St()]
    pending = {}

    def emit_wait(nvm, nlg):
        p, meta = [], {"vm": None, "lgkm": None}
        if nvm is not None:
            nvm = min(nvm, 63)
            p.append(f"vmcnt({nvm})")
            meta["vm"] = nvm
        if nlg is not None:
            nlg = min(nlg, 15)
            p.append(f"lgkmcnt({nlg})")
            meta["lgkm"] = nlg
        for st in states:
            st.apply(nvm, nlg)
        out.append(I("s_waitcnt " + " ".join(p), "wait", meta=meta))
        if stats is not None:
            stats["waits"] = stats.get("waits", 0) + 1

    def mn(a, b):
        return b if a is None else (a if b is None else min(a, b))

    for x in ins:
        if x.kind == "wait":
            for st in states:
                st.apply(x.meta["vm"], x.meta["lgkm"])
            out.append(x)
            continue
        if x.kind == "label":
            name = x.t[:-1]
            states += pending.pop(name, [])
            uniq = {}
            for st in states:
                uniq.setdefault(st.key(), st)
            states = list(uniq.values())
            assert states, "unreachable label " + name
            out.append(x)
            continue
        if x.kind == "comment":
            out.append(x)
            continue
        touched = x.r | x.w
        nvm = nlg = None
        for st in states:
            vm, lg = st.vm, st.lg
            for j in range(len(vm) - 1, -1, -1):
                o = vm[j]
                if (o.kind == "vload" and o.w & touched) or _matches(x.dep, o.tag):
                    nvm = mn(nvm, len(vm) - 1 - j)
                    break
            for j in range(len(lg) - 1, -1, -1):
                o = lg[j]
                hit = (o.kind == "ds_read" and o.w & touched) or (o.kind == "ds_write" and _matches(x.dep, o.tag))
                if x.ovw is not None and o.kind == "ds_read" and _matches(x.ovw, o.dep):
                    hit = True
                if x.kind == "barrier" and x.meta.get("drain_lds"):
                    hit = True
                if hit:
                    nlg = mn(nlg, len(lg) - 1 - j)
                    break
            if any(o.w & touched for o in st.smem):
                nlg = 0
            if x.kind in ("ds_read", "ds_write") and st.smem:
                nlg = 0
        if nvm is not None or nlg is not None:
            emit_wait(nvm, nlg)
        if x.kind == "need":
            continue
        if x.kind in ("ds_read", "ds_write"):
            if max(len(st.lg) for st in states) >= 15:
                emit_wait(None, 14)
            for st in states:
                st.lg.append(x)
        elif x.kind in ("vload", "dma", "vstore"):
            if max(len(st.vm) for st in states) >= 63:
                emit_wait(62, None)
            for st in states:
                st.vm.append(x)
        elif x.kind == "smem":
            for st in states:
                st.smem.append(x)
        out.append(x)
        if x.kind == "branch":
            pending.setdefault(_branch_target(x), []).extend(st.copy() for st in states)
            if x.t.startswith("s_branch"):
                states = []
    return out


VALU_KINDS = ("valu", "trans", "permlane", "readlane")


def pad_hazards(ins, stats=None, window=24):
    out = []
    hist = []

    def required(x, p):
        need = 0
        pw = p.w
        if not pw and p.kind not in ("mfma", "vstore"):
            return 0
        xr, xw = x.r, x.w
        if p.kind in VALU_KINDS:
            vw = {u for u in pw if u[0] in "va"}
            sw = {u for u in pw if u[0] in ("s", "vcc")}
            if x.kind == "mfma" and vw & xr:
                need = max(need, 2)
            if x.kind == "permlane" and vw & xr:
                need = max(need, 2)
            if x.kind == "readlane" and vw & xr:
                need = max(need, 1)
            if x.meta.get("dpp") and vw & xr:
                need = max(need, 2)
            if p.kind == "trans" and x.kind in VALU_KINDS and x.kind != "trans" and vw & xr:
                need = max(need, 1)
            if p.kind == "trans" and x.kind == "trans" and vw & xr:
                need = max(need, 1)
            if sw & xr:
                if x.kind in VALU_KINDS:
                    need = max(need, 2)
                if x.kind in ("vload", "vstore", "dma"):
                    need = max(need, 5)
                if x.kind == "readlane":
                    need = max(need, 4)
                if x.kind in ("salu", "branch", "smem"):
                    need = max(need, 4)
        if p.kind == "salu" and ("m0", 0) in pw and x.kind == "dma":
            need = max(need, 1)
        if p.kind == "mfma":
            ps = p.meta["passes"]
            d = set(p.meta["d"])
            if x.kind == "mfma":
                if d & set(x.meta["ab"]):
                    need = max(need, ps + 4)
                c = set(x.meta["c"])
                if d & c:
                    exact = x.meta["c"] == p.meta["d"] and x.meta["passes"] == ps
                    if not exact:
                        need = max(need, ps + 2)
            elif x.kind in VALU_KINDS or x.kind in ("vload", "vstore", "ds_read", "ds_write", "dma"):
                if d & (xr | xw):
                    need = max(need, ps + 4)
            if x.kind in VALU_KINDS and set(p.meta["c"]) & xw:
                need = max(need, ps - 1)
        if p.kind == "vstore" and p.meta.get("wide"):
            data = set(p.meta["data"])
            if data & xw:
                need = max(need, 2 if x.kind in VALU_KINDS else 1)
        return need

    pend = {}
    for x in ins:
        if x.kind == "label":
            best = {}
            for p, d in hist + pend.pop(x.t[:-1], []):
                if id(p) not in best or d < best[id(p)][1]:
                    best[id(p)] = (p, d)
            hist = list(best.values())
            out.append(x)
            continue
        if x.kind in ("comment", "need"):
            out.append(x)
            continue
        short = 0
        for p, dist in hist:
            rq = required(x, p)
            if rq > dist:
                short = max(short, rq - dist)
        if short:
            if stats is not None:
                stats.setdefault("nops", []).append((short, x.t))
            n = short
            while n > 0:
                k = min(n, 16)
                out.append(I(f"s_nop {k - 1}", "nop", meta={"n": k - 1}))
                n -= k
            hist = [(p, d + short) for p, d in hist]
        out.append(x)
        step = x.meta["n"] + 1 if x.kind == "nop" else 1
        hist = [(p, d + step) for p, d in hist if d + step < window]
        if x.kind != "nop":
            hist.append((x, 0))
        if x.kind == "branch":
            pend.setdefault(_branch_target(x), []).extend(hist)
            if x.t.startswith("s_branch"):
                hist = []
    return out


MARK = "@@ITER"
ALIGN_LOOPS = 0


def mark(prog, group, idx):
    prog.add(I(f"{MARK} {group} {idx}", "comment", meta={"mark": (group, idx)}))


def roll(ins, counters):
    out = []
    i = 0
    n = len(ins)
    uid = [0]
    while i < n:
        x = ins[i]
        m = x.meta.get("mark")
        if not m:
            out.append(x)
            i += 1
            continue
        group = m[0]
        iters = []
        cur = None
        while True:
            y = ins[i]
            mm = y.meta.get("mark")
            i += 1
            if mm and mm[0] == group:
                if cur is not None:
                    iters.append(cur)
                if mm[1] is None:
                    break
                cur = []
            else:
                cur.append(y)
        text = ["\n".join(z.t for z in it if z.kind != "comment") for it in iters]
        j = 0
        while j < len(iters):
            k = j
            while k + 1 < len(iters) and text[k + 1] == text[j]:
                k += 1
            cnt = k - j + 1
            body = iters[j]
            seen_cmp = False
            for z in body:
                if z.meta.get("tail") == "cmp":
                    seen_cmp = True
                elif z.meta.get("tail") == "br":
                    seen_cmp = False
                elif seen_cmp and z.kind == "salu" and not z.t.startswith("s_mov"):
                    raise AssertionError("SCC clobbered between loop compare and branch: " + z.t)
            if cnt >= 2:
                uid[0] += 1
                lab = f"L_{group}_{uid[0]}"
                c = counters[group]
                out.append(I(f"s_mov_b32 {c}, {cnt}", "salu", units(c)))
                if ALIGN_LOOPS:
                    out.append(I(f".p2align {ALIGN_LOOPS}", "label"))
                out.append(I(f"{lab}:", "label"))
                for z in body:
                    if z.meta.get("tail") == "dec":
                        out.append(I(f"s_sub_u32 {c}, {c}, 1", "salu"))
                    elif z.meta.get("tail") == "cmp":
                        out.append(I(f"s_cmp_lg_u32 {c}, 0", "salu"))
                    elif z.meta.get("tail") == "br":
                        out.append(I(f"s_cbranch_scc1 {lab}", "branch"))
                    else:
                        out.append(z)
                out.append(I(f"; rolled {group} x{cnt}", "comment"))
            else:
                for z in body:
                    if not z.meta.get("tail"):
                        out.append(z)
                    elif z.meta.get("tail") == "br":
                        out.append(I("s_nop 0", "nop", meta={"n": 0}))
                    else:
                        out.append(I("s_nop 0", "nop", meta={"n": 0}))
            j = k + 1
    return out


def loop_dec(prog):
    prog.add(I("@tail_dec", "salu", meta={"tail": "dec"}))
    prog.add(I("@tail_cmp", "salu", meta={"tail": "cmp"}))


def loop_branch(prog):
    prog.add(I("@tail_br", "salu", meta={"tail": "br"}))


def finalize(prog, counters=None, verbose=False, name=""):
    stats = {}
    ins = insert_waits(prog.ins, stats)
    ins = pad_hazards(ins, stats)
    ins = roll(ins, counters or {})
    if verbose:
        nops = stats.get("nops", [])
        tot = sum(n for n, _ in nops)
        print(f"[{name}] instrs {sum(1 for x in ins if x.kind not in ('comment', 'label'))} waits {stats.get('waits', 0)} "
              f"nop sites {len(nops)} states {tot}")
        for n, t in nops[:verbose if isinstance(verbose, int) and verbose > 1 else 0]:
            print("    nop", n, "before", t)
    lines = []
    for x in ins:
        if x.kind == "need" or x.t.startswith(MARK):
            continue
        if x.kind == "label":
            lines.append(x.t)
        else:
            lines.append("  " + x.t)
    return "\n".join(lines)


def kernel_text(name, body, vgpr, accum, sgpr=102):
    return f""".text
.globl {name}
.p2align 8
.type {name},@function
{name}:
{body}
  s_endpgm
.section .rodata,"a"
.p2align 6
.amdhsa_kernel {name}
  .amdhsa_next_free_vgpr {vgpr}
  .amdhsa_next_free_sgpr {sgpr}
  .amdhsa_accum_offset {accum}
  .amdhsa_group_segment_fixed_size 0
  .amdhsa_kernarg_size 112
  .amdhsa_user_sgpr_count 2
  .amdhsa_user_sgpr_kernarg_segment_ptr 1
  .amdhsa_system_sgpr_workgroup_id_x 1
  .amdhsa_float_denorm_mode_32 3
.end_amdhsa_kernel
"""


from layout import WS_STAMP


class Stamps:
    def __init__(self, p, on, base=64, vreg=None, early=3, only=None):
        self.p, self.on, self.n, self.base = p, on, 0, base
        self.only = only
        self.vreg, self.early = vreg, early
        self.names = []

    def __call__(self, name, real=False):
        if not self.on:
            return
        if self.only is not None:
            if name not in self.only:
                return
            real = True
        p = self.p
        if self.vreg is None or self.n < self.early:
            p.stamp(S(self.base + 2 * self.n, 2), real)
        else:
            k = self.base + 2 * self.early
            p.stamp(S(k, 2), real)
            p.wait(lgkm=0)
            if self.n == self.early and self.early:
                for i in range(self.early):
                    p.v("v_writelane_b32", self.vreg, S(self.base + 2 * i), i, extra_r=[self.vreg])
            p.v("v_writelane_b32", self.vreg, S(k), self.n, extra_r=[self.vreg])
        self.names.append(name)
        self.n += 1

    def flush(self, rws, swave, slot, vtmp0, vtmp1):
        if not self.on:
            return
        p = self.p
        p.wait(vm=0, lgkm=0)
        t = S(100)
        p.s("s_lshl_b32", t, S(2), 2)
        p.s("s_add_u32", t, t, swave)
        if self.vreg is None:
            p.s("s_lshl_b32", t, t, 7)
            p.s("s_add_u32", t, t, WS_STAMP + slot * 0x20000)
            p.v("v_mov_b32", vtmp1, 0)
            for i in range(self.n):
                p.v("v_mov_b32", vtmp0, S(self.base + 2 * i))
                p.bstore(vtmp0, vtmp1, rws, soff=t, off=4 * i)
        else:
            p.s("s_lshl_b32", t, t, 8)
            p.s("s_add_u32", t, t, WS_STAMP)
            p.v("v_mbcnt_lo_u32_b32", vtmp1, -1, 0)
            p.v("v_mbcnt_hi_u32_b32", vtmp1, -1, vtmp1)
            p.v("v_lshlrev_b32", vtmp1, 2, vtmp1)
            p.bstore(self.vreg, vtmp1, rws, soff=t)
        p.wait(vm=0)
```

```python
from asmlib import *
from layout import *
from ka import srd, bf16_round_hi
import kb2
from kb2 import *

KNAME = NAME + "_kernel"
M_LDS = B_LDS
SC1 = "sc1"
TOUCH = "v1"
CODEPF = 1

DBG_MOD0 = 0
DBG_MOD1 = 8
DBG_CLR = 12
DBG_FLAG0 = 128
N_CNT = 256
N_MOD0, N_MOD1 = 32, 64
F_PART, F_H2, F_ACT = 0, 1, 2

rDBG = S(96, 4)
rTMP = S(92, 4)
rTMP2 = S(72, 4)
sTag = S(90)
aT = A(253)
sp0, sp1 = S(50), S(51)
rG, rU, rD, rOut = rWQ, rK, rV, rWO
vpoll = V(63)
vtid2 = V(45)


def poll(p, srd_, off, target, name, sleep=16):
    lab, done = f"P_{name}", f"P_{name}_done"
    p.s("s_cmp_lg_u32", sw, 0)
    p.branch("s_cbranch_scc1", done)
    p.s("s_mov_b32", sp1, 0)
    p.label(lab)
    p.bload(V(62), vpoll, srd_, soff=0, off=off, flags=SC1)
    p.wait(vm=0)
    p.v("v_readfirstlane_b32", sp0, V(62))
    p.s("s_cmp_ge_u32", sp0, target)
    p.branch("s_cbranch_scc1", done)
    p.s("s_add_u32", sp1, sp1, 1)
    p.s("s_cmp_lt_u32", sp1, 0x20000)
    p.raw(f"s_sleep {sleep}")
    p.add(I(f"s_cbranch_scc1 {lab}", "salu"))
    p.label(done)
    p.barrier(drain_lds=True)


vflag = V(61)


def poll_flags(p, kind, sfirst, count, name):
    lab, done = f"P_{name}", f"P_{name}_done"
    p.s("s_cmp_lg_u32", sw, 0)
    p.branch("s_cbranch_scc1", done)
    p.s("s_mov_b32", sp1, 0)
    p.v("v_min_u32", vflag, count - 1, vl)
    p.v("v_lshlrev_b32", vflag, 7, vflag)
    p.s("s_lshl_b32", sp0, sfirst, 7)
    p.s("s_add_u32", S(47), sp0, WS_FLAG + kind * 256 * 128)
    p.label(lab)
    p.bload(V(62), vflag, rWS, soff=S(47), flags=SC1)
    p.wait(vm=0)
    p.v("v_cmp_eq_u32", VCC, sTag, V(62))
    p.add(I("s_cmp_eq_u64 vcc, exec", "salu", (), units(VCC)))
    p.branch("s_cbranch_scc1", done)
    p.s("s_add_u32", sp1, sp1, 1)
    p.s("s_cmp_lt_u32", sp1, 0x40000)
    p.raw("s_sleep 2")
    p.add(I(f"s_cbranch_scc1 {lab}", "salu"))
    p.label(done)
    p.barrier(drain_lds=True)


def set_flag(p, kind, sindex, value):
    p.v("v_mov_b32", V(62), value)
    p.v("v_mov_b32", vpoll, 0)
    p.s("s_lshl_b32", sp0, sindex, 7)
    p.s("s_add_u32", sp0, sp0, WS_FLAG + kind * 256 * 128)
    p.s("s_mov_b64", EXEC, 1)
    p.bstore(V(62), vpoll, rWS, soff=sp0, flags=SC1)
    p.s("s_mov_b64", EXEC, -1)


def spin(p, srd_, off, target, name):
    lab, done = f"W_{name}", f"W_{name}_done"
    p.s("s_mov_b32", sp1, 0)
    p.label(lab)
    p.bload(V(62), vpoll, srd_, soff=0, off=off, flags=SC1)
    p.wait(vm=0)
    p.v("v_readfirstlane_b32", sp0, V(62))
    p.s("s_cmp_ge_u32", sp0, target)
    p.branch("s_cbranch_scc1", done)
    p.s("s_add_u32", sp1, sp1, 1)
    p.s("s_cmp_lt_u32", sp1, 0x40000)
    p.raw("s_sleep 1")
    p.add(I(f"s_cbranch_scc1 {lab}", "salu"))
    p.label(done)


aEarly = A(248, 2)


def early_sample(p):
    p.bload(aEarly, vpoll, rDBG, soff=0, off=DBG_MOD1, flags=SC1)


def confirm_early(p):
    for k, (off, target) in enumerate(((DBG_MOD1, N_MOD1), (DBG_CLR, N_CNT))):
        ok = f"C_early{k}_ok"
        p.v("v_accvgpr_read_b32", V(62), aEarly[k])
        p.v("v_readfirstlane_b32", sp0, V(62))
        p.s("s_cmp_ge_u32", sp0, target)
        p.branch("s_cbranch_scc1", ok)
        spin(p, rDBG, off, target, f"early{k}")
        p.label(ok)
    p.s("s_cmp_lg_u32", S(2), 0)
    p.branch("s_cbranch_scc1", "C_epoch_done")
    p.v("v_mov_b32", V(62), sTag)
    p.s("s_mov_b32", sp0, WS_EPOCH)
    p.s("s_mov_b64", EXEC, 1)
    p.bstore(V(62), vpoll, rWS, soff=sp0, flags=SC1)
    p.s("s_mov_b64", EXEC, -1)
    p.label("C_epoch_done")


def signal(p, kind, sindex, name, pre=None):
    done = f"S_{name}_done"
    p.wait(vm=0)
    if pre:
        p.s("s_cmp_lg_u32", sw, 0)
        p.branch("s_cbranch_scc1", f"S_{name}_pre")
        pre(p)
        p.label(f"S_{name}_pre")
    p.barrier(drain_lds=True)
    p.s("s_cmp_lg_u32", sw, 0)
    p.branch("s_cbranch_scc1", done)
    set_flag(p, kind, sindex, sTag)
    p.label(done)


def add_one(p, srd_, off):
    p.v("v_mov_b32", V(62), 1)
    p.v("v_mov_b32", vpoll, 0)
    p.s("s_mov_b64", EXEC, 1)
    so, io = (off, 0) if not isinstance(off, int) else (0, off)
    t = f"buffer_atomic_add {V(62)}, " + Prog._bt(vpoll, srd_, so, io, SC1)
    p.add(I(t, "vstore", (), units(V(62), vpoll, srd_, so), meta={"data": units(V(62)), "wide": False}))
    p.s("s_mov_b64", EXEC, -1)


SIL = WRING + 2 * SLOT
MPART = SIL + 1024
mreg = V(64, 64)
aC = A(250)


def slab_issue(p, sslab):
    regs = V(128, 8)
    st0, st1, so = st[0], st[1], st[2]
    vt0, vt1, vcoff = regs[0], regs[1], regs[2]
    vd = regs[4:8]
    p.v("v_lshlrev_b32", vcoff, 2, vtid2)
    p.bload(aC, vcoff, rTMP2)
    p.v("v_lshrrev_b32", vt0, 2, vl)
    p.s("s_mov_b32", st0, 6144)
    p.v("v_mul_lo_u32", vt0, vt0, st0)
    p.v("v_and_b32", vt1, 3, vl)
    p.v("v_lshl_add_u32", vd[0], vt1, 4, vt0)
    for j in range(1, 4):
        p.v("v_add_u32", vd[j], j * (16 * 6144 - 1024), vd[0])
    p.s("s_mul_i32", st0, sw, 128 * 6144)
    p.s("s_lshl_b32", st1, sslab, 6)
    p.s("s_add_u32", so, st0, st1)
    for grp in range(2):
        p.s("s_add_u32", M0, sMS, grp * 4096)
        if grp:
            p.s("s_add_u32", so, so, 64 * 6144)
        else:
            p.nop(0)
        for j in range(4):
            p.dma(vd[j], rTMP, so, off=1024 * j, tag=("slab", grp))


def slab_finish(p, T, sslab, name):
    regs = V(136, 64) if name == "slab0" else mreg
    st0, st1 = st[0], st[1]
    vt0, vt1, vt2, vc, vcoff = regs[0], regs[1], regs[2], regs[3], regs[4]
    s0, s1, e0, e1, vpk = regs[12], regs[13], regs[14], regs[15], regs[5]
    p.v("v_lshlrev_b32", vcoff, 2, vtid2)
    p.v("v_accvgpr_read_b32", vc, aC)
    p.v("v_lshlrev_b32", s0, 16, vc)
    p.v("v_and_b32", s1, sHi, vc)
    for s_, e_ in ((s0, e0), (s1, e1)):
        p.v("v_mul_f32", e_, -1.4426950408889634, s_)
    for s_, e_ in ((s0, e0), (s1, e1)):
        p.v("v_exp_f32", e_, e_)
    for s_, e_ in ((s0, e0), (s1, e1)):
        p.v("v_add_f32", e_, 1.0, e_)
    for s_, e_ in ((s0, e0), (s1, e1)):
        p.v("v_rcp_f32", e_, e_)
    for s_, e_ in ((s0, e0), (s1, e1)):
        p.v("v_mul_f32", s_, s_, e_)
    p.v("v_cvt_pk_bf16_f32", vpk, s0, s1)
    p.v("v_add_u32", vt0, SIL, vcoff)
    p.ds_write("ds_write_b32", vt0, vpk)
    vtr_ = regs[7]
    p.v("v_lshrrev_b32", vt1, 2, vl)
    p.v("v_lshlrev_b32", vt1, 6, vt1)
    p.v("v_and_b32", vt0, 3, vl)
    p.v("v_lshl_add_u32", vt0, vt0, 3, vt1)
    p.v("v_add_u32", vtr_, sMS, vt0)
    vb = regs[6]
    p.v("v_lshrrev_b32", vb, 4, vl)
    p.v("v_lshlrev_b32", vb, 3, vb)
    p.s("s_lshl_b32", st0, sw, 8)
    p.s("s_add_u32", st0, st0, SIL)
    p.v("v_add_u32", vb, st0, vb)
    p.barrier()
    if name == "slab0":
        T("s_sil")
    acc_ = regs[16:24]
    bf = regs[24:40]
    af = regs[40:56]
    for ks in range(4):
        b = bf[4 * ks:4 * ks + 4]
        p.ds_read("ds_read_b64", b[0:2], vb, off=64 * ks)
        p.ds_read("ds_read_b64", b[2:4], vb, off=64 * ks + 32)
    for k2 in range(2):
        for ks in (2 * k2, 2 * k2 + 1):
            for t in range(2):
                a = af[8 * (ks & 1) + 4 * t:8 * (ks & 1) + 4 * t + 4]
                for h in range(2):
                    p.ds_read("ds_read_b64_tr_b16", a[2 * h:2 * h + 2], vtr_, off=ks * 2048 + 1024 * h + 32 * t,
                              dep=("slab", ks >> 1))
        for ks in (2 * k2, 2 * k2 + 1):
            for t in range(2):
                d = acc_[4 * t:4 * t + 4]
                p.mfma16(d, af[8 * (ks & 1) + 4 * t:8 * (ks & 1) + 4 * t + 4], bf[4 * ks:4 * ks + 4], d if ks else 0)
    p.v("v_lshrrev_b32", vt1, 4, vl)
    p.v("v_lshlrev_b32", vt1, 4, vt1)
    p.s("s_lshl_b32", st0, sw, 7)
    p.s("s_add_u32", st0, st0, MPART)
    p.v("v_add_u32", vt1, st0, vt1)
    for t in range(2):
        p.ds_write("ds_write_b128", vt1, acc_[4 * t:4 * t + 4], off=64 * t)
    p.barrier()
    if name == "slab0":
        T("s_gemv")
    p.s("s_cmp_lg_u32", sw, 0 if name == "slab0" else 3)
    p.branch("s_cbranch_scc1", f"M_{name}_done")
    r4 = regs[16:20]
    p.v("v_and_b32", vt0, 31, vl)
    p.v("v_lshlrev_b32", vt0, 2, vt0)
    p.v("v_add_u32", vt1, MPART, vt0)
    for w in range(4):
        p.ds_read("ds_read_b32", r4[w], vt1, off=128 * w)
    p.v("v_add_f32", r4[0], r4[0], r4[1])
    p.v("v_add_f32", r4[2], r4[2], r4[3])
    p.v("v_add_f32", r4[0], r4[0], r4[2])
    bf16_round_hi(p, r4[0], r4[0])
    p.v("v_add_f32", r4[1], 1.0, r4[0])
    bf16_round_hi(p, r4[1], r4[1])
    p.s("s_lshr_b32", st0, sslab, 4)
    p.s("s_cmp_eq_u32", st0, 1)
    p.s("s_cselect_b32", st1, 1, 0)
    p.s("s_cmp_eq_u32", st0, 4)
    p.s("s_cselect_b32", st1, 1, st1)
    p.v("v_mov_b32", vt2, st1)
    p.v("v_cmp_eq_u32", VCC, 1, vt2)
    p.v("v_cndmask_b32", r4[0], r4[0], r4[1])
    p.s("s_cmp_lt_u32", st0, 2)
    p.s("s_mov_b32", st1, QSCALE)
    p.s("s_cselect_b32", st1, st1, 1.0)
    p.v("v_mul_f32", r4[0], st1, r4[0])
    p.s("s_mov_b64", EXEC, 0xFFFFFFFF)
    if name == "slab0":
        get_tag(p)
        p.v("v_mov_b32", r4[1], sTag)
        p.v("v_lshlrev_b32", vt0, 1, vt0)
        p.s("s_lshl_b32", st0, sslab, 8)
        p.s("s_add_u32", st0, st0, WS_MODG)
        p.bstore(r4[0:2], vt0, rWS, soff=st0, flags=SC1)
        T("s_st")
    else:
        p.s("s_lshl_b32", st0, sslab, 7)
        p.s("s_add_u32", st0, st0, WS_MOD)
        p.bstore(r4[0], vt0, rWS, soff=st0, flags=SC1)
    p.s("s_mov_b64", EXEC, -1)
    p.label(f"M_{name}_done")


def late_signals(p):
    p.s("s_cmp_lg_u32", sw, 3)
    p.branch("s_cbranch_scc1", "M_late_done")
    p.wait(vm=0)
    add_one(p, rDBG, DBG_CLR)
    p.s("s_sub_u32", sp0, S(2), N_MOD0)
    p.s("s_cmp_ge_u32", sp0, N_MOD1)
    p.branch("s_cbranch_scc1", "M_late_done")
    add_one(p, rDBG, DBG_MOD1)
    p.label("M_late_done")


R_LDS = SH + 65536 - 512


def phase_r_issue(p):
    sqt, shalf, st0, st1, sb0 = st[2], st[3], st[0], st[1], st[4]
    vg, vq, vf = V(2), V(3), V(4)
    vt0, vt1, vt2 = V(5), V(6), V(7)
    p.v("v_and_b32", vq, 7, vl)
    p.v("v_lshrrev_b32", vg, 3, vl)
    p.v("v_and_b32", vg, 3, vg)
    p.v("v_lshrrev_b32", vf, 5, vl)
    p.s("s_lshr_b32", sqt, shg, 1)
    p.s("s_and_b32", shalf, shg, 1)
    vfr = V(8)
    p.v("v_lshlrev_b32", vt0, 4, vg)
    p.v("v_add_u32", vt0, vt0, vq)
    p.s("s_lshl_b32", st0, shalf, 3)
    p.v("v_add_u32", vt0, st0, vt0)
    p.v("v_lshlrev_b32", vt0, 4, vt0)
    p.v("v_lshlrev_b32", vt1, 12, vf)
    p.v("v_add_u32", vfr, vt0, vt1)
    p.s("s_mul_i32", sb0, srb, PART_BLK)
    p.s("s_lshl_b32", st0, sw, 14)
    p.s("s_add_u32", sb0, sb0, st0)
    p.s("s_lshl_b32", st0, sqt, 10)
    p.s("s_add_u32", sb0, sb0, st0)
    p.s("s_add_u32", sb0, sb0, WS_PART)
    vx = V(80, 8)
    vxo = V(9)
    p.s("s_lshl_b32", st0, srb, 6)
    p.s("s_lshl_b32", st1, sqt, 4)
    p.s("s_add_u32", st0, st0, st1)
    p.s("s_lshl_b32", st1, shalf, 3)
    p.s("s_add_u32", st0, st0, st1)
    p.v("v_add_u32", vt0, st0, vq)
    p.v("v_lshlrev_b32", vt0, 10, vt0)
    p.v("v_lshlrev_b32", vt1, 6, vf)
    p.v("v_lshlrev_b32", vt2, 3, vg)
    p.v("v_add3_u32", vxo, vt0, vt1, vt2)
    p.s("s_lshl_b32", st0, sw, 8)
    for i in range(2):
        for h in range(2):
            p.bload(vx[4 * i + 2 * h:4 * i + 2 * h + 2], vxo, rX, soff=st0, off=128 * i + 32 * h)
    vm = V(88, 48)
    vmo = V(10)
    p.v("v_lshlrev_b32", vt1, 7, vf)
    p.v("v_lshlrev_b32", vt2, 4, vg)
    p.v("v_add_u32", vmo, vt1, vt2)
    p.s("s_lshl_b32", st0, sw, 9)
    for k, vec in enumerate((2, 3, 4)):
        p.s("s_add_u32", st1, st0, WS_MOD + vec * 2048)
        for i in range(2):
            for h in range(2):
                o = 16 * k + 8 * i + 4 * h
                p.bload(vm[o:o + 4], vmo, rWS, soff=st1, off=256 * i + 64 * h, flags=SC1)


def phase_r_partials(p):
    st0, sb0 = st[0], st[4]
    vp = V(16, 64)
    vfr = V(8)
    for hg in range(8):
        for i in range(2):
            p.s("s_add_u32", st0, sb0, hg * 32 * PART_BLK + i * 8192)
            p.bload(vp[8 * hg + 4 * i:8 * hg + 4 * i + 4], vfr, rWS, soff=st0, flags=SC1)


def phase_r_compute(p, T, after_sum):
    sqt, st0 = st[2], st[0]
    vq = V(3)
    vt0, vt1 = V(5), V(6)
    vfr = V(8)
    vp, vx, vm = V(16, 64), V(80, 8), V(88, 48)
    a = V(136, 16)
    slo, so = st[1], st[5]
    p.s("s_mov_b32", slo, 0x00003F80)
    p.s("s_mov_b32", sp1, 0x3F800000)
    for hg in range(8):
        for i in range(2):
            for r in range(4):
                src = vp[8 * hg + 4 * i + r]
                for hi, sel in ((0, slo), (1, sp1)):
                    d = a[8 * i + 2 * r + hi]
                    p.v("v_dot2_f32_bf16", d, src, sel, d if hg else 0)
    T("r_sum")
    after_sum()
    p.s("s_lshr_b32", sqt, shg, 1)
    xf = V(152, 16)
    for i in range(2):
        for h in range(2):
            for j in range(2):
                src = vx[4 * i + 2 * h + j]
                p.v("v_lshlrev_b32", xf[8 * i + 4 * h + 2 * j], 16, src)
                p.v("v_and_b32", xf[8 * i + 4 * h + 2 * j + 1], sHi, src)
    for k in range(16):
        p.v("v_fmac_f32", xf[k], a[k], vm[k])
    x1p = V(16, 8)
    for i in range(2):
        for j in range(4):
            p.v("v_cvt_pk_bf16_f32", x1p[4 * i + j], xf[8 * i + 2 * j], xf[8 * i + 2 * j + 1])
    p.s("s_lshl_b32", so, srb, 16)
    p.s("s_lshl_b32", st0, sw, 14)
    p.s("s_add_u32", so, so, st0)
    p.s("s_lshl_b32", st0, sqt, 10)
    p.s("s_add_u32", so, so, st0)
    for i in range(2):
        p.s("s_add_u32", st0, so, WS_X1 + i * 8192)
        p.bstore(x1p[4 * i:4 * i + 4], vfr, rWS, soff=st0, flags=SC1)
    for i in range(2):
        for j in range(4):
            p.v("v_lshlrev_b32", xf[8 * i + 2 * j], 16, x1p[4 * i + j])
            p.v("v_and_b32", xf[8 * i + 2 * j + 1], sHi, x1p[4 * i + j])
    s1, s2 = V(24), V(25)
    p.v("v_add_f32", s1, xf[0], xf[1])
    p.v("v_mul_f32", s2, xf[0], xf[0])
    p.v("v_fmac_f32", s2, xf[1], xf[1])
    for k in range(2, 16):
        p.v("v_add_f32", s1, s1, xf[k])
        p.v("v_fmac_f32", s2, xf[k], xf[k])
    for s_ in (s1, s2):
        p.v("v_add_f32_dpp", s_, s_, s_, mods="row_ror:8 row_mask:0xf bank_mask:0xf")
    for op in ("v_permlane16_swap_b32", "v_permlane32_swap_b32"):
        for s_, t_ in ((s1, vt0), (s2, vt1)):
            p.v("v_mov_b32", t_, s_)
        for s_, t_ in ((s1, vt0), (s2, vt1)):
            p.v(op, s_, t_)
        for s_, t_ in ((s1, vt0), (s2, vt1)):
            p.v("v_add_f32", s_, s_, t_)
    p.v("v_lshlrev_b32", vt0, 3, vq)
    p.v("v_add_u32", vt0, R_LDS, vt0)
    p.s("s_lshl_b32", st0, sw, 6)
    p.v("v_add_u32", vt1, st0, vt0)
    s12 = V(26, 2)
    p.v("v_mov_b32", s12[0], s1)
    p.v("v_mov_b32", s12[1], s2)
    p.ds_write("ds_write_b64", vt1, s12)
    p.barrier()
    rr = V(28, 8)
    for w in range(4):
        p.ds_read("ds_read_b64", rr[2 * w:2 * w + 2], vt0, off=64 * w)
    p.v("v_add_f32", s1, rr[0], rr[2])
    p.v("v_add_f32", s2, rr[1], rr[3])
    p.v("v_add_f32", rr[4], rr[4], rr[6])
    p.v("v_add_f32", rr[5], rr[5], rr[7])
    p.v("v_add_f32", s1, s1, rr[4])
    p.v("v_add_f32", s2, s2, rr[5])
    mu, rs2, nm2 = V(36), V(38, 2), V(40, 2)
    p.v("v_mul_f32", mu, 1.0 / 512, s1)
    p.v("v_mul_f32", s2, 1.0 / 512, s2)
    p.v("v_fma_f32", s2, Neg(mu), mu, s2)
    p.v("v_max_f32", s2, 0, s2)
    p.v("v_add_f32", s2, 1e-5, s2)
    p.v("v_rsq_f32", rs2[0], s2)
    p.v("v_mul_f32_e64", nm2[0], Neg(mu), rs2[0])
    p.v("v_mov_b32", rs2[1], rs2[0])
    p.v("v_mov_b32", nm2[1], nm2[0])
    for k in range(8):
        p.v("v_pk_fma_f32", xf[2 * k:2 * k + 2], xf[2 * k:2 * k + 2], rs2, nm2)
    for k in range(8):
        p.v("v_pk_fma_f32", xf[2 * k:2 * k + 2], xf[2 * k:2 * k + 2], vm[32 + 2 * k:34 + 2 * k], vm[16 + 2 * k:18 + 2 * k])
    h2p = V(44, 8)
    for i in range(2):
        for j in range(4):
            p.v("v_cvt_pk_bf16_f32", h2p[4 * i + j], xf[8 * i + 2 * j], xf[8 * i + 2 * j + 1])
        p.s("s_add_u32", st0, so, WS_H2 + i * 8192)
        p.bstore(h2p[4 * i:4 * i + 4], vfr, rWS, soff=st0, flags=SC1)


ROWB = 2752
sDrb, sDcg, sDact, sDH = S(40 + 12), S(40 + 13), S(40 + 14), S(40 + 15)
sErb, sEcb, sEact, sEwd = S(56), S(57), S(58), S(59)
sDrot = S(91)


def d_ids(p):
    st0, st1 = st[0], st[1]
    p.s("s_and_b32", st0, shg, 1)
    p.s("s_lshl_b32", st0, st0, 2)
    p.s("s_and_b32", st1, srb, 3)
    p.s("s_add_u32", sDrb, st0, st1)
    p.s("s_lshr_b32", st0, shg, 1)
    p.s("s_mul_i32", st1, st0, 7)
    p.s("s_add_u32", st1, st1, 1)
    p.s("s_cmp_eq_u32", st0, 0)
    p.s("s_cselect_b32", sDcg, 0, st1)
    p.s("s_cselect_b32", st0, 8, 7)
    p.s("s_lshr_b32", st1, srb, 2)
    p.s("s_add_u32", sDcg, sDcg, st1)
    p.s("s_cmp_lt_u32", st1, st0)
    p.s("s_cselect_b32", sDact, 1, 0)
    p.s("s_lshl_b32", sDrot, st1, 1)


def d_weights(p):
    st0, st1 = st[0], st[1]
    vt_ = V(170, 5)
    vd = V(176, 3)
    smag = S(61)
    p.s("s_cmp_eq_u32", sw, 0)
    p.branch("s_cbranch_scc1", "M_dw_done")
    p.s("s_mov_b32", smag, 0xAAAB)
    p.s("s_mov_b32", st0, ROWB)
    for k in range(3):
        p.v("v_add_u32", vt_[0], 64 * k, vl)
        p.v("v_mul_lo_u32", vt_[1], vt_[0], smag)
        p.v("v_lshrrev_b32", vt_[1], 18, vt_[1])
        p.v("v_mul_u32_u24", vt_[2], 6, vt_[1])
        p.v("v_sub_u32", vt_[2], vt_[0], vt_[2])
        p.v("v_lshlrev_b32", vt_[2], 4, vt_[2])
        p.v("v_mul_lo_u32", vt_[1], vt_[1], st0)
        p.v("v_add_u32", vd[k], vt_[1], vt_[2])
        if k:
            p.v("v_subrev_u32", vd[k], 1024 * k, vd[k])
    sPos, sCol = S(62), S(63)
    p.s("s_mul_i32", sCol, sDcg, 96)
    p.s("s_sub_u32", sPos, sw, 1)
    p.label("M_dw_loop")
    p.s("s_add_u32", st0, sPos, sDrot)
    p.s("s_and_b32", st0, st0, 15)
    p.s("s_mul_i32", st0, st0, 32 * ROWB)
    p.s("s_add_u32", st0, st0, sCol)
    p.s("s_mul_i32", st1, sPos, 3072)
    for m, r_ in enumerate((rG, rU)):
        p.s("s_add_u32", M0, st1, m * 49152)
        p.nop(0)
        for k in range(3):
            p.dma(vd[k], r_, st0, off=1024 * k, tag="dw")
    p.s("s_add_u32", sPos, sPos, 3)
    p.s("s_cmp_lt_u32", sPos, 16)
    p.add(I("s_cbranch_scc1 M_dw_loop", "salu"))
    p.wait(vm=0)
    p.label("M_dw_done")


E_RING = SH
E_NSLOT = 4


def phase_d(p, T, e_prefetch):
    st0, st1 = st[0], st[1]
    sH, sAct = st[2], st[3]
    vlin_ = V(2)
    vt_ = V(3, 5)
    vtr_ = V(12, 2)
    p.v("v_lshlrev_b32", vlin_, 4, vl)
    p.s("s_lshl_b32", sH, sDrb, 2)
    p.s("s_add_u32", sH, sH, sw)
    p.s("s_mul_i32", sAct, sH, ACT_RB)
    p.s("s_lshl_b32", sH, sH, 16)
    p.s("s_add_u32", sH, sH, WS_H2)
    p.s("s_mul_i32", st0, sDcg, 6144)
    p.s("s_add_u32", sAct, sAct, st0)
    p.s("s_add_u32", sAct, sAct, WS_ACT)
    NB = 6
    vB_ = V(128, 16 * NB)

    def bfr(ks, qt):
        o = 16 * (ks % NB) + 4 * qt
        return vB_[o:o + 4]

    sK_ = S(63)

    def load_b(ks):
        q = Prog()
        if ks == 0:
            q.s("s_lshl_b32", sK_, sDrot, 12)
        else:
            q.s("s_add_u32", sK_, sK_, 4096)
            q.s("s_and_b32", sK_, sK_, 0xFFFF)
        q.s("s_add_u32", st1, sH, sK_)
        for qt in range(4):
            q.bload(bfr(ks, qt), vlin_, rWS, soff=st1, off=1024 * qt, flags=SC1)
        return q.ins

    p.v("v_lshrrev_b32", vt_[0], 2, vl)
    p.v("v_mul_u32_u24", vt_[0], 96, vt_[0])
    p.v("v_and_b32", vt_[1], 3, vl)
    p.v("v_lshlrev_b32", vt_[1], 3, vt_[1])
    p.v("v_add_u32", vtr_[0], vt_[0], vt_[1])
    p.v("v_add_u32", vtr_[1], 49152, vtr_[0])
    d_weights(p)
    p.s("s_lshl_b32", st[4], sDrb, 5)
    poll_flags(p, F_H2, st[4], 32, "h2")
    T("d_go")
    for ks in range(NB):
        for x in load_b(ks):
            p.add(x)
    e_prefetch()
    accd = V(16, 96)
    vA = V(112, 16)

    def accr(m, t, qt):
        o = 48 * m + 16 * t + 4 * qt
        return accd[o:o + 4]

    def afr(i):
        return vA[4 * (i % 4):4 * (i % 4) + 4]

    def rd_a(ks, f):
        q = Prog()
        m, t = f // 3, f % 3
        for h in range(2):
            q.ds_read("ds_read_b64_tr_b16", afr(6 * ks + f)[2 * h:2 * h + 2], vtr_[m], off=ks * 3072 + 1536 * h + 32 * t)
        return q.ins

    for f in range(2):
        for x in rd_a(0, f):
            p.add(x)
    for ks in range(16):
        for f in range(6):
            m, t = f // 3, f % 3
            nf, nks = (f + 2) % 6, ks + (f + 2) // 6
            pre = rd_a(nks, nf) if nks < 16 else []
            for qt in range(4):
                d = accr(m, t, qt)
                p.mfma16(d, afr(6 * ks + f), bfr(ks, qt), d if ks else 0)
                if qt < 2 and pre:
                    p.add(pre[qt])
            if f == 5 and ks + NB < 16:
                for x in load_b(ks + NB):
                    p.add(x)
    T("d_mma")
    o = V(128, 32)
    for qt in range(4):
        for t in range(3):
            g_, u_ = accr(0, t, qt), accr(1, t, qt)
            for r in range(4):
                p.v("v_mul_f32", g_[r], g_[r], u_[r])
        full = o[8 * qt:8 * qt + 4]
        half = o[8 * qt + 4:8 * qt + 6]
        for t in range(3):
            g_ = accr(0, t, qt)
            dst = full[2 * t:2 * t + 2] if t < 2 else half
            p.v("v_cvt_pk_bf16_f32", dst[0], g_[0], g_[1])
            p.v("v_cvt_pk_bf16_f32", dst[1], g_[2], g_[3])
        p.bstore(full, vlin_, rWS, soff=sAct, off=1024 * qt, flags=SC1)
    vh = vt_[0]
    p.v("v_lshlrev_b32", vh, 3, vl)
    p.s("s_add_u32", st0, sAct, 4096)
    p.s("s_cmp_eq_u32", sDcg, 28)
    p.branch("s_cbranch_scc1", "D_skip_half")
    for qt in range(4):
        p.bstore(o[8 * qt + 4:8 * qt + 6], vh, rWS, soff=st0, off=512 * qt, flags=SC1)
    p.label("D_skip_half")
    p.s("s_lshl_b32", st[4], sDrb, 5)
    p.s("s_add_u32", st[4], st[4], sDcg)
    signal(p, F_ACT, st[4], "act")


eRing, eSa, eSd = S(60), S(61), S(62)
eVd, eVtr, eLin, eLin8 = V(232, 2), V(234, 4), V(238), V(239)
eAcc, eA, eB = V(16, 64), V(80, 16), V(96, 16 * E_NSLOT)


def e_setup(p):
    st0, st1 = st[0], st[1]
    vt_ = V(240, 4)
    p.v("v_lshlrev_b32", eLin, 4, vl)
    p.v("v_lshlrev_b32", eLin8, 3, vl)
    p.s("s_lshl_b32", st0, shg, 2)
    p.s("s_lshr_b32", st1, S(2), 6)
    p.s("s_add_u32", sErb, st0, st1)
    p.s("s_and_b32", sEcb, srb, 7)
    p.s("s_lshl_b32", eRing, sw, 14)
    p.s("s_add_u32", eRing, eRing, E_RING)
    p.v("v_lshrrev_b32", vt_[0], 3, vl)
    p.v("v_lshlrev_b32", vt_[1], 10, vt_[0])
    p.v("v_lshrrev_b32", vt_[0], 1, vt_[0])
    p.v("v_and_b32", vt_[0], 3, vt_[0])
    p.v("v_lshlrev_b32", vt_[0], 1, vt_[0])
    p.v("v_and_b32", vt_[2], 7, vl)
    p.v("v_xor_b32", vt_[0], vt_[0], vt_[2])
    p.v("v_lshlrev_b32", vt_[0], 4, vt_[0])
    p.v("v_add_u32", eVd[0], vt_[0], vt_[1])
    p.v("v_add_u32", eVd[1], 8 * 1024 - 1024, eVd[0])
    p.v("v_lshrrev_b32", vt_[0], 2, vl)
    p.v("v_lshlrev_b32", vt_[1], 7, vt_[0])
    p.v("v_lshrrev_b32", vt_[0], 1, vt_[0])
    p.v("v_and_b32", vt_[0], 3, vt_[0])
    p.v("v_lshlrev_b32", vt_[0], 1, vt_[0])
    p.v("v_and_b32", vt_[2], 3, vl)
    p.v("v_lshrrev_b32", vt_[3], 1, vt_[2])
    p.v("v_xor_b32", vt_[0], vt_[0], vt_[3])
    p.v("v_lshlrev_b32", vt_[0], 4, vt_[0])
    p.v("v_and_b32", vt_[2], 1, vt_[2])
    p.v("v_lshlrev_b32", vt_[2], 3, vt_[2])
    p.v("v_add3_u32", eVtr[0], vt_[0], vt_[1], vt_[2])
    p.v("v_add_u32", eVtr[0], eRing, eVtr[0])
    for t in range(1, 4):
        p.v("v_xor_b32", eVtr[t], t << 5, eVtr[0])
    p.s("s_mul_i32", sEact, sErb, ACT_RB)
    p.s("s_mul_i32", st0, sw, 2 * 6144)
    p.s("s_add_u32", sEact, sEact, st0)
    p.s("s_add_u32", sEact, sEact, WS_ACT)
    p.s("s_mul_i32", sEwd, sw, 96 * 1024)
    p.s("s_lshl_b32", st0, sEcb, 7)
    p.s("s_add_u32", sEwd, sEwd, st0)


def e_issue_w(q, n, kind, pair_off):
    doff = pair_off * 4 * 96 * 1024
    slot = (n % E_NSLOT) * 4096
    if kind < 2:
        rows = [doff + (48 * kind) * 1024, doff + (48 * kind + 16) * 1024]
    else:
        rows = [doff + 32 * 1024, doff + (48 + 32) * 1024]
    for hf in range(2):
        q.s("s_add_u32", eSd, sEwd, rows[hf])
        q.s("s_add_u32", M0, eRing, slot + 2048 * hf)
        q.nop(0)
        for j in range(2):
            q.dma(eVd[j], rD, eSd, off=1024 * j, tag=("e", n), ovw=("e", n - E_NSLOT))


def e_bfr(n, qt):
    o = 16 * (n % E_NSLOT) + 4 * qt
    return eB[o:o + 4]


def e_issue_b(q, n, kind, pair_off):
    aoff = pair_off * 8 * 6144
    if kind < 2:
        q.s("s_add_u32", eSa, sEact, aoff + kind * 6144)
        for qt in range(4):
            q.bload(e_bfr(n, qt), eLin, rWS, soff=eSa, off=1024 * qt, flags=SC1)
    else:
        for hf in range(2):
            q.s("s_add_u32", eSa, sEact, aoff + hf * 6144 + 4096)
            for qt in range(4):
                q.bload(e_bfr(n, qt)[2 * hf:2 * hf + 2], eLin8, rWS, soff=eSa, off=512 * qt, flags=SC1)


def phase_e(p, T):
    st0, st1 = st[0], st[1]
    vt_ = V(240, 4)

    def accr(t, qt):
        return eAcc[16 * t + 4 * qt:16 * t + 4 * qt + 4]

    def afr(i):
        return eA[4 * (i % 4):4 * (i % 4) + 4]

    def rd_a(n, t):
        q = Prog()
        for h in range(2):
            q.ds_read("ds_read_b64_tr_b16", afr(4 * n + t)[2 * h:2 * h + 2], eVtr[t],
                      off=(n % E_NSLOT) * 4096 + 2048 * h, dep=("e", n))
        return q.ins

    def step(n, first, nxt, have_next):
        for t in range(4):
            tn, nn = (t + 2) % 4, n + (t + 2) // 4
            pre = rd_a(nn, tn) if (nn == n or have_next) else []
            for qt in range(4):
                d = accr(t, qt)
                p.mfma16(d, afr(4 * n + t), e_bfr(n, qt), d if not first else 0)
                if qt < 2 and pre:
                    p.add(pre[qt])
        for x in nxt:
            p.add(x)

    x1 = V(160, 8)
    gb = V(168, 16)
    p.s("s_lshl_b32", st[4], shg, 5)
    poll_flags(p, F_ACT, st[4], 29, "act")
    T("e_go")
    for n in range(E_NSLOT):
        e_issue_b(p, n, n % 3, n // 3)
    p.s("s_lshl_b32", st0, sErb, 16)
    p.s("s_lshl_b32", st1, sEcb, 13)
    p.s("s_add_u32", st0, st0, st1)
    p.s("s_lshl_b32", st1, sw, 10)
    p.s("s_add_u32", st0, st0, st1)
    p.s("s_add_u32", st0, st0, WS_X1)
    p.bload(x1[0:4], eLin, rWS, soff=st0, flags=SC1)
    p.s("s_add_u32", st0, st0, 4096)
    p.bload(x1[4:8], eLin, rWS, soff=st0, flags=SC1)
    p.v("v_lshrrev_b32", vt_[1], 4, vl)
    p.v("v_lshlrev_b32", vt_[1], 4, vt_[1])
    p.s("s_lshl_b32", st0, sEcb, 8)
    p.s("s_add_u32", st0, st0, WS_MOD + 5 * 2048)
    for t in range(4):
        p.bload(gb[4 * t:4 * t + 4], vt_[1], rWS, soff=st0, off=64 * t, flags=SC1)
    for t in range(2):
        for x in rd_a(0, t):
            p.add(x)
    for n in range(9):
        q = Prog()
        m = n + E_NSLOT
        if m < 9:
            e_issue_w(q, m, m % 3, m // 3)
            e_issue_b(q, m, m % 3, m // 3)
        step(n, n == 0, q.ins, n < 8)
    T("e_main")
    p.s("s_cmp_lt_u32", sw, 2)
    p.branch("s_cbranch_scc1", "E_four")
    p.s("s_cmp_eq_u32", sw, 3)
    p.branch("s_cbranch_scc1", "E_red")
    n = 9
    p.s("s_sub_u32", sEact, sEact, 2 * 2 * 6144 - 28 * 6144)
    p.s("s_sub_u32", sEwd, sEwd, 2 * 96 * 1024 - 1344 * 1024)
    e_issue_w(p, n, 0, 0)
    e_issue_b(p, n, 0, 0)
    for t in range(2):
        for x in rd_a(n, t):
            p.add(x)
    step(n, False, [], False)
    p.branch("s_branch", "E_red")
    p.label("E_four")
    for n in range(9, 12):
        e_issue_w(p, n, n % 3, 3)
        e_issue_b(p, n, n % 3, 3)
    for t in range(2):
        for x in rd_a(9, t):
            p.add(x)
    for n in range(9, 12):
        step(n, False, [], n < 11)
    p.label("E_red")
    T("e_tail")
    p.wait(vm=0, lgkm=0)
    p.s("s_lshl_b32", st0, sw, 12)
    p.v("v_add_u32", vt_[0], st0, eLin)
    for qt in range(4):
        for t in range(4):
            p.ds_write("ds_write_b128", vt_[0], accr(t, qt), off=qt * 16384 + t * 1024)
    p.barrier()
    red = V(96, 64)
    p.s("s_lshl_b32", st0, sw, 14)
    p.v("v_add_u32", vt_[0], st0, eLin)
    for w in range(4):
        for t in range(4):
            p.ds_read("ds_read_b128", red[16 * w + 4 * t:16 * w + 4 * t + 4], vt_[0], off=w * 4096 + t * 1024)
    for k in range(8):
        p.v("v_pk_add_f32", red[2 * k:2 * k + 2], red[2 * k:2 * k + 2], red[16 + 2 * k:18 + 2 * k])
        p.v("v_pk_add_f32", red[32 + 2 * k:34 + 2 * k], red[32 + 2 * k:34 + 2 * k], red[48 + 2 * k:50 + 2 * k])
    for k in range(8):
        p.v("v_pk_add_f32", red[2 * k:2 * k + 2], red[2 * k:2 * k + 2], red[32 + 2 * k:34 + 2 * k])
    xf = V(184, 16)
    for j in range(2):
        for h in range(2):
            for i in range(2):
                src = x1[4 * j + 2 * h + i]
                k = 8 * j + 4 * h + 2 * i
                p.v("v_lshlrev_b32", xf[k], 16, src)
                p.v("v_and_b32", xf[k + 1], sHi, src)
    for k in range(16):
        p.v("v_fmac_f32", xf[k], red[k], gb[k])
    op = V(200, 8)
    for k in range(8):
        p.v("v_cvt_pk_bf16_f32", op[k], xf[2 * k], xf[2 * k + 1])
    p.v("v_and_b32", vt_[0], 15, vl)
    p.v("v_lshlrev_b32", vt_[0], 10, vt_[0])
    p.v("v_lshrrev_b32", vt_[1], 4, vl)
    p.v("v_lshlrev_b32", vt_[1], 3, vt_[1])
    p.v("v_add_u32", vt_[0], vt_[0], vt_[1])
    p.s("s_lshl_b32", st0, sErb, 6)
    p.s("s_lshl_b32", st1, sw, 4)
    p.s("s_add_u32", st0, st0, st1)
    p.s("s_lshl_b32", st0, st0, 10)
    p.s("s_lshl_b32", st1, sEcb, 7)
    p.s("s_add_u32", st0, st0, st1)
    for t in range(4):
        p.bstore(op[2 * t:2 * t + 2], vt_[0], rOut, soff=st0, off=32 * t, flags=SC1)


aTouch = A(240, 8)


CODE_LINES = 24


def code_prefetch(p):
    p.s("s_cmp_lg_u32", sw, 1)
    p.branch("s_cbranch_scc1", "M_no_codepf")
    sPC = S(92, 2)
    p.add(I(f"s_getpc_b64 {sPC}", "salu", units(sPC), ()))
    p.label("M_pc")
    p.add(I(f"s_sub_u32 {sPC[0]}, {sPC[0]}, M_pc-{KNAME}", "salu", units(sPC[0]), units(sPC[0])))
    p.add(I(f"s_subb_u32 {sPC[1]}, {sPC[1]}, 0", "salu", units(sPC[1]), units(sPC[1])))
    p.s("s_mul_i32", st[1], srb, CODE_LINES)
    p.v("v_min_u32", vt[0], CODE_LINES - 1, vl)
    p.v("v_add_u32", vt[0], st[1], vt[0])
    p.v("v_lshlrev_b32", vt[0], 6, vt[0])
    p.v("v_min_u32", vt[0], f"(B_end-{KNAME})", vt[0])
    p.add(I(f"global_load_dword {A(254)}, {vt[0]}, {sPC}", "vload", units(A(254)), units(vt[0], sPC)))
    p.label("M_no_codepf")


def get_tag(p):
    p.v("v_accvgpr_read_b32", V(62), aT)
    p.v("v_readfirstlane_b32", sTag, V(62))
    p.s("s_add_u32", sTag, sTag, 1)


def touch_streams(p, ptr2):
    p.s("s_cmp_eq_u32", sw, 0)
    p.branch("s_cbranch_scc1", "M_no_touch")
    vo = vt[6]
    p.v("v_lshlrev_b32", vo, 6, vl)
    p.s("s_cmp_lt_u32", srb, 16)
    p.s("s_cselect_b32", rTMP[0], ptr2["k"][0], ptr2["v"][0])
    p.s("s_cselect_b32", rTMP[1], ptr2["k"][1], ptr2["v"][1])
    p.s("s_lshl_b32", st[1], shg, 21)
    p.s("s_add_u32", st[1], st[1], 1536 * 256)
    p.s("s_add_u32", rTMP[0], rTMP[0], st[1])
    p.s("s_addc_u32", rTMP[1], rTMP[1], 0)
    p.s("s_mov_b32", rTMP[2], 4 << 19)
    p.s("s_mov_b32", rTMP[3], 0x20000)
    p.s("s_lshl_b32", st[2], srot, 13)
    for m in range(3):
        p.s("s_add_u32", st[1], sw, 3 * m - 1)
        p.s("s_lshr_b32", st[3], st[1], 1)
        p.s("s_lshl_b32", st[3], st[3], 19)
        p.s("s_and_b32", st[1], st[1], 1)
        p.s("s_lshl_b32", st[1], st[1], 12)
        p.s("s_add_u32", st[1], st[1], st[3])
        p.s("s_add_u32", st[1], st[1], st[2])
        p.bload(aTouch[m], vo, rTMP, soff=st[1])
    srd(p, rTMP, ptr2["wd"], SZ["wd"])
    p.s("s_lshl_b32", st[1], S(2), 12)
    p.s("s_cmp_eq_u32", sw, 3)
    p.s("s_cselect_b32", st[2], st[1], SZ["wd"])
    p.bload(aTouch[3], vo, rTMP, soff=st[2])
    p.s("s_add_u32", st[2], st[2], 256 * 4096)
    p.bload(aTouch[4], vo, rTMP, soff=st[2])
    p.label("M_no_touch")


def touch_d_weights(p):
    p.s("s_cmp_eq_u32", sw, 0)
    p.branch("s_cbranch_scc1", "M_no_touch_d")
    p.s("s_cmp_eq_u32", sDact, 0)
    p.branch("s_cbranch_scc1", "M_no_touch_d")
    vo = V(170)
    p.v("v_lshrrev_b32", V(171), 1, vl)
    p.s("s_mov_b32", st[0], ROWB)
    p.v("v_mul_lo_u32", V(171), V(171), st[0])
    p.v("v_and_b32", vo, 1, vl)
    p.v("v_lshlrev_b32", vo, 6, vo)
    p.v("v_add_u32", vo, vo, V(171))
    p.s("s_and_b32", st[0], srb, 3)
    p.s("s_mul_i32", st[0], st[0], 128 * ROWB)
    p.s("s_mul_i32", st[1], sDcg, 96)
    p.s("s_add_u32", st[0], st[0], st[1])
    p.s("s_sub_u32", st[1], sw, 1)
    p.s("s_mul_i32", st[1], st[1], 32 * ROWB)
    p.s("s_add_u32", st[1], st[1], st[0])
    p.bload(aTouch[0], vo, rG, soff=st[1])
    p.bload(aTouch[1], vo, rU, soff=st[1])
    p.s("s_add_u32", st[1], st[0], 3 * 32 * ROWB)
    p.s("s_cmp_eq_u32", sw, 3)
    p.s("s_cselect_b32", st[1], st[1], SZ["wg"])
    p.bload(aTouch[2], vo, rG, soff=st[1])
    p.bload(aTouch[3], vo, rU, soff=st[1])
    p.label("M_no_touch_d")


DBGSTAMPS = ["rt0", "ln", "h_ready", "q_done", "att_loop", "o_done", "r_go", "r_done", "d_go", "d_mma", "e_go", "e_main", "rt1"]
DBGWG = 128


def gen_mega(diag=False):
    p = Prog()
    T = Stamps(p, diag, vreg=V(0), early=0, only=DBGSTAMPS if diag == "dbg" else None)
    p.s("s_cmp_ge_u32", S(2), 256)
    p.branch("s_cbranch_scc1", "B_end")
    p.v("v_mov_b32", vtid2, V(0))
    T("rt0", True)
    T("start")
    ptr = {k: S(52 + 2 * i, 2) for i, k in enumerate(["x", "ws", "dbg", "wmod", "c", "wq"])}
    for k in ptr:
        p.s_load(ptr[k], S(0, 2), ARG[k])
    p.v("v_lshrrev_b32", vt[0], 6, vtid2)
    p.v("v_and_b32", vl, 63, vtid2)
    p.v("v_readfirstlane_b32", sw, vt[0])
    p.s("s_and_b32", shg, S(2), 7)
    p.s("s_lshr_b32", srb, S(2), 3)
    p.s("s_and_b32", srot, srb, 15)
    p.s("s_lshl_b32", shead, shg, 2)
    p.s("s_mov_b32", sHi, 0xFFFF0000)
    vq, vg = vtmp[0], vtmp[1]
    p.v("v_and_b32", vq, 15, vl)
    p.v("v_lshrrev_b32", vg, 4, vl)
    p.v("v_lshlrev_b32", vlin, 4, vl)
    p.v("v_mov_b32", vpoll, 0)
    p.s("s_add_u32", shead, shead, sw)
    p.s("s_mul_i32", sMW, sw, WRING)
    p.s("s_lshl_b32", sMS, sw, 14)
    p.s("s_add_u32", sMS, sMS, SH)
    vxo = vtmp[2]
    p.s("s_lshl_b32", st[0], srb, 6)
    p.s("s_lshl_b32", st[1], sw, 4)
    p.s("s_add_u32", st[0], st[0], st[1])
    p.v("v_add_u32", vxo, st[0], vq)
    p.v("v_lshlrev_b32", vxo, 10, vxo)
    p.v("v_lshl_add_u32", vxo, vg, 4, vxo)
    p.wait(lgkm=0)
    srd(p, rX, ptr["x"], SZ["x"])
    srd(p, rWS, ptr["ws"], WS_DIAG_END if diag == "diag" else WS_END)
    srd(p, rDBG, ptr["dbg"], 256)
    srd(p, rWQ, ptr["wq"], SZ["wq"])
    ptr2 = {k: S(64 + 12 + 2 * i, 2) for i, k in enumerate(["k", "v", "wo", "wg", "wu", "wd", "out"])}
    for k in ptr2:
        p.s_load(ptr2[k], S(0, 2), ARG[k])
    p.s("s_mov_b32", st[0], WS_EPOCH)
    p.bload(aT, vpoll, rWS, soff=st[0], flags=SC1)
    if CODEPF:
        code_prefetch(p)
    srd(p, rTMP, ptr["wmod"], SZ["wmod"])
    srd(p, rTMP2, ptr["c"], SZ["c"])
    p.s("s_cmp_ge_u32", S(2), N_MOD0)
    p.branch("s_cbranch_scc1", "M_no_slab")
    slab_issue(p, S(2))
    p.label("M_no_slab")
    T("s_iss")
    p.wait(lgkm=0)
    bc_setup(p, ptr2)
    vone, vz = vtmp[4:8], vtmp[8:12]
    dma_voffs(p, vdQ, 8192, "n8", 8)
    p.s("s_lshl_b32", sA, srot, 18)
    p.s("s_lshl_b32", st[1], shead, 8)
    p.s("s_add_u32", sA, sA, st[1])
    vX = V(64, 64)
    sX = S(91)

    def x_loads(lo, hi):
        for n in range(lo, hi):
            p.bload(vX[4 * n:4 * n + 4], vxo, rX, soff=sX)
            if n < 15:
                p.s("s_add_u32", sX, sX, 64)
                p.s("s_and_b32", sX, sX, 0x3FF)

    p.s("s_lshl_b32", sX, srot, 6)
    p.s("s_cmp_ge_u32", S(2), N_MOD0)
    p.branch("s_cbranch_scc1", "M_no_slab_f")
    slab_finish(p, T, S(2), "slab0")
    p.barrier()
    p.label("M_no_slab_f")
    x_loads(0, 16)
    if TOUCH == "early":
        p.s("s_cmp_lt_u32", S(2), N_MOD0 + N_MOD1)
        p.branch("s_cbranch_scc1", "M_skip_touch")
        touch_streams(p, ptr2)
        p.label("M_skip_touch")
    T("issued")
    p.s("s_sub_u32", st[5], S(2), N_MOD0)
    p.s("s_cmp_ge_u32", st[5], N_MOD1)
    p.branch("s_cbranch_scc1", "M_no_slab1i")
    slab_issue(p, S(2))
    p.label("M_no_slab1i")
    dma_now(p, "wq", 0)
    T("setup")

    gram, rsum = vtmp[12:16], A(232, 4)
    for n in range(16):
        xs = vX[4 * n:4 * n + 4]
        p.mfma16(gram, xs, xs, gram if n else 0)
        p.mfma16(rsum, vone, xs, rsum if n else 0)
    rs0 = vt[6]
    p.v("v_accvgpr_read_b32", rs0, rsum[0])
    mu, rs2, nm2 = vt[7], V(50, 2), V(52, 2)
    row_stats(p, gram, [rs0], vq, vg, mu, rs2[0], nm2[0], vt[0], vt[1])
    p.v("v_mov_b32", rs2[1], rs2[0])
    p.v("v_mov_b32", nm2[1], nm2[0])
    vY = V(128, 128)
    for n in range(16):
        xs = vX[4 * n:4 * n + 4]
        y = vY[8 * n:8 * n + 8]
        for i in range(4):
            p.v("v_lshlrev_b32", y[2 * i], 16, xs[i])
            p.v("v_and_b32", y[2 * i + 1], sHi, xs[i])
        for i in range(4):
            p.v("v_pk_fma_f32", y[2 * i:2 * i + 2], y[2 * i:2 * i + 2], rs2, nm2)
    T("ln")
    p.s("s_sub_u32", st[5], S(2), N_MOD0)
    p.s("s_cmp_ge_u32", st[5], N_MOD1)
    p.branch("s_cbranch_scc1", "M_no_slab1")
    slab_finish(p, T, S(2), "slab1")
    p.label("M_no_slab1")
    vts = vt[5]
    p.s("s_lshl_b32", st[1], sw, 2)
    p.s("s_add_u32", st[1], st[1], srot)
    p.v("v_add_u32", vt[0], st[1], vg)
    p.v("v_and_b32", vt[0], 15, vt[0])
    p.v("v_lshlrev_b32", vt[0], 8, vt[0])
    p.v("v_lshrrev_b32", vt[1], 3, vq)
    p.v("v_lshl_add_u32", vt[0], vt[1], 12, vt[0])
    p.v("v_and_b32", vt[1], 7, vq)
    p.v("v_lshl_add_u32", vts, vt[1], 5, vt[0])
    get_tag(p)
    g8 = V(64, 8)
    p.s("s_mov_b32", sp1, 0)
    p.s("s_mov_b32", st[1], WS_MODG)
    p.label("P_modg")
    p.bload(g8[0:4], vts, rWS, soff=st[1], flags=SC1)
    p.bload(g8[4:8], vts, rWS, soff=st[1], off=16, flags=SC1)
    p.v("v_cmp_eq_u32", VCC, sTag, g8[1])
    p.s("s_mov_b64", sexec, VCC)
    for k in (3, 5, 7):
        p.v("v_cmp_eq_u32", VCC, sTag, g8[k])
        p.s("s_and_b64", sexec, sexec, VCC)
    p.add(I(f"s_cmp_eq_u64 {sexec}, exec", "salu", (), units(sexec)))
    p.branch("s_cbranch_scc1", "P_modg_done")
    p.s("s_add_u32", sp1, sp1, 1)
    p.s("s_cmp_lt_u32", sp1, 0x40000)
    p.raw("s_sleep 2")
    p.add(I("s_cbranch_scc1 P_modg", "salu"))
    p.label("P_modg_done")
    T("mod0")
    if TOUCH == "v1":
        dma_now(p, "wq", 1)
        touch_streams(p, ptr2)
    p.v("v_mov_b32", g8[1], g8[2])
    p.v("v_mov_b32", g8[2], g8[4])
    p.v("v_mov_b32", g8[3], g8[6])
    p.s("s_lshl_b32", st[1], sw, 10)
    p.s("s_add_u32", st[1], st[1], TAB)
    p.v("v_add_u32", vt[4], st[1], vlin)
    p.ds_write("ds_write_b128", vt[4], g8[0:4])
    vtab, vhw = vt[2], vt[3]
    p.v("v_lshlrev_b32", vtab, 5, vg)
    p.v("v_add_u32", vtab, TAB, vtab)
    p.s("s_lshl_b32", st[1], sw, 10)
    p.s("s_add_u32", st[1], st[1], SH)
    p.v("v_add_u32", vhw, st[1], vlin)
    p.barrier()
    T("tab")
    if TOUCH != "v1":
        dma_now(p, "wq", 1)
    if TOUCH == "aftertab":
        touch_streams(p, ptr2)

    def rd_tab(n):
        tb = V(64 + 16 * (n % 3), 16)
        for i, o in enumerate((0, 16, 128, 144)):
            p.ds_read("ds_read_b128", tb[4 * i:4 * i + 4], vtab, off=n * 256 + o)

    rd_tab(0)
    rd_tab(1)
    for n in range(16):
        tb = V(64 + 16 * (n % 3), 16)
        y = vY[8 * n:8 * n + 8]
        o4 = V(112 + 4 * (n & 3), 4)
        if n + 2 < 16:
            rd_tab(n + 2)
        for i in range(4):
            p.v("v_pk_fma_f32", y[2 * i:2 * i + 2], y[2 * i:2 * i + 2], tb[8 + 2 * i:10 + 2 * i], tb[2 * i:2 * i + 2])
        for i in range(4):
            p.v("v_cvt_pk_bf16_f32", o4[i], y[2 * i], y[2 * i + 1])
        p.ds_write("ds_write_b128", vhw, o4, off=n * 4096)
    for i in range(8):
        zero16(p, vACC[16 * i:16 * i + 16], vz)
    p.barrier()
    T("h_ready")

    bc_main(p, T, store_flags=SC1, at_q_done=late_signals, before_norm=early_sample)
    T("o_done")

    ptr3 = ptr2
    srd(p, rG, ptr3["wg"], SZ["wg"])
    srd(p, rU, ptr3["wu"], SZ["wu"])
    srd(p, rD, ptr3["wd"], SZ["wd"])
    srd(p, rOut, ptr3["out"], SZ["out"])
    d_ids(p)
    signal(p, F_PART, S(2), "part", pre=confirm_early)
    touch_d_weights(p)
    phase_r_issue(p)
    p.s("s_lshl_b32", st[5], srb, 3)
    poll_flags(p, F_PART, st[5], 8, "part")
    T("r_go")
    phase_r_partials(p)

    phase_r_compute(p, T, lambda: None)
    signal(p, F_H2, S(2), "h2")
    T("r_done")
    e_setup(p)

    def e_prefetch():
        for n in range(E_NSLOT):
            e_issue_w(p, n, n % 3, n // 3)

    p.s("s_cmp_eq_u32", sDact, 0)
    p.branch("s_cbranch_scc1", "M_no_d")
    phase_d(p, T, e_prefetch)
    p.branch("s_branch", "M_e")
    p.label("M_no_d")
    p.barrier()
    e_prefetch()
    p.label("M_e")
    T("d_done")
    phase_e(p, T)
    T("e_done")
    if diag:
        p.wait(vm=0)
    T("rt1", True)
    if diag == "dbg":
        p.s("s_cmp_lg_u32", S(2), DBGWG)
        p.branch("s_cbranch_scc1", "M_dbg_done")
        p.s("s_cmp_lg_u32", sw, 0)
        p.branch("s_cbranch_scc1", "M_dbg_done")
        p.v("v_readlane_b32", S(100), V(0), 0)
        p.v("v_subrev_u32", V(0), S(100), V(0))
        p.v("v_mbcnt_lo_u32_b32", vt[1], -1, 0)
        p.v("v_mbcnt_hi_u32_b32", vt[1], -1, vt[1])
        p.v("v_lshlrev_b32", vt[1], 2, vt[1])
        p.v("v_add_u32", vt[1], 12, vt[1])
        p.s("s_mov_b64", EXEC, 0x1FFE)
        p.bstore(V(0), vt[1], rDBG, soff=0)
        p.s("s_mov_b64", EXEC, -1)
        p.label("M_dbg_done")
    else:
        T.flush(rWS, sw, 1, vt[0], vt[1])
    gen_mega.stamp_names = T.names
    p.branch("s_branch", "B_end")
    slow_attention(p)
    p.label("B_end")
    resolve_ovw(p.ins)
    return finalize(p, {"gq": sLoop, "ga": sLoop, "go": sLoop}, verbose=4, name="MEGA")


def assemble_mega(diag=False):
    from build import HEAD
    body = gen_mega(diag)
    s = HEAD + f"; @launch grid=(256,1,1) block=(256,1,1) lds={M_LDS}\n"
    s += '.amdgcn_target "amdgcn-amd-amdhsa--gfx950"\n'
    s += kernel_text(KNAME, body, 512, 256)
    return s


if __name__ == "__main__":
    import sys
    diag = len(sys.argv) > 2 and sys.argv[2] in ("diag", "dbg") and sys.argv[2]
    for a in sys.argv[3:]:
        k, v = a.split("=")
        globals()[k] = int(v) if v.isdigit() else v
    txt = assemble_mega(diag)
    open(sys.argv[1], "w").write(txt)
    print("wrote", sys.argv[1], len(txt))
    if diag:
        print(",".join(gen_mega.stamp_names))
```

```python
from asmlib import *
from layout import *
from ka import srd

SLOT = 8192
WRING = 3 * SLOT
SH = 4 * WRING
B_LDS = SH + 65536
TAB = 2 * SLOT
LIMIT = float(2 ** 40)

vtid, vl = V(0), V(1)
vdQ, vdK, vdV = V(2, 8), V(10, 8), V(18, 4)
vtr, vK, vB, vlin = V(22, 8), V(30, 4), V(34), V(35)
vt = V(36, 8)
vtrP = V(44)
vtmp = V(46, 18)
vQ = V(64, 64)
vACC = V(128, 128)
vS = [V(128, 32), V(160, 32)]
vP = V(192, 16)
vNM = V(208, 16)
vW = V(224, 32)
aO, aL, aONE = A(0, 128), A(128, 16), A(144, 4)
aA, aK, aB = A(148, 16), A(164, 16), A(180, 48)
rWQ, rK, rV, rWO, rWS, rX = S(4, 4), S(8, 4), S(12, 4), S(16, 4), S(20, 4), S(24, 4)
sw, shg, srb, shead, srot = S(28), S(29), S(30), S(31), S(32)
sMW, sMS = S(33), S(34)
sA, sK, sV = S(35), S(36), S(37)
sLoop = S(38)
st = S(39, 6)
sPart = S(45)
sHi = S(46)
sexec = S(48, 2)


def acc(t, qt):
    return vACC[16 * t + 4 * qt:16 * t + 4 * qt + 4]


def oacc(dt, qt):
    return aO[16 * dt + 4 * qt:16 * dt + 4 * qt + 4]


def sreg(buf, kt, qt):
    return vS[buf][16 * kt + 4 * qt:16 * kt + 4 * qt + 4]


def afrag(i):
    return aA[4 * (i % 4):4 * (i % 4) + 4]


def kfrag(i):
    return aK[4 * (i % 4):4 * (i % 4) + 4]


def bfrag(n, qt):
    o = 16 * (n % 3) + 4 * qt
    return aB[o:o + 4]


def qfrag(qt, s_):
    return vQ[16 * qt + 4 * s_:16 * qt + 4 * s_ + 4]


def dma_voffs(p, dst, stride, swz, n):
    p.v("v_lshrrev_b32", vt[0], 4, vl)
    p.v("v_and_b32", vt[1], 15, vl)
    p.s("s_mov_b32", st[0], stride)
    p.v("v_mul_lo_u32", vt[2], vt[0], st[0])
    npat = {"tr": 2, "n8": 4, "k": 4}[swz]
    for j in range(min(n, npat)):
        if swz == "tr":
            p.v("v_add_u32", vt[3], 4 * (j & 1), vt[0])
            p.v("v_lshlrev_b32", vt[3], 1, vt[3])
        elif swz == "n8":
            p.v("v_add_u32", vt[3], 4 * ((j >> 1) & 1), vt[0])
            p.v("v_lshlrev_b32", vt[3], 1, vt[3])
        else:
            p.v("v_add_u32", vt[3], 4 * (j & 3), vt[0])
        p.v("v_xor_b32", vt[3], vt[3], vt[1])
        p.v("v_lshlrev_b32", vt[3], 4, vt[3])
        p.v("v_add_u32", vt[4 + j], vt[3], vt[2])
    for j in range(n):
        k = 4 * j * stride - 1024 * (j & 3)
        src = vt[4 + j % npat]
        if k:
            p.v("v_add_u32", dst[j], k, src)
        else:
            p.v("v_mov_b32", dst[j], src)


KIND = {
    "wq": (rWQ, vdQ, sA, 32 * 8192, 0x3FFFFF),
    "wo": (rWO, vdQ, sA, 32 * 1024, 0x7FFFF),
    "k": (rK, vdK, sK, SLOT, 0x1FFFF),
    "v": (rV, vdV, sV, SLOT, 0x1FFFF),
}


def ring_pos(kind, n):
    if kind in ("wq", "wo"):
        return ("W", n % 3)
    if kind == "k":
        return ("W", 1 + (n & 1))
    return ("V", n & 1)


def dma_piece(kind, n, j):
    srd_, voffs, so, step, mask = KIND[kind]
    ring, pos = ring_pos(kind, n)
    q = Prog()
    pre = []
    if (j & 3) == 0:
        q.s("s_add_u32", M0, sMW if ring == "W" else sMS, pos * SLOT + (j >> 2) * 4096)
        pre, q.ins = q.ins, []
    voff = voffs[j] if kind != "v" else voffs[(j & 1) + 2 * (j >> 2)]
    x = q.dma(voff, srd_, so, off=1024 * (j & 3), tag=(kind, n))
    x.meta["into"] = (ring, pos)
    if j == 7:
        q.s("s_add_u32", so, so, step)
        q.s("s_and_b32", so, so, mask)
    return pre, q.ins


def dma_now(p, kind, n):
    for j in range(8):
        pre, main = dma_piece(kind, n, j)
        for x in pre:
            p.add(x)
        if pre:
            p.nop(0)
        for x in main:
            p.add(x)


def rd_tr(kind, n, t, dst):
    q = Prog()
    ring, pos = ring_pos(kind, n)
    second = 1024 if kind == "wq" else 4096
    for h in range(2):
        i = q.ds_read("ds_read_b64_tr_b16", dst[2 * h:2 * h + 2], vtr[t], off=pos * SLOT + second * h, dep=(kind, n))
        i.meta["from"] = (ring, pos)
    return q.ins


def rd_k(n, f, dst):
    q = Prog()
    kt, s_ = f >> 2, f & 3
    ring, pos = ring_pos("k", n)
    i = q.ds_read("ds_read_b128", dst, vK[s_], off=pos * SLOT + kt * 4096, dep=("k", n))
    i.meta["from"] = (ring, pos)
    return q.ins


def rd_b(n, qt, base_step):
    q = Prog()
    q.ds_read("ds_read_b128", bfrag(n, qt), vB, off=(n - base_step) * 4096 + qt * 1024)
    return q.ins


def resolve_ovw(ins):
    last = {}
    for x in ins:
        if x.kind == "ds_read" and "from" in x.meta:
            last[x.meta["from"]] = x.dep
        elif x.kind == "dma" and "into" in x.meta:
            x.ovw = last.get(x.meta["into"])


def cost(x):
    if x.kind == "trans":
        return 8
    if x.kind in ("comment", "label", "need"):
        return 0
    return 4


class Sched:
    def __init__(self, mf):
        self.mf = mf
        n = len(mf)
        self.mem = [[] for _ in range(n)]
        self.oth = [[] for _ in range(n)]
        self.res = [0] * n

    def fixed(self, g, ins):
        g = max(0, min(g, len(self.mf) - 1))
        for x in ins:
            (self.mem if x.kind in ("ds_read", "dma", "vstore", "ds_write", "vload") else self.oth)[g].append(x)

    def reserve(self, g, c=4):
        if 0 <= g < len(self.mf):
            self.res[g] += c

    def used(self, g):
        return sum(map(cost, self.mem[g] + self.oth[g])) + self.res[g]

    def flow(self, seq, first=0, last=None, budget=8):
        n = len(self.mf) if last is None else last + 1
        rem = sum(cost(x) for x, _ in seq)
        i = 0
        for g in range(first, n):
            cap_after = sum(max(0, budget - self.used(h)) for h in range(g + 1, n))
            while i < len(seq) and seq[i][1] <= g:
                c = cost(seq[i][0])
                u = self.used(g)
                if u + c <= budget or (rem > cap_after and u + c <= budget + 4) or g == n - 1:
                    self.oth[g].append(seq[i][0])
                    rem -= c
                    i += 1
                else:
                    break
        assert i == len(seq), "unplaced fillers"

    def pack(self, exps, cvts, first=0, last=None):
        n = len(self.mf) if last is None else last + 1
        ei = ci = 0
        for g in range(first, n):
            done = ei
            while True:
                u = self.used(g)
                e_ok = ei < len(exps) and exps[ei][1] <= g
                c_ok = ci < len(cvts) and cvts[ci][1] <= done
                free8 = sum(1 for h in range(g + 1, n) if self.used(h) == 0)
                free4 = sum(max(0, 8 - self.used(h)) // 4 for h in range(g + 1, n))
                need8 = len(exps) - ei
                need4 = len(cvts) - ci
                behind = need8 * 2 + need4 > free4 or need8 > free8
                lastg = g == n - 1
                if e_ok and (u == 0 or lastg or (behind and u <= 4 and not (c_ok and u == 4))):
                    self.oth[g].append(exps[ei][0])
                    ei += 1
                elif c_ok and (u + 4 <= 8 or lastg or (behind and u <= 8 and need8 * 2 + need4 > free4 + 1)):
                    self.oth[g].append(cvts[ci][0])
                    ci += 1
                else:
                    break
        while ei < len(exps):
            self.oth[n - 1].append(exps[ei][0])
            ei += 1
        while ci < len(cvts):
            self.oth[n - 1].append(cvts[ci][0])
            ci += 1

    def profile(self):
        return [self.used(g) for g in range(len(self.mf))]

    def emit(self, p):
        for g, m in enumerate(self.mf):
            m()
            for x in self.mem[g] + self.oth[g]:
                p.add(x)


def put_dma(sc, kind, n, gaps):
    for j in range(8):
        pre, main = dma_piece(kind, n, j)
        sc.fixed(gaps[j] - 1, pre)
        sc.fixed(gaps[j], main)


def gemm_step(p, kind, n, nxt, base_step, first, last, extra=None, tail=None):
    mf = []
    for t in range(8):
        for qt in range(4):
            def m(t=t, qt=qt):
                x = p.mfma16(acc(t, qt), afrag(t), bfrag(n, qt), acc(t, qt) if not first else 0)
                if qt == 0 and t % 2 == 0:
                    also(x, afrag(t + 1))
                if qt == 0 and t == 0:
                    also(x, [bfrag(n, k) for k in range(4)])
            mf.append(m)
    sc = Sched(mf)
    for t in range(0, 8, 2):
        g = 4 * t
        for k in range(2):
            tn, nn = (t + 2 + k) % 8, n + (t + 2 + k) // 8
            if not (last and nn > n):
                r = rd_tr(kind, nn, tn, afrag(t + 2 + k))
                sc.fixed(g + 2 * k, r[:1])
                sc.fixed(g + 2 * k + 1, r[1:])
        sc.reserve(g + 7)
        if not last:
            sc.fixed(g + 5, rd_b(n + 1, t // 2, base_step))
    if nxt is not None:
        put_dma(sc, nxt[0], nxt[1], [4 * t + (4 if t % 2 == 0 else 2) for t in range(8)])
    if extra:
        for g, ins in extra.items():
            sc.fixed(g, ins)
    if tail:
        sc.flow(tail, budget=12)
    sc.emit(p)


def gemm_stage(p, kind, nxt_of, extra_of=None, group="gq", zeroed=False, tail=None):
    for qt in range(4):
        for x in rd_b(0, qt, 0):
            p.add(x)
    for t in range(2):
        for x in rd_tr(kind, 0, t, afrag(t)):
            p.add(x)
    for it in range(6):
        mark(p, group, it)
        for n in range(3 * it, min(3 * it + 3, 16)):
            gemm_step(p, kind, n, nxt_of(n), 3 * it, n == 0 and not zeroed, n == 15,
                      extra_of(n) if extra_of else None, tail if n == 15 else None)
        if it < 5:
            p.v("v_add_u32", vB, 3 * 4096, vB)
        loop_dec(p)
        loop_branch(p)
    mark(p, group, None)
    p.v("v_subrev_u32", vB, 15 * 4096, vB)


def exp_list(buf, start, stop):
    q = Prog()
    order = [(qt, kt, r) for qt in range(4) for kt in range(2) for r in range(4)]
    for qt, kt, r in order[start:stop]:
        x = sreg(buf, kt, qt)[r]
        q.v("v_exp_f32", x, x)
    return q.ins


def cvt_list(buf):
    q = Prog()
    for qt in range(4):
        for kt in range(2):
            s_ = sreg(buf, kt, qt)
            for i in range(2):
                q.v("v_cvt_pk_bf16_f32", vP[4 * qt + 2 * kt + i], s_[2 * i], s_[2 * i + 1])
    return q.ins


N1 = 20


def x_tail_seq(cur):
    ex = exp_list(cur, N1, 32)
    cv = cvt_list(cur)
    return cv[0:4] + ex[0:2] + cv[4:8] + ex[2:4] + cv[8:10] + ex[4:8] + cv[10:12] + ex[8:12] + cv[12:16]


def also(x, regs):
    x.r |= set(units(regs))


def phase_x(p, t, first=False, dma=None):
    buf = (t + 1) & 1
    mf = []
    for f in range(8):
        kt, s_ = f >> 2, f & 3
        for qt in range(4):
            def m(kt=kt, s_=s_, qt=qt, f=f):
                d = sreg(buf, kt, qt)
                c = d if s_ else (0 if first else vNM[4 * qt:4 * qt + 4])
                x = p.mfma16(d, kfrag(f), qfrag(qt, s_), c)
                if qt == 0 and f % 2 == 0:
                    also(x, kfrag(f + 1))
            mf.append(m)
    sc = Sched(mf)
    for f in range(0, 8, 2):
        g = 4 * f
        if f < 6:
            sc.fixed(g, rd_k(t + 1, f + 2, kfrag(f + 2)) + rd_k(t + 1, f + 3, kfrag(f + 3)))
        elif not first:
            sc.fixed(g, rd_tr("v", t, 0, afrag(0)))
            sc.fixed(g + 1, rd_tr("v", t, 1, afrag(1)))
            sc.reserve(g - 1)
        sc.reserve(g + 7)
    if dma is not None:
        put_dma(sc, dma[0], dma[1], [2, 7, 10, 15, 18, 22, 27, 30])
    if not first:
        ex = exp_list(t & 1, N1, 32)
        cv = cvt_list(t & 1)
        need = [0] * 10 + [4, 4] + [8, 8, 12, 12]
        sc.pack([(x, 0) for x in ex], list(zip(cv, need)), last=30)
    if PROFILE:
        print("X", sc.profile())
    sc.emit(p)


PROFILE = False


def phase_y(p, t, last=False, dma=None, tail=None):
    mf = []
    for qt in range(4):
        def m(qt=qt):
            d = aL[4 * qt:4 * qt + 4]
            p.mfma16(d, aONE, vP[4 * qt:4 * qt + 4], d)
        mf.append(m)
    for dt in range(8):
        for qt in range(4):
            def m(dt=dt, qt=qt):
                d = oacc(dt, qt)
                x = p.mfma16(d, afrag(dt), vP[4 * qt:4 * qt + 4], d)
                if qt == 0 and dt % 2 == 0:
                    also(x, afrag(dt + 1))
            mf.append(m)
    sc = Sched(mf)
    for dt in range(0, 8, 2):
        g = 4 + 4 * dt
        if dt < 6:
            sc.fixed(g, rd_tr("v", t, dt + 2, afrag(dt + 2)))
            sc.fixed(g + 1, rd_tr("v", t, dt + 3, afrag(dt + 3)))
        elif t + 2 <= 15:
            sc.fixed(g, rd_k(t + 2, 0, kfrag(0)) + rd_k(t + 2, 1, kfrag(1)))
            sc.reserve(g - 1)
        sc.reserve(g + 7)
    sc.reserve(3)
    if dma is not None:
        put_dma(sc, dma[0], dma[1], [3, 8, 11, 16, 19, 24, 27, 32])
    if not last:
        sc.pack([(x, 1) for x in exp_list((t + 1) & 1, 0, N1)], [])
    if tail:
        sc.flow(tail, budget=12)
    if PROFILE:
        print("Y", sc.profile())
    sc.emit(p)


def zero16(p, dst, vz):
    p.mfma32(dst, vz, vz, 0)


def tr_pattern(p, dst, natural):
    p.v("v_lshrrev_b32", vt[0], 4, vl)
    p.v("v_lshrrev_b32", vt[1], 2, vl)
    p.v("v_and_b32", vt[1], 3, vt[1])
    if natural:
        p.v("v_lshl_add_u32", vt[2], vt[0], 3, vt[1])
        p.v("v_and_b32", vt[0], 1, vt[0])
        p.v("v_lshl_add_u32", vt[3], vt[0], 2, vt[1])
    else:
        p.v("v_lshl_add_u32", vt[2], vt[0], 2, vt[1])
        p.v("v_and_b32", vt[3], 7, vt[2])
    p.v("v_lshlrev_b32", vt[3], 1, vt[3])
    p.v("v_and_b32", vt[4], 3, vl)
    p.v("v_lshrrev_b32", vt[5], 1, vt[4])
    p.v("v_xor_b32", vt[3], vt[3], vt[5])
    p.v("v_lshlrev_b32", vt[3], 4, vt[3])
    p.v("v_and_b32", vt[4], 1, vt[4])
    p.v("v_lshlrev_b32", vt[4], 3, vt[4])
    p.v("v_lshlrev_b32", vt[2], 8, vt[2])
    p.v("v_add3_u32", dst, vt[2], vt[3], vt[4])


def set_vtr(p, pattern, base):
    p.v("v_add_u32", vtr[0], base, pattern)
    for t in range(1, 8):
        p.v("v_xor_b32", vtr[t], t << 5, vtr[0])


def row_stats(p, gram, rsum, vq, vg, mu, rs, nmr, t0, t1):
    sq = t1
    p.v("v_and_b32", t0, 3, vq)
    p.v("v_cmp_eq_u32", VCC, 1, t0)
    p.v("v_cndmask_b32", sq, gram[0], gram[1])
    p.v("v_cmp_eq_u32", VCC, 2, t0)
    p.v("v_cndmask_b32", sq, sq, gram[2])
    p.v("v_cmp_eq_u32", VCC, 3, t0)
    p.v("v_cndmask_b32", sq, sq, gram[3])
    p.v("v_lshrrev_b32", t0, 2, vq)
    p.v("v_cmp_eq_u32", VCC, t0, vg)
    p.v("v_cndmask_b32", sq, 0, sq)
    for op in ("v_permlane32_swap_b32", "v_permlane16_swap_b32"):
        p.v("v_mov_b32", t0, sq)
        p.v(op, sq, t0)
        p.v("v_add_f32", sq, sq, t0)
    p.v("v_mul_f32", mu, 1.0 / 512, rsum[0])
    p.v("v_mul_f32", sq, 1.0 / 512, sq)
    p.v("v_fma_f32", sq, Neg(mu), mu, sq)
    p.v("v_max_f32", sq, 0, sq)
    p.v("v_add_f32", sq, 1e-5, sq)
    p.v("v_rsq_f32", rs, sq)
    p.v("v_mul_f32_e64", nmr, Neg(mu), rs)


def slow_attention(p):
    q = p
    q.label("B_slow")
    q.wait(vm=0, lgkm=0)
    vM = vW[0:4]
    for qt in range(4):
        q.v("v_mov_b32", vM[qt], 0xFF800000)
    vz = vW[4:8]
    for i in range(4):
        q.v("v_mov_b32", vz[i], 0)
    sT = st[4]

    def load_tile(with_v):
        q.s("s_lshl_b32", sK, sT, 13)
        q.s("s_mov_b32", sV, sK)
        dma_now(q, "k", 1)
        if with_v:
            dma_now(q, "v", 0)
        q.wait(vm=0)

    def scores(cinit):
        for f in range(8):
            kt, s_ = f >> 2, f & 3
            for x in rd_k(1, f, kfrag(f)):
                q.add(x)
            for qt in range(4):
                d = sreg(0, kt, qt)
                q.mfma16(d, kfrag(f), qfrag(qt, s_), d if s_ else cinit(qt))

    q.s("s_mov_b32", sT, 0)
    q.label("B_slow_p1")
    load_tile(False)
    scores(lambda qt: 0)
    for qt in range(4):
        a, b = sreg(0, 0, qt), sreg(0, 1, qt)
        q.v("v_max3_f32", vM[qt], vM[qt], a[0], a[1])
        q.v("v_max3_f32", vM[qt], vM[qt], a[2], a[3])
        q.v("v_max3_f32", vM[qt], vM[qt], b[0], b[1])
        q.v("v_max3_f32", vM[qt], vM[qt], b[2], b[3])
    q.wait(vm=0, lgkm=0)
    q.s("s_add_u32", sT, sT, 1)
    q.s("s_cmp_lt_u32", sT, 16)
    q.add(I("s_cbranch_scc1 B_slow_p1", "salu"))
    for qt in range(4):
        m = vM[qt]
        for op in ("v_permlane32_swap_b32", "v_permlane16_swap_b32"):
            q.v("v_mov_b32", vW[8], m)
            q.v(op, m, vW[8])
            q.v("v_max_f32", m, m, vW[8])
        for r in range(4):
            q.v("v_sub_f32", vNM[4 * qt + r], 0, m)
    for i in range(8):
        zero16(q, aO[16 * i:16 * i + 16], vz)
    zero16(q, aL, vz)
    q.s("s_mov_b32", sT, 0)
    q.label("B_slow_p2")
    load_tile(True)
    scores(lambda qt: vNM[4 * qt:4 * qt + 4])
    for x in exp_list(0, 0, 32) + cvt_list(0):
        q.add(x)
    for qt in range(4):
        d = aL[4 * qt:4 * qt + 4]
        q.mfma16(d, aONE, vP[4 * qt:4 * qt + 4], d)
    for dt in range(8):
        for x in rd_tr("v", 0, dt, afrag(dt)):
            q.add(x)
        for qt in range(4):
            d = oacc(dt, qt)
            q.mfma16(d, afrag(dt), vP[4 * qt:4 * qt + 4], d)
    q.wait(vm=0, lgkm=0)
    q.nop(15)
    q.s("s_add_u32", sT, sT, 1)
    q.s("s_cmp_lt_u32", sT, 16)
    q.add(I("s_cbranch_scc1 B_slow_p2", "salu"))
    q.nop(15)
    q.add(I("s_branch B_norm", "salu"))


def bc_setup(p, ptr):
    vq, vg = vtmp[0], vtmp[1]
    p.s("s_lshl_b32", st[1], shead, 19)
    p.s("s_add_u32", st[1], st[1], 1536 * 256)
    for r_, k in ((rK, "k"), (rV, "v")):
        p.s("s_add_u32", r_[0], ptr[k][0], st[1])
        p.s("s_addc_u32", r_[1], ptr[k][1], 0)
        p.s("s_mov_b32", r_[2], 16 * SLOT)
        p.s("s_mov_b32", r_[3], 0x20000)
    p.s("s_lshl_b32", st[1], shg, 19)
    p.s("s_add_u32", rWO[0], ptr["wo"][0], st[1])
    p.s("s_addc_u32", rWO[1], ptr["wo"][1], 0)
    p.s("s_mov_b32", rWO[2], 512 * 1024)
    p.s("s_mov_b32", rWO[3], 0x20000)
    p.s("s_lshl_b32", sK, srot, 13)
    p.s("s_mov_b32", sV, sK)
    dma_voffs(p, vdK, 256, "k", 8)
    dma_voffs(p, vt[0:8] if False else vdV, 256, "tr", 2)
    p.v("v_add_u32", vdV[2], 4096, vdV[0])
    p.v("v_add_u32", vdV[3], 4096, vdV[1])
    tr_pattern(p, vtrP, False)
    tr_pattern(p, vtr[0], True)
    set_vtr(p, vtr[0], sMW)
    p.v("v_xor_b32", vt[1], vg, vq)
    p.v("v_lshlrev_b32", vt[1], 4, vt[1])
    p.v("v_lshlrev_b32", vt[0], 8, vq)
    p.v("v_add3_u32", vK[0], vt[0], vt[1], sMW)
    for s_ in range(1, 4):
        p.v("v_xor_b32", vK[s_], s_ << 6, vK[0])
    p.v("v_add_u32", vB, SH, vlin)
    vone = vtmp[4:8]
    vz = vtmp[8:12]
    for i in range(4):
        p.v("v_mov_b32", vone[i], 0x3F803F80)
        p.v("v_mov_b32", vz[i], 0)
    for i in range(4):
        p.v("v_accvgpr_write_b32", aONE[i], vone[i])
    for i in range(8):
        zero16(p, aO[16 * i:16 * i + 16], vz)
    zero16(p, aL, vz)
    p.s("s_mul_i32", sPart, shg, 32)
    p.s("s_add_u32", sPart, sPart, srb)
    p.s("s_mul_i32", sPart, sPart, PART_BLK)
    p.s("s_lshl_b32", st[1], sw, 14)
    p.s("s_add_u32", sPart, sPart, st[1])
    p.s("s_add_u32", sPart, sPart, WS_PART)


def bc_main(p, T, store_flags="", after_q=None, at_q_done=None, before_norm=None):
    def nxt_q(n):
        return ("wq", n + 2) if n + 2 < 16 else ("k", n + 2 - 16)

    def extra_q(n):
        if n != 15:
            return None
        q = Prog()
        q.barrier(drain_lds=False)
        return {3: q.ins}

    gemm_stage(p, "wq", nxt_q, extra_q, "gq", zeroed=True)
    T("q_done")
    if at_q_done:
        at_q_done(p)
    dma_now(p, "v", 0)
    for s_ in range(4):
        for qt in range(4):
            d = qfrag(qt, s_)
            a0, a1 = acc(2 * s_, qt), acc(2 * s_ + 1, qt)
            p.v("v_cvt_pk_bf16_f32", d[0], a0[0], a0[1])
            p.v("v_cvt_pk_bf16_f32", d[1], a0[2], a0[3])
            p.v("v_cvt_pk_bf16_f32", d[2], a1[0], a1[1])
            p.v("v_cvt_pk_bf16_f32", d[3], a1[2], a1[3])
        for op in ("v_permlane32_swap_b32", "v_permlane16_swap_b32"):
            for qt in range(4):
                d = qfrag(qt, s_)
                p.v(op, d[0], d[2])
                p.v(op, d[1], d[3])
        if s_ == 0:
            for f in range(2):
                for x in rd_k(0, f, kfrag(f)):
                    p.add(x)
    set_vtr(p, vtrP, sMS)
    dma_voffs(p, vdQ, 1024, "tr", 8)
    p.s("s_lshl_b32", sA, srot, 15)
    p.s("s_lshl_b32", st[1], sw, 8)
    p.s("s_add_u32", sA, sA, st[1])

    T("q_epi")
    if after_q:
        after_q(p)
    phase_x(p, -1, first=True)
    dma_now(p, "k", 2)
    for qt in range(4):
        a, b = sreg(0, 0, qt), sreg(0, 1, qt)
        m = vt[qt]
        p.v("v_max3_f32", m, a[0], a[1], a[2])
        p.v("v_max3_f32", m, m, a[3], b[0])
        p.v("v_max3_f32", m, m, b[1], b[2])
        p.v("v_max_f32", m, m, b[3])
    for op in ("v_permlane32_swap_b32", "v_permlane16_swap_b32"):
        for qt in range(4):
            p.v("v_mov_b32", vt[4 + qt], vt[qt])
        for qt in range(4):
            p.v(op, vt[qt], vt[4 + qt])
        for qt in range(4):
            p.v("v_max_f32", vt[qt], vt[qt], vt[4 + qt])
    for qt in range(4):
        for r in range(4):
            p.v("v_sub_f32", vNM[4 * qt + r], 0, vt[qt])
    for qt in range(4):
        for kt in range(2):
            for r in range(4):
                x = sreg(0, kt, qt)[r]
                p.v("v_sub_f32", x, x, vt[qt])
    for f in range(2):
        for x in rd_k(1, f, kfrag(f)):
            p.add(x)
    for x in exp_list(0, 0, N1):
        p.add(x)
    T("att_pro")
    for it in range(7):
        mark(p, "ga", it)
        for t in (2 * it, 2 * it + 1):
            phase_x(p, t, dma=("v", t + 1))
            phase_y(p, t, dma=("k", t + 3))
        loop_dec(p)
        loop_branch(p)
    mark(p, "ga", None)
    T("att_loop")
    phase_x(p, 14, dma=("v", 15))
    phase_y(p, 14, dma=("wo", 0))
    for i, x in enumerate(x_tail_seq(1)):
        p.add(x)
        if i == 4:
            for t in range(2):
                for y in rd_tr("v", 15, t, afrag(t)):
                    p.add(y)
    phase_y(p, 15, last=True, dma=("wo", 1))

    T("att_done")
    if before_norm:
        before_norm(p)
    rinv = vW[0:4]
    for qt in range(4):
        p.v("v_accvgpr_read_b32", rinv[qt], aL[4 * qt])
    p.v("v_add_f32", vt[0], rinv[0], rinv[1])
    p.v("v_add_f32", vt[1], rinv[2], rinv[3])
    p.v("v_add_f32", vt[0], vt[0], vt[1])
    p.v("v_cmp_gt_f32", VCC, LIMIT, vt[0])
    p.add(I("s_cmp_eq_u64 vcc, exec", "salu", (), units(VCC)))
    p.branch("s_cbranch_scc0", "B_slow")
    p.label("B_norm")
    p.barrier()
    for qt in range(4):
        p.v("v_accvgpr_read_b32", rinv[qt], aL[4 * qt])
    for qt in range(4):
        p.v("v_rcp_f32", rinv[qt], rinv[qt])
    r2 = vW[4:12]
    for qt in range(4):
        p.v("v_mov_b32", r2[2 * qt], rinv[qt])
        p.v("v_mov_b32", r2[2 * qt + 1], rinv[qt])
    vow = vW[12:16]
    for s_ in range(4):
        p.s("s_lshl_b32", st[1], sw, 2)
        p.s("s_add_u32", st[1], st[1], s_ + 16)
        p.s("s_sub_u32", st[1], st[1], srot)
        p.s("s_and_b32", st[1], st[1], 15)
        p.s("s_lshl_b32", st[1], st[1], 12)
        p.s("s_add_u32", st[1], st[1], SH)
        p.v("v_add_u32", vow[s_], st[1], vlin)
    first = True
    for s_ in range(4):
        for qt in range(4):
            k = (4 * s_ + qt) & 3
            x = V(128 + 8 * k, 8)
            o4 = V(160 + 4 * (4 * s_ + qt), 4)
            for h in range(2):
                src = oacc(2 * s_ + h, qt)
                for r in range(4):
                    p.v("v_accvgpr_read_b32", x[4 * h + r], src[r])
            for e in range(4):
                p.v("v_pk_mul_f32", x[2 * e:2 * e + 2], x[2 * e:2 * e + 2], r2[2 * qt:2 * qt + 2])
            for i in range(4):
                p.v("v_cvt_pk_bf16_f32", o4[i], x[2 * i], x[2 * i + 1])
            p.ds_write("ds_write_b128", vow[s_], o4, off=qt * 1024)
    T("norm")
    set_vtr(p, vtrP, sMW)
    p.barrier()
    T("o_xchg")

    q = Prog()
    tail = []
    for j in range(4):
        for qt in range(4):
            k = (4 * j + qt) & 3
            o4 = vtmp[4 * k:4 * k + 4]
            a0, a1 = acc(2 * j, qt), acc(2 * j + 1, qt)
            g0 = 4 * (2 * j + 1) + qt + 3
            q.v("v_cvt_pk_bf16_f32", o4[0], a0[0], a0[1])
            q.v("v_cvt_pk_bf16_f32", o4[1], a0[2], a0[3])
            q.v("v_cvt_pk_bf16_f32", o4[2], a1[0], a1[1])
            q.v("v_cvt_pk_bf16_f32", o4[3], a1[2], a1[3])
            q.bstore(o4, vlin, rWS, soff=sPart, off=qt * 1024, flags=store_flags)
            if qt == 3 and j < 3:
                q.s("s_add_u32", sPart, sPart, 4096)
            tail += [(x, min(g0, 31)) for x in q.ins]
            q.ins = []
    gemm_stage(p, "wo", lambda n: ("wo", n + 2) if n + 2 < 16 else None, None, "go", tail=tail)


def gen_b(diag=False):
    p = Prog()
    T = Stamps(p, diag)
    p.s("s_cmp_ge_u32", S(2), 256)
    p.branch("s_cbranch_scc1", "B_end")
    T("rt0", True)
    T("start")
    ptr = {k: S(52 + 2 * i, 2) for i, k in enumerate(["x", "wq", "ws", "k", "v", "wo"])}
    for k in ptr:
        p.s_load(ptr[k], S(0, 2), ARG[k])
    p.v("v_lshrrev_b32", vt[0], 6, vtid)
    p.v("v_and_b32", vl, 63, vtid)
    p.v("v_readfirstlane_b32", sw, vt[0])
    p.s("s_and_b32", shg, S(2), 7)
    p.s("s_lshr_b32", srb, S(2), 3)
    p.s("s_and_b32", srot, srb, 15)
    p.s("s_lshl_b32", shead, shg, 2)
    p.s("s_mov_b32", sHi, 0xFFFF0000)
    vq, vg = vtmp[0], vtmp[1]
    p.v("v_and_b32", vq, 15, vl)
    p.v("v_lshrrev_b32", vg, 4, vl)
    p.v("v_lshlrev_b32", vlin, 4, vl)
    p.s("s_add_u32", shead, shead, sw)
    p.s("s_mul_i32", sMW, sw, WRING)
    p.s("s_lshl_b32", sMS, sw, 14)
    p.s("s_add_u32", sMS, sMS, SH)
    vxo = vtmp[2]
    p.s("s_lshl_b32", st[0], srb, 6)
    p.s("s_lshl_b32", st[1], sw, 4)
    p.s("s_add_u32", st[0], st[0], st[1])
    p.v("v_add_u32", vxo, st[0], vq)
    p.v("v_lshlrev_b32", vxo, 10, vxo)
    p.v("v_lshl_add_u32", vxo, vg, 4, vxo)
    p.wait(lgkm=0)
    srd(p, rX, ptr["x"], SZ["x"])
    vX = V(64, 64)
    p.s("s_lshl_b32", st[0], srot, 6)
    for n in range(16):
        p.bload(vX[4 * n:4 * n + 4], vxo, rX, soff=st[0])
        if n < 15:
            p.s("s_add_u32", st[0], st[0], 64)
            p.s("s_and_b32", st[0], st[0], 0x3FF)
    T("issued")
    bc_setup(p, ptr)
    vone, vz = vtmp[4:8], vtmp[8:12]
    srd(p, rWQ, ptr["wq"], SZ["wq"])
    srd(p, rWS, ptr["ws"], WS_DIAG_END if diag else WS_END)
    dma_voffs(p, vdQ, 8192, "n8", 8)
    p.s("s_lshl_b32", sA, srot, 18)
    p.s("s_lshl_b32", st[1], shead, 8)
    p.s("s_add_u32", sA, sA, st[1])
    dma_now(p, "wq", 0)
    p.s("s_lshl_b32", st[1], sw, 2)
    p.s("s_add_u32", st[1], st[1], srot)
    p.v("v_add_u32", vt[0], st[1], vg)
    p.v("v_and_b32", vt[0], 15, vt[0])
    p.v("v_lshlrev_b32", vt[0], 7, vt[0])
    p.v("v_lshrrev_b32", vt[1], 3, vq)
    p.v("v_lshl_add_u32", vt[0], vt[1], 11, vt[0])
    p.v("v_and_b32", vt[1], 7, vq)
    p.v("v_lshl_add_u32", vt[0], vt[1], 4, vt[0])
    p.s("s_lshl_b32", st[1], sw, 10)
    p.s("s_add_u32", M0, st[1], TAB)
    p.s("s_mov_b32", st[1], WS_MOD)
    p.dma(vt[0], rWS, st[1], tag="tab")
    dma_now(p, "wq", 1)
    T("setup")

    gram, rsum = vtmp[12:16], V(224, 4)
    for n in range(16):
        xs = vX[4 * n:4 * n + 4]
        p.mfma16(gram, xs, xs, gram if n else 0)
        p.mfma16(rsum, vone, xs, rsum if n else 0)
    vwu = A(240, 8)
    p.v("v_lshlrev_b32", vt[0], 6, vl)
    p.s("s_add_u32", st[1], sK, 4096)
    p.bload(vwu[0], vt[0], rK, soff=sK)
    p.bload(vwu[1], vt[0], rK, soff=st[1])
    p.bload(vwu[2], vt[0], rV, soff=sK)
    p.bload(vwu[3], vt[0], rV, soff=st[1])
    p.v("v_lshrrev_b32", vt[0], 2, vl)
    p.v("v_lshlrev_b32", vt[0], 10, vt[0])
    p.v("v_and_b32", vt[1], 3, vl)
    p.v("v_lshl_add_u32", vt[0], vt[1], 6, vt[0])
    p.s("s_lshl_b32", st[1], srot, 15)
    p.s("s_lshl_b32", st[2], sw, 8)
    p.s("s_add_u32", st[1], st[1], st[2])
    p.bload(vwu[4], vt[0], rWO, soff=st[1])
    p.s("s_add_u32", st[1], st[1], 16384)
    p.bload(vwu[5], vt[0], rWO, soff=st[1])
    mu, rs2, nm2 = V(236), V(238, 2), V(240, 2)
    row_stats(p, gram, rsum, vq, vg, mu, rs2[0], nm2[0], vt[0], vt[1])
    p.v("v_mov_b32", rs2[1], rs2[0])
    p.v("v_mov_b32", nm2[1], nm2[0])
    T("stats")
    p.barrier(dep="tab")
    T("tab")
    vtab = vt[2]
    p.v("v_lshlrev_b32", vtab, 5, vg)
    p.v("v_add_u32", vtab, TAB, vtab)
    vhw = vt[3]
    p.s("s_lshl_b32", st[1], sw, 10)
    p.s("s_add_u32", st[1], st[1], SH)
    p.v("v_add_u32", vhw, st[1], vlin)
    def rd_tab(n):
        tb = V(128 + 16 * (n % 3), 16)
        for i, o in enumerate((0, 16, 128, 144)):
            p.ds_read("ds_read_b128", tb[4 * i:4 * i + 4], vtab, off=n * 256 + o)

    rd_tab(0)
    rd_tab(1)
    for n in range(16):
        k = n & 1
        tb = V(128 + 16 * (n % 3), 16)
        y = V(176 + 8 * k, 8)
        o4 = V(192 + 4 * k, 4)
        if n + 2 < 16:
            rd_tab(n + 2)
        xs = vX[4 * n:4 * n + 4]
        for i in range(4):
            p.v("v_lshlrev_b32", y[2 * i], 16, xs[i])
            p.v("v_and_b32", y[2 * i + 1], sHi, xs[i])
        for i in range(4):
            p.v("v_pk_fma_f32", y[2 * i:2 * i + 2], y[2 * i:2 * i + 2], rs2, nm2)
        for i in range(4):
            p.v("v_pk_fma_f32", y[2 * i:2 * i + 2], y[2 * i:2 * i + 2], tb[8 + 2 * i:10 + 2 * i], tb[2 * i:2 * i + 2])
        for i in range(4):
            p.v("v_cvt_pk_bf16_f32", o4[i], y[2 * i], y[2 * i + 1])
        p.ds_write("ds_write_b128", vhw, o4, off=n * 4096)
    for i in range(8):
        zero16(p, vACC[16 * i:16 * i + 16], vz)
    T("h")
    p.barrier()
    T("h_ready")

    bc_main(p, T)
    T("o_done")
    if diag:
        p.wait(vm=0)
    T("drained")
    T("rt1", True)
    T.flush(rWS, sw, 1, vt[0], vt[1])
    gen_b.stamp_names = T.names
    p.branch("s_branch", "B_end")
    slow_attention(p)
    p.label("B_end")
    resolve_ovw(p.ins)
    return finalize(p, {"gq": sLoop, "ga": sLoop, "go": sLoop}, verbose=8, name="BC")


if __name__ == "__main__":
    txt = gen_b()
    open("kb2.s", "w").write(txt)
    print(len(txt.splitlines()))
```

```python
from asmlib import *
from layout import *
from ka import srd, bf16_round_hi
import kb2
from kb2 import *

KNAME = NAME + "_kernel"
M_LDS = B_LDS
SC1 = "sc1"
TOUCH = "v1"
CODEPF = 0
SLAB1EARLY = 1
KVTOUCH = 1

DBG_MOD0 = 0
DBG_MOD1 = 8
DBG_CLR = 12
DBG_FLAG0 = 128
N_CNT = 256
N_MOD0, N_MOD1 = 32, 64
F_PART, F_H2, F_ACT = 0, 1, 2

rDBG = S(96, 4)
rTMP = S(92, 4)
rTMP2 = S(72, 4)
sTag = S(90)
aT = A(253)
sp0, sp1 = S(50), S(51)
rG, rU, rD, rOut = rWQ, rK, rV, rWO
vpoll = V(63)
vtid2 = V(45)


def poll(p, srd_, off, target, name, sleep=16):
    lab, done = f"P_{name}", f"P_{name}_done"
    p.s("s_cmp_lg_u32", sw, 0)
    p.branch("s_cbranch_scc1", done)
    p.s("s_mov_b32", sp1, 0)
    p.label(lab)
    p.bload(V(62), vpoll, srd_, soff=0, off=off, flags=SC1)
    p.wait(vm=0)
    p.v("v_readfirstlane_b32", sp0, V(62))
    p.s("s_cmp_ge_u32", sp0, target)
    p.branch("s_cbranch_scc1", done)
    p.s("s_add_u32", sp1, sp1, 1)
    p.s("s_cmp_lt_u32", sp1, 0x20000)
    p.raw(f"s_sleep {sleep}")
    p.add(I(f"s_cbranch_scc1 {lab}", "salu"))
    p.label(done)
    p.barrier(drain_lds=True)


vflag = V(61)


def poll_flags(p, kind, sfirst, count, name):
    lab, done = f"P_{name}", f"P_{name}_done"
    p.s("s_cmp_lg_u32", sw, 0)
    p.branch("s_cbranch_scc1", done)
    p.s("s_mov_b32", sp1, 0)
    p.v("v_min_u32", vflag, count - 1, vl)
    p.v("v_lshlrev_b32", vflag, 7, vflag)
    p.s("s_lshl_b32", sp0, sfirst, 7)
    p.s("s_add_u32", S(47), sp0, WS_FLAG + kind * 256 * 128)
    p.label(lab)
    p.bload(V(62), vflag, rWS, soff=S(47), flags=SC1)
    p.wait(vm=0)
    p.v("v_cmp_eq_u32", VCC, sTag, V(62))
    p.add(I("s_cmp_eq_u64 vcc, exec", "salu", (), units(VCC)))
    p.branch("s_cbranch_scc1", done)
    p.s("s_add_u32", sp1, sp1, 1)
    p.s("s_cmp_lt_u32", sp1, 0x40000)
    p.raw("s_sleep 2")
    p.add(I(f"s_cbranch_scc1 {lab}", "salu"))
    p.label(done)
    p.barrier(drain_lds=True)


def set_flag(p, kind, sindex, value):
    p.v("v_mov_b32", V(62), value)
    p.v("v_mov_b32", vpoll, 0)
    p.s("s_lshl_b32", sp0, sindex, 7)
    p.s("s_add_u32", sp0, sp0, WS_FLAG + kind * 256 * 128)
    p.s("s_mov_b64", EXEC, 1)
    p.bstore(V(62), vpoll, rWS, soff=sp0, flags=SC1)
    p.s("s_mov_b64", EXEC, -1)


def spin(p, srd_, off, target, name):
    lab, done = f"W_{name}", f"W_{name}_done"
    p.s("s_mov_b32", sp1, 0)
    p.label(lab)
    p.bload(V(62), vpoll, srd_, soff=0, off=off, flags=SC1)
    p.wait(vm=0)
    p.v("v_readfirstlane_b32", sp0, V(62))
    p.s("s_cmp_ge_u32", sp0, target)
    p.branch("s_cbranch_scc1", done)
    p.s("s_add_u32", sp1, sp1, 1)
    p.s("s_cmp_lt_u32", sp1, 0x40000)
    p.raw("s_sleep 1")
    p.add(I(f"s_cbranch_scc1 {lab}", "salu"))
    p.label(done)


aEarly = A(248, 2)


def early_sample(p):
    p.bload(aEarly, vpoll, rDBG, soff=0, off=DBG_MOD1, flags=SC1)


def confirm_early(p):
    for k, (off, target) in enumerate(((DBG_MOD1, N_MOD1), (DBG_CLR, N_CNT))):
        ok = f"C_early{k}_ok"
        p.v("v_accvgpr_read_b32", V(62), aEarly[k])
        p.v("v_readfirstlane_b32", sp0, V(62))
        p.s("s_cmp_ge_u32", sp0, target)
        p.branch("s_cbranch_scc1", ok)
        spin(p, rDBG, off, target, f"early{k}")
        p.label(ok)
    p.s("s_cmp_lg_u32", S(2), 0)
    p.branch("s_cbranch_scc1", "C_epoch_done")
    p.v("v_mov_b32", V(62), sTag)
    p.s("s_mov_b32", sp0, WS_EPOCH)
    p.s("s_mov_b64", EXEC, 1)
    p.bstore(V(62), vpoll, rWS, soff=sp0, flags=SC1)
    p.s("s_mov_b64", EXEC, -1)
    p.label("C_epoch_done")


def signal(p, kind, sindex, name, pre=None):
    done = f"S_{name}_done"
    p.wait(vm=0)
    if pre:
        p.s("s_cmp_lg_u32", sw, 0)
        p.branch("s_cbranch_scc1", f"S_{name}_pre")
        pre(p)
        p.label(f"S_{name}_pre")
    p.barrier(drain_lds=True)
    p.s("s_cmp_lg_u32", sw, 0)
    p.branch("s_cbranch_scc1", done)
    set_flag(p, kind, sindex, sTag)
    p.label(done)


def add_one(p, srd_, off):
    p.v("v_mov_b32", V(62), 1)
    p.v("v_mov_b32", vpoll, 0)
    p.s("s_mov_b64", EXEC, 1)
    so, io = (off, 0) if not isinstance(off, int) else (0, off)
    t = f"buffer_atomic_add {V(62)}, " + Prog._bt(vpoll, srd_, so, io, SC1)
    p.add(I(t, "vstore", (), units(V(62), vpoll, srd_, so), meta={"data": units(V(62)), "wide": False}))
    p.s("s_mov_b64", EXEC, -1)


SIL = WRING + 2 * SLOT
MPART = SIL + 1024
mreg = V(64, 64)
aC = A(250)


def slab_issue(p, sslab):
    regs = V(128, 8)
    st0, st1, so = st[0], st[1], st[2]
    vt0, vt1, vcoff = regs[0], regs[1], regs[2]
    vd = regs[4:8]
    p.v("v_lshlrev_b32", vcoff, 2, vtid2)
    p.bload(aC, vcoff, rTMP2)
    p.v("v_lshrrev_b32", vt0, 2, vl)
    p.s("s_mov_b32", st0, 6144)
    p.v("v_mul_lo_u32", vt0, vt0, st0)
    p.v("v_and_b32", vt1, 3, vl)
    p.v("v_lshl_add_u32", vd[0], vt1, 4, vt0)
    for j in range(1, 4):
        p.v("v_add_u32", vd[j], j * (16 * 6144 - 1024), vd[0])
    p.s("s_mul_i32", st0, sw, 128 * 6144)
    p.s("s_lshl_b32", st1, sslab, 6)
    p.s("s_add_u32", so, st0, st1)
    for grp in range(2):
        p.s("s_add_u32", M0, sMS, grp * 4096)
        if grp:
            p.s("s_add_u32", so, so, 64 * 6144)
        else:
            p.nop(0)
        for j in range(4):
            p.dma(vd[j], rTMP, so, off=1024 * j, tag=("slab", grp))


def slab_finish(p, T, sslab, name):
    regs = V(136, 64) if name == "slab0" else mreg
    st0, st1 = st[0], st[1]
    vt0, vt1, vt2, vc, vcoff = regs[0], regs[1], regs[2], regs[3], regs[4]
    s0, s1, e0, e1, vpk = regs[12], regs[13], regs[14], regs[15], regs[5]
    p.v("v_lshlrev_b32", vcoff, 2, vtid2)
    p.v("v_accvgpr_read_b32", vc, aC)
    p.v("v_lshlrev_b32", s0, 16, vc)
    p.v("v_and_b32", s1, sHi, vc)
    for s_, e_ in ((s0, e0), (s1, e1)):
        p.v("v_mul_f32", e_, -1.4426950408889634, s_)
    for s_, e_ in ((s0, e0), (s1, e1)):
        p.v("v_exp_f32", e_, e_)
    for s_, e_ in ((s0, e0), (s1, e1)):
        p.v("v_add_f32", e_, 1.0, e_)
    for s_, e_ in ((s0, e0), (s1, e1)):
        p.v("v_rcp_f32", e_, e_)
    for s_, e_ in ((s0, e0), (s1, e1)):
        p.v("v_mul_f32", s_, s_, e_)
    p.v("v_cvt_pk_bf16_f32", vpk, s0, s1)
    p.v("v_add_u32", vt0, SIL, vcoff)
    p.ds_write("ds_write_b32", vt0, vpk)
    vtr_ = regs[7]
    p.v("v_lshrrev_b32", vt1, 2, vl)
    p.v("v_lshlrev_b32", vt1, 6, vt1)
    p.v("v_and_b32", vt0, 3, vl)
    p.v("v_lshl_add_u32", vt0, vt0, 3, vt1)
    p.v("v_add_u32", vtr_, sMS, vt0)
    vb = regs[6]
    p.v("v_lshrrev_b32", vb, 4, vl)
    p.v("v_lshlrev_b32", vb, 3, vb)
    p.s("s_lshl_b32", st0, sw, 8)
    p.s("s_add_u32", st0, st0, SIL)
    p.v("v_add_u32", vb, st0, vb)
    p.barrier()
    if name == "slab0":
        T("s_sil")
    acc_ = regs[16:24]
    bf = regs[24:40]
    af = regs[40:56]
    for ks in range(4):
        b = bf[4 * ks:4 * ks + 4]
        p.ds_read("ds_read_b64", b[0:2], vb, off=64 * ks)
        p.ds_read("ds_read_b64", b[2:4], vb, off=64 * ks + 32)
    for k2 in range(2):
        for ks in (2 * k2, 2 * k2 + 1):
            for t in range(2):
                a = af[8 * (ks & 1) + 4 * t:8 * (ks & 1) + 4 * t + 4]
                for h in range(2):
                    p.ds_read("ds_read_b64_tr_b16", a[2 * h:2 * h + 2], vtr_, off=ks * 2048 + 1024 * h + 32 * t,
                              dep=("slab", ks >> 1))
        for ks in (2 * k2, 2 * k2 + 1):
            for t in range(2):
                d = acc_[4 * t:4 * t + 4]
                p.mfma16(d, af[8 * (ks & 1) + 4 * t:8 * (ks & 1) + 4 * t + 4], bf[4 * ks:4 * ks + 4], d if ks else 0)
    p.v("v_lshrrev_b32", vt1, 4, vl)
    p.v("v_lshlrev_b32", vt1, 4, vt1)
    p.s("s_lshl_b32", st0, sw, 7)
    p.s("s_add_u32", st0, st0, MPART)
    p.v("v_add_u32", vt1, st0, vt1)
    for t in range(2):
        p.ds_write("ds_write_b128", vt1, acc_[4 * t:4 * t + 4], off=64 * t)
    p.barrier()
    if name == "slab0":
        T("s_gemv")
    p.s("s_cmp_lg_u32", sw, 0 if name == "slab0" else 3)
    p.branch("s_cbranch_scc1", f"M_{name}_done")
    r4 = regs[16:20]
    p.v("v_and_b32", vt0, 31, vl)
    p.v("v_lshlrev_b32", vt0, 2, vt0)
    p.v("v_add_u32", vt1, MPART, vt0)
    for w in range(4):
        p.ds_read("ds_read_b32", r4[w], vt1, off=128 * w)
    p.v("v_add_f32", r4[0], r4[0], r4[1])
    p.v("v_add_f32", r4[2], r4[2], r4[3])
    p.v("v_add_f32", r4[0], r4[0], r4[2])
    bf16_round_hi(p, r4[0], r4[0])
    p.v("v_add_f32", r4[1], 1.0, r4[0])
    bf16_round_hi(p, r4[1], r4[1])
    p.s("s_lshr_b32", st0, sslab, 4)
    p.s("s_cmp_eq_u32", st0, 1)
    p.s("s_cselect_b32", st1, 1, 0)
    p.s("s_cmp_eq_u32", st0, 4)
    p.s("s_cselect_b32", st1, 1, st1)
    p.v("v_mov_b32", vt2, st1)
    p.v("v_cmp_eq_u32", VCC, 1, vt2)
    p.v("v_cndmask_b32", r4[0], r4[0], r4[1])
    p.s("s_cmp_lt_u32", st0, 2)
    p.s("s_mov_b32", st1, QSCALE)
    p.s("s_cselect_b32", st1, st1, 1.0)
    p.v("v_mul_f32", r4[0], st1, r4[0])
    p.s("s_mov_b64", EXEC, 0xFFFFFFFF)
    if name == "slab0":
        get_tag(p)
        p.v("v_mov_b32", r4[1], sTag)
        p.v("v_lshlrev_b32", vt0, 1, vt0)
        p.s("s_lshl_b32", st0, sslab, 8)
        p.s("s_add_u32", st0, st0, WS_MODG)
        p.bstore(r4[0:2], vt0, rWS, soff=st0, flags=SC1)
        T("s_st")
    else:
        p.s("s_lshl_b32", st0, sslab, 7)
        p.s("s_add_u32", st0, st0, WS_MOD)
        p.bstore(r4[0], vt0, rWS, soff=st0, flags=SC1)
    p.s("s_mov_b64", EXEC, -1)
    p.label(f"M_{name}_done")


def late_signals(p):
    p.s("s_cmp_lg_u32", sw, 3)
    p.branch("s_cbranch_scc1", "M_late_done")
    p.wait(vm=0)
    add_one(p, rDBG, DBG_CLR)
    p.s("s_sub_u32", sp0, S(2), N_MOD0)
    p.s("s_cmp_ge_u32", sp0, N_MOD1)
    p.branch("s_cbranch_scc1", "M_late_done")
    add_one(p, rDBG, DBG_MOD1)
    p.label("M_late_done")


R_LDS = SH + 65536 - 512


def phase_r_issue(p):
    sqt, shalf, st0, st1, sb0 = st[2], st[3], st[0], st[1], st[4]
    vg, vq, vf = V(2), V(3), V(4)
    vt0, vt1, vt2 = V(5), V(6), V(7)
    p.v("v_and_b32", vq, 7, vl)
    p.v("v_lshrrev_b32", vg, 3, vl)
    p.v("v_and_b32", vg, 3, vg)
    p.v("v_lshrrev_b32", vf, 5, vl)
    p.s("s_lshr_b32", sqt, shg, 1)
    p.s("s_and_b32", shalf, shg, 1)
    vfr = V(8)
    p.v("v_lshlrev_b32", vt0, 4, vg)
    p.v("v_add_u32", vt0, vt0, vq)
    p.s("s_lshl_b32", st0, shalf, 3)
    p.v("v_add_u32", vt0, st0, vt0)
    p.v("v_lshlrev_b32", vt0, 4, vt0)
    p.v("v_lshlrev_b32", vt1, 12, vf)
    p.v("v_add_u32", vfr, vt0, vt1)
    p.s("s_mul_i32", sb0, srb, PART_BLK)
    p.s("s_lshl_b32", st0, sw, 14)
    p.s("s_add_u32", sb0, sb0, st0)
    p.s("s_lshl_b32", st0, sqt, 10)
    p.s("s_add_u32", sb0, sb0, st0)
    p.s("s_add_u32", sb0, sb0, WS_PART)
    vx = V(80, 8)
    vxo = V(9)
    p.s("s_lshl_b32", st0, srb, 6)
    p.s("s_lshl_b32", st1, sqt, 4)
    p.s("s_add_u32", st0, st0, st1)
    p.s("s_lshl_b32", st1, shalf, 3)
    p.s("s_add_u32", st0, st0, st1)
    p.v("v_add_u32", vt0, st0, vq)
    p.v("v_lshlrev_b32", vt0, 10, vt0)
    p.v("v_lshlrev_b32", vt1, 6, vf)
    p.v("v_lshlrev_b32", vt2, 3, vg)
    p.v("v_add3_u32", vxo, vt0, vt1, vt2)
    p.s("s_lshl_b32", st0, sw, 8)
    for i in range(2):
        for h in range(2):
            p.bload(vx[4 * i + 2 * h:4 * i + 2 * h + 2], vxo, rX, soff=st0, off=128 * i + 32 * h)
    vm = V(88, 48)
    vmo = V(10)
    p.v("v_lshlrev_b32", vt1, 7, vf)
    p.v("v_lshlrev_b32", vt2, 4, vg)
    p.v("v_add_u32", vmo, vt1, vt2)
    p.s("s_lshl_b32", st0, sw, 9)
    for k, vec in enumerate((2, 3, 4)):
        p.s("s_add_u32", st1, st0, WS_MOD + vec * 2048)
        for i in range(2):
            for h in range(2):
                o = 16 * k + 8 * i + 4 * h
                p.bload(vm[o:o + 4], vmo, rWS, soff=st1, off=256 * i + 64 * h, flags=SC1)


def phase_r_partials(p):
    st0, sb0 = st[0], st[4]
    vp = V(16, 64)
    vfr = V(8)
    for hg in range(8):
        for i in range(2):
            p.s("s_add_u32", st0, sb0, hg * 32 * PART_BLK + i * 8192)
            p.bload(vp[8 * hg + 4 * i:8 * hg + 4 * i + 4], vfr, rWS, soff=st0, flags=SC1)


def phase_r_compute(p, T, after_sum):
    sqt, st0 = st[2], st[0]
    vq = V(3)
    vt0, vt1 = V(5), V(6)
    vfr = V(8)
    vp, vx, vm = V(16, 64), V(80, 8), V(88, 48)
    a = V(136, 16)
    slo, so = st[1], st[5]
    p.s("s_mov_b32", slo, 0x00003F80)
    p.s("s_mov_b32", sp1, 0x3F800000)
    for hg in range(8):
        for i in range(2):
            for r in range(4):
                src = vp[8 * hg + 4 * i + r]
                for hi, sel in ((0, slo), (1, sp1)):
                    d = a[8 * i + 2 * r + hi]
                    p.v("v_dot2_f32_bf16", d, src, sel, d if hg else 0)
    T("r_sum")
    after_sum()
    p.s("s_lshr_b32", sqt, shg, 1)
    xf = V(152, 16)
    for i in range(2):
        for h in range(2):
            for j in range(2):
                src = vx[4 * i + 2 * h + j]
                p.v("v_lshlrev_b32", xf[8 * i + 4 * h + 2 * j], 16, src)
                p.v("v_and_b32", xf[8 * i + 4 * h + 2 * j + 1], sHi, src)
    for k in range(16):
        p.v("v_fmac_f32", xf[k], a[k], vm[k])
    x1p = V(16, 8)
    for i in range(2):
        for j in range(4):
            p.v("v_cvt_pk_bf16_f32", x1p[4 * i + j], xf[8 * i + 2 * j], xf[8 * i + 2 * j + 1])
    p.s("s_lshl_b32", so, srb, 16)
    p.s("s_lshl_b32", st0, sw, 14)
    p.s("s_add_u32", so, so, st0)
    p.s("s_lshl_b32", st0, sqt, 10)
    p.s("s_add_u32", so, so, st0)
    for i in range(2):
        p.s("s_add_u32", st0, so, WS_X1 + i * 8192)
        p.bstore(x1p[4 * i:4 * i + 4], vfr, rWS, soff=st0, flags=SC1)
    for i in range(2):
        for j in range(4):
            p.v("v_lshlrev_b32", xf[8 * i + 2 * j], 16, x1p[4 * i + j])
            p.v("v_and_b32", xf[8 * i + 2 * j + 1], sHi, x1p[4 * i + j])
    s1, s2 = V(24), V(25)
    p.v("v_add_f32", s1, xf[0], xf[1])
    p.v("v_mul_f32", s2, xf[0], xf[0])
    p.v("v_fmac_f32", s2, xf[1], xf[1])
    for k in range(2, 16):
        p.v("v_add_f32", s1, s1, xf[k])
        p.v("v_fmac_f32", s2, xf[k], xf[k])
    for s_ in (s1, s2):
        p.v("v_add_f32_dpp", s_, s_, s_, mods="row_ror:8 row_mask:0xf bank_mask:0xf")
    for op in ("v_permlane16_swap_b32", "v_permlane32_swap_b32"):
        for s_, t_ in ((s1, vt0), (s2, vt1)):
            p.v("v_mov_b32", t_, s_)
        for s_, t_ in ((s1, vt0), (s2, vt1)):
            p.v(op, s_, t_)
        for s_, t_ in ((s1, vt0), (s2, vt1)):
            p.v("v_add_f32", s_, s_, t_)
    p.v("v_lshlrev_b32", vt0, 3, vq)
    p.v("v_add_u32", vt0, R_LDS, vt0)
    p.s("s_lshl_b32", st0, sw, 6)
    p.v("v_add_u32", vt1, st0, vt0)
    s12 = V(26, 2)
    p.v("v_mov_b32", s12[0], s1)
    p.v("v_mov_b32", s12[1], s2)
    p.ds_write("ds_write_b64", vt1, s12)
    p.barrier()
    rr = V(28, 8)
    for w in range(4):
        p.ds_read("ds_read_b64", rr[2 * w:2 * w + 2], vt0, off=64 * w)
    p.v("v_add_f32", s1, rr[0], rr[2])
    p.v("v_add_f32", s2, rr[1], rr[3])
    p.v("v_add_f32", rr[4], rr[4], rr[6])
    p.v("v_add_f32", rr[5], rr[5], rr[7])
    p.v("v_add_f32", s1, s1, rr[4])
    p.v("v_add_f32", s2, s2, rr[5])
    mu, rs2, nm2 = V(36), V(38, 2), V(40, 2)
    p.v("v_mul_f32", mu, 1.0 / 512, s1)
    p.v("v_mul_f32", s2, 1.0 / 512, s2)
    p.v("v_fma_f32", s2, Neg(mu), mu, s2)
    p.v("v_max_f32", s2, 0, s2)
    p.v("v_add_f32", s2, 1e-5, s2)
    p.v("v_rsq_f32", rs2[0], s2)
    p.v("v_mul_f32_e64", nm2[0], Neg(mu), rs2[0])
    p.v("v_mov_b32", rs2[1], rs2[0])
    p.v("v_mov_b32", nm2[1], nm2[0])
    for k in range(8):
        p.v("v_pk_fma_f32", xf[2 * k:2 * k + 2], xf[2 * k:2 * k + 2], rs2, nm2)
    for k in range(8):
        p.v("v_pk_fma_f32", xf[2 * k:2 * k + 2], xf[2 * k:2 * k + 2], vm[32 + 2 * k:34 + 2 * k], vm[16 + 2 * k:18 + 2 * k])
    h2p = V(44, 8)
    for i in range(2):
        for j in range(4):
            p.v("v_cvt_pk_bf16_f32", h2p[4 * i + j], xf[8 * i + 2 * j], xf[8 * i + 2 * j + 1])
        p.s("s_add_u32", st0, so, WS_H2 + i * 8192)
        p.bstore(h2p[4 * i:4 * i + 4], vfr, rWS, soff=st0, flags=SC1)


ROWB = 2752
sDrb, sDcg, sDact, sDH = S(40 + 12), S(40 + 13), S(40 + 14), S(40 + 15)
sErb, sEcb, sEact, sEwd = S(56), S(57), S(58), S(59)
sDrot = S(91)


def d_ids(p):
    st0, st1 = st[0], st[1]
    p.s("s_and_b32", st0, shg, 1)
    p.s("s_lshl_b32", st0, st0, 2)
    p.s("s_and_b32", st1, srb, 3)
    p.s("s_add_u32", sDrb, st0, st1)
    p.s("s_lshr_b32", st0, shg, 1)
    p.s("s_mul_i32", st1, st0, 7)
    p.s("s_add_u32", st1, st1, 1)
    p.s("s_cmp_eq_u32", st0, 0)
    p.s("s_cselect_b32", sDcg, 0, st1)
    p.s("s_cselect_b32", st0, 8, 7)
    p.s("s_lshr_b32", st1, srb, 2)
    p.s("s_add_u32", sDcg, sDcg, st1)
    p.s("s_cmp_lt_u32", st1, st0)
    p.s("s_cselect_b32", sDact, 1, 0)
    p.s("s_lshl_b32", sDrot, st1, 1)


def d_weights(p):
    st0, st1 = st[0], st[1]
    vt_ = V(170, 5)
    vd = V(176, 3)
    smag = S(61)
    p.s("s_cmp_eq_u32", sw, 0)
    p.branch("s_cbranch_scc1", "M_dw_done")
    p.s("s_mov_b32", smag, 0xAAAB)
    p.s("s_mov_b32", st0, ROWB)
    for k in range(3):
        p.v("v_add_u32", vt_[0], 64 * k, vl)
        p.v("v_mul_lo_u32", vt_[1], vt_[0], smag)
        p.v("v_lshrrev_b32", vt_[1], 18, vt_[1])
        p.v("v_mul_u32_u24", vt_[2], 6, vt_[1])
        p.v("v_sub_u32", vt_[2], vt_[0], vt_[2])
        p.v("v_lshlrev_b32", vt_[2], 4, vt_[2])
        p.v("v_mul_lo_u32", vt_[1], vt_[1], st0)
        p.v("v_add_u32", vd[k], vt_[1], vt_[2])
        if k:
            p.v("v_subrev_u32", vd[k], 1024 * k, vd[k])
    sPos, sCol = S(62), S(63)
    p.s("s_mul_i32", sCol, sDcg, 96)
    p.s("s_sub_u32", sPos, sw, 1)
    p.label("M_dw_loop")
    p.s("s_add_u32", st0, sPos, sDrot)
    p.s("s_and_b32", st0, st0, 15)
    p.s("s_mul_i32", st0, st0, 32 * ROWB)
    p.s("s_add_u32", st0, st0, sCol)
    p.s("s_mul_i32", st1, sPos, 3072)
    for m, r_ in enumerate((rG, rU)):
        p.s("s_add_u32", M0, st1, m * 49152)
        p.nop(0)
        for k in range(3):
            p.dma(vd[k], r_, st0, off=1024 * k, tag="dw")
    p.s("s_add_u32", sPos, sPos, 3)
    p.s("s_cmp_lt_u32", sPos, 16)
    p.add(I("s_cbranch_scc1 M_dw_loop", "salu"))
    p.wait(vm=0)
    p.label("M_dw_done")


E_RING = SH
E_NSLOT = 4


def phase_d(p, T, e_prefetch):
    st0, st1 = st[0], st[1]
    sH, sAct = st[2], st[3]
    vlin_ = V(2)
    vt_ = V(3, 5)
    vtr_ = V(12, 2)
    p.v("v_lshlrev_b32", vlin_, 4, vl)
    p.s("s_lshl_b32", sH, sDrb, 2)
    p.s("s_add_u32", sH, sH, sw)
    p.s("s_mul_i32", sAct, sH, ACT_RB)
    p.s("s_lshl_b32", sH, sH, 16)
    p.s("s_add_u32", sH, sH, WS_H2)
    p.s("s_mul_i32", st0, sDcg, 6144)
    p.s("s_add_u32", sAct, sAct, st0)
    p.s("s_add_u32", sAct, sAct, WS_ACT)
    NB = 4
    vB_ = V(128, 16 * NB)

    def bfr(ks, qt):
        o = 16 * (ks % NB) + 4 * qt
        return vB_[o:o + 4]

    sK_ = S(63)

    def load_b(ks):
        q = Prog()
        if ks == 0:
            q.s("s_lshl_b32", sK_, sDrot, 12)
        else:
            q.s("s_add_u32", sK_, sK_, 4096)
            q.s("s_and_b32", sK_, sK_, 0xFFFF)
        q.s("s_add_u32", st1, sH, sK_)
        for qt in range(4):
            q.bload(bfr(ks, qt), vlin_, rWS, soff=st1, off=1024 * qt, flags=SC1)
        return q.ins

    p.v("v_lshrrev_b32", vt_[0], 2, vl)
    p.v("v_mul_u32_u24", vt_[0], 96, vt_[0])
    p.v("v_and_b32", vt_[1], 3, vl)
    p.v("v_lshlrev_b32", vt_[1], 3, vt_[1])
    p.v("v_add_u32", vtr_[0], vt_[0], vt_[1])
    p.v("v_add_u32", vtr_[1], 49152, vtr_[0])
    accd = V(16, 96)
    vA = V(112, 16)
    vz_ = V(196, 4)
    for i in range(4):
        p.v("v_mov_b32", vz_[i], 0)
    d_weights(p)
    p.s("s_lshl_b32", st[4], sDrb, 5)
    poll_flags(p, F_H2, st[4], 32, "h2")
    T("d_go")
    for ks in range(NB):
        for x in load_b(ks):
            p.add(x)
    for i in range(6):
        zero16(p, accd[16 * i:16 * i + 16], vz_)

    def accr(m, t, qt):
        o = 48 * m + 16 * t + 4 * qt
        return accd[o:o + 4]

    def afr(i):
        return vA[4 * (i % 4):4 * (i % 4) + 4]

    def rd_a(ks, f, base):
        q = Prog()
        m, t = f // 3, f % 3
        for h in range(2):
            q.ds_read("ds_read_b64_tr_b16", afr(6 * ks + f)[2 * h:2 * h + 2], vtr_[m],
                      off=(ks - base) * 3072 + 1536 * h + 32 * t)
        return q.ins

    for f in range(2):
        for x in rd_a(0, f, 0):
            p.add(x)
    for it in range(4):
        mark(p, "gd", it)
        for ks in range(4 * it, 4 * it + 4):
            for f in range(6):
                m, t = f // 3, f % 3
                nf, nks = (f + 2) % 6, ks + (f + 2) // 6
                pre = rd_a(nks, nf, 4 * it) if nks < 16 else []
                for qt in range(4):
                    d = accr(m, t, qt)
                    p.mfma16(d, afr(6 * ks + f), bfr(ks, qt), d)
                    if qt < 2 and pre:
                        p.add(pre[qt])
                    if f == 5 and qt == 3 and ks + NB < 16:
                        for x in load_b(ks + NB):
                            p.add(x)
        if it < 3:
            p.v("v_add_u32", vtr_[0], 4 * 3072, vtr_[0])
            p.v("v_add_u32", vtr_[1], 4 * 3072, vtr_[1])
        loop_dec(p)
        loop_branch(p)
    mark(p, "gd", None)
    T("d_mma")
    o = V(128, 32)
    for qt in range(4):
        for t in range(3):
            g_, u_ = accr(0, t, qt), accr(1, t, qt)
            for r in range(4):
                p.v("v_mul_f32", g_[r], g_[r], u_[r])
        full = o[8 * qt:8 * qt + 4]
        half = o[8 * qt + 4:8 * qt + 6]
        for t in range(3):
            g_ = accr(0, t, qt)
            dst = full[2 * t:2 * t + 2] if t < 2 else half
            p.v("v_cvt_pk_bf16_f32", dst[0], g_[0], g_[1])
            p.v("v_cvt_pk_bf16_f32", dst[1], g_[2], g_[3])
        p.bstore(full, vlin_, rWS, soff=sAct, off=1024 * qt, flags=SC1)
    vh = vt_[0]
    p.v("v_lshlrev_b32", vh, 3, vl)
    p.s("s_add_u32", st0, sAct, 4096)
    p.s("s_cmp_eq_u32", sDcg, 28)
    p.branch("s_cbranch_scc1", "D_skip_half")
    for qt in range(4):
        p.bstore(o[8 * qt + 4:8 * qt + 6], vh, rWS, soff=st0, off=512 * qt, flags=SC1)
    p.label("D_skip_half")
    p.s("s_lshl_b32", st[4], sDrb, 5)
    p.s("s_add_u32", st[4], st[4], sDcg)
    signal(p, F_ACT, st[4], "act")


eRing, eSa, eSd = S(60), S(61), S(62)
eVd, eVtr, eLin, eLin8 = V(232, 2), V(234, 4), V(238), V(239)
eAcc, eA, eB = V(16, 64), V(80, 16), V(96, 16 * E_NSLOT)


def e_setup(p):
    st0, st1 = st[0], st[1]
    vt_ = V(240, 4)
    p.v("v_lshlrev_b32", eLin, 4, vl)
    p.v("v_lshlrev_b32", eLin8, 3, vl)
    p.s("s_lshl_b32", st0, shg, 2)
    p.s("s_lshr_b32", st1, S(2), 6)
    p.s("s_add_u32", sErb, st0, st1)
    p.s("s_and_b32", sEcb, srb, 7)
    p.s("s_lshl_b32", eRing, sw, 14)
    p.s("s_add_u32", eRing, eRing, E_RING)
    p.v("v_lshrrev_b32", vt_[0], 3, vl)
    p.v("v_lshlrev_b32", vt_[1], 10, vt_[0])
    p.v("v_lshrrev_b32", vt_[0], 1, vt_[0])
    p.v("v_and_b32", vt_[0], 3, vt_[0])
    p.v("v_lshlrev_b32", vt_[0], 1, vt_[0])
    p.v("v_and_b32", vt_[2], 7, vl)
    p.v("v_xor_b32", vt_[0], vt_[0], vt_[2])
    p.v("v_lshlrev_b32", vt_[0], 4, vt_[0])
    p.v("v_add_u32", eVd[0], vt_[0], vt_[1])
    p.v("v_add_u32", eVd[1], 8 * 1024 - 1024, eVd[0])
    p.v("v_lshrrev_b32", vt_[0], 2, vl)
    p.v("v_lshlrev_b32", vt_[1], 7, vt_[0])
    p.v("v_lshrrev_b32", vt_[0], 1, vt_[0])
    p.v("v_and_b32", vt_[0], 3, vt_[0])
    p.v("v_lshlrev_b32", vt_[0], 1, vt_[0])
    p.v("v_and_b32", vt_[2], 3, vl)
    p.v("v_lshrrev_b32", vt_[3], 1, vt_[2])
    p.v("v_xor_b32", vt_[0], vt_[0], vt_[3])
    p.v("v_lshlrev_b32", vt_[0], 4, vt_[0])
    p.v("v_and_b32", vt_[2], 1, vt_[2])
    p.v("v_lshlrev_b32", vt_[2], 3, vt_[2])
    p.v("v_add3_u32", eVtr[0], vt_[0], vt_[1], vt_[2])
    p.v("v_add_u32", eVtr[0], eRing, eVtr[0])
    for t in range(1, 4):
        p.v("v_xor_b32", eVtr[t], t << 5, eVtr[0])
    p.s("s_mul_i32", sEact, sErb, ACT_RB)
    p.s("s_mul_i32", st0, sw, 2 * 6144)
    p.s("s_add_u32", sEact, sEact, st0)
    p.s("s_add_u32", sEact, sEact, WS_ACT)
    p.s("s_mul_i32", sEwd, sw, 96 * 1024)
    p.s("s_lshl_b32", st0, sEcb, 7)
    p.s("s_add_u32", sEwd, sEwd, st0)


def e_issue_w(q, n, kind, pair_off):
    doff = pair_off * 4 * 96 * 1024
    slot = (n % E_NSLOT) * 4096
    if kind < 2:
        rows = [doff + (48 * kind) * 1024, doff + (48 * kind + 16) * 1024]
    else:
        rows = [doff + 32 * 1024, doff + (48 + 32) * 1024]
    for hf in range(2):
        q.s("s_add_u32", eSd, sEwd, rows[hf])
        q.s("s_add_u32", M0, eRing, slot + 2048 * hf)
        q.nop(0)
        for j in range(2):
            q.dma(eVd[j], rD, eSd, off=1024 * j, tag=("e", n), ovw=("e", n - E_NSLOT))


def e_bfr(n, qt):
    o = 16 * (n % E_NSLOT) + 4 * qt
    return eB[o:o + 4]


def e_issue_b(q, n, kind, pair_off):
    aoff = pair_off * 8 * 6144
    if kind < 2:
        q.s("s_add_u32", eSa, sEact, aoff + kind * 6144)
        for qt in range(4):
            q.bload(e_bfr(n, qt), eLin, rWS, soff=eSa, off=1024 * qt, flags=SC1)
    else:
        for hf in range(2):
            q.s("s_add_u32", eSa, sEact, aoff + hf * 6144 + 4096)
            for qt in range(4):
                q.bload(e_bfr(n, qt)[2 * hf:2 * hf + 2], eLin8, rWS, soff=eSa, off=512 * qt, flags=SC1)


def phase_e(p, T):
    st0, st1 = st[0], st[1]
    vt_ = V(240, 4)

    def accr(t, qt):
        return eAcc[16 * t + 4 * qt:16 * t + 4 * qt + 4]

    def afr(i):
        return eA[4 * (i % 4):4 * (i % 4) + 4]

    def rd_a(n, t):
        q = Prog()
        for h in range(2):
            q.ds_read("ds_read_b64_tr_b16", afr(4 * n + t)[2 * h:2 * h + 2], eVtr[t],
                      off=(n % E_NSLOT) * 4096 + 2048 * h, dep=("e", n))
        return q.ins

    def step(n, first, nxt, have_next):
        for t in range(4):
            tn, nn = (t + 2) % 4, n + (t + 2) // 4
            pre = rd_a(nn, tn) if (nn == n or have_next) else []
            for qt in range(4):
                d = accr(t, qt)
                p.mfma16(d, afr(4 * n + t), e_bfr(n, qt), d if not first else 0)
                if qt < 2 and pre:
                    p.add(pre[qt])
        for x in nxt:
            p.add(x)

    x1 = V(160, 8)
    gb = V(168, 16)
    p.s("s_lshl_b32", st[4], shg, 5)
    poll_flags(p, F_ACT, st[4], 29, "act")
    T("e_go")
    for n in range(E_NSLOT):
        e_issue_b(p, n, n % 3, n // 3)
    p.s("s_lshl_b32", st0, sErb, 16)
    p.s("s_lshl_b32", st1, sEcb, 13)
    p.s("s_add_u32", st0, st0, st1)
    p.s("s_lshl_b32", st1, sw, 10)
    p.s("s_add_u32", st0, st0, st1)
    p.s("s_add_u32", st0, st0, WS_X1)
    p.bload(x1[0:4], eLin, rWS, soff=st0, flags=SC1)
    p.s("s_add_u32", st0, st0, 4096)
    p.bload(x1[4:8], eLin, rWS, soff=st0, flags=SC1)
    p.v("v_lshrrev_b32", vt_[1], 4, vl)
    p.v("v_lshlrev_b32", vt_[1], 4, vt_[1])
    p.s("s_lshl_b32", st0, sEcb, 8)
    p.s("s_add_u32", st0, st0, WS_MOD + 5 * 2048)
    for t in range(4):
        p.bload(gb[4 * t:4 * t + 4], vt_[1], rWS, soff=st0, off=64 * t, flags=SC1)
    for t in range(2):
        for x in rd_a(0, t):
            p.add(x)
    for n in range(9):
        q = Prog()
        m = n + E_NSLOT
        if m < 9:
            e_issue_w(q, m, m % 3, m // 3)
            e_issue_b(q, m, m % 3, m // 3)
        step(n, n == 0, q.ins, n < 8)
    T("e_main")
    p.s("s_cmp_lt_u32", sw, 2)
    p.branch("s_cbranch_scc1", "E_four")
    p.s("s_cmp_eq_u32", sw, 3)
    p.branch("s_cbranch_scc1", "E_red")
    n = 9
    p.s("s_sub_u32", sEact, sEact, 2 * 2 * 6144 - 28 * 6144)
    p.s("s_sub_u32", sEwd, sEwd, 2 * 96 * 1024 - 1344 * 1024)
    e_issue_w(p, n, 0, 0)
    e_issue_b(p, n, 0, 0)
    for t in range(2):
        for x in rd_a(n, t):
            p.add(x)
    step(n, False, [], False)
    p.branch("s_branch", "E_red")
    p.label("E_four")
    for n in range(9, 12):
        e_issue_w(p, n, n % 3, 3)
        e_issue_b(p, n, n % 3, 3)
    for t in range(2):
        for x in rd_a(9, t):
            p.add(x)
    for n in range(9, 12):
        step(n, False, [], n < 11)
    p.label("E_red")
    T("e_tail")
    p.wait(vm=0, lgkm=0)
    p.s("s_lshl_b32", st0, sw, 12)
    p.v("v_add_u32", vt_[0], st0, eLin)
    for qt in range(4):
        for t in range(4):
            p.ds_write("ds_write_b128", vt_[0], accr(t, qt), off=qt * 16384 + t * 1024)
    p.barrier()
    red = V(96, 64)
    p.s("s_lshl_b32", st0, sw, 14)
    p.v("v_add_u32", vt_[0], st0, eLin)
    for w in range(4):
        for t in range(4):
            p.ds_read("ds_read_b128", red[16 * w + 4 * t:16 * w + 4 * t + 4], vt_[0], off=w * 4096 + t * 1024)
    for k in range(8):
        p.v("v_pk_add_f32", red[2 * k:2 * k + 2], red[2 * k:2 * k + 2], red[16 + 2 * k:18 + 2 * k])
        p.v("v_pk_add_f32", red[32 + 2 * k:34 + 2 * k], red[32 + 2 * k:34 + 2 * k], red[48 + 2 * k:50 + 2 * k])
    for k in range(8):
        p.v("v_pk_add_f32", red[2 * k:2 * k + 2], red[2 * k:2 * k + 2], red[32 + 2 * k:34 + 2 * k])
    xf = V(184, 16)
    for j in range(2):
        for h in range(2):
            for i in range(2):
                src = x1[4 * j + 2 * h + i]
                k = 8 * j + 4 * h + 2 * i
                p.v("v_lshlrev_b32", xf[k], 16, src)
                p.v("v_and_b32", xf[k + 1], sHi, src)
    for k in range(16):
        p.v("v_fmac_f32", xf[k], red[k], gb[k])
    op = V(200, 8)
    for k in range(8):
        p.v("v_cvt_pk_bf16_f32", op[k], xf[2 * k], xf[2 * k + 1])
    p.v("v_and_b32", vt_[0], 15, vl)
    p.v("v_lshlrev_b32", vt_[0], 10, vt_[0])
    p.v("v_lshrrev_b32", vt_[1], 4, vl)
    p.v("v_lshlrev_b32", vt_[1], 3, vt_[1])
    p.v("v_add_u32", vt_[0], vt_[0], vt_[1])
    p.s("s_lshl_b32", st0, sErb, 6)
    p.s("s_lshl_b32", st1, sw, 4)
    p.s("s_add_u32", st0, st0, st1)
    p.s("s_lshl_b32", st0, st0, 10)
    p.s("s_lshl_b32", st1, sEcb, 7)
    p.s("s_add_u32", st0, st0, st1)
    for t in range(4):
        p.bstore(op[2 * t:2 * t + 2], vt_[0], rOut, soff=st0, off=32 * t, flags=SC1)


aTouch = A(240, 8)


CODE_LINES = 24


def code_prefetch(p):
    p.s("s_cmp_lg_u32", sw, 1)
    p.branch("s_cbranch_scc1", "M_no_codepf")
    sPC = S(92, 2)
    p.add(I(f"s_getpc_b64 {sPC}", "salu", units(sPC), ()))
    p.label("M_pc")
    p.add(I(f"s_sub_u32 {sPC[0]}, {sPC[0]}, M_pc-{KNAME}", "salu", units(sPC[0]), units(sPC[0])))
    p.add(I(f"s_subb_u32 {sPC[1]}, {sPC[1]}, 0", "salu", units(sPC[1]), units(sPC[1])))
    p.s("s_mul_i32", st[1], srb, CODE_LINES)
    p.v("v_min_u32", vt[0], CODE_LINES - 1, vl)
    p.v("v_add_u32", vt[0], st[1], vt[0])
    p.v("v_lshlrev_b32", vt[0], 6, vt[0])
    p.v("v_min_u32", vt[0], f"(B_end-{KNAME})", vt[0])
    p.add(I(f"global_load_dword {A(254)}, {vt[0]}, {sPC}", "vload", units(A(254)), units(vt[0], sPC)))
    p.label("M_no_codepf")


def get_tag(p):
    p.v("v_accvgpr_read_b32", V(62), aT)
    p.v("v_readfirstlane_b32", sTag, V(62))
    p.s("s_add_u32", sTag, sTag, 1)


def touch_streams(p, ptr2):
    p.s("s_cmp_eq_u32", sw, 0)
    p.branch("s_cbranch_scc1", "M_no_touch")
    vo = vt[6]
    p.v("v_lshlrev_b32", vo, 6, vl)
    p.s("s_cmp_lt_u32", srb, 16)
    p.s("s_cselect_b32", rTMP[0], ptr2["k"][0], ptr2["v"][0])
    p.s("s_cselect_b32", rTMP[1], ptr2["k"][1], ptr2["v"][1])
    p.s("s_lshl_b32", st[1], shg, 21)
    p.s("s_add_u32", st[1], st[1], 1536 * 256)
    p.s("s_add_u32", rTMP[0], rTMP[0], st[1])
    p.s("s_addc_u32", rTMP[1], rTMP[1], 0)
    p.s("s_mov_b32", rTMP[2], 4 << 19)
    p.s("s_mov_b32", rTMP[3], 0x20000)
    p.s("s_lshl_b32", st[2], srot, 13)
    for m in range(3 if KVTOUCH else 0):
        p.s("s_add_u32", st[1], sw, 3 * m - 1)
        p.s("s_lshr_b32", st[3], st[1], 1)
        p.s("s_lshl_b32", st[3], st[3], 19)
        p.s("s_and_b32", st[1], st[1], 1)
        p.s("s_lshl_b32", st[1], st[1], 12)
        p.s("s_add_u32", st[1], st[1], st[3])
        p.s("s_add_u32", st[1], st[1], st[2])
        p.bload(aTouch[m], vo, rTMP, soff=st[1])
    srd(p, rTMP, ptr2["wd"], SZ["wd"])
    p.s("s_lshl_b32", st[1], S(2), 12)
    p.s("s_cmp_eq_u32", sw, 3)
    p.s("s_cselect_b32", st[2], st[1], SZ["wd"])
    p.bload(aTouch[3], vo, rTMP, soff=st[2])
    p.s("s_add_u32", st[2], st[2], 256 * 4096)
    p.bload(aTouch[4], vo, rTMP, soff=st[2])
    p.label("M_no_touch")


def touch_d_weights(p):
    p.s("s_cmp_eq_u32", sw, 0)
    p.branch("s_cbranch_scc1", "M_no_touch_d")
    p.s("s_cmp_eq_u32", sDact, 0)
    p.branch("s_cbranch_scc1", "M_no_touch_d")
    vo = V(170)
    p.v("v_lshrrev_b32", V(171), 1, vl)
    p.s("s_mov_b32", st[0], ROWB)
    p.v("v_mul_lo_u32", V(171), V(171), st[0])
    p.v("v_and_b32", vo, 1, vl)
    p.v("v_lshlrev_b32", vo, 6, vo)
    p.v("v_add_u32", vo, vo, V(171))
    p.s("s_and_b32", st[0], srb, 3)
    p.s("s_mul_i32", st[0], st[0], 128 * ROWB)
    p.s("s_mul_i32", st[1], sDcg, 96)
    p.s("s_add_u32", st[0], st[0], st[1])
    p.s("s_sub_u32", st[1], sw, 1)
    p.s("s_mul_i32", st[1], st[1], 32 * ROWB)
    p.s("s_add_u32", st[1], st[1], st[0])
    p.bload(aTouch[0], vo, rG, soff=st[1])
    p.bload(aTouch[1], vo, rU, soff=st[1])
    p.s("s_add_u32", st[1], st[0], 3 * 32 * ROWB)
    p.s("s_cmp_eq_u32", sw, 3)
    p.s("s_cselect_b32", st[1], st[1], SZ["wg"])
    p.bload(aTouch[2], vo, rG, soff=st[1])
    p.bload(aTouch[3], vo, rU, soff=st[1])
    p.label("M_no_touch_d")


DBGSTAMPS = ["rt0", "ln", "h_ready", "q_done", "att_loop", "o_done", "r_go", "r_done", "d_go", "d_mma", "e_go", "e_main", "rt1"]
DBGWG = 128


def gen_mega(diag=False):
    p = Prog()
    T = Stamps(p, diag, vreg=V(0), early=0, only=DBGSTAMPS if diag == "dbg" else None)
    p.s("s_cmp_ge_u32", S(2), 256)
    p.branch("s_cbranch_scc1", "B_end")
    p.v("v_mov_b32", vtid2, V(0))
    T("rt0", True)
    T("start")
    ptr = {k: S(52 + 2 * i, 2) for i, k in enumerate(["x", "ws", "dbg", "wmod", "c", "wq"])}
    for k in ptr:
        p.s_load(ptr[k], S(0, 2), ARG[k])
    p.v("v_lshrrev_b32", vt[0], 6, vtid2)
    p.v("v_and_b32", vl, 63, vtid2)
    p.v("v_readfirstlane_b32", sw, vt[0])
    p.s("s_and_b32", shg, S(2), 7)
    p.s("s_lshr_b32", srb, S(2), 3)
    p.s("s_and_b32", srot, srb, 15)
    p.s("s_lshl_b32", shead, shg, 2)
    p.s("s_mov_b32", sHi, 0xFFFF0000)
    vq, vg = vtmp[0], vtmp[1]
    p.v("v_and_b32", vq, 15, vl)
    p.v("v_lshrrev_b32", vg, 4, vl)
    p.v("v_lshlrev_b32", vlin, 4, vl)
    p.v("v_mov_b32", vpoll, 0)
    p.s("s_add_u32", shead, shead, sw)
    p.s("s_mul_i32", sMW, sw, WRING)
    p.s("s_lshl_b32", sMS, sw, 14)
    p.s("s_add_u32", sMS, sMS, SH)
    vxo = vtmp[2]
    p.s("s_lshl_b32", st[0], srb, 6)
    p.s("s_lshl_b32", st[1], sw, 4)
    p.s("s_add_u32", st[0], st[0], st[1])
    p.v("v_add_u32", vxo, st[0], vq)
    p.v("v_lshlrev_b32", vxo, 10, vxo)
    p.v("v_lshl_add_u32", vxo, vg, 4, vxo)
    p.wait(lgkm=0)
    srd(p, rX, ptr["x"], SZ["x"])
    srd(p, rWS, ptr["ws"], WS_DIAG_END if diag == "diag" else WS_END)
    srd(p, rDBG, ptr["dbg"], 256)
    srd(p, rWQ, ptr["wq"], SZ["wq"])
    ptr2 = {k: S(64 + 12 + 2 * i, 2) for i, k in enumerate(["k", "v", "wo", "wg", "wu", "wd", "out"])}
    for k in ptr2:
        p.s_load(ptr2[k], S(0, 2), ARG[k])
    p.s("s_mov_b32", st[0], WS_EPOCH)
    p.bload(aT, vpoll, rWS, soff=st[0], flags=SC1)
    if CODEPF:
        code_prefetch(p)
    srd(p, rTMP, ptr["wmod"], SZ["wmod"])
    srd(p, rTMP2, ptr["c"], SZ["c"])
    p.s("s_cmp_ge_u32", S(2), N_MOD0 + N_MOD1 if SLAB1EARLY else N_MOD0)
    p.branch("s_cbranch_scc1", "M_no_slab")
    slab_issue(p, S(2))
    p.label("M_no_slab")
    T("s_iss")
    p.wait(lgkm=0)
    bc_setup(p, ptr2)
    vone, vz = vtmp[4:8], vtmp[8:12]
    dma_voffs(p, vdQ, 8192, "n8", 8)
    p.s("s_lshl_b32", sA, srot, 18)
    p.s("s_lshl_b32", st[1], shead, 8)
    p.s("s_add_u32", sA, sA, st[1])
    vX = V(64, 64)
    sX = S(91)

    def x_loads(lo, hi):
        for n in range(lo, hi):
            p.bload(vX[4 * n:4 * n + 4], vxo, rX, soff=sX)
            if n < 15:
                p.s("s_add_u32", sX, sX, 64)
                p.s("s_and_b32", sX, sX, 0x3FF)

    p.s("s_lshl_b32", sX, srot, 6)
    p.s("s_cmp_ge_u32", S(2), N_MOD0)
    p.branch("s_cbranch_scc1", "M_no_slab_f")
    slab_finish(p, T, S(2), "slab0")
    p.barrier()
    p.label("M_no_slab_f")
    x_loads(0, 16)
    if TOUCH == "early":
        p.s("s_cmp_lt_u32", S(2), N_MOD0 + N_MOD1)
        p.branch("s_cbranch_scc1", "M_skip_touch")
        touch_streams(p, ptr2)
        p.label("M_skip_touch")
    T("issued")
    if not SLAB1EARLY:
        p.s("s_sub_u32", st[5], S(2), N_MOD0)
        p.s("s_cmp_ge_u32", st[5], N_MOD1)
        p.branch("s_cbranch_scc1", "M_no_slab1i")
        slab_issue(p, S(2))
        p.label("M_no_slab1i")
    dma_now(p, "wq", 0)
    T("setup")

    gram, rsum = vtmp[12:16], A(232, 4)
    for n in range(16):
        xs = vX[4 * n:4 * n + 4]
        p.mfma16(gram, xs, xs, gram if n else 0)
        p.mfma16(rsum, vone, xs, rsum if n else 0)
    rs0 = vt[6]
    p.v("v_accvgpr_read_b32", rs0, rsum[0])
    mu, rs2, nm2 = vt[7], V(50, 2), V(52, 2)
    row_stats(p, gram, [rs0], vq, vg, mu, rs2[0], nm2[0], vt[0], vt[1])
    p.v("v_mov_b32", rs2[1], rs2[0])
    p.v("v_mov_b32", nm2[1], nm2[0])
    vY = V(128, 128)
    for n in range(16):
        xs = vX[4 * n:4 * n + 4]
        y = vY[8 * n:8 * n + 8]
        for i in range(4):
            p.v("v_lshlrev_b32", y[2 * i], 16, xs[i])
            p.v("v_and_b32", y[2 * i + 1], sHi, xs[i])
        for i in range(4):
            p.v("v_pk_fma_f32", y[2 * i:2 * i + 2], y[2 * i:2 * i + 2], rs2, nm2)
    T("ln")
    p.s("s_sub_u32", st[5], S(2), N_MOD0)
    p.s("s_cmp_ge_u32", st[5], N_MOD1)
    p.branch("s_cbranch_scc1", "M_no_slab1")
    slab_finish(p, T, S(2), "slab1")
    p.label("M_no_slab1")
    vts = vt[5]
    p.s("s_lshl_b32", st[1], sw, 2)
    p.s("s_add_u32", st[1], st[1], srot)
    p.v("v_add_u32", vt[0], st[1], vg)
    p.v("v_and_b32", vt[0], 15, vt[0])
    p.v("v_lshlrev_b32", vt[0], 8, vt[0])
    p.v("v_lshrrev_b32", vt[1], 3, vq)
    p.v("v_lshl_add_u32", vt[0], vt[1], 12, vt[0])
    p.v("v_and_b32", vt[1], 7, vq)
    p.v("v_lshl_add_u32", vts, vt[1], 5, vt[0])
    get_tag(p)
    g8 = V(64, 8)
    p.s("s_mov_b32", sp1, 0)
    p.s("s_mov_b32", st[1], WS_MODG)
    p.label("P_modg")
    p.bload(g8[0:4], vts, rWS, soff=st[1], flags=SC1)
    p.bload(g8[4:8], vts, rWS, soff=st[1], off=16, flags=SC1)
    p.v("v_cmp_eq_u32", VCC, sTag, g8[1])
    p.s("s_mov_b64", sexec, VCC)
    for k in (3, 5, 7):
        p.v("v_cmp_eq_u32", VCC, sTag, g8[k])
        p.s("s_and_b64", sexec, sexec, VCC)
    p.add(I(f"s_cmp_eq_u64 {sexec}, exec", "salu", (), units(sexec)))
    p.branch("s_cbranch_scc1", "P_modg_done")
    p.s("s_add_u32", sp1, sp1, 1)
    p.s("s_cmp_lt_u32", sp1, 0x40000)
    p.raw("s_sleep 2")
    p.add(I("s_cbranch_scc1 P_modg", "salu"))
    p.label("P_modg_done")
    T("mod0")
    if TOUCH == "v1":
        dma_now(p, "wq", 1)
        touch_streams(p, ptr2)
    p.v("v_mov_b32", g8[1], g8[2])
    p.v("v_mov_b32", g8[2], g8[4])
    p.v("v_mov_b32", g8[3], g8[6])
    p.s("s_lshl_b32", st[1], sw, 10)
    p.s("s_add_u32", st[1], st[1], TAB)
    p.v("v_add_u32", vt[4], st[1], vlin)
    p.ds_write("ds_write_b128", vt[4], g8[0:4])
    vtab, vhw = vt[2], vt[3]
    p.v("v_lshlrev_b32", vtab, 5, vg)
    p.v("v_add_u32", vtab, TAB, vtab)
    p.s("s_lshl_b32", st[1], sw, 10)
    p.s("s_add_u32", st[1], st[1], SH)
    p.v("v_add_u32", vhw, st[1], vlin)
    p.barrier()
    T("tab")
    if TOUCH != "v1":
        dma_now(p, "wq", 1)
    if TOUCH == "aftertab":
        touch_streams(p, ptr2)

    def rd_tab(n):
        tb = V(64 + 16 * (n % 3), 16)
        for i, o in enumerate((0, 16, 128, 144)):
            p.ds_read("ds_read_b128", tb[4 * i:4 * i + 4], vtab, off=n * 256 + o)

    rd_tab(0)
    rd_tab(1)
    for n in range(16):
        tb = V(64 + 16 * (n % 3), 16)
        y = vY[8 * n:8 * n + 8]
        o4 = V(112 + 4 * (n & 3), 4)
        if n + 2 < 16:
            rd_tab(n + 2)
        for i in range(4):
            p.v("v_pk_fma_f32", y[2 * i:2 * i + 2], y[2 * i:2 * i + 2], tb[8 + 2 * i:10 + 2 * i], tb[2 * i:2 * i + 2])
        for i in range(4):
            p.v("v_cvt_pk_bf16_f32", o4[i], y[2 * i], y[2 * i + 1])
        p.ds_write("ds_write_b128", vhw, o4, off=n * 4096)
    for i in range(8):
        zero16(p, vACC[16 * i:16 * i + 16], vz)
    p.barrier()
    T("h_ready")

    bc_main(p, T, store_flags=SC1, at_q_done=late_signals, before_norm=early_sample)
    T("o_done")

    ptr3 = ptr2
    srd(p, rG, ptr3["wg"], SZ["wg"])
    srd(p, rU, ptr3["wu"], SZ["wu"])
    srd(p, rD, ptr3["wd"], SZ["wd"])
    srd(p, rOut, ptr3["out"], SZ["out"])
    d_ids(p)
    signal(p, F_PART, S(2), "part", pre=confirm_early)
    touch_d_weights(p)
    phase_r_issue(p)
    p.s("s_lshl_b32", st[5], srb, 3)
    poll_flags(p, F_PART, st[5], 8, "part")
    T("r_go")
    phase_r_partials(p)

    phase_r_compute(p, T, lambda: None)
    signal(p, F_H2, S(2), "h2")
    T("r_done")
    e_setup(p)

    def e_prefetch():
        for n in range(E_NSLOT):
            e_issue_w(p, n, n % 3, n // 3)

    p.s("s_cmp_eq_u32", sDact, 0)
    p.branch("s_cbranch_scc1", "M_no_d")
    phase_d(p, T, e_prefetch)
    p.label("M_no_d")
    e_prefetch()
    T("d_done")
    phase_e(p, T)
    T("e_done")
    if diag:
        p.wait(vm=0)
    T("rt1", True)
    if diag == "dbg":
        p.s("s_cmp_lg_u32", S(2), DBGWG)
        p.branch("s_cbranch_scc1", "M_dbg_done")
        p.s("s_cmp_lg_u32", sw, 0)
        p.branch("s_cbranch_scc1", "M_dbg_done")
        p.v("v_readlane_b32", S(100), V(0), 0)
        p.v("v_subrev_u32", V(0), S(100), V(0))
        p.v("v_mbcnt_lo_u32_b32", vt[1], -1, 0)
        p.v("v_mbcnt_hi_u32_b32", vt[1], -1, vt[1])
        p.v("v_lshlrev_b32", vt[1], 2, vt[1])
        p.v("v_add_u32", vt[1], 12, vt[1])
        p.s("s_mov_b64", EXEC, 0x1FFE)
        p.bstore(V(0), vt[1], rDBG, soff=0)
        p.s("s_mov_b64", EXEC, -1)
        p.label("M_dbg_done")
    else:
        T.flush(rWS, sw, 1, vt[0], vt[1])
    gen_mega.stamp_names = T.names
    p.branch("s_branch", "B_end")
    slow_attention(p)
    p.label("B_end")
    resolve_ovw(p.ins)
    return finalize(p, {"gq": sLoop, "ga": sLoop, "go": sLoop, "gd": sLoop}, verbose=4, name="MEGA")


def assemble_mega(diag=False):
    from build import HEAD
    body = gen_mega(diag)
    s = HEAD + f"; @launch grid=(256,1,1) block=(256,1,1) lds={M_LDS}\n"
    s += '.amdgcn_target "amdgcn-amd-amdhsa--gfx950"\n'
    s += kernel_text(KNAME, body, 512, 256)
    return s


if __name__ == "__main__":
    import sys
    diag = len(sys.argv) > 2 and sys.argv[2] in ("diag", "dbg") and sys.argv[2]
    for a in sys.argv[3:]:
        k, v = a.split("=")
        globals()[k] = int(v) if v.isdigit() else v
    txt = assemble_mega(diag)
    open(sys.argv[1], "w").write(txt)
    print("wrote", sys.argv[1], len(txt))
    if diag:
        print(",".join(gen_mega.stamp_names))
```

```python
from asmlib import *
from layout import *
from ka import srd

SLOT = 8192
WRING = 3 * SLOT
SH = 4 * WRING
B_LDS = SH + 65536
TAB = 2 * SLOT
LIMIT = float(2 ** 40)

vtid, vl = V(0), V(1)
vdQ, vdK, vdV = V(2, 8), V(10, 8), V(18, 4)
vtr, vK, vB, vlin = V(22, 8), V(30, 4), V(34), V(35)
vt = V(36, 8)
vtrP = V(44)
vtmp = V(46, 18)
vQ = V(64, 64)
vACC = V(128, 128)
vS = [V(128, 32), V(160, 32)]
vP = V(192, 16)
vNM = V(208, 16)
vW = V(224, 32)
aO, aL, aONE = A(0, 128), A(128, 16), A(144, 4)
aA, aK, aB = A(148, 16), A(164, 16), A(180, 48)
rWQ, rK, rV, rWO, rWS, rX = S(4, 4), S(8, 4), S(12, 4), S(16, 4), S(20, 4), S(24, 4)
sw, shg, srb, shead, srot = S(28), S(29), S(30), S(31), S(32)
sMW, sMS = S(33), S(34)
sA, sK, sV = S(35), S(36), S(37)
sLoop = S(38)
st = S(39, 6)
sPart = S(45)
sHi = S(46)
sexec = S(48, 2)


def acc(t, qt):
    return vACC[16 * t + 4 * qt:16 * t + 4 * qt + 4]


def oacc(dt, qt):
    return aO[16 * dt + 4 * qt:16 * dt + 4 * qt + 4]


def sreg(buf, kt, qt):
    return vS[buf][16 * kt + 4 * qt:16 * kt + 4 * qt + 4]


def afrag(i):
    return aA[4 * (i % 4):4 * (i % 4) + 4]


DIST = 2
aK8, aV8 = A(148, 32), A(180, 32)


def kfrag(i):
    if DIST == 4:
        return aK8[4 * (i % 8):4 * (i % 8) + 4]
    return aK[4 * (i % 4):4 * (i % 4) + 4]


def vfrag(i):
    if DIST == 4:
        return aV8[4 * (i % 8):4 * (i % 8) + 4]
    return afrag(i)


def bfrag(n, qt):
    o = 16 * (n % 3) + 4 * qt
    return aB[o:o + 4]


def qfrag(qt, s_):
    return vQ[16 * qt + 4 * s_:16 * qt + 4 * s_ + 4]


def dma_voffs(p, dst, stride, swz, n):
    p.v("v_lshrrev_b32", vt[0], 4, vl)
    p.v("v_and_b32", vt[1], 15, vl)
    p.s("s_mov_b32", st[0], stride)
    p.v("v_mul_lo_u32", vt[2], vt[0], st[0])
    npat = {"tr": 2, "n8": 4, "k": 4}[swz]
    for j in range(min(n, npat)):
        if swz == "tr":
            p.v("v_add_u32", vt[3], 4 * (j & 1), vt[0])
            p.v("v_lshlrev_b32", vt[3], 1, vt[3])
        elif swz == "n8":
            p.v("v_add_u32", vt[3], 4 * ((j >> 1) & 1), vt[0])
            p.v("v_lshlrev_b32", vt[3], 1, vt[3])
        else:
            p.v("v_add_u32", vt[3], 4 * (j & 3), vt[0])
        p.v("v_xor_b32", vt[3], vt[3], vt[1])
        p.v("v_lshlrev_b32", vt[3], 4, vt[3])
        p.v("v_add_u32", vt[4 + j], vt[3], vt[2])
    for j in range(n):
        k = 4 * j * stride - 1024 * (j & 3)
        src = vt[4 + j % npat]
        if k:
            p.v("v_add_u32", dst[j], k, src)
        else:
            p.v("v_mov_b32", dst[j], src)


KIND = {
    "wq": (rWQ, vdQ, sA, 32 * 8192, 0x3FFFFF),
    "wo": (rWO, vdQ, sA, 32 * 1024, 0x7FFFF),
    "wo2": (rWO, vdQ, sA, 64 * 1024, 0x7FFFF),
    "k": (rK, vdK, sK, SLOT, 0x1FFFF),
    "v": (rV, vdV, sV, SLOT, 0x1FFFF),
}


def ring_pos(kind, n):
    if kind in ("wq", "wo", "wo2"):
        return ("W", n % 3)
    if kind == "k":
        return ("W", 1 + (n & 1))
    return ("V", n & 1)


def dma_piece(kind, n, j):
    srd_, voffs, so, step, mask = KIND[kind]
    ring, pos = ring_pos(kind, n)
    q = Prog()
    pre = []
    if (j & 3) == 0:
        q.s("s_add_u32", M0, sMW if ring == "W" else sMS, pos * SLOT + (j >> 2) * 4096)
        pre, q.ins = q.ins, []
    voff = voffs[j] if kind != "v" else voffs[(j & 1) + 2 * (j >> 2)]
    x = q.dma(voff, srd_, so, off=1024 * (j & 3), tag=(kind, n))
    x.meta["into"] = (ring, pos)
    if j == 7:
        q.s("s_add_u32", so, so, step)
        q.s("s_and_b32", so, so, mask)
        if kind == "wo2" and n == 7:
            q.s("s_add_u32", so, so, 128)
    return pre, q.ins


def dma_piece3(kind, n, j):
    pre, main = dma_piece(kind, n, j)
    return pre, main[:1], main[1:]


def put_dma_alone(sc, kind, n, gaps, post_gaps):
    if "nodma" in EXP:
        return
    for j in range(8):
        pre, d, post = dma_piece3(kind, n, j)
        sc.fixed(gaps[j] - 1, pre)
        sc.fixed(gaps[j], d)
        for x, g in zip(post, post_gaps):
            sc.fixed(g, [x])


def dma_now(p, kind, n):
    for j in range(8):
        pre, main = dma_piece(kind, n, j)
        for x in pre:
            p.add(x)
        if pre:
            p.nop(0)
        for x in main:
            p.add(x)


def rd_tr(kind, n, t, dst):
    q = Prog()
    ring, pos = ring_pos(kind, n)
    second = 1024 if kind == "wq" else 4096
    for h in range(2):
        i = q.ds_read("ds_read_b64_tr_b16", dst[2 * h:2 * h + 2], vtr[t], off=pos * SLOT + second * h, dep=(kind, n))
        i.meta["from"] = (ring, pos)
    return q.ins


def rd_k(n, f, dst):
    q = Prog()
    kt, s_ = f >> 2, f & 3
    ring, pos = ring_pos("k", n)
    i = q.ds_read("ds_read_b128", dst, vK[s_], off=pos * SLOT + kt * 4096, dep=("k", n))
    i.meta["from"] = (ring, pos)
    return q.ins


def rd_b(n, qt, base_step):
    q = Prog()
    q.ds_read("ds_read_b128", bfrag(n, qt), vB, off=(n - base_step) * 4096 + qt * 1024)
    return q.ins


def resolve_ovw(ins):
    last = {}
    for x in ins:
        if x.kind == "ds_read" and "from" in x.meta:
            last[x.meta["from"]] = x.dep
        elif x.kind == "dma" and "into" in x.meta:
            x.ovw = last.get(x.meta["into"])


DMA_COST = 4
NEWS = 0
NEWS_XD, NEWS_XP = [3, 6, 11, 14, 19, 22, 26 + 2, 30], [31, 31]
NEWS_YD, NEWS_YP = [2, 8, 14, 16, 22, 24, 30, 32], [33, 34]


def cost(x):
    if x.kind == "trans":
        return 8
    if x.kind == "dma":
        return DMA_COST
    if x.kind in ("comment", "label", "need"):
        return 0
    return 4


class Sched:
    def __init__(self, mf):
        self.mf = mf
        n = len(mf)
        self.mem = [[] for _ in range(n)]
        self.oth = [[] for _ in range(n)]
        self.res = [0] * n

    def fixed(self, g, ins):
        g = max(0, min(g, len(self.mf) - 1))
        for x in ins:
            (self.mem if x.kind in ("ds_read", "dma", "vstore", "ds_write", "vload") else self.oth)[g].append(x)

    def reserve(self, g, c=4):
        if 0 <= g < len(self.mf):
            self.res[g] += c

    def used(self, g):
        return sum(map(cost, self.mem[g] + self.oth[g])) + self.res[g]

    def flow(self, seq, first=0, last=None, budget=8):
        n = len(self.mf) if last is None else last + 1
        rem = sum(cost(x) for x, _ in seq)
        i = 0
        for g in range(first, n):
            cap_after = sum(max(0, budget - self.used(h)) for h in range(g + 1, n))
            while i < len(seq) and seq[i][1] <= g:
                c = cost(seq[i][0])
                u = self.used(g)
                if u + c <= budget or (rem > cap_after and u + c <= budget + 4) or g == n - 1:
                    self.oth[g].append(seq[i][0])
                    rem -= c
                    i += 1
                else:
                    break
        assert i == len(seq), "unplaced fillers"

    def pack(self, exps, cvts, first=0, last=None):
        n = len(self.mf) if last is None else last + 1
        ei = ci = 0
        for g in range(first, n):
            done = ei
            while True:
                u = self.used(g)
                e_ok = ei < len(exps) and exps[ei][1] <= g
                c_ok = ci < len(cvts) and cvts[ci][1] <= done
                free8 = sum(1 for h in range(g + 1, n) if self.used(h) == 0)
                free4 = sum(max(0, 8 - self.used(h)) // 4 for h in range(g + 1, n))
                need8 = len(exps) - ei
                need4 = len(cvts) - ci
                behind = need8 * 2 + need4 > free4 or need8 > free8
                lastg = g == n - 1
                if e_ok and (u == 0 or lastg or (behind and u <= 4 and not (c_ok and u == 4))):
                    self.oth[g].append(exps[ei][0])
                    ei += 1
                elif c_ok and (u + 4 <= 8 or lastg or (behind and u <= 8 and need8 * 2 + need4 > free4 + 1)):
                    self.oth[g].append(cvts[ci][0])
                    ci += 1
                else:
                    break
        while ei < len(exps):
            self.oth[n - 1].append(exps[ei][0])
            ei += 1
        while ci < len(cvts):
            self.oth[n - 1].append(cvts[ci][0])
            ci += 1

    def profile(self):
        return [self.used(g) for g in range(len(self.mf))]

    def emit(self, p):
        for g, m in enumerate(self.mf):
            m()
            for x in self.mem[g] + self.oth[g]:
                p.add(x)


EXP = ""


def put_dma(sc, kind, n, gaps):
    if "nodma" in EXP:
        return
    for j in range(8):
        pre, main = dma_piece(kind, n, j)
        sc.fixed(gaps[j] - 1, pre)
        sc.fixed(gaps[j], main)


def gemm_step(p, kind, n, nxt, base_step, first, last, extra=None, tail=None):
    mf = []
    for t in range(8):
        for qt in range(4):
            def m(t=t, qt=qt):
                x = p.mfma16(acc(t, qt), afrag(t), bfrag(n, qt), acc(t, qt) if not first else 0)
                if qt == 0 and t % 2 == 0:
                    also(x, afrag(t + 1))
                if qt == 0 and t == 0:
                    also(x, [bfrag(n, k) for k in range(4)])
            mf.append(m)
    sc = Sched(mf)
    if NEWS:
        for t in range(0, 8, 2):
            g = 4 * t
            for k in range(2):
                tn, nn = (t + 2 + k) % 8, n + (t + 2 + k) // 8
                if not (last and nn > n) and "noa" not in EXP:
                    r = rd_tr(kind, nn, tn, afrag(t + 2 + k))
                    sc.fixed(g + 3 * k, r[:1])
                    sc.fixed(g + 3 * k + 1, r[1:])
            if not last and "nob" not in EXP:
                sc.fixed(g + (5 if t < 6 else 6), rd_b(n + 1, t // 2, base_step))
        if nxt is not None:
            put_dma_alone(sc, nxt[0], nxt[1], [2, 6, 10, 14, 18, 22, 26, 29], [30, 31, 31])
        if extra:
            for g, ins in extra.items():
                sc.fixed(g, ins)
        if tail:
            sc.flow(tail, budget=12)
        sc.emit(p)
        return
    for t in range(0, 8, 2):
        g = 4 * t
        for k in range(2):
            tn, nn = (t + 2 + k) % 8, n + (t + 2 + k) // 8
            if not (last and nn > n) and "noa" not in EXP:
                r = rd_tr(kind, nn, tn, afrag(t + 2 + k))
                sc.fixed(g + 2 * k, r[:1])
                sc.fixed(g + 2 * k + 1, r[1:])
        sc.reserve(g + 7)
        if not last and "nob" not in EXP:
            sc.fixed(g + 5, rd_b(n + 1, t // 2, base_step))
    if nxt is not None:
        put_dma(sc, nxt[0], nxt[1], [4 * t + (4 if t % 2 == 0 else 2) for t in range(8)])
    if extra:
        for g, ins in extra.items():
            sc.fixed(g, ins)
    if tail:
        sc.flow(tail, budget=12)
    if PROFILE:
        print("G", n, sc.profile())
    sc.emit(p)


def gemm_stage(p, kind, nxt_of, extra_of=None, group="gq", zeroed=False, tail=None, after_iter=None):
    for qt in range(4):
        for x in rd_b(0, qt, 0):
            p.add(x)
    for t in range(2):
        for x in rd_tr(kind, 0, t, afrag(t)):
            p.add(x)
    for it in range(6):
        mark(p, group, it)
        for n in range(3 * it, min(3 * it + 3, 16)):
            gemm_step(p, kind, n, nxt_of(n), 3 * it, n == 0 and not zeroed, n == 15,
                      extra_of(n) if extra_of else None, tail if n == 15 else None)
        if it < 5:
            p.v("v_add_u32", vB, 3 * 4096, vB)
        loop_dec(p)
        loop_branch(p)
        if after_iter and it in after_iter:
            mark(p, group, None)
            after_iter[it](p)
    mark(p, group, None) if not (after_iter and 5 in after_iter) else None
    p.v("v_subrev_u32", vB, 15 * 4096, vB)


def exp_list(buf, start, stop):
    q = Prog()
    order = [(qt, kt, r) for qt in range(4) for kt in range(2) for r in range(4)]
    for qt, kt, r in order[start:stop]:
        x = sreg(buf, kt, qt)[r]
        q.v("v_exp_f32", x, x)
    return q.ins


def cvt_list(buf):
    q = Prog()
    for qt in range(4):
        for kt in range(2):
            s_ = sreg(buf, kt, qt)
            for i in range(2):
                q.v("v_cvt_pk_bf16_f32", vP[4 * qt + 2 * kt + i], s_[2 * i], s_[2 * i + 1])
    return q.ins


N1 = 20


def x_tail_seq(cur):
    ex = exp_list(cur, N1, 32)
    cv = cvt_list(cur)
    return cv[0:4] + ex[0:2] + cv[4:8] + ex[2:4] + cv[8:10] + ex[4:8] + cv[10:12] + ex[8:12] + cv[12:16]


def also(x, regs):
    x.r |= set(units(regs))


def phase_x(p, t, first=False, dma=None, extra=None):
    buf = (t + 1) & 1
    mf = []
    for f in range(8):
        kt, s_ = f >> 2, f & 3
        for qt in range(4):
            def m(kt=kt, s_=s_, qt=qt, f=f):
                d = sreg(buf, kt, qt)
                c = d if s_ else (0 if first else vNM[4 * qt:4 * qt + 4])
                x = p.mfma16(d, kfrag(f), qfrag(qt, s_), c)
                if qt == 0 and f % 2 == 0:
                    also(x, kfrag(f + 1))
            mf.append(m)
    sc = Sched(mf)
    if NEWS:
        for f in range(0, 6, 2):
            g = 4 * f
            sc.fixed(g, rd_k(t + 1, f + 2, kfrag(f + 2)))
            sc.fixed(g + 1, rd_k(t + 1, f + 3, kfrag(f + 3)))
            sc.reserve(g + 7)
        if not first:
            r = rd_tr("v", t, 0, vfrag(0)) + rd_tr("v", t, 1, vfrag(1))
            for k in range(4):
                sc.fixed(24 + k, [r[k]])
        sc.reserve(31)
        if dma is not None:
            put_dma_alone(sc, dma[0], dma[1], NEWS_XD, NEWS_XP)
            for g in NEWS_XD:
                sc.reserve(g, 4)
        if extra:
            for g, ins in extra.items():
                sc.fixed(g, ins)
        if not first:
            ex = exp_list(t & 1, N1, 32)
            cv = cvt_list(t & 1)
            need = [max(0, v - (N1 - 20)) for v in ([0] * 10 + [4, 4] + [8, 8, 12, 12])] if N1 >= 20 else None
            sc.pack([(x, 0) for x in ex], list(zip(cv, need)), last=30)
        if PROFILE:
            print("X", sc.profile())
        sc.emit(p)
        return
    for f in range(0, 8, 2):
        g = 4 * f
        if f + DIST < 8:
            sc.fixed(g, rd_k(t + 1, f + DIST, kfrag(f + DIST)) + rd_k(t + 1, f + DIST + 1, kfrag(f + DIST + 1)))
        elif not first:
            v0 = f + DIST - 8
            sc.fixed(g, rd_tr("v", t, v0, vfrag(v0)))
            sc.fixed(g + 1, rd_tr("v", t, v0 + 1, vfrag(v0 + 1)))
            if v0 == 0:
                sc.reserve(g - 1)
        sc.reserve(g + 7)
    if dma is not None:
        put_dma(sc, dma[0], dma[1], [2, 7, 10, 15, 18, 22, 27, 30])
    if extra:
        for g, ins in extra.items():
            sc.fixed(g, ins)
    if not first:
        ex = exp_list(t & 1, N1, 32)
        cv = cvt_list(t & 1)
        need = [0] * 10 + [4, 4] + [8, 8, 12, 12]
        sc.pack([(x, 0) for x in ex], list(zip(cv, need)), last=30)
    if PROFILE:
        print("X", sc.profile())
    sc.emit(p)


PROFILE = False


def phase_y(p, t, last=False, dma=None, tail=None):
    mf = []
    for qt in range(4):
        def m(qt=qt):
            d = aL[4 * qt:4 * qt + 4]
            p.mfma16(d, aONE, vP[4 * qt:4 * qt + 4], d)
        mf.append(m)
    for dt in range(8):
        for qt in range(4):
            def m(dt=dt, qt=qt):
                d = oacc(dt, qt)
                x = p.mfma16(d, vfrag(dt), vP[4 * qt:4 * qt + 4], d)
                if qt == 0 and dt % 2 == 0:
                    also(x, vfrag(dt + 1))
            mf.append(m)
    sc = Sched(mf)
    if NEWS:
        for dt in range(0, 6, 2):
            g = 4 + 4 * dt
            sc.fixed(g, rd_tr("v", t, dt + 2, vfrag(dt + 2)))
            sc.fixed(g + 1, rd_tr("v", t, dt + 3, vfrag(dt + 3)))
            sc.reserve(g + 7)
        if t + 2 <= 15:
            sc.fixed(28, rd_k(t + 2, 0, kfrag(0)) + rd_k(t + 2, 1, kfrag(1)))
        sc.reserve(35)
        sc.reserve(3)
        if dma is not None:
            put_dma_alone(sc, dma[0], dma[1], NEWS_YD, NEWS_YP)
            for g in NEWS_YD:
                sc.reserve(g, 4)
        if not last:
            sc.pack([(x, 1) for x in exp_list((t + 1) & 1, 0, N1)], [])
        if tail:
            sc.flow(tail, budget=12)
        if PROFILE:
            print("Y", sc.profile())
        sc.emit(p)
        return
    for dt in range(0, 8, 2):
        g = 4 + 4 * dt
        if dt + DIST < 8:
            sc.fixed(g, rd_tr("v", t, dt + DIST, vfrag(dt + DIST)))
            sc.fixed(g + 1, rd_tr("v", t, dt + DIST + 1, vfrag(dt + DIST + 1)))
        elif t + 2 <= 15:
            k0 = dt + DIST - 8
            sc.fixed(g, rd_k(t + 2, k0, kfrag(k0)) + rd_k(t + 2, k0 + 1, kfrag(k0 + 1)))
            if k0 == 0:
                sc.reserve(g - 1)
        sc.reserve(g + 7)
    sc.reserve(3)
    if dma is not None:
        put_dma(sc, dma[0], dma[1], [3, 8, 11, 16, 19, 24, 27, 32])
    if not last:
        sc.pack([(x, 1) for x in exp_list((t + 1) & 1, 0, N1)], [])
    if tail:
        sc.flow(tail, budget=12)
    if PROFILE:
        print("Y", sc.profile())
    sc.emit(p)


def zero16(p, dst, vz):
    p.mfma32(dst, vz, vz, 0)


def tr_pattern(p, dst, natural):
    p.v("v_lshrrev_b32", vt[0], 4, vl)
    p.v("v_lshrrev_b32", vt[1], 2, vl)
    p.v("v_and_b32", vt[1], 3, vt[1])
    if natural:
        p.v("v_lshl_add_u32", vt[2], vt[0], 3, vt[1])
        p.v("v_and_b32", vt[0], 1, vt[0])
        p.v("v_lshl_add_u32", vt[3], vt[0], 2, vt[1])
    else:
        p.v("v_lshl_add_u32", vt[2], vt[0], 2, vt[1])
        p.v("v_and_b32", vt[3], 7, vt[2])
    p.v("v_lshlrev_b32", vt[3], 1, vt[3])
    p.v("v_and_b32", vt[4], 3, vl)
    p.v("v_lshrrev_b32", vt[5], 1, vt[4])
    p.v("v_xor_b32", vt[3], vt[3], vt[5])
    p.v("v_lshlrev_b32", vt[3], 4, vt[3])
    p.v("v_and_b32", vt[4], 1, vt[4])
    p.v("v_lshlrev_b32", vt[4], 3, vt[4])
    p.v("v_lshlrev_b32", vt[2], 8, vt[2])
    p.v("v_add3_u32", dst, vt[2], vt[3], vt[4])


def set_vtr(p, pattern, base):
    p.v("v_add_u32", vtr[0], base, pattern)
    for t in range(1, 8):
        p.v("v_xor_b32", vtr[t], t << 5, vtr[0])


def row_stats(p, gram, rsum, vq, vg, mu, rs, nmr, t0, t1):
    sq = t1
    p.v("v_and_b32", t0, 3, vq)
    p.v("v_cmp_eq_u32", VCC, 1, t0)
    p.v("v_cndmask_b32", sq, gram[0], gram[1])
    p.v("v_cmp_eq_u32", VCC, 2, t0)
    p.v("v_cndmask_b32", sq, sq, gram[2])
    p.v("v_cmp_eq_u32", VCC, 3, t0)
    p.v("v_cndmask_b32", sq, sq, gram[3])
    p.v("v_lshrrev_b32", t0, 2, vq)
    p.v("v_cmp_eq_u32", VCC, t0, vg)
    p.v("v_cndmask_b32", sq, 0, sq)
    for op in ("v_permlane32_swap_b32", "v_permlane16_swap_b32"):
        p.v("v_mov_b32", t0, sq)
        p.v(op, sq, t0)
        p.v("v_add_f32", sq, sq, t0)
    p.v("v_mul_f32", mu, 1.0 / 512, rsum[0])
    p.v("v_mul_f32", sq, 1.0 / 512, sq)
    p.v("v_fma_f32", sq, Neg(mu), mu, sq)
    p.v("v_max_f32", sq, 0, sq)
    p.v("v_add_f32", sq, 1e-5, sq)
    p.v("v_rsq_f32", rs, sq)
    p.v("v_mul_f32_e64", nmr, Neg(mu), rs)


def slow_attention(p):
    q = p
    q.label("B_slow")
    q.wait(vm=0, lgkm=0)
    vM = vW[0:4]
    for qt in range(4):
        q.v("v_mov_b32", vM[qt], 0xFF800000)
    vz = vW[4:8]
    for i in range(4):
        q.v("v_mov_b32", vz[i], 0)
    sT = st[4]

    def load_tile(with_v):
        q.s("s_lshl_b32", sK, sT, 13)
        q.s("s_mov_b32", sV, sK)
        dma_now(q, "k", 1)
        if with_v:
            dma_now(q, "v", 0)
        q.wait(vm=0)

    def scores(cinit):
        for f in range(8):
            kt, s_ = f >> 2, f & 3
            for x in rd_k(1, f, kfrag(f)):
                q.add(x)
            for qt in range(4):
                d = sreg(0, kt, qt)
                q.mfma16(d, kfrag(f), qfrag(qt, s_), d if s_ else cinit(qt))

    q.s("s_mov_b32", sT, 0)
    q.label("B_slow_p1")
    load_tile(False)
    scores(lambda qt: 0)
    for qt in range(4):
        a, b = sreg(0, 0, qt), sreg(0, 1, qt)
        q.v("v_max3_f32", vM[qt], vM[qt], a[0], a[1])
        q.v("v_max3_f32", vM[qt], vM[qt], a[2], a[3])
        q.v("v_max3_f32", vM[qt], vM[qt], b[0], b[1])
        q.v("v_max3_f32", vM[qt], vM[qt], b[2], b[3])
    q.wait(vm=0, lgkm=0)
    q.s("s_add_u32", sT, sT, 1)
    q.s("s_cmp_lt_u32", sT, 16)
    q.add(I("s_cbranch_scc1 B_slow_p1", "salu"))
    for qt in range(4):
        m = vM[qt]
        for op in ("v_permlane32_swap_b32", "v_permlane16_swap_b32"):
            q.v("v_mov_b32", vW[8], m)
            q.v(op, m, vW[8])
            q.v("v_max_f32", m, m, vW[8])
        for r in range(4):
            q.v("v_sub_f32", vNM[4 * qt + r], 0, m)
    for i in range(8):
        zero16(q, aO[16 * i:16 * i + 16], vz)
    zero16(q, aL, vz)
    q.s("s_mov_b32", sT, 0)
    q.label("B_slow_p2")
    load_tile(True)
    scores(lambda qt: vNM[4 * qt:4 * qt + 4])
    for x in exp_list(0, 0, 32) + cvt_list(0):
        q.add(x)
    for qt in range(4):
        d = aL[4 * qt:4 * qt + 4]
        q.mfma16(d, aONE, vP[4 * qt:4 * qt + 4], d)
    for dt in range(8):
        for x in rd_tr("v", 0, dt, afrag(dt)):
            q.add(x)
        for qt in range(4):
            d = oacc(dt, qt)
            q.mfma16(d, afrag(dt), vP[4 * qt:4 * qt + 4], d)
    q.wait(vm=0, lgkm=0)
    q.nop(15)
    q.s("s_add_u32", sT, sT, 1)
    q.s("s_cmp_lt_u32", sT, 16)
    q.add(I("s_cbranch_scc1 B_slow_p2", "salu"))
    q.nop(15)
    q.add(I("s_branch B_norm", "salu"))


def wo2_setup(p):
    p.v("v_lshrrev_b32", vt[0], 3, vl)
    p.v("v_lshlrev_b32", vt[1], 10, vt[0])
    p.v("v_lshrrev_b32", vt[0], 1, vt[0])
    p.v("v_lshlrev_b32", vt[0], 1, vt[0])
    p.v("v_and_b32", vt[2], 7, vl)
    p.v("v_xor_b32", vt[0], vt[0], vt[2])
    p.v("v_lshl_add_u32", vt[0], vt[0], 4, vt[1])
    for j in range(8):
        k = 8 * j * 1024 - 1024 * (j & 3)
        if k:
            p.v("v_add_u32", vdQ[j], k, vt[0])
        else:
            p.v("v_mov_b32", vdQ[j], vt[0])
    p.s("s_and_b32", sA, srb, 7)
    p.s("s_lshl_b32", sA, sA, 16)
    p.s("s_lshl_b32", st[1], sw, 8)
    p.s("s_add_u32", sA, sA, st[1])


def wo2_read_setup(p):
    p.v("v_lshrrev_b32", vt[0], 2, vl)
    p.v("v_lshlrev_b32", vt[1], 7, vt[0])
    p.v("v_lshrrev_b32", vt[0], 1, vt[0])
    p.v("v_and_b32", vt[0], 3, vt[0])
    p.v("v_lshlrev_b32", vt[0], 1, vt[0])
    p.v("v_and_b32", vt[2], 3, vl)
    p.v("v_lshrrev_b32", vt[3], 1, vt[2])
    p.v("v_xor_b32", vt[0], vt[0], vt[3])
    p.v("v_lshlrev_b32", vt[0], 4, vt[0])
    p.v("v_and_b32", vt[2], 1, vt[2])
    p.v("v_lshlrev_b32", vt[2], 3, vt[2])
    p.v("v_add3_u32", vtr[0], vt[0], vt[1], vt[2])
    p.v("v_add_u32", vtr[0], sMW, vtr[0])
    for t in range(1, 4):
        p.v("v_xor_b32", vtr[t], t << 5, vtr[0])


def rd_o2(m, f, dst):
    q = Prog()
    ring, pos = ring_pos("wo2", m)
    kap, t = f >> 2, f & 3
    for h in range(2):
        i = q.ds_read("ds_read_b64_tr_b16", dst[2 * h:2 * h + 2], vtr[t], off=pos * SLOT + kap * 4096 + h * 2048,
                      dep=("wo2", m))
        i.meta["from"] = (ring, pos)
    return q.ins


def rd_b2(s_, qt):
    q = Prog()
    q.ds_read("ds_read_b128", bfrag(s_, qt), vB, off=(s_ & 15) * 4096 + qt * 1024)
    return q.ins


def part_store_seq(P, store_flags, tag):
    q = Prog()
    seq = []
    for jj in range(2):
        j = 2 * P + jj
        for qt in range(4):
            k = (4 * jj + qt) & 3
            o4 = vtmp[4 * k:4 * k + 4]
            a0, a1 = acc(2 * j, qt), acc(2 * j + 1, qt)
            q.v("v_cvt_pk_bf16_f32", o4[0], a0[0], a0[1])
            q.v("v_cvt_pk_bf16_f32", o4[1], a0[2], a0[3])
            q.v("v_cvt_pk_bf16_f32", o4[2], a1[0], a1[1])
            q.v("v_cvt_pk_bf16_f32", o4[3], a1[2], a1[3])
            q.bstore(o4, vlin, rWS, soff=sPart, off=qt * 1024, flags=store_flags, tag=tag)
            if qt == 3:
                q.s("s_add_u32", sPart, sPart, 4096)
            seq.append((jj, qt, q.ins))
            q.ins = []
    return seq


def stage_o2(p, T, store_flags, hooks):
    for qt in range(4):
        for x in rd_b2(0, qt):
            p.add(x)
    for f in range(2):
        for x in rd_o2(0, f, afrag(f)):
            p.add(x)
    for m in range(16):
        P = m >> 3
        first = (m & 7) == 0
        mf = []
        for f in range(8):
            kap, t = f >> 2, f & 3
            for qt in range(4):
                def mm(f=f, kap=kap, t=t, qt=qt):
                    d = acc(4 * P + t, qt)
                    x = p.mfma16(d, afrag(f), bfrag(2 * m + kap, qt), 0 if (first and kap == 0) else d)
                    if qt == 0 and f % 2 == 0:
                        also(x, afrag(f + 1))
                    if qt == 0 and t == 0:
                        also(x, [bfrag(2 * m + kap, k) for k in range(4)])
                mf.append(mm)
        sc = Sched(mf)
        for f in range(0, 8, 2):
            g = 4 * f
            for k in range(2):
                fn, mn = (f + 2 + k) % 8, m + (f + 2 + k) // 8
                if mn < 16:
                    r = rd_o2(mn, fn, afrag(f + 2 + k))
                    sc.fixed(g + 2 * k, r[:1])
                    sc.fixed(g + 2 * k + 1, r[1:])
            sc.reserve(g + 7)
        for kap in range(2):
            s_ = 2 * m + kap + 1
            if s_ < 32:
                for qt in range(4):
                    sc.fixed(16 * kap + 4 + 2 * qt + (1 if qt >= 2 else 0), rd_b2(s_, qt))
        if m + 2 < 16:
            gaps = [4 * t + (2 if t % 2 == 0 else 3) for t in range(8)] if m != 8 else list(range(1, 9))
            put_dma(sc, "wo2", m + 2, gaps)
        for g, ins in hooks.get(m, {}).items():
            sc.fixed(g, ins)
        if m == 8:
            seq = []
            for jj, qt, ins in part_store_seq(0, store_flags, "part1"):
                seq += [(x, 9) for x in ins]
            sc.flow(seq, budget=16)
        sc.emit(p)
        if m in (7, 9, 11, 13, 15):
            T(f"o_m{m}")
    if "before_last_stores" in hooks:
        hooks["before_last_stores"](p)
        T("o_ld0")
    for jj, qt, ins in part_store_seq(1, store_flags, "part2"):
        for x in ins:
            p.add(x)


def bc_setup(p, ptr):
    vq, vg = vtmp[0], vtmp[1]
    p.s("s_lshl_b32", st[1], shead, 19)
    p.s("s_add_u32", st[1], st[1], 1536 * 256)
    for r_, k in ((rK, "k"), (rV, "v")):
        p.s("s_add_u32", r_[0], ptr[k][0], st[1])
        p.s("s_addc_u32", r_[1], ptr[k][1], 0)
        p.s("s_mov_b32", r_[2], 16 * SLOT)
        p.s("s_mov_b32", r_[3], 0x20000)
    p.s("s_lshl_b32", st[1], shg, 19)
    p.s("s_add_u32", rWO[0], ptr["wo"][0], st[1])
    p.s("s_addc_u32", rWO[1], ptr["wo"][1], 0)
    p.s("s_mov_b32", rWO[2], 512 * 1024)
    p.s("s_mov_b32", rWO[3], 0x20000)
    p.s("s_lshl_b32", sK, srot, 13)
    p.s("s_mov_b32", sV, sK)
    dma_voffs(p, vdK, 256, "k", 8)
    dma_voffs(p, vt[0:8] if False else vdV, 256, "tr", 2)
    p.v("v_add_u32", vdV[2], 4096, vdV[0])
    p.v("v_add_u32", vdV[3], 4096, vdV[1])
    tr_pattern(p, vtrP, False)
    tr_pattern(p, vtr[0], True)
    set_vtr(p, vtr[0], sMW)
    p.v("v_xor_b32", vt[1], vg, vq)
    p.v("v_lshlrev_b32", vt[1], 4, vt[1])
    p.v("v_lshlrev_b32", vt[0], 8, vq)
    p.v("v_add3_u32", vK[0], vt[0], vt[1], sMW)
    for s_ in range(1, 4):
        p.v("v_xor_b32", vK[s_], s_ << 6, vK[0])
    p.v("v_add_u32", vB, SH, vlin)
    vone = vtmp[4:8]
    vz = vtmp[8:12]
    for i in range(4):
        p.v("v_mov_b32", vone[i], 0x3F803F80)
        p.v("v_mov_b32", vz[i], 0)
    for i in range(4):
        p.v("v_accvgpr_write_b32", aONE[i], vone[i])
    for i in range(8):
        zero16(p, aO[16 * i:16 * i + 16], vz)
    zero16(p, aL, vz)
    p.s("s_mul_i32", sPart, shg, 32)
    p.s("s_add_u32", sPart, sPart, srb)
    p.s("s_mul_i32", sPart, sPart, PART_BLK)
    p.s("s_lshl_b32", st[1], sw, 14)
    p.s("s_add_u32", sPart, sPart, st[1])
    p.s("s_add_u32", sPart, sPart, WS_PART)


def bc_main(p, T, store_flags="", after_q=None, at_q_done=None, before_norm=None, o2_hooks=None, mid_q=None, bg_q=None, bg_att=None, before_att=None):
    def nxt_q(n):
        return ("wq", n + 2) if n + 2 < 16 else ("k", n + 2 - 16)

    def extra_q(n):
        if n != 15:
            return bg_q(n) if bg_q else None
        q = Prog()
        q.barrier(drain_lds=False)
        return {3: q.ins}

    gemm_stage(p, "wq", nxt_q, extra_q, "gq", zeroed=True, after_iter=mid_q)
    T("q_done")
    if at_q_done:
        at_q_done(p)
    dma_now(p, "v", 0)
    for s_ in range(4):
        for qt in range(4):
            d = qfrag(qt, s_)
            a0, a1 = acc(2 * s_, qt), acc(2 * s_ + 1, qt)
            p.v("v_cvt_pk_bf16_f32", d[0], a0[0], a0[1])
            p.v("v_cvt_pk_bf16_f32", d[1], a0[2], a0[3])
            p.v("v_cvt_pk_bf16_f32", d[2], a1[0], a1[1])
            p.v("v_cvt_pk_bf16_f32", d[3], a1[2], a1[3])
        for op in ("v_permlane32_swap_b32", "v_permlane16_swap_b32"):
            for qt in range(4):
                d = qfrag(qt, s_)
                p.v(op, d[0], d[2])
                p.v(op, d[1], d[3])
        if s_ == 0:
            for f in range(DIST):
                for x in rd_k(0, f, kfrag(f)):
                    p.add(x)
    set_vtr(p, vtrP, sMS)
    two = o2_hooks is not None
    wo = "wo2" if two else "wo"
    if two:
        wo2_setup(p)
    else:
        dma_voffs(p, vdQ, 1024, "tr", 8)
        p.s("s_lshl_b32", sA, srot, 15)
        p.s("s_lshl_b32", st[1], sw, 8)
        p.s("s_add_u32", sA, sA, st[1])

    T("q_epi")
    if before_att:
        before_att(p)
    if after_q:
        after_q(p)
    phase_x(p, -1, first=True)
    dma_now(p, "k", 2)
    for qt in range(4):
        a, b = sreg(0, 0, qt), sreg(0, 1, qt)
        m = vt[qt]
        p.v("v_max3_f32", m, a[0], a[1], a[2])
        p.v("v_max3_f32", m, m, a[3], b[0])
        p.v("v_max3_f32", m, m, b[1], b[2])
        p.v("v_max_f32", m, m, b[3])
    for op in ("v_permlane32_swap_b32", "v_permlane16_swap_b32"):
        for qt in range(4):
            p.v("v_mov_b32", vt[4 + qt], vt[qt])
        for qt in range(4):
            p.v(op, vt[qt], vt[4 + qt])
        for qt in range(4):
            p.v("v_max_f32", vt[qt], vt[qt], vt[4 + qt])
    for qt in range(4):
        for r in range(4):
            p.v("v_sub_f32", vNM[4 * qt + r], 0, vt[qt])
    for qt in range(4):
        for kt in range(2):
            for r in range(4):
                x = sreg(0, kt, qt)[r]
                p.v("v_sub_f32", x, x, vt[qt])
    for f in range(DIST):
        for x in rd_k(1, f, kfrag(f)):
            p.add(x)
    for x in exp_list(0, 0, N1):
        p.add(x)
    T("att_pro")
    for it in range(7):
        mark(p, "ga", it)
        for t in (2 * it, 2 * it + 1):
            phase_x(p, t, dma=("v", t + 1), extra=bg_att(t) if bg_att else None)
            phase_y(p, t, dma=("k", t + 3))
        loop_dec(p)
        loop_branch(p)
    mark(p, "ga", None)
    T("att_loop")
    phase_x(p, 14, dma=("v", 15))
    phase_y(p, 14, dma=(wo, 0))
    for i, x in enumerate(x_tail_seq(1)):
        p.add(x)
        if i == 4:
            for t in range(DIST):
                for y in rd_tr("v", 15, t, vfrag(t)):
                    p.add(y)
    phase_y(p, 15, last=True, dma=(wo, 1))

    T("att_done")
    if before_norm:
        before_norm(p)
    rinv = vW[0:4]
    for qt in range(4):
        p.v("v_accvgpr_read_b32", rinv[qt], aL[4 * qt])
    p.v("v_add_f32", vt[0], rinv[0], rinv[1])
    p.v("v_add_f32", vt[1], rinv[2], rinv[3])
    p.v("v_add_f32", vt[0], vt[0], vt[1])
    p.v("v_cmp_gt_f32", VCC, LIMIT, vt[0])
    p.add(I("s_cmp_eq_u64 vcc, exec", "salu", (), units(VCC)))
    p.branch("s_cbranch_scc0", "B_slow")
    p.label("B_norm")
    p.barrier()
    for qt in range(4):
        p.v("v_accvgpr_read_b32", rinv[qt], aL[4 * qt])
    for qt in range(4):
        p.v("v_rcp_f32", rinv[qt], rinv[qt])
    r2 = vW[4:12]
    for qt in range(4):
        p.v("v_mov_b32", r2[2 * qt], rinv[qt])
        p.v("v_mov_b32", r2[2 * qt + 1], rinv[qt])
    vow = vW[12:16]
    for s_ in range(4):
        p.s("s_lshl_b32", st[1], sw, 2)
        p.s("s_add_u32", st[1], st[1], s_ + 16)
        if two:
            p.s("s_and_b32", st[2], srb, 7)
            p.s("s_lshl_b32", st[2], st[2], 1)
            p.s("s_sub_u32", st[1], st[1], st[2])
        else:
            p.s("s_sub_u32", st[1], st[1], srot)
        p.s("s_and_b32", st[1], st[1], 15)
        p.s("s_lshl_b32", st[1], st[1], 12)
        p.s("s_add_u32", st[1], st[1], SH)
        p.v("v_add_u32", vow[s_], st[1], vlin)
    first = True
    for s_ in range(4):
        for qt in range(4):
            k = (4 * s_ + qt) & 3
            x = V(128 + 8 * k, 8)
            o4 = V(160 + 4 * (4 * s_ + qt), 4)
            for h in range(2):
                src = oacc(2 * s_ + h, qt)
                for r in range(4):
                    p.v("v_accvgpr_read_b32", x[4 * h + r], src[r])
            for e in range(4):
                p.v("v_pk_mul_f32", x[2 * e:2 * e + 2], x[2 * e:2 * e + 2], r2[2 * qt:2 * qt + 2])
            for i in range(4):
                p.v("v_cvt_pk_bf16_f32", o4[i], x[2 * i], x[2 * i + 1])
            p.ds_write("ds_write_b128", vow[s_], o4, off=qt * 1024)
    T("norm")
    if two:
        wo2_read_setup(p)
    else:
        set_vtr(p, vtrP, sMW)
    p.barrier()
    T("o_xchg")

    if two:
        stage_o2(p, T, store_flags, o2_hooks)
        return
    q = Prog()
    tail = []
    for j in range(4):
        for qt in range(4):
            k = (4 * j + qt) & 3
            o4 = vtmp[4 * k:4 * k + 4]
            a0, a1 = acc(2 * j, qt), acc(2 * j + 1, qt)
            g0 = 4 * (2 * j + 1) + qt + 3
            q.v("v_cvt_pk_bf16_f32", o4[0], a0[0], a0[1])
            q.v("v_cvt_pk_bf16_f32", o4[1], a0[2], a0[3])
            q.v("v_cvt_pk_bf16_f32", o4[2], a1[0], a1[1])
            q.v("v_cvt_pk_bf16_f32", o4[3], a1[2], a1[3])
            q.bstore(o4, vlin, rWS, soff=sPart, off=qt * 1024, flags=store_flags)
            if qt == 3 and j < 3:
                q.s("s_add_u32", sPart, sPart, 4096)
            tail += [(x, min(g0, 31)) for x in q.ins]
            q.ins = []
    gemm_stage(p, "wo", lambda n: ("wo", n + 2) if n + 2 < 16 else None, None, "go", tail=tail)


def gen_b(diag=False):
    p = Prog()
    T = Stamps(p, diag)
    p.s("s_cmp_ge_u32", S(2), 256)
    p.branch("s_cbranch_scc1", "B_end")
    T("rt0", True)
    T("start")
    ptr = {k: S(52 + 2 * i, 2) for i, k in enumerate(["x", "wq", "ws", "k", "v", "wo"])}
    for k in ptr:
        p.s_load(ptr[k], S(0, 2), ARG[k])
    p.v("v_lshrrev_b32", vt[0], 6, vtid)
    p.v("v_and_b32", vl, 63, vtid)
    p.v("v_readfirstlane_b32", sw, vt[0])
    p.s("s_and_b32", shg, S(2), 7)
    p.s("s_lshr_b32", srb, S(2), 3)
    p.s("s_and_b32", srot, srb, 15)
    p.s("s_lshl_b32", shead, shg, 2)
    p.s("s_mov_b32", sHi, 0xFFFF0000)
    vq, vg = vtmp[0], vtmp[1]
    p.v("v_and_b32", vq, 15, vl)
    p.v("v_lshrrev_b32", vg, 4, vl)
    p.v("v_lshlrev_b32", vlin, 4, vl)
    p.s("s_add_u32", shead, shead, sw)
    p.s("s_mul_i32", sMW, sw, WRING)
    p.s("s_lshl_b32", sMS, sw, 14)
    p.s("s_add_u32", sMS, sMS, SH)
    vxo = vtmp[2]
    p.s("s_lshl_b32", st[0], srb, 6)
    p.s("s_lshl_b32", st[1], sw, 4)
    p.s("s_add_u32", st[0], st[0], st[1])
    p.v("v_add_u32", vxo, st[0], vq)
    p.v("v_lshlrev_b32", vxo, 10, vxo)
    p.v("v_lshl_add_u32", vxo, vg, 4, vxo)
    p.wait(lgkm=0)
    srd(p, rX, ptr["x"], SZ["x"])
    vX = V(64, 64)
    p.s("s_lshl_b32", st[0], srot, 6)
    for n in range(16):
        p.bload(vX[4 * n:4 * n + 4], vxo, rX, soff=st[0])
        if n < 15:
            p.s("s_add_u32", st[0], st[0], 64)
            p.s("s_and_b32", st[0], st[0], 0x3FF)
    T("issued")
    bc_setup(p, ptr)
    vone, vz = vtmp[4:8], vtmp[8:12]
    srd(p, rWQ, ptr["wq"], SZ["wq"])
    srd(p, rWS, ptr["ws"], WS_DIAG_END if diag else WS_END)
    dma_voffs(p, vdQ, 8192, "n8", 8)
    p.s("s_lshl_b32", sA, srot, 18)
    p.s("s_lshl_b32", st[1], shead, 8)
    p.s("s_add_u32", sA, sA, st[1])
    dma_now(p, "wq", 0)
    p.s("s_lshl_b32", st[1], sw, 2)
    p.s("s_add_u32", st[1], st[1], srot)
    p.v("v_add_u32", vt[0], st[1], vg)
    p.v("v_and_b32", vt[0], 15, vt[0])
    p.v("v_lshlrev_b32", vt[0], 7, vt[0])
    p.v("v_lshrrev_b32", vt[1], 3, vq)
    p.v("v_lshl_add_u32", vt[0], vt[1], 11, vt[0])
    p.v("v_and_b32", vt[1], 7, vq)
    p.v("v_lshl_add_u32", vt[0], vt[1], 4, vt[0])
    p.s("s_lshl_b32", st[1], sw, 10)
    p.s("s_add_u32", M0, st[1], TAB)
    p.s("s_mov_b32", st[1], WS_MOD)
    p.dma(vt[0], rWS, st[1], tag="tab")
    dma_now(p, "wq", 1)
    T("setup")

    gram, rsum = vtmp[12:16], V(224, 4)
    for n in range(16):
        xs = vX[4 * n:4 * n + 4]
        p.mfma16(gram, xs, xs, gram if n else 0)
        p.mfma16(rsum, vone, xs, rsum if n else 0)
    vwu = A(240, 8)
    p.v("v_lshlrev_b32", vt[0], 6, vl)
    p.s("s_add_u32", st[1], sK, 4096)
    p.bload(vwu[0], vt[0], rK, soff=sK)
    p.bload(vwu[1], vt[0], rK, soff=st[1])
    p.bload(vwu[2], vt[0], rV, soff=sK)
    p.bload(vwu[3], vt[0], rV, soff=st[1])
    p.v("v_lshrrev_b32", vt[0], 2, vl)
    p.v("v_lshlrev_b32", vt[0], 10, vt[0])
    p.v("v_and_b32", vt[1], 3, vl)
    p.v("v_lshl_add_u32", vt[0], vt[1], 6, vt[0])
    p.s("s_lshl_b32", st[1], srot, 15)
    p.s("s_lshl_b32", st[2], sw, 8)
    p.s("s_add_u32", st[1], st[1], st[2])
    p.bload(vwu[4], vt[0], rWO, soff=st[1])
    p.s("s_add_u32", st[1], st[1], 16384)
    p.bload(vwu[5], vt[0], rWO, soff=st[1])
    mu, rs2, nm2 = V(236), V(238, 2), V(240, 2)
    row_stats(p, gram, rsum, vq, vg, mu, rs2[0], nm2[0], vt[0], vt[1])
    p.v("v_mov_b32", rs2[1], rs2[0])
    p.v("v_mov_b32", nm2[1], nm2[0])
    T("stats")
    p.barrier(dep="tab")
    T("tab")
    vtab = vt[2]
    p.v("v_lshlrev_b32", vtab, 5, vg)
    p.v("v_add_u32", vtab, TAB, vtab)
    vhw = vt[3]
    p.s("s_lshl_b32", st[1], sw, 10)
    p.s("s_add_u32", st[1], st[1], SH)
    p.v("v_add_u32", vhw, st[1], vlin)
    def rd_tab(n):
        tb = V(128 + 16 * (n % 3), 16)
        for i, o in enumerate((0, 16, 128, 144)):
            p.ds_read("ds_read_b128", tb[4 * i:4 * i + 4], vtab, off=n * 256 + o)

    rd_tab(0)
    rd_tab(1)
    for n in range(16):
        k = n & 1
        tb = V(128 + 16 * (n % 3), 16)
        y = V(176 + 8 * k, 8)
        o4 = V(192 + 4 * k, 4)
        if n + 2 < 16:
            rd_tab(n + 2)
        xs = vX[4 * n:4 * n + 4]
        for i in range(4):
            p.v("v_lshlrev_b32", y[2 * i], 16, xs[i])
            p.v("v_and_b32", y[2 * i + 1], sHi, xs[i])
        for i in range(4):
            p.v("v_pk_fma_f32", y[2 * i:2 * i + 2], y[2 * i:2 * i + 2], rs2, nm2)
        for i in range(4):
            p.v("v_pk_fma_f32", y[2 * i:2 * i + 2], y[2 * i:2 * i + 2], tb[8 + 2 * i:10 + 2 * i], tb[2 * i:2 * i + 2])
        for i in range(4):
            p.v("v_cvt_pk_bf16_f32", o4[i], y[2 * i], y[2 * i + 1])
        p.ds_write("ds_write_b128", vhw, o4, off=n * 4096)
    for i in range(8):
        zero16(p, vACC[16 * i:16 * i + 16], vz)
    T("h")
    p.barrier()
    T("h_ready")

    bc_main(p, T)
    T("o_done")
    if diag:
        p.wait(vm=0)
    T("drained")
    T("rt1", True)
    T.flush(rWS, sw, 1, vt[0], vt[1])
    gen_b.stamp_names = T.names
    p.branch("s_branch", "B_end")
    slow_attention(p)
    p.label("B_end")
    resolve_ovw(p.ins)
    return finalize(p, {"gq": sLoop, "ga": sLoop, "go": sLoop}, verbose=8, name="BC")


if __name__ == "__main__":
    txt = gen_b()
    open("kb2.s", "w").write(txt)
    print(len(txt.splitlines()))
```

```python
from asmlib import *
from layout import *
from ka import srd, bf16_round_hi
import kb2
from kb2 import *

KNAME = NAME + "_kernel"
M_LDS = B_LDS
SC1 = "sc1"
TOUCH = "v1"
CODEPF = 0
SLAB1EARLY = 0
TWOPASS = 0
ILV = 1
EROT = 1
SLABW = 1
MLPTOUCH = "all"
EARLYW = 1
NOMEM = 0
KVTOUCH = 1

DBG_MOD0 = 0
DBG_MOD1 = 8
DBG_CLR = 12
DBG_FLAG0 = 128
N_CNT = 256
N_MOD0, N_MOD1 = 32, 64
F_PART, F_H2, F_ACT, F_PART1 = 0, 1, 2, 3

rDBG = S(96, 4)
rTMP = S(92, 4)
rTMP2 = S(72, 4)
sTag = S(90)
aT = A(253)
sp0, sp1 = S(50), S(51)
rG, rU, rD, rOut = rWQ, rK, rV, rWO
vpoll = V(63)
vtid2 = V(45)


def poll(p, srd_, off, target, name, sleep=16):
    lab, done = f"P_{name}", f"P_{name}_done"
    p.s("s_cmp_lg_u32", sw, 0)
    p.branch("s_cbranch_scc1", done)
    p.s("s_mov_b32", sp1, 0)
    p.label(lab)
    p.bload(V(62), vpoll, srd_, soff=0, off=off, flags=SC1)
    p.wait(vm=0)
    p.v("v_readfirstlane_b32", sp0, V(62))
    p.s("s_cmp_ge_u32", sp0, target)
    p.branch("s_cbranch_scc1", done)
    p.s("s_add_u32", sp1, sp1, 1)
    p.s("s_cmp_lt_u32", sp1, 0x20000)
    p.raw(f"s_sleep {sleep}")
    p.add(I(f"s_cbranch_scc1 {lab}", "salu"))
    p.label(done)
    p.barrier(drain_lds=True)


vflag = V(61)


def poll_flags(p, kind, sfirst, count, name):
    lab, done = f"P_{name}", f"P_{name}_done"
    p.s("s_cmp_lg_u32", sw, 0)
    p.branch("s_cbranch_scc1", done)
    p.s("s_mov_b32", sp1, 0)
    p.v("v_min_u32", vflag, count - 1, vl)
    p.v("v_lshlrev_b32", vflag, 7, vflag)
    p.s("s_lshl_b32", sp0, sfirst, 7)
    p.s("s_add_u32", S(47), sp0, WS_FLAG + kind * 256 * 128)
    p.label(lab)
    p.bload(V(62), vflag, rWS, soff=S(47), flags=SC1)
    p.wait(vm=0)
    p.v("v_cmp_eq_u32", VCC, sTag, V(62))
    p.add(I("s_cmp_eq_u64 vcc, exec", "salu", (), units(VCC)))
    p.branch("s_cbranch_scc1", done)
    p.s("s_add_u32", sp1, sp1, 1)
    p.s("s_cmp_lt_u32", sp1, 0x40000)
    p.raw("s_sleep 2")
    p.add(I(f"s_cbranch_scc1 {lab}", "salu"))
    p.label(done)
    p.barrier(drain_lds=True)


def set_flag(p, kind, sindex, value):
    p.v("v_mov_b32", V(62), value)
    p.v("v_mov_b32", vpoll, 0)
    p.s("s_lshl_b32", sp0, sindex, 7)
    p.s("s_add_u32", sp0, sp0, WS_FLAG + kind * 256 * 128)
    p.s("s_mov_b64", EXEC, 1)
    p.bstore(V(62), vpoll, rWS, soff=sp0, flags=SC1)
    p.s("s_mov_b64", EXEC, -1)


def spin(p, srd_, off, target, name):
    lab, done = f"W_{name}", f"W_{name}_done"
    p.s("s_mov_b32", sp1, 0)
    p.label(lab)
    p.bload(V(62), vpoll, srd_, soff=0, off=off, flags=SC1)
    p.wait(vm=0)
    p.v("v_readfirstlane_b32", sp0, V(62))
    p.s("s_cmp_ge_u32", sp0, target)
    p.branch("s_cbranch_scc1", done)
    p.s("s_add_u32", sp1, sp1, 1)
    p.s("s_cmp_lt_u32", sp1, 0x40000)
    p.raw("s_sleep 1")
    p.add(I(f"s_cbranch_scc1 {lab}", "salu"))
    p.label(done)


aEarly = A(248, 2)


def early_sample(p):
    p.bload(aEarly, vpoll, rDBG, soff=0, off=DBG_MOD1, flags=SC1)


def confirm_early(p):
    for k, (off, target) in ((1, (DBG_CLR, N_CNT)),):
        ok = f"C_early{k}_ok"
        p.v("v_accvgpr_read_b32", V(62), aEarly[k])
        p.v("v_readfirstlane_b32", sp0, V(62))
        p.s("s_cmp_ge_u32", sp0, target)
        p.branch("s_cbranch_scc1", ok)
        spin(p, rDBG, off, target, f"early{k}")
        p.label(ok)
    p.s("s_cmp_lg_u32", S(2), 0)
    p.branch("s_cbranch_scc1", "C_epoch_done")
    p.v("v_mov_b32", V(62), sTag)
    p.s("s_mov_b32", sp0, WS_EPOCH)
    p.s("s_mov_b64", EXEC, 1)
    p.bstore(V(62), vpoll, rWS, soff=sp0, flags=SC1)
    p.s("s_mov_b64", EXEC, -1)
    p.label("C_epoch_done")


def signal(p, kind, sindex, name, pre=None, T=None):
    done = f"S_{name}_done"
    p.wait(vm=0)
    if T:
        T(name + "_drain")
    if pre:
        p.s("s_cmp_lg_u32", sw, 0)
        p.branch("s_cbranch_scc1", f"S_{name}_pre")
        pre(p)
        p.label(f"S_{name}_pre")
    p.barrier(drain_lds=True)
    p.s("s_cmp_lg_u32", sw, 0)
    p.branch("s_cbranch_scc1", done)
    set_flag(p, kind, sindex, sTag)
    p.label(done)


def add_one(p, srd_, off):
    p.v("v_mov_b32", V(62), 1)
    p.v("v_mov_b32", vpoll, 0)
    p.s("s_mov_b64", EXEC, 1)
    so, io = (off, 0) if not isinstance(off, int) else (0, off)
    t = f"buffer_atomic_add {V(62)}, " + Prog._bt(vpoll, srd_, so, io, SC1)
    p.add(I(t, "vstore", (), units(V(62), vpoll, srd_, so), meta={"data": units(V(62)), "wide": False}))
    p.s("s_mov_b64", EXEC, -1)


SIL = WRING + 2 * SLOT
MPART = SIL + 1024
mreg = V(64, 64)
aC = A(250)


def slab_issue(p, sslab):
    regs = V(128, 8)
    st0, st1, so = st[0], st[1], st[2]
    vt0, vt1, vcoff = regs[0], regs[1], regs[2]
    vd = regs[4:8]
    p.v("v_lshlrev_b32", vcoff, 2, vtid2)
    p.bload(aC, vcoff, rTMP2)
    p.v("v_lshrrev_b32", vt0, 2, vl)
    p.s("s_mov_b32", st0, 6144)
    p.v("v_mul_lo_u32", vt0, vt0, st0)
    p.v("v_and_b32", vt1, 3, vl)
    p.v("v_lshl_add_u32", vd[0], vt1, 4, vt0)
    for j in range(1, 4):
        p.v("v_add_u32", vd[j], j * (16 * 6144 - 1024), vd[0])
    p.s("s_mul_i32", st0, sw, 128 * 6144)
    p.s("s_lshl_b32", st1, sslab, 6)
    p.s("s_add_u32", so, st0, st1)
    for grp in range(2):
        p.s("s_add_u32", M0, sMS, grp * 4096)
        if grp:
            p.s("s_add_u32", so, so, 64 * 6144)
        else:
            p.nop(0)
        for j in range(4):
            p.dma(vd[j], rTMP, so, off=1024 * j, tag=("slab", grp))


def slab_finish(p, T, sslab, name):
    regs = V(136, 64) if name == "slab0" else mreg
    st0, st1 = st[0], st[1]
    vt0, vt1, vt2, vc, vcoff = regs[0], regs[1], regs[2], regs[3], regs[4]
    s0, s1, e0, e1, vpk = regs[12], regs[13], regs[14], regs[15], regs[5]
    p.v("v_lshlrev_b32", vcoff, 2, vtid2)
    p.v("v_accvgpr_read_b32", vc, aC)
    p.v("v_lshlrev_b32", s0, 16, vc)
    p.v("v_and_b32", s1, sHi, vc)
    for s_, e_ in ((s0, e0), (s1, e1)):
        p.v("v_mul_f32", e_, -1.4426950408889634, s_)
    for s_, e_ in ((s0, e0), (s1, e1)):
        p.v("v_exp_f32", e_, e_)
    for s_, e_ in ((s0, e0), (s1, e1)):
        p.v("v_add_f32", e_, 1.0, e_)
    for s_, e_ in ((s0, e0), (s1, e1)):
        p.v("v_rcp_f32", e_, e_)
    for s_, e_ in ((s0, e0), (s1, e1)):
        p.v("v_mul_f32", s_, s_, e_)
    p.v("v_cvt_pk_bf16_f32", vpk, s0, s1)
    p.v("v_add_u32", vt0, SIL, vcoff)
    p.ds_write("ds_write_b32", vt0, vpk)
    vtr_ = regs[7]
    p.v("v_lshrrev_b32", vt1, 2, vl)
    p.v("v_lshlrev_b32", vt1, 6, vt1)
    p.v("v_and_b32", vt0, 3, vl)
    p.v("v_lshl_add_u32", vt0, vt0, 3, vt1)
    p.v("v_add_u32", vtr_, sMS, vt0)
    vb = regs[6]
    p.v("v_lshrrev_b32", vb, 4, vl)
    p.v("v_lshlrev_b32", vb, 3, vb)
    p.s("s_lshl_b32", st0, sw, 8)
    p.s("s_add_u32", st0, st0, SIL)
    p.v("v_add_u32", vb, st0, vb)
    p.barrier()
    if name == "slab0":
        T("s_sil")
    acc_ = regs[16:24]
    bf = regs[24:40]
    af = regs[40:56]
    for ks in range(4):
        b = bf[4 * ks:4 * ks + 4]
        p.ds_read("ds_read_b64", b[0:2], vb, off=64 * ks)
        p.ds_read("ds_read_b64", b[2:4], vb, off=64 * ks + 32)
    for k2 in range(2):
        for ks in (2 * k2, 2 * k2 + 1):
            for t in range(2):
                a = af[8 * (ks & 1) + 4 * t:8 * (ks & 1) + 4 * t + 4]
                for h in range(2):
                    p.ds_read("ds_read_b64_tr_b16", a[2 * h:2 * h + 2], vtr_, off=ks * 2048 + 1024 * h + 32 * t,
                              dep=("slab", ks >> 1))
        for ks in (2 * k2, 2 * k2 + 1):
            for t in range(2):
                d = acc_[4 * t:4 * t + 4]
                p.mfma16(d, af[8 * (ks & 1) + 4 * t:8 * (ks & 1) + 4 * t + 4], bf[4 * ks:4 * ks + 4], d if ks else 0)
    p.v("v_lshrrev_b32", vt1, 4, vl)
    p.v("v_lshlrev_b32", vt1, 4, vt1)
    p.s("s_lshl_b32", st0, sw, 7)
    p.s("s_add_u32", st0, st0, MPART)
    p.v("v_add_u32", vt1, st0, vt1)
    for t in range(2):
        p.ds_write("ds_write_b128", vt1, acc_[4 * t:4 * t + 4], off=64 * t)
    p.barrier()
    if name == "slab0":
        T("s_gemv")
    p.s("s_cmp_lg_u32", sw, 0 if name == "slab0" else 3)
    p.branch("s_cbranch_scc1", f"M_{name}_done")
    r4 = regs[16:20]
    p.v("v_and_b32", vt0, 31, vl)
    p.v("v_lshlrev_b32", vt0, 2, vt0)
    p.v("v_add_u32", vt1, MPART, vt0)
    for w in range(4):
        p.ds_read("ds_read_b32", r4[w], vt1, off=128 * w)
    p.v("v_add_f32", r4[0], r4[0], r4[1])
    p.v("v_add_f32", r4[2], r4[2], r4[3])
    p.v("v_add_f32", r4[0], r4[0], r4[2])
    bf16_round_hi(p, r4[0], r4[0])
    p.v("v_add_f32", r4[1], 1.0, r4[0])
    bf16_round_hi(p, r4[1], r4[1])
    p.s("s_lshr_b32", st0, sslab, 4)
    p.s("s_cmp_eq_u32", st0, 1)
    p.s("s_cselect_b32", st1, 1, 0)
    p.s("s_cmp_eq_u32", st0, 4)
    p.s("s_cselect_b32", st1, 1, st1)
    p.v("v_mov_b32", vt2, st1)
    p.v("v_cmp_eq_u32", VCC, 1, vt2)
    p.v("v_cndmask_b32", r4[0], r4[0], r4[1])
    p.s("s_cmp_lt_u32", st0, 2)
    p.s("s_mov_b32", st1, QSCALE)
    p.s("s_cselect_b32", st1, st1, 1.0)
    p.v("v_mul_f32", r4[0], st1, r4[0])
    p.s("s_mov_b64", EXEC, 0xFFFFFFFF)
    if name == "slab0":
        get_tag(p)
        p.v("v_mov_b32", r4[1], sTag)
        p.v("v_lshlrev_b32", vt0, 1, vt0)
        p.s("s_lshl_b32", st0, sslab, 8)
        p.s("s_add_u32", st0, st0, WS_MODG)
        p.bstore(r4[0:2], vt0, rWS, soff=st0, flags=SC1)
        T("s_st")
    else:
        p.s("s_lshl_b32", st0, sslab, 7)
        p.s("s_add_u32", st0, st0, WS_MOD)
        p.bstore(r4[0], vt0, rWS, soff=st0, flags=SC1)
    p.s("s_mov_b64", EXEC, -1)
    p.label(f"M_{name}_done")


aC4 = A(236, 4)


def slabw_issue(p, sslab):
    regs = V(128, 8)
    st0, so = st[0], st[2]
    vt0, vt1 = regs[0], regs[1]
    vd = regs[4:8]
    p.bload(aC4, vlin, rTMP2)
    p.v("v_lshrrev_b32", vt0, 2, vl)
    p.s("s_mov_b32", st0, 6144)
    p.v("v_mul_lo_u32", vt0, vt0, st0)
    p.v("v_and_b32", vt1, 3, vl)
    p.v("v_lshl_add_u32", vd[0], vt1, 4, vt0)
    for j in range(1, 4):
        p.v("v_add_u32", vd[j], j * (16 * 6144 - 1024), vd[0])
    p.s("s_lshl_b32", so, sslab, 6)
    for grp in range(8):
        p.s("s_mov_b32", M0, SH + grp * 4096)
        if grp:
            p.s("s_add_u32", so, so, 64 * 6144)
        else:
            p.nop(0)
        for j in range(4):
            p.dma(vd[j], rTMP, so, off=1024 * j, tag=("slab", grp))


def slabw_finish(p, T, sslab, name):
    regs = V(136, 64) if name == "slab0" else mreg
    st0, st1 = st[0], st[1]
    vt0, vt1, vt2, vtr_, vb = regs[0], regs[1], regs[2], regs[3], regs[4]
    cs, es, pk = regs[8:16], regs[16:24], regs[24:28]
    for i in range(4):
        p.v("v_accvgpr_read_b32", vt0, aC4[i])
        p.v("v_lshlrev_b32", cs[2 * i], 16, vt0)
        p.v("v_and_b32", cs[2 * i + 1], sHi, vt0)
    for k in range(8):
        p.v("v_mul_f32", es[k], -1.4426950408889634, cs[k])
    for k in range(8):
        p.v("v_exp_f32", es[k], es[k])
    for k in range(8):
        p.v("v_add_f32", es[k], 1.0, es[k])
    for k in range(8):
        p.v("v_rcp_f32", es[k], es[k])
    for k in range(8):
        p.v("v_mul_f32", cs[k], cs[k], es[k])
    for i in range(4):
        p.v("v_cvt_pk_bf16_f32", pk[i], cs[2 * i], cs[2 * i + 1])
    p.v("v_add_u32", vt0, SIL, vlin)
    p.ds_write("ds_write_b128", vt0, pk, tag="sil")
    p.v("v_lshrrev_b32", vt1, 2, vl)
    p.v("v_lshlrev_b32", vt1, 6, vt1)
    p.v("v_and_b32", vt0, 3, vl)
    p.v("v_lshl_add_u32", vt0, vt0, 3, vt1)
    p.v("v_add_u32", vtr_, SH, vt0)
    p.v("v_lshrrev_b32", vb, 4, vl)
    p.v("v_lshlrev_b32", vb, 3, vb)
    p.v("v_add_u32", vb, SIL, vb)
    acc_ = regs[8:16]
    bf = regs[16:32]
    af = regs[32:64]
    for k4 in range(4):
        for kk in range(4):
            ks = 4 * k4 + kk
            b = bf[4 * kk:4 * kk + 4]
            p.ds_read("ds_read_b64", b[0:2], vb, off=64 * ks, dep="sil")
            p.ds_read("ds_read_b64", b[2:4], vb, off=64 * ks + 32, dep="sil")
            for t in range(2):
                a = af[8 * kk + 4 * t:8 * kk + 4 * t + 4]
                for h in range(2):
                    p.ds_read("ds_read_b64_tr_b16", a[2 * h:2 * h + 2], vtr_, off=ks * 2048 + 1024 * h + 32 * t,
                              dep=("slab", ks >> 1))
        for kk in range(4):
            ks = 4 * k4 + kk
            for t in range(2):
                d = acc_[4 * t:4 * t + 4]
                p.mfma16(d, af[8 * kk + 4 * t:8 * kk + 4 * t + 4], bf[4 * kk:4 * kk + 4], d if ks else 0)
    if name == "slab0":
        T("s_gemv")
    r4 = regs[16:20]
    x0, x1 = regs[20], regs[21]
    p.v("v_and_b32", vt0, 1, vl)
    p.v("v_cmp_eq_u32", VCC, 1, vt0)
    for t in range(2):
        p.v("v_cndmask_b32", regs[22 + 2 * t], acc_[4 * t], acc_[4 * t + 1])
        p.v("v_cndmask_b32", regs[23 + 2 * t], acc_[4 * t + 2], acc_[4 * t + 3])
    p.v("v_and_b32", vt0, 2, vl)
    p.v("v_cmp_eq_u32", VCC, 2, vt0)
    p.v("v_cndmask_b32", x0, regs[22], regs[23])
    p.v("v_cndmask_b32", x1, regs[24], regs[25])
    p.v("v_and_b32", vt0, 4, vl)
    p.v("v_cmp_eq_u32", VCC, 4, vt0)
    p.v("v_cndmask_b32", r4[0], x0, x1)
    p.v("v_lshlrev_b32", vt0, 2, vt0)
    p.v("v_lshrrev_b32", vt1, 4, vl)
    p.v("v_lshl_add_u32", vt0, vt1, 2, vt0)
    p.v("v_and_b32", vt1, 3, vl)
    p.v("v_add_u32", vt0, vt0, vt1)
    p.v("v_lshlrev_b32", vt0, 2, vt0)
    bf16_round_hi(p, r4[0], r4[0])
    p.v("v_add_f32", r4[1], 1.0, r4[0])
    bf16_round_hi(p, r4[1], r4[1])
    p.s("s_lshr_b32", st0, sslab, 4)
    p.s("s_cmp_eq_u32", st0, 1)
    p.s("s_cselect_b32", st1, 1, 0)
    p.s("s_cmp_eq_u32", st0, 4)
    p.s("s_cselect_b32", st1, 1, st1)
    p.v("v_mov_b32", vt2, st1)
    p.v("v_cmp_eq_u32", VCC, 1, vt2)
    p.v("v_cndmask_b32", r4[0], r4[0], r4[1])
    p.s("s_cmp_lt_u32", st0, 2)
    p.s("s_mov_b32", st1, QSCALE)
    p.s("s_cselect_b32", st1, st1, 1.0)
    p.v("v_mul_f32", r4[0], st1, r4[0])
    if name == "slab0":
        get_tag(p)
        p.v("v_mov_b32", r4[1], sTag)
        p.v("v_lshlrev_b32", vt0, 1, vt0)
    p.raw("s_mov_b32 exec_lo, 0x00ff00ff")
    p.raw("s_mov_b32 exec_hi, 0x00ff00ff")
    if name == "slab0":
        p.s("s_lshl_b32", st0, sslab, 8)
        p.s("s_add_u32", st0, st0, WS_MODG)
        p.bstore(r4[0:2], vt0, rWS, soff=st0, flags=SC1)
        T("s_st")
    else:
        p.s("s_lshl_b32", st0, sslab, 7)
        p.s("s_add_u32", st0, st0, WS_MOD)
        p.bstore(r4[0], vt0, rWS, soff=st0, flags=SC1)
    p.s("s_mov_b64", EXEC, -1)


def late_signals(p):
    p.s("s_cmp_lg_u32", sw, 3)
    p.branch("s_cbranch_scc1", "M_late_done")
    p.wait(vm=0)
    add_one(p, rDBG, DBG_CLR)
    p.s("s_sub_u32", sp0, S(2), N_MOD0)
    p.s("s_cmp_ge_u32", sp0, N_MOD1)
    p.branch("s_cbranch_scc1", "M_late_done")
    add_one(p, rDBG, DBG_MOD1)
    p.label("M_late_done")


R_LDS = SH + 65536 - 512


rVg, rVq, rVf, rVfr, rVxo, rVmo = V(2), V(3), V(4), V(8), V(9), V(10)
rVx, rX1p, rH2p = V(12, 8), V(20, 8), V(48, 8)
rVp = [V(64, 32), V(96, 32)]
rA, rXf, rVm = V(128, 16), V(144, 16), V(160, 48)
sRqt, sRhalf, sRb0 = S(66), S(67), S(68)


def r_addr(p):
    st0, st1 = st[0], st[1]
    vt0, vt1, vt2 = V(5), V(6), V(7)
    p.v("v_and_b32", rVq, 7, vl)
    p.v("v_lshrrev_b32", rVg, 3, vl)
    p.v("v_and_b32", rVg, 3, rVg)
    p.v("v_lshrrev_b32", rVf, 5, vl)
    p.s("s_lshr_b32", sRqt, shg, 1)
    p.s("s_and_b32", sRhalf, shg, 1)
    p.v("v_lshlrev_b32", vt0, 4, rVg)
    p.v("v_add_u32", vt0, vt0, rVq)
    p.s("s_lshl_b32", st0, sRhalf, 3)
    p.v("v_add_u32", vt0, st0, vt0)
    p.v("v_lshlrev_b32", vt0, 4, vt0)
    p.v("v_lshlrev_b32", vt1, 12, rVf)
    p.v("v_add_u32", rVfr, vt0, vt1)
    p.s("s_mul_i32", sRb0, srb, PART_BLK)
    p.s("s_lshl_b32", st0, sw, 14)
    p.s("s_add_u32", sRb0, sRb0, st0)
    p.s("s_lshl_b32", st0, sRqt, 10)
    p.s("s_add_u32", sRb0, sRb0, st0)
    p.s("s_add_u32", sRb0, sRb0, WS_PART)


def r_partial_loads(p, i):
    for hg in range(8):
        p.s("s_add_u32", st[0], sRb0, hg * 32 * PART_BLK + i * 8192)
        p.bload(rVp[i][4 * hg:4 * hg + 4], rVfr, rWS, soff=st[0], flags=SC1)


def r_side_loads(p):
    st0, st1 = st[0], st[1]
    vt0, vt1, vt2 = V(5), V(6), V(7)
    p.s("s_lshl_b32", st0, srb, 6)
    p.s("s_lshl_b32", st1, sRqt, 4)
    p.s("s_add_u32", st0, st0, st1)
    p.s("s_lshl_b32", st1, sRhalf, 3)
    p.s("s_add_u32", st0, st0, st1)
    p.v("v_add_u32", vt0, st0, rVq)
    p.v("v_lshlrev_b32", vt0, 10, vt0)
    p.v("v_lshlrev_b32", vt1, 6, rVf)
    p.v("v_lshlrev_b32", vt2, 3, rVg)
    p.v("v_add3_u32", rVxo, vt0, vt1, vt2)
    p.s("s_lshl_b32", st0, sw, 8)
    for i in range(2):
        for h in range(2):
            p.bload(rVx[4 * i + 2 * h:4 * i + 2 * h + 2], rVxo, rX, soff=st0, off=128 * i + 32 * h)
    p.v("v_lshlrev_b32", vt1, 7, rVf)
    p.v("v_lshlrev_b32", vt2, 4, rVg)
    p.v("v_add_u32", rVmo, vt1, vt2)
    r_mod_loads(p, (0, 1))


def r_mod_loads(p, which):
    st0, st1 = st[0], st[1]
    p.s("s_lshl_b32", st0, sw, 9)
    for k in which:
        vec = 2 + k
        p.s("s_add_u32", st1, st0, WS_MOD + vec * 2048)
        for i in range(2):
            for h in range(2):
                o = 16 * k + 8 * i + 4 * h
                p.bload(rVm[o:o + 4], rVmo, rWS, soff=st1, off=256 * i + 64 * h, flags=SC1)


def r_sum(p, i):
    slo, shi = st[1], sp1
    p.s("s_mov_b32", slo, 0x00003F80)
    p.s("s_mov_b32", shi, 0x3F800000)
    for hg in range(8):
        for r in range(4):
            src = rVp[i][4 * hg + r]
            for hi, sel in ((0, slo), (1, shi)):
                d = rA[8 * i + 2 * r + hi]
                p.v("v_dot2_f32_bf16", d, src, sel, d if hg else 0)


def phase_r_compute(p, T):
    st0, so = st[0], st[5]
    vt0, vt1 = V(5), V(6)
    a, xf, vm, vx, x1p = rA, rXf, rVm, rVx, rX1p
    for i in range(2):
        for h in range(2):
            for j in range(2):
                src = vx[4 * i + 2 * h + j]
                p.v("v_lshlrev_b32", xf[8 * i + 4 * h + 2 * j], 16, src)
                p.v("v_and_b32", xf[8 * i + 4 * h + 2 * j + 1], sHi, src)
    for k in range(16):
        p.v("v_fmac_f32", xf[k], a[k], vm[k])
    for i in range(2):
        for j in range(4):
            p.v("v_cvt_pk_bf16_f32", x1p[4 * i + j], xf[8 * i + 2 * j], xf[8 * i + 2 * j + 1])
    p.s("s_lshl_b32", so, srb, 16)
    p.s("s_lshl_b32", st0, sw, 14)
    p.s("s_add_u32", so, so, st0)
    p.s("s_lshl_b32", st0, sRqt, 10)
    p.s("s_add_u32", so, so, st0)
    for i in range(2):
        p.s("s_add_u32", st0, so, WS_X1 + i * 8192)
        p.bstore(x1p[4 * i:4 * i + 4], rVfr, rWS, soff=st0, flags=SC1)
    for i in range(2):
        for j in range(4):
            p.v("v_lshlrev_b32", xf[8 * i + 2 * j], 16, x1p[4 * i + j])
            p.v("v_and_b32", xf[8 * i + 2 * j + 1], sHi, x1p[4 * i + j])
    s1, s2 = V(28), V(29)
    p.v("v_add_f32", s1, xf[0], xf[1])
    p.v("v_mul_f32", s2, xf[0], xf[0])
    p.v("v_fmac_f32", s2, xf[1], xf[1])
    for k in range(2, 16):
        p.v("v_add_f32", s1, s1, xf[k])
        p.v("v_fmac_f32", s2, xf[k], xf[k])
    for s_ in (s1, s2):
        p.v("v_add_f32_dpp", s_, s_, s_, mods="row_ror:8 row_mask:0xf bank_mask:0xf")
    for op in ("v_permlane16_swap_b32", "v_permlane32_swap_b32"):
        for s_, t_ in ((s1, vt0), (s2, vt1)):
            p.v("v_mov_b32", t_, s_)
        for s_, t_ in ((s1, vt0), (s2, vt1)):
            p.v(op, s_, t_)
        for s_, t_ in ((s1, vt0), (s2, vt1)):
            p.v("v_add_f32", s_, s_, t_)
    p.v("v_lshlrev_b32", vt0, 3, rVq)
    p.v("v_add_u32", vt0, R_LDS, vt0)
    p.s("s_lshl_b32", st0, sw, 6)
    p.v("v_add_u32", vt1, st0, vt0)
    s12 = V(30, 2)
    p.v("v_mov_b32", s12[0], s1)
    p.v("v_mov_b32", s12[1], s2)
    p.ds_write("ds_write_b64", vt1, s12)
    p.barrier()
    rr = V(32, 8)
    for w in range(4):
        p.ds_read("ds_read_b64", rr[2 * w:2 * w + 2], vt0, off=64 * w)
    p.v("v_add_f32", s1, rr[0], rr[2])
    p.v("v_add_f32", s2, rr[1], rr[3])
    p.v("v_add_f32", rr[4], rr[4], rr[6])
    p.v("v_add_f32", rr[5], rr[5], rr[7])
    p.v("v_add_f32", s1, s1, rr[4])
    p.v("v_add_f32", s2, s2, rr[5])
    mu, rs2, nm2 = V(40), V(42, 2), V(44, 2)
    p.v("v_mul_f32", mu, 1.0 / 512, s1)
    p.v("v_mul_f32", s2, 1.0 / 512, s2)
    p.v("v_fma_f32", s2, Neg(mu), mu, s2)
    p.v("v_max_f32", s2, 0, s2)
    p.v("v_add_f32", s2, 1e-5, s2)
    p.v("v_rsq_f32", rs2[0], s2)
    p.v("v_mul_f32_e64", nm2[0], Neg(mu), rs2[0])
    p.v("v_mov_b32", rs2[1], rs2[0])
    p.v("v_mov_b32", nm2[1], nm2[0])
    for k in range(8):
        p.v("v_pk_fma_f32", xf[2 * k:2 * k + 2], xf[2 * k:2 * k + 2], rs2, nm2)
    for k in range(8):
        p.v("v_pk_fma_f32", xf[2 * k:2 * k + 2], xf[2 * k:2 * k + 2], vm[32 + 2 * k:34 + 2 * k], vm[16 + 2 * k:18 + 2 * k])
    h2p = rH2p
    for i in range(2):
        for j in range(4):
            p.v("v_cvt_pk_bf16_f32", h2p[4 * i + j], xf[8 * i + 2 * j], xf[8 * i + 2 * j + 1])
        p.s("s_add_u32", st0, so, WS_H2 + i * 8192)
        p.bstore(h2p[4 * i:4 * i + 4], rVfr, rWS, soff=st0, flags=SC1)


aF1 = A(250)


def check_mod1(p):
    p.v("v_accvgpr_read_b32", V(62), aEarly[0])
    p.v("v_readfirstlane_b32", sp0, V(62))
    p.s("s_cmp_ge_u32", sp0, N_MOD1)
    p.branch("s_cbranch_scc1", "C_mod1_ok")
    spin(p, rDBG, DBG_MOD1, N_MOD1, "mod1")
    p.label("C_mod1_ok")


def o2_hooks():
    h = {}
    q = Prog()
    q.v("v_mov_b32", V(62), sTag)
    q.s("s_lshl_b32", S(47), S(2), 7)
    q.s("s_add_u32", S(47), S(47), WS_FLAG + F_PART1 * 256 * 128)
    pre = q.ins
    q = Prog()
    q.need("part1")
    q.barrier(drain_lds=False)
    q.bstore(V(62), vpoll, rWS, soff=S(47), flags=SC1)
    h[12] = {6: pre, 9: q.ins}
    q = Prog()
    q.v("v_min_u32", V(45), 7, vl)
    q.v("v_lshlrev_b32", V(45), 7, V(45))
    q.s("s_lshl_b32", S(47), srb, 10)
    q.s("s_add_u32", S(47), S(47), WS_FLAG + F_PART1 * 256 * 128)
    pre = q.ins
    q = Prog()
    q.bload(aF1, V(45), rWS, soff=S(47), flags=SC1)
    h[14] = {2: pre, 6: q.ins}

    def before_last(p):
        r_addr(p)
        check_mod1(p)
        r_side_loads(p)
        p.v("v_accvgpr_read_b32", V(62), aF1)
        p.s("s_mov_b32", sp1, 0)
        p.label("P_part1")
        p.v("v_cmp_eq_u32", VCC, sTag, V(62))
        p.add(I("s_cmp_eq_u64 vcc, exec", "salu", (), units(VCC)))
        p.branch("s_cbranch_scc1", "P_part1_done")
        p.bload(V(62), V(45), rWS, soff=S(47), flags=SC1)
        p.wait(vm=0)
        p.s("s_add_u32", sp1, sp1, 1)
        p.s("s_cmp_lt_u32", sp1, 0x40000)
        p.add(I("s_cbranch_scc1 P_part1", "salu"))
        p.label("P_part1_done")
        r_partial_loads(p, 0)

    h["before_last_stores"] = before_last
    return h


ROWB = 2752
sDrb, sDcg, sDact, sDH = S(40 + 12), S(40 + 13), S(40 + 14), S(40 + 15)
sErb, sEcb, sEact, sEwd = S(56), S(57), S(58), S(59)
sDrot = S(91)


def d_ids(p):
    st0, st1 = st[0], st[1]
    p.s("s_and_b32", st0, shg, 1)
    p.s("s_lshl_b32", st0, st0, 2)
    p.s("s_and_b32", st1, srb, 3)
    p.s("s_add_u32", sDrb, st0, st1)
    p.s("s_lshr_b32", st0, shg, 1)
    p.s("s_mul_i32", st1, st0, 7)
    p.s("s_add_u32", st1, st1, 1)
    p.s("s_cmp_eq_u32", st0, 0)
    p.s("s_cselect_b32", sDcg, 0, st1)
    p.s("s_cselect_b32", st0, 8, 7)
    p.s("s_lshr_b32", st1, srb, 2)
    p.s("s_add_u32", sDcg, sDcg, st1)
    p.s("s_cmp_lt_u32", st1, st0)
    p.s("s_cselect_b32", sDact, 1, 0)
    p.s("s_lshl_b32", sDrot, st1, 1)


def d_weights(p, drain=True):
    st0, st1 = st[0], st[1]
    vt_ = V(216, 5)
    vd = V(224, 3)
    smag = S(61)
    p.s("s_cmp_eq_u32", sw, 0)
    p.branch("s_cbranch_scc1", "M_dw_done")
    p.s("s_mov_b32", smag, 0xAAAB)
    p.s("s_mov_b32", st0, ROWB)
    for k in range(3):
        p.v("v_add_u32", vt_[0], 64 * k, vl)
        p.v("v_mul_lo_u32", vt_[1], vt_[0], smag)
        p.v("v_lshrrev_b32", vt_[1], 18, vt_[1])
        p.v("v_mul_u32_u24", vt_[2], 6, vt_[1])
        p.v("v_sub_u32", vt_[2], vt_[0], vt_[2])
        p.v("v_lshlrev_b32", vt_[2], 4, vt_[2])
        p.v("v_mul_lo_u32", vt_[1], vt_[1], st0)
        p.v("v_add_u32", vd[k], vt_[1], vt_[2])
        if k:
            p.v("v_subrev_u32", vd[k], 1024 * k, vd[k])
    sPos, sCol = S(62), S(63)
    p.s("s_mul_i32", sCol, sDcg, 96)
    p.s("s_sub_u32", sPos, sw, 1)
    p.label("M_dw_loop")
    p.s("s_add_u32", st0, sPos, sDrot)
    p.s("s_and_b32", st0, st0, 15)
    p.s("s_mul_i32", st0, st0, 32 * ROWB)
    p.s("s_add_u32", st0, st0, sCol)
    p.s("s_mul_i32", st1, sPos, 3072)
    for m, r_ in enumerate((rG, rU)):
        p.s("s_add_u32", M0, st1, m * 49152)
        p.nop(0)
        for k in range(3):
            p.dma(vd[k], r_, st0, off=1024 * k, tag="dw")
    p.s("s_add_u32", sPos, sPos, 3)
    p.s("s_cmp_lt_u32", sPos, 16)
    p.add(I("s_cbranch_scc1 M_dw_loop", "salu"))
    if drain:
        p.wait(vm=0)
    p.label("M_dw_done")


E_RING = SH
E_NSLOT = 4


def phase_d(p, T, e_prefetch):
    st0, st1 = st[0], st[1]
    sH, sAct = st[2], st[3]
    vlin_ = V(2)
    vt_ = V(3, 5)
    vtr_ = V(12, 2)
    p.v("v_lshlrev_b32", vlin_, 4, vl)
    p.s("s_lshl_b32", sH, sDrb, 2)
    p.s("s_add_u32", sH, sH, sw)
    p.s("s_mul_i32", sAct, sH, ACT_RB)
    p.s("s_lshl_b32", sH, sH, 16)
    p.s("s_add_u32", sH, sH, WS_H2)
    p.s("s_mul_i32", st0, sDcg, 6144)
    p.s("s_add_u32", sAct, sAct, st0)
    p.s("s_add_u32", sAct, sAct, WS_ACT)
    NB = 4
    vB_ = V(128, 16 * NB)

    def bfr(ks, qt):
        o = 16 * (ks % NB) + 4 * qt
        return vB_[o:o + 4]

    sK_ = S(63)

    def load_b(ks):
        q = Prog()
        if ks == 0:
            q.s("s_lshl_b32", sK_, sDrot, 12)
        else:
            q.s("s_add_u32", sK_, sK_, 4096)
            q.s("s_and_b32", sK_, sK_, 0xFFFF)
        q.s("s_add_u32", st1, sH, sK_)
        for qt in range(4):
            q.bload(bfr(ks, qt), vlin_, rWS, soff=st1, off=1024 * qt, flags=SC1)
        return q.ins

    p.v("v_lshrrev_b32", vt_[0], 2, vl)
    p.v("v_mul_u32_u24", vt_[0], 96, vt_[0])
    p.v("v_and_b32", vt_[1], 3, vl)
    p.v("v_lshlrev_b32", vt_[1], 3, vt_[1])
    p.v("v_add_u32", vtr_[0], vt_[0], vt_[1])
    p.v("v_add_u32", vtr_[1], 49152, vtr_[0])
    accd = V(16, 96)
    vA = V(112, 16)
    vz_ = V(196, 4)
    for i in range(4):
        p.v("v_mov_b32", vz_[i], 0)
    if EARLYW:
        e_early(p, "d")
    else:
        d_weights(p)
    p.s("s_lshl_b32", st[4], sDrb, 5)
    poll_flags(p, F_H2, st[4], 32, "h2")
    T("d_go")
    for ks in range(NB):
        for x in load_b(ks):
            p.add(x)
    for i in range(6):
        zero16(p, accd[16 * i:16 * i + 16], vz_)

    def accr(m, t, qt):
        o = 48 * m + 16 * t + 4 * qt
        return accd[o:o + 4]

    def afr(i):
        return vA[4 * (i % 4):4 * (i % 4) + 4]

    def rd_a(ks, f, base):
        q = Prog()
        m, t = f // 3, f % 3
        for h in range(2):
            q.ds_read("ds_read_b64_tr_b16", afr(6 * ks + f)[2 * h:2 * h + 2], vtr_[m],
                      off=(ks - base) * 3072 + 1536 * h + 32 * t)
        return q.ins

    for f in range(2):
        for x in rd_a(0, f, 0):
            p.add(x)
    for it in range(4):
        mark(p, "gd", it)
        for ks in range(4 * it, 4 * it + 4):
            mf = []
            for f in range(6):
                m, t = f // 3, f % 3
                for qt in range(4):
                    def mm(m=m, t=t, qt=qt, f=f, ks=ks):
                        d = accr(m, t, qt)
                        x = p.mfma16(d, afr(6 * ks + f), bfr(ks, qt), d)
                        if ILV and f == 0 and qt == 0:
                            also(x, [bfr(ks, k) for k in range(4)])
                    mf.append(mm)
            sc = Sched(mf)
            for f in range(6):
                nf, nks = (f + 2) % 6, ks + (f + 2) // 6
                if nks < 16:
                    r = rd_a(nks, nf, 4 * it)
                    sc.fixed(4 * f, r[:1])
                    sc.fixed(4 * f + 1, r[1:])
            if ILV:
                if ks >= 1 and ks - 1 + NB < 16:
                    ld = load_b(ks - 1 + NB)
                    sal = [x for x in ld if x.kind == "salu"]
                    vm_ = [x for x in ld if x.kind != "salu"]
                    for i, x in enumerate(sal):
                        sc.fixed(i, [x])
                    for i, x in enumerate(vm_):
                        sc.fixed(6 + 4 * i, [x])
            elif ks + NB < 16:
                sc.fixed(23, load_b(ks + NB))
            sc.emit(p)
        if it < 3:
            p.v("v_add_u32", vtr_[0], 4 * 3072, vtr_[0])
            p.v("v_add_u32", vtr_[1], 4 * 3072, vtr_[1])
        loop_dec(p)
        loop_branch(p)
    mark(p, "gd", None)
    T("d_mma")
    o = V(128, 32)
    for qt in range(4):
        for t in range(3):
            g_, u_ = accr(0, t, qt), accr(1, t, qt)
            for r in range(4):
                p.v("v_mul_f32", g_[r], g_[r], u_[r])
        full = o[8 * qt:8 * qt + 4]
        half = o[8 * qt + 4:8 * qt + 6]
        for t in range(3):
            g_ = accr(0, t, qt)
            dst = full[2 * t:2 * t + 2] if t < 2 else half
            p.v("v_cvt_pk_bf16_f32", dst[0], g_[0], g_[1])
            p.v("v_cvt_pk_bf16_f32", dst[1], g_[2], g_[3])
        p.bstore(full, vlin_, rWS, soff=sAct, off=1024 * qt, flags=SC1)
    vh = vt_[0]
    p.v("v_lshlrev_b32", vh, 3, vl)
    p.s("s_add_u32", st0, sAct, 4096)
    p.s("s_cmp_eq_u32", sDcg, 28)
    p.branch("s_cbranch_scc1", "D_skip_half")
    for qt in range(4):
        p.bstore(o[8 * qt + 4:8 * qt + 6], vh, rWS, soff=st0, off=512 * qt, flags=SC1)
    p.label("D_skip_half")
    p.s("s_lshl_b32", st[4], sDrb, 5)
    p.s("s_add_u32", st[4], st[4], sDcg)
    signal(p, F_ACT, st[4], "act")


eRing, eSa, eSd = S(60), S(61), S(62)
eSet = S(55)
ePA, ePW = S(70, 3), S(73, 3)
eVd, eVtr, eLin, eLin8 = V(232, 2), V(234, 4), V(238), V(239)
eAcc, eA, eB = V(16, 64), V(80, 16), V(96, 16 * E_NSLOT)


def e_setup(p):
    st0, st1 = st[0], st[1]
    vt_ = V(240, 4)
    p.v("v_lshlrev_b32", eLin, 4, vl)
    p.v("v_lshlrev_b32", eLin8, 3, vl)
    p.s("s_lshl_b32", st0, shg, 2)
    p.s("s_lshr_b32", st1, S(2), 6)
    p.s("s_add_u32", sErb, st0, st1)
    p.s("s_and_b32", sEcb, srb, 7)
    p.s("s_lshl_b32", eRing, sw, 14)
    p.s("s_add_u32", eRing, eRing, E_RING)
    p.v("v_lshrrev_b32", vt_[0], 3, vl)
    p.v("v_lshlrev_b32", vt_[1], 10, vt_[0])
    p.v("v_lshrrev_b32", vt_[0], 1, vt_[0])
    p.v("v_and_b32", vt_[0], 3, vt_[0])
    p.v("v_lshlrev_b32", vt_[0], 1, vt_[0])
    p.v("v_and_b32", vt_[2], 7, vl)
    p.v("v_xor_b32", vt_[0], vt_[0], vt_[2])
    p.v("v_lshlrev_b32", vt_[0], 4, vt_[0])
    p.v("v_add_u32", eVd[0], vt_[0], vt_[1])
    p.v("v_add_u32", eVd[1], 8 * 1024 - 1024, eVd[0])
    p.v("v_lshrrev_b32", vt_[0], 2, vl)
    p.v("v_lshlrev_b32", vt_[1], 7, vt_[0])
    p.v("v_lshrrev_b32", vt_[0], 1, vt_[0])
    p.v("v_and_b32", vt_[0], 3, vt_[0])
    p.v("v_lshlrev_b32", vt_[0], 1, vt_[0])
    p.v("v_and_b32", vt_[2], 3, vl)
    p.v("v_lshrrev_b32", vt_[3], 1, vt_[2])
    p.v("v_xor_b32", vt_[0], vt_[0], vt_[3])
    p.v("v_lshlrev_b32", vt_[0], 4, vt_[0])
    p.v("v_and_b32", vt_[2], 1, vt_[2])
    p.v("v_lshlrev_b32", vt_[2], 3, vt_[2])
    p.v("v_add3_u32", eVtr[0], vt_[0], vt_[1], vt_[2])
    p.v("v_add_u32", eVtr[0], eRing, eVtr[0])
    for t in range(1, 4):
        p.v("v_xor_b32", eVtr[t], t << 5, eVtr[0])
    if EROT:
        p.s("s_add_u32", eSet, sw, sEcb)
        p.s("s_and_b32", eSet, eSet, 3)
        p.s("s_lshr_b32", st1, sEcb, 2)
    else:
        p.s("s_mov_b32", eSet, sw)
        p.s("s_mov_b32", st1, 0)
    for i in range(3):
        p.s("s_add_u32", st0, st1, i)
        p.s("s_cmp_ge_u32", st0, 3)
        p.s("s_cselect_b32", ePA[i], 3, 0)
        p.s("s_sub_u32", st0, st0, ePA[i])
        p.s("s_mul_i32", ePA[i], st0, 8 * 6144)
        p.s("s_mul_i32", ePW[i], st0, 4 * 96 * 1024)
    p.s("s_mul_i32", sEact, sErb, ACT_RB)
    p.s("s_mul_i32", st0, eSet, 2 * 6144)
    p.s("s_add_u32", sEact, sEact, st0)
    p.s("s_add_u32", sEact, sEact, WS_ACT)
    p.s("s_mul_i32", sEwd, eSet, 96 * 1024)
    p.s("s_lshl_b32", st0, sEcb, 7)
    p.s("s_add_u32", sEwd, sEwd, st0)


def e_issue_w(q, n, kind, pair_off, rotated=True):
    rot = rotated and pair_off < 3
    doff = 0 if rot else pair_off * 4 * 96 * 1024
    slot = (n % E_NSLOT) * 4096
    if kind < 2:
        rows = [doff + (48 * kind) * 1024, doff + (48 * kind + 16) * 1024]
    else:
        rows = [doff + 32 * 1024, doff + (48 + 32) * 1024]
    for hf in range(2):
        q.s("s_add_u32", eSd, sEwd, rows[hf])
        if rot:
            q.s("s_add_u32", eSd, eSd, ePW[pair_off])
        q.s("s_add_u32", M0, eRing, slot + 2048 * hf)
        q.nop(0)
        for j in range(2):
            q.dma(eVd[j], rD, eSd, off=1024 * j, tag=("e", n), ovw=("e", n - E_NSLOT))


def e_early(p, name):
    sJob, sOwn, sN, sT0, sT1, sT2 = S(62), st[0], st[1], S(61), S(63), S(69)
    eSa2 = S(47)
    p.s("s_cmp_eq_u32", sw, 0)
    p.branch("s_cbranch_scc1", f"M_ee_done_{name}")
    p.s("s_sub_u32", sJob, sw, 1)
    p.label(f"M_ee_loop_{name}")
    p.s("s_lshr_b32", sOwn, sJob, 2)
    p.s("s_and_b32", sN, sJob, 3)
    p.s("s_lshl_b32", sT0, sJob, 12)
    p.s("s_add_u32", sT0, sT0, E_RING)
    p.s("s_mul_i32", sT1, sN, 48)
    p.s("s_cmp_eq_u32", sN, 2)
    p.s("s_cselect_b32", sT1, 32, sT1)
    p.s("s_cselect_b32", sT2, 48, 16)
    p.s("s_cmp_eq_u32", sN, 3)
    p.s("s_cselect_b32", sT1, 0, sT1)
    p.s("s_cselect_b32", eSa2, ePW[1], ePW[0])
    if EROT:
        p.s("s_add_u32", sOwn, sOwn, sEcb)
        p.s("s_and_b32", sOwn, sOwn, 3)
    p.s("s_mul_i32", sOwn, sOwn, 96)
    p.s("s_add_u32", sT1, sT1, sOwn)
    p.s("s_add_u32", sT2, sT2, sT1)
    p.s("s_lshl_b32", sN, sEcb, 7)
    p.s("s_add_u32", sN, sN, eSa2)
    for hf, sr in enumerate((sT1, sT2)):
        p.s("s_lshl_b32", sr, sr, 10)
        p.s("s_add_u32", sr, sr, sN)
        p.s("s_add_u32", M0, sT0, 2048 * hf)
        p.nop(0)
        for j in range(2):
            p.dma(eVd[j], rD, sr, off=1024 * j, tag="ee")
    p.s("s_add_u32", sJob, sJob, 3)
    p.s("s_cmp_lt_u32", sJob, 16)
    p.add(I(f"s_cbranch_scc1 M_ee_loop_{name}", "salu"))
    p.label(f"M_ee_done_{name}")


def e_bfr(n, qt):
    o = 16 * (n % E_NSLOT) + 4 * qt
    return eB[o:o + 4]


def e_issue_b(q, n, kind, pair_off, rotated=True):
    rot = rotated and pair_off < 3
    aoff = 0 if rot else pair_off * 8 * 6144
    if kind < 2:
        q.s("s_add_u32", eSa, sEact, aoff + kind * 6144)
        if rot:
            q.s("s_add_u32", eSa, eSa, ePA[pair_off])
        for qt in range(4):
            q.bload(e_bfr(n, qt), eLin, rWS, soff=eSa, off=1024 * qt, flags=SC1)
    else:
        for hf in range(2):
            q.s("s_add_u32", eSa, sEact, aoff + hf * 6144 + 4096)
            if rot:
                q.s("s_add_u32", eSa, eSa, ePA[pair_off])
            for qt in range(4):
                q.bload(e_bfr(n, qt)[2 * hf:2 * hf + 2], eLin8, rWS, soff=eSa, off=512 * qt, flags=SC1)


def phase_e(p, T):
    st0, st1 = st[0], st[1]
    vt_ = V(240, 4)

    def accr(t, qt):
        return eAcc[16 * t + 4 * qt:16 * t + 4 * qt + 4]

    def afr(i):
        return eA[4 * (i % 4):4 * (i % 4) + 4]

    def rd_a(n, t):
        q = Prog()
        for h in range(2):
            q.ds_read("ds_read_b64_tr_b16", afr(4 * n + t)[2 * h:2 * h + 2], eVtr[t],
                      off=(n % E_NSLOT) * 4096 + 2048 * h, dep=("e", n))
        return q.ins

    def step(n, first, nxt, have_next):
        mf = []
        for t in range(4):
            for qt in range(4):
                def mm(t=t, qt=qt):
                    d = accr(t, qt)
                    x = p.mfma16(d, afr(4 * n + t), e_bfr(n, qt), d if not first else 0)
                    if ILV and t == 0 and qt == 0:
                        also(x, [e_bfr(n, k) for k in range(4)])
                mf.append(mm)
        sc = Sched(mf)
        tg = []
        for t in range(4):
            tn, nn = (t + 2) % 4, n + (t + 2) // 4
            if nn == n or have_next:
                r = rd_a(nn, tn)
                sc.fixed(4 * t, r[:1])
                sc.fixed(4 * t + 1, r[1:])
        if ILV and nxt:
            free = [g for g in range(16) if g % 4 >= 2]
            g, k = 0, 0
            pend = []
            for x in nxt:
                if x.kind in ("salu",):
                    pend.append(x)
                elif x.kind == "nop":
                    continue
                elif k < len(free):
                    gap = free[k]
                    for y in pend:
                        sc.fixed(gap - 1, [y])
                    pend = []
                    sc.fixed(gap, [x])
                    k += 1
                else:
                    sc.oth[15] += pend + [x]
                    pend = []
            sc.oth[15] += pend
        else:
            sc.fixed(15, nxt)
        sc.emit(p)

    x1 = V(160, 8)
    gb = V(168, 16)
    p.s("s_lshl_b32", st[4], shg, 5)
    poll_flags(p, F_ACT, st[4], 29, "act")
    T("e_go")
    for n in range(E_NSLOT):
        e_issue_b(p, n, n % 3, n // 3)
    p.s("s_lshl_b32", st0, sErb, 16)
    p.s("s_lshl_b32", st1, sEcb, 13)
    p.s("s_add_u32", st0, st0, st1)
    p.s("s_lshl_b32", st1, sw, 10)
    p.s("s_add_u32", st0, st0, st1)
    p.s("s_add_u32", st0, st0, WS_X1)
    p.bload(x1[0:4], eLin, rWS, soff=st0, flags=SC1)
    p.s("s_add_u32", st0, st0, 4096)
    p.bload(x1[4:8], eLin, rWS, soff=st0, flags=SC1)
    p.v("v_lshrrev_b32", vt_[1], 4, vl)
    p.v("v_lshlrev_b32", vt_[1], 4, vt_[1])
    p.s("s_lshl_b32", st0, sEcb, 8)
    p.s("s_add_u32", st0, st0, WS_MOD + 5 * 2048)
    for t in range(4):
        p.bload(gb[4 * t:4 * t + 4], vt_[1], rWS, soff=st0, off=64 * t, flags=SC1)
    for t in range(2):
        for x in rd_a(0, t):
            p.add(x)
    for n in range(9):
        q = Prog()
        m = n - 1 + E_NSLOT if ILV else n + E_NSLOT
        if m < 9 and m >= E_NSLOT:
            e_issue_w(q, m, m % 3, m // 3)
            e_issue_b(q, m, m % 3, m // 3)
        step(n, n == 0, q.ins, n < 8)
    T("e_main")
    p.s("s_cmp_lt_u32", eSet, 2)
    p.branch("s_cbranch_scc1", "E_four")
    p.s("s_cmp_eq_u32", eSet, 3)
    p.branch("s_cbranch_scc1", "E_red")
    n = 9
    p.s("s_sub_u32", sEact, sEact, 2 * 2 * 6144 - 28 * 6144)
    p.s("s_sub_u32", sEwd, sEwd, 2 * 96 * 1024 - 1344 * 1024)
    e_issue_w(p, n, 0, 0, rotated=False)
    e_issue_b(p, n, 0, 0, rotated=False)
    for t in range(2):
        for x in rd_a(n, t):
            p.add(x)
    step(n, False, [], False)
    p.branch("s_branch", "E_red")
    p.label("E_four")
    for n in range(9, 12):
        e_issue_w(p, n, n % 3, 3)
        e_issue_b(p, n, n % 3, 3)
    for t in range(2):
        for x in rd_a(9, t):
            p.add(x)
    for n in range(9, 12):
        step(n, False, [], n < 11)
    p.label("E_red")
    T("e_tail")
    p.wait(vm=0, lgkm=0)
    p.s("s_lshl_b32", st0, sw, 12)
    p.v("v_add_u32", vt_[0], st0, eLin)
    for qt in range(4):
        for t in range(4):
            p.ds_write("ds_write_b128", vt_[0], accr(t, qt), off=qt * 16384 + t * 1024)
    p.barrier()
    red = V(96, 64)
    p.s("s_lshl_b32", st0, sw, 14)
    p.v("v_add_u32", vt_[0], st0, eLin)
    for w in range(4):
        for t in range(4):
            p.ds_read("ds_read_b128", red[16 * w + 4 * t:16 * w + 4 * t + 4], vt_[0], off=w * 4096 + t * 1024)
    for k in range(8):
        p.v("v_pk_add_f32", red[2 * k:2 * k + 2], red[2 * k:2 * k + 2], red[16 + 2 * k:18 + 2 * k])
        p.v("v_pk_add_f32", red[32 + 2 * k:34 + 2 * k], red[32 + 2 * k:34 + 2 * k], red[48 + 2 * k:50 + 2 * k])
    for k in range(8):
        p.v("v_pk_add_f32", red[2 * k:2 * k + 2], red[2 * k:2 * k + 2], red[32 + 2 * k:34 + 2 * k])
    xf = V(184, 16)
    for j in range(2):
        for h in range(2):
            for i in range(2):
                src = x1[4 * j + 2 * h + i]
                k = 8 * j + 4 * h + 2 * i
                p.v("v_lshlrev_b32", xf[k], 16, src)
                p.v("v_and_b32", xf[k + 1], sHi, src)
    for k in range(16):
        p.v("v_fmac_f32", xf[k], red[k], gb[k])
    op = V(200, 8)
    for k in range(8):
        p.v("v_cvt_pk_bf16_f32", op[k], xf[2 * k], xf[2 * k + 1])
    p.v("v_and_b32", vt_[0], 15, vl)
    p.v("v_lshlrev_b32", vt_[0], 10, vt_[0])
    p.v("v_lshrrev_b32", vt_[1], 4, vl)
    p.v("v_lshlrev_b32", vt_[1], 3, vt_[1])
    p.v("v_add_u32", vt_[0], vt_[0], vt_[1])
    p.s("s_lshl_b32", st0, sErb, 6)
    p.s("s_lshl_b32", st1, sw, 4)
    p.s("s_add_u32", st0, st0, st1)
    p.s("s_lshl_b32", st0, st0, 10)
    p.s("s_lshl_b32", st1, sEcb, 7)
    p.s("s_add_u32", st0, st0, st1)
    for t in range(4):
        p.bstore(op[2 * t:2 * t + 2], vt_[0], rOut, soff=st0, off=32 * t, flags=SC1)


aTouch = A(240, 8)


CODE_LINES = 24


def code_prefetch(p):
    p.s("s_cmp_lg_u32", sw, 1)
    p.branch("s_cbranch_scc1", "M_no_codepf")
    sPC = S(92, 2)
    p.add(I(f"s_getpc_b64 {sPC}", "salu", units(sPC), ()))
    p.label("M_pc")
    p.add(I(f"s_sub_u32 {sPC[0]}, {sPC[0]}, M_pc-{KNAME}", "salu", units(sPC[0]), units(sPC[0])))
    p.add(I(f"s_subb_u32 {sPC[1]}, {sPC[1]}, 0", "salu", units(sPC[1]), units(sPC[1])))
    p.s("s_mul_i32", st[1], srb, CODE_LINES)
    p.v("v_min_u32", vt[0], CODE_LINES - 1, vl)
    p.v("v_add_u32", vt[0], st[1], vt[0])
    p.v("v_lshlrev_b32", vt[0], 6, vt[0])
    p.v("v_min_u32", vt[0], f"(B_end-{KNAME})", vt[0])
    p.add(I(f"global_load_dword {A(254)}, {vt[0]}, {sPC}", "vload", units(A(254)), units(vt[0], sPC)))
    p.label("M_no_codepf")


def get_tag(p):
    p.v("v_accvgpr_read_b32", V(62), aT)
    p.v("v_readfirstlane_b32", sTag, V(62))
    p.s("s_add_u32", sTag, sTag, 1)


sTch = S(69)


def bg_touch():
    q = Prog()
    q.bload(aTouch[0], vlin, rTMP, soff=sTch)
    q.s("s_add_u32", sTch, sTch, 1024)
    return q.ins


def bg_q_setup(p):
    p.s("s_cmp_lt_u32", srb, 16)
    for h in range(4):
        p.s("s_cselect_b32", rTMP[h], rK[h], rV[h])
    p.s("s_lshl_b32", sTch, srot, 13)


def bg_q(n):
    if n < 12 and n % 3 < 2:
        return {9: bg_touch()}
    return None


def bg_att_setup(p, ptr2):
    for k, name in enumerate(("wg", "wu", "wd")):
        for h in range(2):
            if k == 0:
                p.s("s_mov_b32", rTMP[h], ptr2[name][h])
            else:
                p.s("s_cmp_eq_u32", sw, k + 1)
                p.s("s_cselect_b32", rTMP[h], ptr2[name][h], rTMP[h])
    p.s("s_cmp_eq_u32", sw, 0)
    p.s("s_cselect_b32", rTMP[2], 0, SZ["wd"])
    p.s("s_mul_i32", sTch, S(2), 5504)


def bg_att(t):
    if t % 2 == 0 and t < 12:
        return {12: bg_touch()}
    return None


def touch_mlp_window(p, ptr2):
    p.s("s_cmp_lt_u32", S(2), N_MOD0 + N_MOD1)
    p.branch("s_cbranch_scc1", "M_no_win")
    p.s("s_cmp_eq_u32", sw, 0)
    p.branch("s_cbranch_scc1", "M_no_win")
    vo = vt[6]
    p.v("v_lshlrev_b32", vo, 6, vl)
    for k, name in enumerate(("wg", "wu", "wd")):
        for h in range(2):
            if k == 0:
                p.s("s_mov_b32", rTMP[h], ptr2[name][h])
            else:
                p.s("s_cmp_eq_u32", sw, k + 1)
                p.s("s_cselect_b32", rTMP[h], ptr2[name][h], rTMP[h])
    p.s("s_mov_b32", rTMP[2], SZ["wd"])
    p.s("s_mov_b32", rTMP[3], 0x20000)
    p.s("s_sub_u32", st[2], S(2), N_MOD0 + N_MOD1)
    p.s("s_lshl_b32", st[2], st[2], 12)
    for i in range(3):
        p.bload(aTouch[i], vo, rTMP, soff=st[2])
        if i < 2:
            p.s("s_add_u32", st[2], st[2], 160 * 4096)
    p.label("M_no_win")


def touch_all(p, ptr2):
    vo = vt[6]
    p.v("v_lshlrev_b32", vo, 6, vl)
    p.s("s_cmp_lt_u32", srb, 16)
    for h in range(4):
        p.s("s_cselect_b32", rTMP[h], rK[h], rV[h])
    p.s("s_lshl_b32", st[2], srot, 13)
    p.bload(aTouch[0], vo, rTMP, soff=st[2])
    p.s("s_add_u32", st[2], st[2], 4096)
    p.bload(aTouch[1], vo, rTMP, soff=st[2])
    for k, name in enumerate(("wg", "wu", "wd")):
        for h in range(2):
            if k == 0:
                p.s("s_mov_b32", rTMP[h], ptr2[name][h])
            else:
                p.s("s_cmp_eq_u32", sw, k + 1)
                p.s("s_cselect_b32", rTMP[h], ptr2[name][h], rTMP[h])
    p.s("s_mov_b32", rTMP[2], SZ["wd"])
    p.s("s_lshl_b32", st[2], S(2), 12)
    p.s("s_cmp_eq_u32", sw, 0)
    p.s("s_cselect_b32", st[2], SZ["wd"], st[2])
    p.bload(aTouch[3], vo, rTMP, soff=st[2])
    p.s("s_add_u32", st[2], st[2], 256 * 4096)
    p.bload(aTouch[4], vo, rTMP, soff=st[2])


def touch_streams(p, ptr2, all_waves=False):
    if all_waves:
        return touch_all(p, ptr2)
    p.s("s_cmp_eq_u32", sw, 0)
    p.branch("s_cbranch_scc1", "M_no_touch")
    vo = vt[6]
    p.v("v_lshlrev_b32", vo, 6, vl)
    p.s("s_cmp_lt_u32", srb, 16)
    p.s("s_cselect_b32", rTMP[0], ptr2["k"][0], ptr2["v"][0])
    p.s("s_cselect_b32", rTMP[1], ptr2["k"][1], ptr2["v"][1])
    p.s("s_lshl_b32", st[1], shg, 21)
    p.s("s_add_u32", st[1], st[1], 1536 * 256)
    p.s("s_add_u32", rTMP[0], rTMP[0], st[1])
    p.s("s_addc_u32", rTMP[1], rTMP[1], 0)
    p.s("s_mov_b32", rTMP[2], 4 << 19)
    p.s("s_mov_b32", rTMP[3], 0x20000)
    p.s("s_lshl_b32", st[2], srot, 13)
    for m in range(3 if KVTOUCH else 0):
        p.s("s_add_u32", st[1], sw, 3 * m - 1)
        p.s("s_lshr_b32", st[3], st[1], 1)
        p.s("s_lshl_b32", st[3], st[3], 19)
        p.s("s_and_b32", st[1], st[1], 1)
        p.s("s_lshl_b32", st[1], st[1], 12)
        p.s("s_add_u32", st[1], st[1], st[3])
        p.s("s_add_u32", st[1], st[1], st[2])
        p.bload(aTouch[m], vo, rTMP, soff=st[1])
    if MLPTOUCH == "wd":
        p.s("s_cmp_lg_u32", sw, 3)
        p.branch("s_cbranch_scc1", "M_no_touch")
    for k, name in enumerate(("wg", "wu", "wd")):
        for h in range(2):
            if k == 0:
                p.s("s_mov_b32", rTMP[h], ptr2[name][h])
            else:
                p.s("s_cmp_eq_u32", sw, k + 1)
                p.s("s_cselect_b32", rTMP[h], ptr2[name][h], rTMP[h])
    p.s("s_mov_b32", rTMP[2], SZ["wd"])
    p.s("s_lshl_b32", st[2], S(2), 12)
    p.bload(aTouch[3], vo, rTMP, soff=st[2])
    p.s("s_add_u32", st[2], st[2], 256 * 4096)
    p.bload(aTouch[4], vo, rTMP, soff=st[2])
    p.label("M_no_touch")


def touch_d_weights(p):
    p.s("s_cmp_eq_u32", sw, 0)
    p.branch("s_cbranch_scc1", "M_no_touch_d")
    p.s("s_cmp_eq_u32", sDact, 0)
    p.branch("s_cbranch_scc1", "M_no_touch_d")
    vo = V(170)
    p.v("v_lshrrev_b32", V(171), 1, vl)
    p.s("s_mov_b32", st[0], ROWB)
    p.v("v_mul_lo_u32", V(171), V(171), st[0])
    p.v("v_and_b32", vo, 1, vl)
    p.v("v_lshlrev_b32", vo, 6, vo)
    p.v("v_add_u32", vo, vo, V(171))
    p.s("s_and_b32", st[0], srb, 3)
    p.s("s_mul_i32", st[0], st[0], 128 * ROWB)
    p.s("s_mul_i32", st[1], sDcg, 96)
    p.s("s_add_u32", st[0], st[0], st[1])
    p.s("s_sub_u32", st[1], sw, 1)
    p.s("s_mul_i32", st[1], st[1], 32 * ROWB)
    p.s("s_add_u32", st[1], st[1], st[0])
    p.bload(aTouch[0], vo, rG, soff=st[1])
    p.bload(aTouch[1], vo, rU, soff=st[1])
    p.s("s_add_u32", st[1], st[0], 3 * 32 * ROWB)
    p.s("s_cmp_eq_u32", sw, 3)
    p.s("s_cselect_b32", st[1], st[1], SZ["wg"])
    p.bload(aTouch[2], vo, rG, soff=st[1])
    p.bload(aTouch[3], vo, rU, soff=st[1])
    p.label("M_no_touch_d")


DBGSTAMPS = ["rt0", "ln", "h_ready", "q_done", "att_loop", "o_done", "r_go", "r_done", "d_go", "d_mma", "e_go", "e_main", "rt1"]
DBGWG = 128


def gen_mega(diag=False):
    p = Prog()
    T = Stamps(p, diag, vreg=V(0), early=0, only=DBGSTAMPS if diag == "dbg" else None)
    p.s("s_cmp_ge_u32", S(2), 256)
    p.branch("s_cbranch_scc1", "B_end")
    p.v("v_mov_b32", vtid2, V(0))
    T("rt0", True)
    T("start")
    ptr = {k: S(52 + 2 * i, 2) for i, k in enumerate(["x", "ws", "dbg", "wmod", "c", "wq"])}
    for k in ptr:
        p.s_load(ptr[k], S(0, 2), ARG[k])
    p.v("v_lshrrev_b32", vt[0], 6, vtid2)
    p.v("v_and_b32", vl, 63, vtid2)
    p.v("v_readfirstlane_b32", sw, vt[0])
    p.s("s_and_b32", shg, S(2), 7)
    p.s("s_lshr_b32", srb, S(2), 3)
    p.s("s_and_b32", srot, srb, 15)
    p.s("s_lshl_b32", shead, shg, 2)
    p.s("s_mov_b32", sHi, 0xFFFF0000)
    vq, vg = vtmp[0], vtmp[1]
    p.v("v_and_b32", vq, 15, vl)
    p.v("v_lshrrev_b32", vg, 4, vl)
    p.v("v_lshlrev_b32", vlin, 4, vl)
    p.v("v_mov_b32", vpoll, 0)
    p.s("s_add_u32", shead, shead, sw)
    p.s("s_mul_i32", sMW, sw, WRING)
    p.s("s_lshl_b32", sMS, sw, 14)
    p.s("s_add_u32", sMS, sMS, SH)
    vxo = vtmp[2]
    p.s("s_lshl_b32", st[0], srb, 6)
    p.s("s_lshl_b32", st[1], sw, 4)
    p.s("s_add_u32", st[0], st[0], st[1])
    p.v("v_add_u32", vxo, st[0], vq)
    p.v("v_lshlrev_b32", vxo, 10, vxo)
    p.v("v_lshl_add_u32", vxo, vg, 4, vxo)
    p.wait(lgkm=0)
    srd(p, rX, ptr["x"], SZ["x"])
    srd(p, rWS, ptr["ws"], WS_DIAG_END if diag == "diag" else WS_END)
    srd(p, rDBG, ptr["dbg"], 256)
    srd(p, rWQ, ptr["wq"], SZ["wq"])
    ptr2 = {k: S(64 + 12 + 2 * i, 2) for i, k in enumerate(["k", "v", "wo", "wg", "wu", "wd", "out"])}
    for k in ptr2:
        p.s_load(ptr2[k], S(0, 2), ARG[k])
    p.s("s_mov_b32", st[0], WS_EPOCH)
    p.bload(aT, vpoll, rWS, soff=st[0], flags=SC1)
    if CODEPF:
        code_prefetch(p)
    srd(p, rTMP, ptr["wmod"], SZ["wmod"])
    srd(p, rTMP2, ptr["c"], SZ["c"])
    if SLABW:
        p.s("s_cmp_lt_u32", S(2), N_MOD0)
        p.s("s_cselect_b32", st[3], 0, 3)
        p.s("s_cmp_lg_u32", sw, st[3])
        p.branch("s_cbranch_scc1", "M_no_slab")
        p.s("s_cmp_ge_u32", S(2), N_MOD0 + N_MOD1)
        p.branch("s_cbranch_scc1", "M_no_slab")
        slabw_issue(p, S(2))
    else:
        p.s("s_cmp_ge_u32", S(2), N_MOD0 + N_MOD1 if SLAB1EARLY else N_MOD0)
        p.branch("s_cbranch_scc1", "M_no_slab")
        slab_issue(p, S(2))
    p.label("M_no_slab")
    T("s_iss")
    p.wait(lgkm=0)
    bc_setup(p, ptr2)
    if NOMEM:
        for r_ in (rK, rV, rWO, rWQ):
            p.s("s_mov_b32", r_[2], 0)
    vone, vz = vtmp[4:8], vtmp[8:12]
    dma_voffs(p, vdQ, 8192, "n8", 8)
    p.s("s_lshl_b32", sA, srot, 18)
    p.s("s_lshl_b32", st[1], shead, 8)
    p.s("s_add_u32", sA, sA, st[1])
    vX = V(64, 64)
    sX = S(91)

    def x_loads(lo, hi):
        for n in range(lo, hi):
            p.bload(vX[4 * n:4 * n + 4], vxo, rX, soff=sX)
            if n < 15:
                p.s("s_add_u32", sX, sX, 64)
                p.s("s_and_b32", sX, sX, 0x3FF)

    p.s("s_lshl_b32", sX, srot, 6)
    p.s("s_cmp_ge_u32", S(2), N_MOD0)
    p.branch("s_cbranch_scc1", "M_no_slab_f")
    if SLABW:
        p.s("s_cmp_lg_u32", sw, 0)
        p.branch("s_cbranch_scc1", "M_no_slab_f")
        slabw_finish(p, T, S(2), "slab0")
    else:
        slab_finish(p, T, S(2), "slab0")
        p.barrier()
    p.label("M_no_slab_f")
    x_loads(0, 16)
    if TOUCH == "early":
        p.s("s_cmp_lt_u32", S(2), N_MOD0 + N_MOD1)
        p.branch("s_cbranch_scc1", "M_skip_touch")
        touch_streams(p, ptr2)
        p.label("M_skip_touch")
    T("issued")
    if not SLAB1EARLY and not SLABW:
        p.s("s_sub_u32", st[5], S(2), N_MOD0)
        p.s("s_cmp_ge_u32", st[5], N_MOD1)
        p.branch("s_cbranch_scc1", "M_no_slab1i")
        slab_issue(p, S(2))
        p.label("M_no_slab1i")
    dma_now(p, "wq", 0)
    T("setup")

    gram, rsum = vtmp[12:16], A(232, 4)
    for n in range(16):
        xs = vX[4 * n:4 * n + 4]
        p.mfma16(gram, xs, xs, gram if n else 0)
        p.mfma16(rsum, vone, xs, rsum if n else 0)
    rs0 = vt[6]
    p.v("v_accvgpr_read_b32", rs0, rsum[0])
    mu, rs2, nm2 = vt[7], V(50, 2), V(52, 2)
    row_stats(p, gram, [rs0], vq, vg, mu, rs2[0], nm2[0], vt[0], vt[1])
    p.v("v_mov_b32", rs2[1], rs2[0])
    p.v("v_mov_b32", nm2[1], nm2[0])
    vY = V(128, 128)
    for n in range(16):
        xs = vX[4 * n:4 * n + 4]
        y = vY[8 * n:8 * n + 8]
        for i in range(4):
            p.v("v_lshlrev_b32", y[2 * i], 16, xs[i])
            p.v("v_and_b32", y[2 * i + 1], sHi, xs[i])
        for i in range(4):
            p.v("v_pk_fma_f32", y[2 * i:2 * i + 2], y[2 * i:2 * i + 2], rs2, nm2)
    T("ln")
    p.s("s_sub_u32", st[5], S(2), N_MOD0)
    p.s("s_cmp_ge_u32", st[5], N_MOD1)
    p.branch("s_cbranch_scc1", "M_no_slab1")
    if SLABW:
        p.s("s_cmp_lg_u32", sw, 3)
        p.branch("s_cbranch_scc1", "M_no_slab1")
        slabw_finish(p, T, S(2), "slab1")
    else:
        slab_finish(p, T, S(2), "slab1")
    p.label("M_no_slab1")
    vts = vt[5]
    p.s("s_lshl_b32", st[1], sw, 2)
    p.s("s_add_u32", st[1], st[1], srot)
    p.v("v_add_u32", vt[0], st[1], vg)
    p.v("v_and_b32", vt[0], 15, vt[0])
    p.v("v_lshlrev_b32", vt[0], 8, vt[0])
    p.v("v_lshrrev_b32", vt[1], 3, vq)
    p.v("v_lshl_add_u32", vt[0], vt[1], 12, vt[0])
    p.v("v_and_b32", vt[1], 7, vq)
    p.v("v_lshl_add_u32", vts, vt[1], 5, vt[0])
    if TOUCH in ("midq", "win", "bg"):
        dma_now(p, "wq", 1)
    if TOUCH == "win":
        touch_mlp_window(p, ptr2)
    get_tag(p)
    g8 = V(64, 8)
    p.s("s_mov_b32", sp1, 0)
    p.s("s_mov_b32", st[1], WS_MODG)
    p.label("P_modg")
    p.bload(g8[0:4], vts, rWS, soff=st[1], flags=SC1)
    p.bload(g8[4:8], vts, rWS, soff=st[1], off=16, flags=SC1)
    p.v("v_cmp_eq_u32", VCC, sTag, g8[1])
    p.s("s_mov_b64", sexec, VCC)
    for k in (3, 5, 7):
        p.v("v_cmp_eq_u32", VCC, sTag, g8[k])
        p.s("s_and_b64", sexec, sexec, VCC)
    p.add(I(f"s_cmp_eq_u64 {sexec}, exec", "salu", (), units(sexec)))
    p.branch("s_cbranch_scc1", "P_modg_done")
    p.s("s_add_u32", sp1, sp1, 1)
    p.s("s_cmp_lt_u32", sp1, 0x40000)
    p.raw("s_sleep 2")
    p.add(I("s_cbranch_scc1 P_modg", "salu"))
    p.label("P_modg_done")
    T("mod0")
    if TOUCH == "v1":
        dma_now(p, "wq", 1)
        touch_streams(p, ptr2)
    p.v("v_mov_b32", g8[1], g8[2])
    p.v("v_mov_b32", g8[2], g8[4])
    p.v("v_mov_b32", g8[3], g8[6])
    p.s("s_lshl_b32", st[1], sw, 10)
    p.s("s_add_u32", st[1], st[1], TAB)
    p.v("v_add_u32", vt[4], st[1], vlin)
    p.ds_write("ds_write_b128", vt[4], g8[0:4])
    vtab, vhw = vt[2], vt[3]
    p.v("v_lshlrev_b32", vtab, 5, vg)
    p.v("v_add_u32", vtab, TAB, vtab)
    p.s("s_lshl_b32", st[1], sw, 10)
    p.s("s_add_u32", st[1], st[1], SH)
    p.v("v_add_u32", vhw, st[1], vlin)
    p.barrier()
    T("tab")
    if TOUCH not in ("v1", "midq", "win", "bg"):
        dma_now(p, "wq", 1)
    if TOUCH == "aftertab":
        touch_streams(p, ptr2)

    def rd_tab(n):
        tb = V(64 + 16 * (n % 3), 16)
        for i, o in enumerate((0, 16, 128, 144)):
            p.ds_read("ds_read_b128", tb[4 * i:4 * i + 4], vtab, off=n * 256 + o)

    rd_tab(0)
    rd_tab(1)
    for n in range(16):
        tb = V(64 + 16 * (n % 3), 16)
        y = vY[8 * n:8 * n + 8]
        o4 = V(112 + 4 * (n & 3), 4)
        if n + 2 < 16:
            rd_tab(n + 2)
        for i in range(4):
            p.v("v_pk_fma_f32", y[2 * i:2 * i + 2], y[2 * i:2 * i + 2], tb[8 + 2 * i:10 + 2 * i], tb[2 * i:2 * i + 2])
        for i in range(4):
            p.v("v_cvt_pk_bf16_f32", o4[i], y[2 * i], y[2 * i + 1])
        p.ds_write("ds_write_b128", vhw, o4, off=n * 4096)
        if n == 7:
            T("h_half")
    T("h_tr")
    for i in range(8):
        zero16(p, vACC[16 * i:16 * i + 16], vz)
    if TOUCH == "bg":
        bg_q_setup(p)
    T("h_zero")
    p.barrier()
    T("h_ready")

    bc_main(p, T, store_flags=SC1, at_q_done=late_signals, before_norm=early_sample,
            o2_hooks=o2_hooks() if TWOPASS else None,
            mid_q={1: lambda q: touch_streams(q, ptr2, all_waves=True)} if TOUCH == "midq" else None,
            bg_q=bg_q if TOUCH == "bg" else None, bg_att=bg_att if TOUCH == "bg" else None,
            before_att=(lambda q: bg_att_setup(q, ptr2)) if TOUCH == "bg" else None)
    T("o_done")

    ptr3 = ptr2
    srd(p, rG, ptr3["wg"], SZ["wg"])
    srd(p, rU, ptr3["wu"], SZ["wu"])
    srd(p, rD, ptr3["wd"], SZ["wd"])
    srd(p, rOut, ptr3["out"], SZ["out"])
    d_ids(p)
    if not TWOPASS:
        r_addr(p)
        check_mod1(p)
        r_side_loads(p)
        r_mod_loads(p, (2,))
    signal(p, F_PART, S(2), "part", pre=confirm_early, T=T)
    T("part_sig")
    if EARLYW:
        p.s("s_cmp_eq_u32", sDact, 0)
        p.branch("s_cbranch_scc1", "M_no_dw_early")
        d_weights(p, drain=False)
        p.label("M_no_dw_early")
    if TWOPASS:
        r_mod_loads(p, (2,))
        r_sum(p, 0)
        T("r_sum0")
    p.s("s_lshl_b32", st[5], srb, 3)
    poll_flags(p, F_PART, st[5], 8, "part")
    T("r_go")
    if not TWOPASS:
        r_partial_loads(p, 0)
    r_partial_loads(p, 1)
    if not TWOPASS:
        r_sum(p, 0)
    r_sum(p, 1)
    T("r_sum")
    phase_r_compute(p, T)
    signal(p, F_H2, S(2), "h2")
    T("r_done")
    e_setup(p)

    def e_prefetch():
        for n in range(E_NSLOT):
            e_issue_w(p, n, n % 3, n // 3)

    p.s("s_cmp_eq_u32", sDact, 0)
    p.branch("s_cbranch_scc1", "M_no_d")
    phase_d(p, T, e_prefetch)
    if EARLYW:
        p.branch("s_branch", "M_e")
        p.label("M_no_d")
        e_early(p, "n")
        p.wait(vm=0)
        p.label("M_e")
    else:
        p.label("M_no_d")
        e_prefetch()
    T("d_done")
    phase_e(p, T)
    T("e_done")
    if diag:
        p.wait(vm=0)
    T("rt1", True)
    if diag == "dbg":
        p.s("s_cmp_lg_u32", S(2), DBGWG)
        p.branch("s_cbranch_scc1", "M_dbg_done")
        p.s("s_cmp_lg_u32", sw, 0)
        p.branch("s_cbranch_scc1", "M_dbg_done")
        p.v("v_readlane_b32", S(100), V(0), 0)
        p.v("v_subrev_u32", V(0), S(100), V(0))
        p.v("v_mbcnt_lo_u32_b32", vt[1], -1, 0)
        p.v("v_mbcnt_hi_u32_b32", vt[1], -1, vt[1])
        p.v("v_lshlrev_b32", vt[1], 2, vt[1])
        p.v("v_add_u32", vt[1], 12, vt[1])
        p.s("s_mov_b64", EXEC, 0x1FFE)
        p.bstore(V(0), vt[1], rDBG, soff=0)
        p.s("s_mov_b64", EXEC, -1)
        p.label("M_dbg_done")
    else:
        T.flush(rWS, sw, 1, vt[0], vt[1])
    gen_mega.stamp_names = T.names
    p.branch("s_branch", "B_end")
    slow_attention(p)
    p.label("B_end")
    resolve_ovw(p.ins)
    return finalize(p, {"gq": sLoop, "ga": sLoop, "go": sLoop, "gd": sLoop}, verbose=4, name="MEGA")


def assemble_mega(diag=False):
    from build import HEAD
    body = gen_mega(diag)
    s = HEAD + f"; @launch grid=(256,1,1) block=(256,1,1) lds={M_LDS}\n"
    s += '.amdgcn_target "amdgcn-amd-amdhsa--gfx950"\n'
    s += kernel_text(KNAME, body, 512, 256)
    return s


if __name__ == "__main__":
    import sys
    diag = len(sys.argv) > 2 and sys.argv[2] in ("diag", "dbg") and sys.argv[2]
    for a in sys.argv[3:]:
        k, v = a.split("=")
        globals()[k] = int(v) if v.isdigit() else v
        if k == "EXP":
            kb2.EXP = v
        if k == "DMAC":
            kb2.DMA_COST = int(v)
        if k == "NEWS":
            kb2.NEWS = int(v)
        if k == "DIST":
            kb2.DIST = int(v)
        if k == "ALIGN":
            import asmlib
            asmlib.ALIGN_LOOPS = int(v)
    txt = assemble_mega(diag)
    open(sys.argv[1], "w").write(txt)
    print("wrote", sys.argv[1], len(txt))
    if diag:
        print(",".join(gen_mega.stamp_names))
```

```python
from asmlib import *
from layout import *
from ka import srd

SLOT = 8192
WRING = 3 * SLOT
SH = 4 * WRING
B_LDS = SH + 65536
TAB = 2 * SLOT
LIMIT = float(2 ** 40)

vtid, vl = V(0), V(1)
vdQ, vdK, vdV = V(2, 8), V(10, 8), V(18, 4)
vtr, vK, vB, vlin = V(22, 8), V(30, 4), V(34), V(35)
vt = V(36, 8)
vtrP = V(44)
vtmp = V(46, 18)
vQ = V(64, 64)
vACC = V(128, 128)
vS = [V(128, 32), V(160, 32)]
vP = V(192, 16)
vNM = V(208, 16)
vW = V(224, 32)
aO, aL, aONE = A(0, 128), A(128, 16), A(144, 4)
aA, aK, aB = A(148, 16), A(164, 16), A(180, 48)
rWQ, rK, rV, rWO, rWS, rX = S(4, 4), S(8, 4), S(12, 4), S(16, 4), S(20, 4), S(24, 4)
sw, shg, srb, shead, srot = S(28), S(29), S(30), S(31), S(32)
sMW, sMS = S(33), S(34)
sA, sK, sV = S(35), S(36), S(37)
sLoop = S(38)
st = S(39, 6)
sPart = S(45)
sHi = S(46)
sexec = S(48, 2)


def acc(t, qt):
    return vACC[16 * t + 4 * qt:16 * t + 4 * qt + 4]


def oacc(dt, qt):
    return aO[16 * dt + 4 * qt:16 * dt + 4 * qt + 4]


def sreg(buf, kt, qt):
    return vS[buf][16 * kt + 4 * qt:16 * kt + 4 * qt + 4]


def afrag(i):
    return aA[4 * (i % 4):4 * (i % 4) + 4]


DIST = 2
aK8, aV8 = A(148, 32), A(180, 32)


def kfrag(i):
    if DIST == 4:
        return aK8[4 * (i % 8):4 * (i % 8) + 4]
    return aK[4 * (i % 4):4 * (i % 4) + 4]


def vfrag(i):
    if DIST == 4:
        return aV8[4 * (i % 8):4 * (i % 8) + 4]
    return afrag(i)


def bfrag(n, qt):
    o = 16 * (n % 3) + 4 * qt
    return aB[o:o + 4]


def qfrag(qt, s_):
    return vQ[16 * qt + 4 * s_:16 * qt + 4 * s_ + 4]


def dma_voffs(p, dst, stride, swz, n):
    p.v("v_lshrrev_b32", vt[0], 4, vl)
    p.v("v_and_b32", vt[1], 15, vl)
    p.s("s_mov_b32", st[0], stride)
    p.v("v_mul_lo_u32", vt[2], vt[0], st[0])
    npat = {"tr": 2, "n8": 4, "k": 4}[swz]
    for j in range(min(n, npat)):
        if swz == "tr":
            p.v("v_add_u32", vt[3], 4 * (j & 1), vt[0])
            p.v("v_lshlrev_b32", vt[3], 1, vt[3])
        elif swz == "n8":
            p.v("v_add_u32", vt[3], 4 * ((j >> 1) & 1), vt[0])
            p.v("v_lshlrev_b32", vt[3], 1, vt[3])
        else:
            p.v("v_add_u32", vt[3], 4 * (j & 3), vt[0])
        p.v("v_xor_b32", vt[3], vt[3], vt[1])
        p.v("v_lshlrev_b32", vt[3], 4, vt[3])
        p.v("v_add_u32", vt[4 + j], vt[3], vt[2])
    for j in range(n):
        k = 4 * j * stride - 1024 * (j & 3)
        src = vt[4 + j % npat]
        if k:
            p.v("v_add_u32", dst[j], k, src)
        else:
            p.v("v_mov_b32", dst[j], src)


KIND = {
    "wq": (rWQ, vdQ, sA, 32 * 8192, 0x3FFFFF),
    "wo": (rWO, vdQ, sA, 32 * 1024, 0x7FFFF),
    "wo2": (rWO, vdQ, sA, 64 * 1024, 0x7FFFF),
    "k": (rK, vdK, sK, SLOT, 0x1FFFF),
    "v": (rV, vdV, sV, SLOT, 0x1FFFF),
}


def ring_pos(kind, n):
    if kind in ("wq", "wo", "wo2"):
        return ("W", n % 3)
    if kind == "k":
        return ("W", 1 + (n & 1))
    return ("V", n & 1)


def dma_piece(kind, n, j):
    srd_, voffs, so, step, mask = KIND[kind]
    ring, pos = ring_pos(kind, n)
    q = Prog()
    pre = []
    if (j & 3) == 0:
        q.s("s_add_u32", M0, sMW if ring == "W" else sMS, pos * SLOT + (j >> 2) * 4096)
        pre, q.ins = q.ins, []
    voff = voffs[j] if kind != "v" else voffs[(j & 1) + 2 * (j >> 2)]
    x = q.dma(voff, srd_, so, off=1024 * (j & 3), tag=(kind, n))
    x.meta["into"] = (ring, pos)
    if j == 7:
        q.s("s_add_u32", so, so, step)
        q.s("s_and_b32", so, so, mask)
        if kind == "wo2" and n == 7:
            q.s("s_add_u32", so, so, 128)
    return pre, q.ins


def dma_piece3(kind, n, j):
    pre, main = dma_piece(kind, n, j)
    return pre, main[:1], main[1:]


def put_dma_alone(sc, kind, n, gaps, post_gaps):
    if "nodma" in EXP:
        return
    for j in range(8):
        pre, d, post = dma_piece3(kind, n, j)
        sc.fixed(gaps[j] - 1, pre)
        sc.fixed(gaps[j], d)
        for x, g in zip(post, post_gaps):
            sc.fixed(g, [x])


def dma_now(p, kind, n):
    for j in range(8):
        pre, main = dma_piece(kind, n, j)
        for x in pre:
            p.add(x)
        if pre:
            p.nop(0)
        for x in main:
            p.add(x)


def rd_tr(kind, n, t, dst):
    q = Prog()
    ring, pos = ring_pos(kind, n)
    second = 1024 if kind == "wq" else 4096
    for h in range(2):
        i = q.ds_read("ds_read_b64_tr_b16", dst[2 * h:2 * h + 2], vtr[t], off=pos * SLOT + second * h, dep=(kind, n))
        i.meta["from"] = (ring, pos)
    return q.ins


def rd_k(n, f, dst):
    q = Prog()
    kt, s_ = f >> 2, f & 3
    ring, pos = ring_pos("k", n)
    i = q.ds_read("ds_read_b128", dst, vK[s_], off=pos * SLOT + kt * 4096, dep=("k", n))
    i.meta["from"] = (ring, pos)
    return q.ins


def rd_b(n, qt, base_step):
    q = Prog()
    q.ds_read("ds_read_b128", bfrag(n, qt), vB, off=(n - base_step) * 4096 + qt * 1024)
    return q.ins


def resolve_ovw(ins):
    last = {}
    for x in ins:
        if x.kind == "ds_read" and "from" in x.meta:
            last[x.meta["from"]] = x.dep
        elif x.kind == "dma" and "into" in x.meta:
            x.ovw = last.get(x.meta["into"])


DMA_COST = 4
NEWS = 1
NEWS_XD, NEWS_XP = [3, 6, 11, 14, 19, 22, 26 + 2, 30], [31, 31]
NEWS_YD, NEWS_YP = [2, 8, 14, 16, 22, 24, 30, 32], [33, 34]


def cost(x):
    if x.kind == "trans":
        return 8
    if x.kind == "dma":
        return DMA_COST
    if x.kind in ("comment", "label", "need"):
        return 0
    return 4


class Sched:
    def __init__(self, mf):
        self.mf = mf
        n = len(mf)
        self.mem = [[] for _ in range(n)]
        self.oth = [[] for _ in range(n)]
        self.res = [0] * n

    def fixed(self, g, ins):
        g = max(0, min(g, len(self.mf) - 1))
        for x in ins:
            (self.mem if x.kind in ("ds_read", "dma", "vstore", "ds_write", "vload") else self.oth)[g].append(x)

    def reserve(self, g, c=4):
        if 0 <= g < len(self.mf):
            self.res[g] += c

    def used(self, g):
        return sum(map(cost, self.mem[g] + self.oth[g])) + self.res[g]

    def flow(self, seq, first=0, last=None, budget=8):
        n = len(self.mf) if last is None else last + 1
        rem = sum(cost(x) for x, _ in seq)
        i = 0
        for g in range(first, n):
            cap_after = sum(max(0, budget - self.used(h)) for h in range(g + 1, n))
            while i < len(seq) and seq[i][1] <= g:
                c = cost(seq[i][0])
                u = self.used(g)
                if u + c <= budget or (rem > cap_after and u + c <= budget + 4) or g == n - 1:
                    self.oth[g].append(seq[i][0])
                    rem -= c
                    i += 1
                else:
                    break
        assert i == len(seq), "unplaced fillers"

    def pack(self, exps, cvts, first=0, last=None):
        n = len(self.mf) if last is None else last + 1
        ei = ci = 0
        for g in range(first, n):
            done = ei
            while True:
                u = self.used(g)
                e_ok = ei < len(exps) and exps[ei][1] <= g
                c_ok = ci < len(cvts) and cvts[ci][1] <= done
                free8 = sum(1 for h in range(g + 1, n) if self.used(h) == 0)
                free4 = sum(max(0, 8 - self.used(h)) // 4 for h in range(g + 1, n))
                need8 = len(exps) - ei
                need4 = len(cvts) - ci
                behind = need8 * 2 + need4 > free4 or need8 > free8
                lastg = g == n - 1
                if e_ok and (u == 0 or lastg or (behind and u <= 4 and not (c_ok and u == 4))):
                    self.oth[g].append(exps[ei][0])
                    ei += 1
                elif c_ok and (u + 4 <= 8 or lastg or (behind and u <= 8 and need8 * 2 + need4 > free4 + 1)):
                    self.oth[g].append(cvts[ci][0])
                    ci += 1
                else:
                    break
        while ei < len(exps):
            self.oth[n - 1].append(exps[ei][0])
            ei += 1
        while ci < len(cvts):
            self.oth[n - 1].append(cvts[ci][0])
            ci += 1

    def profile(self):
        return [self.used(g) for g in range(len(self.mf))]

    def emit(self, p):
        for g, m in enumerate(self.mf):
            m()
            for x in self.mem[g] + self.oth[g]:
                p.add(x)


EXP = ""


def put_dma(sc, kind, n, gaps):
    if "nodma" in EXP:
        return
    for j in range(8):
        pre, main = dma_piece(kind, n, j)
        sc.fixed(gaps[j] - 1, pre)
        sc.fixed(gaps[j], main)


def gemm_step(p, kind, n, nxt, base_step, first, last, extra=None, tail=None):
    mf = []
    for t in range(8):
        for qt in range(4):
            def m(t=t, qt=qt):
                x = p.mfma16(acc(t, qt), afrag(t), bfrag(n, qt), acc(t, qt) if not first else 0)
                if qt == 0 and t % 2 == 0:
                    also(x, afrag(t + 1))
                if qt == 0 and t == 0:
                    also(x, [bfrag(n, k) for k in range(4)])
            mf.append(m)
    sc = Sched(mf)
    if NEWS:
        for t in range(0, 8, 2):
            g = 4 * t
            for k in range(2):
                tn, nn = (t + 2 + k) % 8, n + (t + 2 + k) // 8
                if not (last and nn > n) and "noa" not in EXP:
                    r = rd_tr(kind, nn, tn, afrag(t + 2 + k))
                    sc.fixed(g + 3 * k, r[:1])
                    sc.fixed(g + 3 * k + 1, r[1:])
            if not last and "nob" not in EXP:
                sc.fixed(g + (5 if t < 6 else 6), rd_b(n + 1, t // 2, base_step))
        if nxt is not None:
            put_dma_alone(sc, nxt[0], nxt[1], [2, 6, 10, 14, 18, 22, 26, 29], [30, 31, 31])
        if extra:
            for g, ins in extra.items():
                sc.fixed(g, ins)
        if tail:
            sc.flow(tail, budget=12)
        sc.emit(p)
        return
    for t in range(0, 8, 2):
        g = 4 * t
        for k in range(2):
            tn, nn = (t + 2 + k) % 8, n + (t + 2 + k) // 8
            if not (last and nn > n) and "noa" not in EXP:
                r = rd_tr(kind, nn, tn, afrag(t + 2 + k))
                sc.fixed(g + 2 * k, r[:1])
                sc.fixed(g + 2 * k + 1, r[1:])
        sc.reserve(g + 7)
        if not last and "nob" not in EXP:
            sc.fixed(g + 5, rd_b(n + 1, t // 2, base_step))
    if nxt is not None:
        put_dma(sc, nxt[0], nxt[1], [4 * t + (4 if t % 2 == 0 else 2) for t in range(8)])
    if extra:
        for g, ins in extra.items():
            sc.fixed(g, ins)
    if tail:
        sc.flow(tail, budget=12)
    if PROFILE:
        print("G", n, sc.profile())
    sc.emit(p)


def gemm_stage(p, kind, nxt_of, extra_of=None, group="gq", zeroed=False, tail=None, after_iter=None):
    for qt in range(4):
        for x in rd_b(0, qt, 0):
            p.add(x)
    for t in range(2):
        for x in rd_tr(kind, 0, t, afrag(t)):
            p.add(x)
    for it in range(6):
        mark(p, group, it)
        for n in range(3 * it, min(3 * it + 3, 16)):
            gemm_step(p, kind, n, nxt_of(n), 3 * it, n == 0 and not zeroed, n == 15,
                      extra_of(n) if extra_of else None, tail if n == 15 else None)
        if it < 5:
            p.v("v_add_u32", vB, 3 * 4096, vB)
        loop_dec(p)
        loop_branch(p)
        if after_iter and it in after_iter:
            mark(p, group, None)
            after_iter[it](p)
    mark(p, group, None) if not (after_iter and 5 in after_iter) else None
    p.v("v_subrev_u32", vB, 15 * 4096, vB)


def exp_list(buf, start, stop):
    q = Prog()
    order = [(qt, kt, r) for qt in range(4) for kt in range(2) for r in range(4)]
    for qt, kt, r in order[start:stop]:
        x = sreg(buf, kt, qt)[r]
        q.v("v_exp_f32", x, x)
    return q.ins


def cvt_list(buf):
    q = Prog()
    for qt in range(4):
        for kt in range(2):
            s_ = sreg(buf, kt, qt)
            for i in range(2):
                q.v("v_cvt_pk_bf16_f32", vP[4 * qt + 2 * kt + i], s_[2 * i], s_[2 * i + 1])
    return q.ins


N1 = 20


def x_tail_seq(cur):
    ex = exp_list(cur, N1, 32)
    cv = cvt_list(cur)
    return cv[0:4] + ex[0:2] + cv[4:8] + ex[2:4] + cv[8:10] + ex[4:8] + cv[10:12] + ex[8:12] + cv[12:16]


def also(x, regs):
    x.r |= set(units(regs))


def phase_x(p, t, first=False, dma=None, extra=None):
    buf = (t + 1) & 1
    mf = []
    for f in range(8):
        kt, s_ = f >> 2, f & 3
        for qt in range(4):
            def m(kt=kt, s_=s_, qt=qt, f=f):
                d = sreg(buf, kt, qt)
                c = d if s_ else (0 if first else vNM[4 * qt:4 * qt + 4])
                x = p.mfma16(d, kfrag(f), qfrag(qt, s_), c)
                if qt == 0 and f % 2 == 0:
                    also(x, kfrag(f + 1))
            mf.append(m)
    sc = Sched(mf)
    if NEWS:
        for f in range(0, 6, 2):
            g = 4 * f
            sc.fixed(g, rd_k(t + 1, f + 2, kfrag(f + 2)))
            sc.fixed(g + 1, rd_k(t + 1, f + 3, kfrag(f + 3)))
            sc.reserve(g + 7)
        if not first:
            r = rd_tr("v", t, 0, vfrag(0)) + rd_tr("v", t, 1, vfrag(1))
            for k in range(4):
                sc.fixed(24 + k, [r[k]])
        sc.reserve(31)
        if dma is not None:
            put_dma_alone(sc, dma[0], dma[1], NEWS_XD, NEWS_XP)
            for g in NEWS_XD:
                sc.reserve(g, 4)
        if extra:
            for g, ins in extra.items():
                sc.fixed(g, ins)
        if not first:
            ex = exp_list(t & 1, N1, 32)
            cv = cvt_list(t & 1)
            need = [max(0, v - (N1 - 20)) for v in ([0] * 10 + [4, 4] + [8, 8, 12, 12])] if N1 >= 20 else None
            sc.pack([(x, 0) for x in ex], list(zip(cv, need)), last=30)
        if PROFILE:
            print("X", sc.profile())
        sc.emit(p)
        return
    for f in range(0, 8, 2):
        g = 4 * f
        if f + DIST < 8:
            sc.fixed(g, rd_k(t + 1, f + DIST, kfrag(f + DIST)) + rd_k(t + 1, f + DIST + 1, kfrag(f + DIST + 1)))
        elif not first:
            v0 = f + DIST - 8
            sc.fixed(g, rd_tr("v", t, v0, vfrag(v0)))
            sc.fixed(g + 1, rd_tr("v", t, v0 + 1, vfrag(v0 + 1)))
            if v0 == 0:
                sc.reserve(g - 1)
        sc.reserve(g + 7)
    if dma is not None:
        put_dma(sc, dma[0], dma[1], [2, 7, 10, 15, 18, 22, 27, 30])
    if extra:
        for g, ins in extra.items():
            sc.fixed(g, ins)
    if not first:
        ex = exp_list(t & 1, N1, 32)
        cv = cvt_list(t & 1)
        need = [0] * 10 + [4, 4] + [8, 8, 12, 12]
        sc.pack([(x, 0) for x in ex], list(zip(cv, need)), last=30)
    if PROFILE:
        print("X", sc.profile())
    sc.emit(p)


PROFILE = False


def phase_y(p, t, last=False, dma=None, tail=None):
    mf = []
    for qt in range(4):
        def m(qt=qt):
            d = aL[4 * qt:4 * qt + 4]
            p.mfma16(d, aONE, vP[4 * qt:4 * qt + 4], d)
        mf.append(m)
    for dt in range(8):
        for qt in range(4):
            def m(dt=dt, qt=qt):
                d = oacc(dt, qt)
                x = p.mfma16(d, vfrag(dt), vP[4 * qt:4 * qt + 4], d)
                if qt == 0 and dt % 2 == 0:
                    also(x, vfrag(dt + 1))
            mf.append(m)
    sc = Sched(mf)
    if NEWS:
        for dt in range(0, 6, 2):
            g = 4 + 4 * dt
            sc.fixed(g, rd_tr("v", t, dt + 2, vfrag(dt + 2)))
            sc.fixed(g + 1, rd_tr("v", t, dt + 3, vfrag(dt + 3)))
            sc.reserve(g + 7)
        if t + 2 <= 15:
            sc.fixed(28, rd_k(t + 2, 0, kfrag(0)) + rd_k(t + 2, 1, kfrag(1)))
        sc.reserve(35)
        sc.reserve(3)
        if dma is not None:
            put_dma_alone(sc, dma[0], dma[1], NEWS_YD, NEWS_YP)
            for g in NEWS_YD:
                sc.reserve(g, 4)
        if not last:
            sc.pack([(x, 1) for x in exp_list((t + 1) & 1, 0, N1)], [])
        if tail:
            sc.flow(tail, budget=12)
        if PROFILE:
            print("Y", sc.profile())
        sc.emit(p)
        return
    for dt in range(0, 8, 2):
        g = 4 + 4 * dt
        if dt + DIST < 8:
            sc.fixed(g, rd_tr("v", t, dt + DIST, vfrag(dt + DIST)))
            sc.fixed(g + 1, rd_tr("v", t, dt + DIST + 1, vfrag(dt + DIST + 1)))
        elif t + 2 <= 15:
            k0 = dt + DIST - 8
            sc.fixed(g, rd_k(t + 2, k0, kfrag(k0)) + rd_k(t + 2, k0 + 1, kfrag(k0 + 1)))
            if k0 == 0:
                sc.reserve(g - 1)
        sc.reserve(g + 7)
    sc.reserve(3)
    if dma is not None:
        put_dma(sc, dma[0], dma[1], [3, 8, 11, 16, 19, 24, 27, 32])
    if not last:
        sc.pack([(x, 1) for x in exp_list((t + 1) & 1, 0, N1)], [])
    if tail:
        sc.flow(tail, budget=12)
    if PROFILE:
        print("Y", sc.profile())
    sc.emit(p)


def zero16(p, dst, vz):
    p.mfma32(dst, vz, vz, 0)


def tr_pattern(p, dst, natural):
    p.v("v_lshrrev_b32", vt[0], 4, vl)
    p.v("v_lshrrev_b32", vt[1], 2, vl)
    p.v("v_and_b32", vt[1], 3, vt[1])
    if natural:
        p.v("v_lshl_add_u32", vt[2], vt[0], 3, vt[1])
        p.v("v_and_b32", vt[0], 1, vt[0])
        p.v("v_lshl_add_u32", vt[3], vt[0], 2, vt[1])
    else:
        p.v("v_lshl_add_u32", vt[2], vt[0], 2, vt[1])
        p.v("v_and_b32", vt[3], 7, vt[2])
    p.v("v_lshlrev_b32", vt[3], 1, vt[3])
    p.v("v_and_b32", vt[4], 3, vl)
    p.v("v_lshrrev_b32", vt[5], 1, vt[4])
    p.v("v_xor_b32", vt[3], vt[3], vt[5])
    p.v("v_lshlrev_b32", vt[3], 4, vt[3])
    p.v("v_and_b32", vt[4], 1, vt[4])
    p.v("v_lshlrev_b32", vt[4], 3, vt[4])
    p.v("v_lshlrev_b32", vt[2], 8, vt[2])
    p.v("v_add3_u32", dst, vt[2], vt[3], vt[4])


def set_vtr(p, pattern, base):
    p.v("v_add_u32", vtr[0], base, pattern)
    for t in range(1, 8):
        p.v("v_xor_b32", vtr[t], t << 5, vtr[0])


def row_stats(p, gram, rsum, vq, vg, mu, rs, nmr, t0, t1):
    sq = t1
    p.v("v_and_b32", t0, 3, vq)
    p.v("v_cmp_eq_u32", VCC, 1, t0)
    p.v("v_cndmask_b32", sq, gram[0], gram[1])
    p.v("v_cmp_eq_u32", VCC, 2, t0)
    p.v("v_cndmask_b32", sq, sq, gram[2])
    p.v("v_cmp_eq_u32", VCC, 3, t0)
    p.v("v_cndmask_b32", sq, sq, gram[3])
    p.v("v_lshrrev_b32", t0, 2, vq)
    p.v("v_cmp_eq_u32", VCC, t0, vg)
    p.v("v_cndmask_b32", sq, 0, sq)
    for op in ("v_permlane32_swap_b32", "v_permlane16_swap_b32"):
        p.v("v_mov_b32", t0, sq)
        p.v(op, sq, t0)
        p.v("v_add_f32", sq, sq, t0)
    p.v("v_mul_f32", mu, 1.0 / 512, rsum[0])
    p.v("v_mul_f32", sq, 1.0 / 512, sq)
    p.v("v_fma_f32", sq, Neg(mu), mu, sq)
    p.v("v_max_f32", sq, 0, sq)
    p.v("v_add_f32", sq, 1e-5, sq)
    p.v("v_rsq_f32", rs, sq)
    p.v("v_mul_f32_e64", nmr, Neg(mu), rs)


def slow_attention(p):
    q = p
    q.label("B_slow")
    q.wait(vm=0, lgkm=0)
    vM = vW[0:4]
    for qt in range(4):
        q.v("v_mov_b32", vM[qt], 0xFF800000)
    vz = vW[4:8]
    for i in range(4):
        q.v("v_mov_b32", vz[i], 0)
    sT = st[4]

    def load_tile(with_v):
        q.s("s_lshl_b32", sK, sT, 13)
        q.s("s_mov_b32", sV, sK)
        dma_now(q, "k", 1)
        if with_v:
            dma_now(q, "v", 0)
        q.wait(vm=0)

    def scores(cinit):
        for f in range(8):
            kt, s_ = f >> 2, f & 3
            for x in rd_k(1, f, kfrag(f)):
                q.add(x)
            for qt in range(4):
                d = sreg(0, kt, qt)
                q.mfma16(d, kfrag(f), qfrag(qt, s_), d if s_ else cinit(qt))

    q.s("s_mov_b32", sT, 0)
    q.label("B_slow_p1")
    load_tile(False)
    scores(lambda qt: 0)
    for qt in range(4):
        a, b = sreg(0, 0, qt), sreg(0, 1, qt)
        q.v("v_max3_f32", vM[qt], vM[qt], a[0], a[1])
        q.v("v_max3_f32", vM[qt], vM[qt], a[2], a[3])
        q.v("v_max3_f32", vM[qt], vM[qt], b[0], b[1])
        q.v("v_max3_f32", vM[qt], vM[qt], b[2], b[3])
    q.wait(vm=0, lgkm=0)
    q.s("s_add_u32", sT, sT, 1)
    q.s("s_cmp_lt_u32", sT, 16)
    q.add(I("s_cbranch_scc1 B_slow_p1", "salu"))
    for qt in range(4):
        m = vM[qt]
        for op in ("v_permlane32_swap_b32", "v_permlane16_swap_b32"):
            q.v("v_mov_b32", vW[8], m)
            q.v(op, m, vW[8])
            q.v("v_max_f32", m, m, vW[8])
        for r in range(4):
            q.v("v_sub_f32", vNM[4 * qt + r], 0, m)
    for i in range(8):
        zero16(q, aO[16 * i:16 * i + 16], vz)
    zero16(q, aL, vz)
    q.s("s_mov_b32", sT, 0)
    q.label("B_slow_p2")
    load_tile(True)
    scores(lambda qt: vNM[4 * qt:4 * qt + 4])
    for x in exp_list(0, 0, 32) + cvt_list(0):
        q.add(x)
    for qt in range(4):
        d = aL[4 * qt:4 * qt + 4]
        q.mfma16(d, aONE, vP[4 * qt:4 * qt + 4], d)
    for dt in range(8):
        for x in rd_tr("v", 0, dt, afrag(dt)):
            q.add(x)
        for qt in range(4):
            d = oacc(dt, qt)
            q.mfma16(d, afrag(dt), vP[4 * qt:4 * qt + 4], d)
    q.wait(vm=0, lgkm=0)
    q.nop(15)
    q.s("s_add_u32", sT, sT, 1)
    q.s("s_cmp_lt_u32", sT, 16)
    q.add(I("s_cbranch_scc1 B_slow_p2", "salu"))
    q.nop(15)
    q.add(I("s_branch B_norm", "salu"))


def wo2_setup(p):
    p.v("v_lshrrev_b32", vt[0], 3, vl)
    p.v("v_lshlrev_b32", vt[1], 10, vt[0])
    p.v("v_lshrrev_b32", vt[0], 1, vt[0])
    p.v("v_lshlrev_b32", vt[0], 1, vt[0])
    p.v("v_and_b32", vt[2], 7, vl)
    p.v("v_xor_b32", vt[0], vt[0], vt[2])
    p.v("v_lshl_add_u32", vt[0], vt[0], 4, vt[1])
    for j in range(8):
        k = 8 * j * 1024 - 1024 * (j & 3)
        if k:
            p.v("v_add_u32", vdQ[j], k, vt[0])
        else:
            p.v("v_mov_b32", vdQ[j], vt[0])
    p.s("s_and_b32", sA, srb, 7)
    p.s("s_lshl_b32", sA, sA, 16)
    p.s("s_lshl_b32", st[1], sw, 8)
    p.s("s_add_u32", sA, sA, st[1])


def wo2_read_setup(p):
    p.v("v_lshrrev_b32", vt[0], 2, vl)
    p.v("v_lshlrev_b32", vt[1], 7, vt[0])
    p.v("v_lshrrev_b32", vt[0], 1, vt[0])
    p.v("v_and_b32", vt[0], 3, vt[0])
    p.v("v_lshlrev_b32", vt[0], 1, vt[0])
    p.v("v_and_b32", vt[2], 3, vl)
    p.v("v_lshrrev_b32", vt[3], 1, vt[2])
    p.v("v_xor_b32", vt[0], vt[0], vt[3])
    p.v("v_lshlrev_b32", vt[0], 4, vt[0])
    p.v("v_and_b32", vt[2], 1, vt[2])
    p.v("v_lshlrev_b32", vt[2], 3, vt[2])
    p.v("v_add3_u32", vtr[0], vt[0], vt[1], vt[2])
    p.v("v_add_u32", vtr[0], sMW, vtr[0])
    for t in range(1, 4):
        p.v("v_xor_b32", vtr[t], t << 5, vtr[0])


def rd_o2(m, f, dst):
    q = Prog()
    ring, pos = ring_pos("wo2", m)
    kap, t = f >> 2, f & 3
    for h in range(2):
        i = q.ds_read("ds_read_b64_tr_b16", dst[2 * h:2 * h + 2], vtr[t], off=pos * SLOT + kap * 4096 + h * 2048,
                      dep=("wo2", m))
        i.meta["from"] = (ring, pos)
    return q.ins


def rd_b2(s_, qt):
    q = Prog()
    q.ds_read("ds_read_b128", bfrag(s_, qt), vB, off=(s_ & 15) * 4096 + qt * 1024)
    return q.ins


def part_store_seq(P, store_flags, tag):
    q = Prog()
    seq = []
    for jj in range(2):
        j = 2 * P + jj
        for qt in range(4):
            k = (4 * jj + qt) & 3
            o4 = vtmp[4 * k:4 * k + 4]
            a0, a1 = acc(2 * j, qt), acc(2 * j + 1, qt)
            q.v("v_cvt_pk_bf16_f32", o4[0], a0[0], a0[1])
            q.v("v_cvt_pk_bf16_f32", o4[1], a0[2], a0[3])
            q.v("v_cvt_pk_bf16_f32", o4[2], a1[0], a1[1])
            q.v("v_cvt_pk_bf16_f32", o4[3], a1[2], a1[3])
            q.bstore(o4, vlin, rWS, soff=sPart, off=qt * 1024, flags=store_flags, tag=tag)
            if qt == 3:
                q.s("s_add_u32", sPart, sPart, 4096)
            seq.append((jj, qt, q.ins))
            q.ins = []
    return seq


def stage_o2(p, T, store_flags, hooks):
    for qt in range(4):
        for x in rd_b2(0, qt):
            p.add(x)
    for f in range(2):
        for x in rd_o2(0, f, afrag(f)):
            p.add(x)
    for m in range(16):
        P = m >> 3
        first = (m & 7) == 0
        mf = []
        for f in range(8):
            kap, t = f >> 2, f & 3
            for qt in range(4):
                def mm(f=f, kap=kap, t=t, qt=qt):
                    d = acc(4 * P + t, qt)
                    x = p.mfma16(d, afrag(f), bfrag(2 * m + kap, qt), 0 if (first and kap == 0) else d)
                    if qt == 0 and f % 2 == 0:
                        also(x, afrag(f + 1))
                    if qt == 0 and t == 0:
                        also(x, [bfrag(2 * m + kap, k) for k in range(4)])
                mf.append(mm)
        sc = Sched(mf)
        for f in range(0, 8, 2):
            g = 4 * f
            for k in range(2):
                fn, mn = (f + 2 + k) % 8, m + (f + 2 + k) // 8
                if mn < 16:
                    r = rd_o2(mn, fn, afrag(f + 2 + k))
                    sc.fixed(g + 2 * k, r[:1])
                    sc.fixed(g + 2 * k + 1, r[1:])
            sc.reserve(g + 7)
        for kap in range(2):
            s_ = 2 * m + kap + 1
            if s_ < 32:
                for qt in range(4):
                    sc.fixed(16 * kap + 4 + 2 * qt + (1 if qt >= 2 else 0), rd_b2(s_, qt))
        if m + 2 < 16:
            gaps = [4 * t + (2 if t % 2 == 0 else 3) for t in range(8)] if m != 8 else list(range(1, 9))
            put_dma(sc, "wo2", m + 2, gaps)
        for g, ins in hooks.get(m, {}).items():
            sc.fixed(g, ins)
        if m == 8:
            seq = []
            for jj, qt, ins in part_store_seq(0, store_flags, "part1"):
                seq += [(x, 9) for x in ins]
            sc.flow(seq, budget=16)
        sc.emit(p)
        if m in (7, 9, 11, 13, 15):
            T(f"o_m{m}")
    if "before_last_stores" in hooks:
        hooks["before_last_stores"](p)
        T("o_ld0")
    for jj, qt, ins in part_store_seq(1, store_flags, "part2"):
        for x in ins:
            p.add(x)


def bc_setup(p, ptr):
    vq, vg = vtmp[0], vtmp[1]
    p.s("s_lshl_b32", st[1], shead, 19)
    p.s("s_add_u32", st[1], st[1], 1536 * 256)
    for r_, k in ((rK, "k"), (rV, "v")):
        p.s("s_add_u32", r_[0], ptr[k][0], st[1])
        p.s("s_addc_u32", r_[1], ptr[k][1], 0)
        p.s("s_mov_b32", r_[2], 16 * SLOT)
        p.s("s_mov_b32", r_[3], 0x20000)
    p.s("s_lshl_b32", st[1], shg, 19)
    p.s("s_add_u32", rWO[0], ptr["wo"][0], st[1])
    p.s("s_addc_u32", rWO[1], ptr["wo"][1], 0)
    p.s("s_mov_b32", rWO[2], 512 * 1024)
    p.s("s_mov_b32", rWO[3], 0x20000)
    p.s("s_lshl_b32", sK, srot, 13)
    p.s("s_mov_b32", sV, sK)
    dma_voffs(p, vdK, 256, "k", 8)
    dma_voffs(p, vt[0:8] if False else vdV, 256, "tr", 2)
    p.v("v_add_u32", vdV[2], 4096, vdV[0])
    p.v("v_add_u32", vdV[3], 4096, vdV[1])
    tr_pattern(p, vtrP, False)
    tr_pattern(p, vtr[0], True)
    set_vtr(p, vtr[0], sMW)
    p.v("v_xor_b32", vt[1], vg, vq)
    p.v("v_lshlrev_b32", vt[1], 4, vt[1])
    p.v("v_lshlrev_b32", vt[0], 8, vq)
    p.v("v_add3_u32", vK[0], vt[0], vt[1], sMW)
    for s_ in range(1, 4):
        p.v("v_xor_b32", vK[s_], s_ << 6, vK[0])
    p.v("v_add_u32", vB, SH, vlin)
    vone = vtmp[4:8]
    vz = vtmp[8:12]
    for i in range(4):
        p.v("v_mov_b32", vone[i], 0x3F803F80)
        p.v("v_mov_b32", vz[i], 0)
    for i in range(4):
        p.v("v_accvgpr_write_b32", aONE[i], vone[i])
    for i in range(8):
        zero16(p, aO[16 * i:16 * i + 16], vz)
    zero16(p, aL, vz)
    p.s("s_mul_i32", sPart, shg, 32)
    p.s("s_add_u32", sPart, sPart, srb)
    p.s("s_mul_i32", sPart, sPart, PART_BLK)
    p.s("s_lshl_b32", st[1], sw, 14)
    p.s("s_add_u32", sPart, sPart, st[1])
    p.s("s_add_u32", sPart, sPart, WS_PART)


def bc_main(p, T, store_flags="", after_q=None, at_q_done=None, before_norm=None, o2_hooks=None, mid_q=None, bg_q=None, bg_att=None, before_att=None):
    def nxt_q(n):
        return ("wq", n + 2) if n + 2 < 16 else ("k", n + 2 - 16)

    def extra_q(n):
        if n != 15:
            return bg_q(n) if bg_q else None
        q = Prog()
        q.barrier(drain_lds=False)
        return {3: q.ins}

    gemm_stage(p, "wq", nxt_q, extra_q, "gq", zeroed=True, after_iter=mid_q)
    T("q_done")
    if at_q_done:
        at_q_done(p)
    dma_now(p, "v", 0)
    for s_ in range(4):
        for qt in range(4):
            d = qfrag(qt, s_)
            a0, a1 = acc(2 * s_, qt), acc(2 * s_ + 1, qt)
            p.v("v_cvt_pk_bf16_f32", d[0], a0[0], a0[1])
            p.v("v_cvt_pk_bf16_f32", d[1], a0[2], a0[3])
            p.v("v_cvt_pk_bf16_f32", d[2], a1[0], a1[1])
            p.v("v_cvt_pk_bf16_f32", d[3], a1[2], a1[3])
        for op in ("v_permlane32_swap_b32", "v_permlane16_swap_b32"):
            for qt in range(4):
                d = qfrag(qt, s_)
                p.v(op, d[0], d[2])
                p.v(op, d[1], d[3])
        if s_ == 0:
            for f in range(DIST):
                for x in rd_k(0, f, kfrag(f)):
                    p.add(x)
    set_vtr(p, vtrP, sMS)
    two = o2_hooks is not None
    wo = "wo2" if two else "wo"
    if two:
        wo2_setup(p)
    else:
        dma_voffs(p, vdQ, 1024, "tr", 8)
        p.s("s_lshl_b32", sA, srot, 15)
        p.s("s_lshl_b32", st[1], sw, 8)
        p.s("s_add_u32", sA, sA, st[1])

    T("q_epi")
    if before_att:
        before_att(p)
    if after_q:
        after_q(p)
    phase_x(p, -1, first=True)
    dma_now(p, "k", 2)
    for qt in range(4):
        a, b = sreg(0, 0, qt), sreg(0, 1, qt)
        m = vt[qt]
        p.v("v_max3_f32", m, a[0], a[1], a[2])
        p.v("v_max3_f32", m, m, a[3], b[0])
        p.v("v_max3_f32", m, m, b[1], b[2])
        p.v("v_max_f32", m, m, b[3])
    for op in ("v_permlane32_swap_b32", "v_permlane16_swap_b32"):
        for qt in range(4):
            p.v("v_mov_b32", vt[4 + qt], vt[qt])
        for qt in range(4):
            p.v(op, vt[qt], vt[4 + qt])
        for qt in range(4):
            p.v("v_max_f32", vt[qt], vt[qt], vt[4 + qt])
    for qt in range(4):
        for r in range(4):
            p.v("v_sub_f32", vNM[4 * qt + r], 0, vt[qt])
    for qt in range(4):
        for kt in range(2):
            for r in range(4):
                x = sreg(0, kt, qt)[r]
                p.v("v_sub_f32", x, x, vt[qt])
    for f in range(DIST):
        for x in rd_k(1, f, kfrag(f)):
            p.add(x)
    for x in exp_list(0, 0, N1):
        p.add(x)
    T("att_pro")
    for it in range(7):
        mark(p, "ga", it)
        for t in (2 * it, 2 * it + 1):
            phase_x(p, t, dma=("v", t + 1), extra=bg_att(t) if bg_att else None)
            phase_y(p, t, dma=("k", t + 3))
        loop_dec(p)
        loop_branch(p)
    mark(p, "ga", None)
    T("att_loop")
    phase_x(p, 14, dma=("v", 15))
    phase_y(p, 14, dma=(wo, 0))
    for i, x in enumerate(x_tail_seq(1)):
        p.add(x)
        if i == 4:
            for t in range(DIST):
                for y in rd_tr("v", 15, t, vfrag(t)):
                    p.add(y)
    phase_y(p, 15, last=True, dma=(wo, 1))

    T("att_done")
    if before_norm:
        before_norm(p)
    rinv = vW[0:4]
    for qt in range(4):
        p.v("v_accvgpr_read_b32", rinv[qt], aL[4 * qt])
    p.v("v_add_f32", vt[0], rinv[0], rinv[1])
    p.v("v_add_f32", vt[1], rinv[2], rinv[3])
    p.v("v_add_f32", vt[0], vt[0], vt[1])
    p.v("v_cmp_gt_f32", VCC, LIMIT, vt[0])
    p.add(I("s_cmp_eq_u64 vcc, exec", "salu", (), units(VCC)))
    p.branch("s_cbranch_scc0", "B_slow")
    p.label("B_norm")
    p.barrier()
    for qt in range(4):
        p.v("v_accvgpr_read_b32", rinv[qt], aL[4 * qt])
    for qt in range(4):
        p.v("v_rcp_f32", rinv[qt], rinv[qt])
    r2 = vW[4:12]
    for qt in range(4):
        p.v("v_mov_b32", r2[2 * qt], rinv[qt])
        p.v("v_mov_b32", r2[2 * qt + 1], rinv[qt])
    vow = vW[12:16]
    for s_ in range(4):
        p.s("s_lshl_b32", st[1], sw, 2)
        p.s("s_add_u32", st[1], st[1], s_ + 16)
        if two:
            p.s("s_and_b32", st[2], srb, 7)
            p.s("s_lshl_b32", st[2], st[2], 1)
            p.s("s_sub_u32", st[1], st[1], st[2])
        else:
            p.s("s_sub_u32", st[1], st[1], srot)
        p.s("s_and_b32", st[1], st[1], 15)
        p.s("s_lshl_b32", st[1], st[1], 12)
        p.s("s_add_u32", st[1], st[1], SH)
        p.v("v_add_u32", vow[s_], st[1], vlin)
    first = True
    for s_ in range(4):
        for qt in range(4):
            k = (4 * s_ + qt) & 3
            x = V(128 + 8 * k, 8)
            o4 = V(160 + 4 * (4 * s_ + qt), 4)
            for h in range(2):
                src = oacc(2 * s_ + h, qt)
                for r in range(4):
                    p.v("v_accvgpr_read_b32", x[4 * h + r], src[r])
            for e in range(4):
                p.v("v_pk_mul_f32", x[2 * e:2 * e + 2], x[2 * e:2 * e + 2], r2[2 * qt:2 * qt + 2])
            for i in range(4):
                p.v("v_cvt_pk_bf16_f32", o4[i], x[2 * i], x[2 * i + 1])
            p.ds_write("ds_write_b128", vow[s_], o4, off=qt * 1024)
    T("norm")
    if two:
        wo2_read_setup(p)
    else:
        set_vtr(p, vtrP, sMW)
    p.barrier()
    T("o_xchg")

    if two:
        stage_o2(p, T, store_flags, o2_hooks)
        return
    q = Prog()
    tail = []
    for j in range(4):
        for qt in range(4):
            k = (4 * j + qt) & 3
            o4 = vtmp[4 * k:4 * k + 4]
            a0, a1 = acc(2 * j, qt), acc(2 * j + 1, qt)
            g0 = 4 * (2 * j + 1) + qt + 3
            q.v("v_cvt_pk_bf16_f32", o4[0], a0[0], a0[1])
            q.v("v_cvt_pk_bf16_f32", o4[1], a0[2], a0[3])
            q.v("v_cvt_pk_bf16_f32", o4[2], a1[0], a1[1])
            q.v("v_cvt_pk_bf16_f32", o4[3], a1[2], a1[3])
            q.bstore(o4, vlin, rWS, soff=sPart, off=qt * 1024, flags=store_flags)
            if qt == 3 and j < 3:
                q.s("s_add_u32", sPart, sPart, 4096)
            tail += [(x, min(g0, 31)) for x in q.ins]
            q.ins = []
    gemm_stage(p, "wo", lambda n: ("wo", n + 2) if n + 2 < 16 else None, None, "go", tail=tail)


def gen_b(diag=False):
    p = Prog()
    T = Stamps(p, diag)
    p.s("s_cmp_ge_u32", S(2), 256)
    p.branch("s_cbranch_scc1", "B_end")
    T("rt0", True)
    T("start")
    ptr = {k: S(52 + 2 * i, 2) for i, k in enumerate(["x", "wq", "ws", "k", "v", "wo"])}
    for k in ptr:
        p.s_load(ptr[k], S(0, 2), ARG[k])
    p.v("v_lshrrev_b32", vt[0], 6, vtid)
    p.v("v_and_b32", vl, 63, vtid)
    p.v("v_readfirstlane_b32", sw, vt[0])
    p.s("s_and_b32", shg, S(2), 7)
    p.s("s_lshr_b32", srb, S(2), 3)
    p.s("s_and_b32", srot, srb, 15)
    p.s("s_lshl_b32", shead, shg, 2)
    p.s("s_mov_b32", sHi, 0xFFFF0000)
    vq, vg = vtmp[0], vtmp[1]
    p.v("v_and_b32", vq, 15, vl)
    p.v("v_lshrrev_b32", vg, 4, vl)
    p.v("v_lshlrev_b32", vlin, 4, vl)
    p.s("s_add_u32", shead, shead, sw)
    p.s("s_mul_i32", sMW, sw, WRING)
    p.s("s_lshl_b32", sMS, sw, 14)
    p.s("s_add_u32", sMS, sMS, SH)
    vxo = vtmp[2]
    p.s("s_lshl_b32", st[0], srb, 6)
    p.s("s_lshl_b32", st[1], sw, 4)
    p.s("s_add_u32", st[0], st[0], st[1])
    p.v("v_add_u32", vxo, st[0], vq)
    p.v("v_lshlrev_b32", vxo, 10, vxo)
    p.v("v_lshl_add_u32", vxo, vg, 4, vxo)
    p.wait(lgkm=0)
    srd(p, rX, ptr["x"], SZ["x"])
    vX = V(64, 64)
    p.s("s_lshl_b32", st[0], srot, 6)
    for n in range(16):
        p.bload(vX[4 * n:4 * n + 4], vxo, rX, soff=st[0])
        if n < 15:
            p.s("s_add_u32", st[0], st[0], 64)
            p.s("s_and_b32", st[0], st[0], 0x3FF)
    T("issued")
    bc_setup(p, ptr)
    vone, vz = vtmp[4:8], vtmp[8:12]
    srd(p, rWQ, ptr["wq"], SZ["wq"])
    srd(p, rWS, ptr["ws"], WS_DIAG_END if diag else WS_END)
    dma_voffs(p, vdQ, 8192, "n8", 8)
    p.s("s_lshl_b32", sA, srot, 18)
    p.s("s_lshl_b32", st[1], shead, 8)
    p.s("s_add_u32", sA, sA, st[1])
    dma_now(p, "wq", 0)
    p.s("s_lshl_b32", st[1], sw, 2)
    p.s("s_add_u32", st[1], st[1], srot)
    p.v("v_add_u32", vt[0], st[1], vg)
    p.v("v_and_b32", vt[0], 15, vt[0])
    p.v("v_lshlrev_b32", vt[0], 7, vt[0])
    p.v("v_lshrrev_b32", vt[1], 3, vq)
    p.v("v_lshl_add_u32", vt[0], vt[1], 11, vt[0])
    p.v("v_and_b32", vt[1], 7, vq)
    p.v("v_lshl_add_u32", vt[0], vt[1], 4, vt[0])
    p.s("s_lshl_b32", st[1], sw, 10)
    p.s("s_add_u32", M0, st[1], TAB)
    p.s("s_mov_b32", st[1], WS_MOD)
    p.dma(vt[0], rWS, st[1], tag="tab")
    dma_now(p, "wq", 1)
    T("setup")

    gram, rsum = vtmp[12:16], V(224, 4)
    for n in range(16):
        xs = vX[4 * n:4 * n + 4]
        p.mfma16(gram, xs, xs, gram if n else 0)
        p.mfma16(rsum, vone, xs, rsum if n else 0)
    vwu = A(240, 8)
    p.v("v_lshlrev_b32", vt[0], 6, vl)
    p.s("s_add_u32", st[1], sK, 4096)
    p.bload(vwu[0], vt[0], rK, soff=sK)
    p.bload(vwu[1], vt[0], rK, soff=st[1])
    p.bload(vwu[2], vt[0], rV, soff=sK)
    p.bload(vwu[3], vt[0], rV, soff=st[1])
    p.v("v_lshrrev_b32", vt[0], 2, vl)
    p.v("v_lshlrev_b32", vt[0], 10, vt[0])
    p.v("v_and_b32", vt[1], 3, vl)
    p.v("v_lshl_add_u32", vt[0], vt[1], 6, vt[0])
    p.s("s_lshl_b32", st[1], srot, 15)
    p.s("s_lshl_b32", st[2], sw, 8)
    p.s("s_add_u32", st[1], st[1], st[2])
    p.bload(vwu[4], vt[0], rWO, soff=st[1])
    p.s("s_add_u32", st[1], st[1], 16384)
    p.bload(vwu[5], vt[0], rWO, soff=st[1])
    mu, rs2, nm2 = V(236), V(238, 2), V(240, 2)
    row_stats(p, gram, rsum, vq, vg, mu, rs2[0], nm2[0], vt[0], vt[1])
    p.v("v_mov_b32", rs2[1], rs2[0])
    p.v("v_mov_b32", nm2[1], nm2[0])
    T("stats")
    p.barrier(dep="tab")
    T("tab")
    vtab = vt[2]
    p.v("v_lshlrev_b32", vtab, 5, vg)
    p.v("v_add_u32", vtab, TAB, vtab)
    vhw = vt[3]
    p.s("s_lshl_b32", st[1], sw, 10)
    p.s("s_add_u32", st[1], st[1], SH)
    p.v("v_add_u32", vhw, st[1], vlin)
    def rd_tab(n):
        tb = V(128 + 16 * (n % 3), 16)
        for i, o in enumerate((0, 16, 128, 144)):
            p.ds_read("ds_read_b128", tb[4 * i:4 * i + 4], vtab, off=n * 256 + o)

    rd_tab(0)
    rd_tab(1)
    for n in range(16):
        k = n & 1
        tb = V(128 + 16 * (n % 3), 16)
        y = V(176 + 8 * k, 8)
        o4 = V(192 + 4 * k, 4)
        if n + 2 < 16:
            rd_tab(n + 2)
        xs = vX[4 * n:4 * n + 4]
        for i in range(4):
            p.v("v_lshlrev_b32", y[2 * i], 16, xs[i])
            p.v("v_and_b32", y[2 * i + 1], sHi, xs[i])
        for i in range(4):
            p.v("v_pk_fma_f32", y[2 * i:2 * i + 2], y[2 * i:2 * i + 2], rs2, nm2)
        for i in range(4):
            p.v("v_pk_fma_f32", y[2 * i:2 * i + 2], y[2 * i:2 * i + 2], tb[8 + 2 * i:10 + 2 * i], tb[2 * i:2 * i + 2])
        for i in range(4):
            p.v("v_cvt_pk_bf16_f32", o4[i], y[2 * i], y[2 * i + 1])
        p.ds_write("ds_write_b128", vhw, o4, off=n * 4096)
    for i in range(8):
        zero16(p, vACC[16 * i:16 * i + 16], vz)
    T("h")
    p.barrier()
    T("h_ready")

    bc_main(p, T)
    T("o_done")
    if diag:
        p.wait(vm=0)
    T("drained")
    T("rt1", True)
    T.flush(rWS, sw, 1, vt[0], vt[1])
    gen_b.stamp_names = T.names
    p.branch("s_branch", "B_end")
    slow_attention(p)
    p.label("B_end")
    resolve_ovw(p.ins)
    return finalize(p, {"gq": sLoop, "ga": sLoop, "go": sLoop}, verbose=8, name="BC")


if __name__ == "__main__":
    txt = gen_b()
    open("kb2.s", "w").write(txt)
    print(len(txt.splitlines()))
```

```python
from asmlib import *
from layout import *
from ka import srd, bf16_round_hi
import kb2
from kb2 import *

KNAME = NAME + "_kernel"
M_LDS = B_LDS
SC1 = "sc1"
TOUCH = "v1"
CODEPF = 0
SLAB1EARLY = 0
TWOPASS = 0
POLLSLEEP = 2
SLABMAP = 0
ILV = 1
EROT = 1
SLABW = 0
MLPTOUCH = "all"
EARLYW = 1
NOMEM = 0
KVTOUCH = 1

DBG_MOD0 = 0
DBG_MOD1 = 8
DBG_CLR = 12
DBG_FLAG0 = 128
N_CNT = 256
N_MOD0, N_MOD1 = 32, 64
F_PART, F_H2, F_ACT, F_PART1 = 0, 1, 2, 3

rDBG = S(96, 4)
rTMP = S(92, 4)
rTMP2 = S(72, 4)
sTag = S(90)
aT = A(253)
sp0, sp1 = S(50), S(51)
rG, rU, rD, rOut = rWQ, rK, rV, rWO
vpoll = V(63)
vtid2 = V(45)


def poll(p, srd_, off, target, name, sleep=16):
    lab, done = f"P_{name}", f"P_{name}_done"
    p.s("s_cmp_lg_u32", sw, 0)
    p.branch("s_cbranch_scc1", done)
    p.s("s_mov_b32", sp1, 0)
    p.label(lab)
    p.bload(V(62), vpoll, srd_, soff=0, off=off, flags=SC1)
    p.wait(vm=0)
    p.v("v_readfirstlane_b32", sp0, V(62))
    p.s("s_cmp_ge_u32", sp0, target)
    p.branch("s_cbranch_scc1", done)
    p.s("s_add_u32", sp1, sp1, 1)
    p.s("s_cmp_lt_u32", sp1, 0x20000)
    p.raw(f"s_sleep {sleep}")
    p.add(I(f"s_cbranch_scc1 {lab}", "salu"))
    p.label(done)
    p.barrier(drain_lds=True)


vflag = V(61)


def poll_flags(p, kind, sfirst, count, name):
    lab, done = f"P_{name}", f"P_{name}_done"
    p.s("s_cmp_lg_u32", sw, 0)
    p.branch("s_cbranch_scc1", done)
    p.s("s_mov_b32", sp1, 0)
    p.v("v_min_u32", vflag, count - 1, vl)
    p.v("v_lshlrev_b32", vflag, 7, vflag)
    p.s("s_lshl_b32", sp0, sfirst, 7)
    p.s("s_add_u32", S(47), sp0, WS_FLAG + kind * 256 * 128)
    p.label(lab)
    p.bload(V(62), vflag, rWS, soff=S(47), flags=SC1)
    p.wait(vm=0)
    p.v("v_cmp_eq_u32", VCC, sTag, V(62))
    p.add(I("s_cmp_eq_u64 vcc, exec", "salu", (), units(VCC)))
    p.branch("s_cbranch_scc1", done)
    p.s("s_add_u32", sp1, sp1, 1)
    p.s("s_cmp_lt_u32", sp1, 0x40000)
    p.raw(f"s_sleep {POLLSLEEP}") if POLLSLEEP else p.nop(0)
    p.add(I(f"s_cbranch_scc1 {lab}", "salu"))
    p.label(done)
    p.barrier(drain_lds=True)


def set_flag(p, kind, sindex, value):
    p.v("v_mov_b32", V(62), value)
    p.v("v_mov_b32", vpoll, 0)
    p.s("s_lshl_b32", sp0, sindex, 7)
    p.s("s_add_u32", sp0, sp0, WS_FLAG + kind * 256 * 128)
    p.s("s_mov_b64", EXEC, 1)
    p.bstore(V(62), vpoll, rWS, soff=sp0, flags=SC1)
    p.s("s_mov_b64", EXEC, -1)


def spin(p, srd_, off, target, name):
    lab, done = f"W_{name}", f"W_{name}_done"
    p.s("s_mov_b32", sp1, 0)
    p.label(lab)
    p.bload(V(62), vpoll, srd_, soff=0, off=off, flags=SC1)
    p.wait(vm=0)
    p.v("v_readfirstlane_b32", sp0, V(62))
    p.s("s_cmp_ge_u32", sp0, target)
    p.branch("s_cbranch_scc1", done)
    p.s("s_add_u32", sp1, sp1, 1)
    p.s("s_cmp_lt_u32", sp1, 0x40000)
    p.raw("s_sleep 1")
    p.add(I(f"s_cbranch_scc1 {lab}", "salu"))
    p.label(done)


aEarly = A(248, 2)


def early_sample(p):
    p.bload(aEarly, vpoll, rDBG, soff=0, off=DBG_MOD1, flags=SC1)


def confirm_early(p):
    for k, (off, target) in ((1, (DBG_CLR, N_CNT)),):
        ok = f"C_early{k}_ok"
        p.v("v_accvgpr_read_b32", V(62), aEarly[k])
        p.v("v_readfirstlane_b32", sp0, V(62))
        p.s("s_cmp_ge_u32", sp0, target)
        p.branch("s_cbranch_scc1", ok)
        spin(p, rDBG, off, target, f"early{k}")
        p.label(ok)
    p.s("s_cmp_lg_u32", S(2), 0)
    p.branch("s_cbranch_scc1", "C_epoch_done")
    p.v("v_mov_b32", V(62), sTag)
    p.s("s_mov_b32", sp0, WS_EPOCH)
    p.s("s_mov_b64", EXEC, 1)
    p.bstore(V(62), vpoll, rWS, soff=sp0, flags=SC1)
    p.s("s_mov_b64", EXEC, -1)
    p.label("C_epoch_done")


def signal(p, kind, sindex, name, pre=None, T=None):
    done = f"S_{name}_done"
    p.wait(vm=0)
    if T:
        T(name + "_drain")
    if pre:
        p.s("s_cmp_lg_u32", sw, 0)
        p.branch("s_cbranch_scc1", f"S_{name}_pre")
        pre(p)
        p.label(f"S_{name}_pre")
    p.barrier(drain_lds=True)
    p.s("s_cmp_lg_u32", sw, 0)
    p.branch("s_cbranch_scc1", done)
    set_flag(p, kind, sindex, sTag)
    p.label(done)


def add_one(p, srd_, off):
    p.v("v_mov_b32", V(62), 1)
    p.v("v_mov_b32", vpoll, 0)
    p.s("s_mov_b64", EXEC, 1)
    so, io = (off, 0) if not isinstance(off, int) else (0, off)
    t = f"buffer_atomic_add {V(62)}, " + Prog._bt(vpoll, srd_, so, io, SC1)
    p.add(I(t, "vstore", (), units(V(62), vpoll, srd_, so), meta={"data": units(V(62)), "wide": False}))
    p.s("s_mov_b64", EXEC, -1)


SIL = WRING + 2 * SLOT
MPART = SIL + 1024
mreg = V(64, 64)
aC = A(250)
sSlab = S(71)


def slab_map(p):
    if not SLABMAP:
        p.s("s_cmp_lt_u32", S(2), N_MOD0 + N_MOD1)
        p.s("s_cselect_b32", sSlab, S(2), 255)
        return
    t0, t1 = st[0], st[1]
    p.s("s_lshl_b32", t0, srb, 1)
    p.s("s_and_b32", t1, shg, 1)
    p.s("s_add_u32", t0, t0, t1)
    p.s("s_mov_b32", sSlab, 255)
    p.s("s_add_u32", t1, t0, N_MOD0)
    p.s("s_lshr_b32", sp0, shg, 1)
    p.s("s_cmp_eq_u32", sp0, 1)
    p.s("s_cselect_b32", sSlab, t1, sSlab)
    p.s("s_cmp_lt_u32", t0, N_MOD0)
    p.s("s_cselect_b32", t1, t0, 255)
    p.s("s_cmp_eq_u32", sp0, 0)
    p.s("s_cselect_b32", sSlab, t1, sSlab)


def slab_issue(p, sslab):
    regs = V(128, 8)
    st0, st1, so = st[0], st[1], st[2]
    vt0, vt1, vcoff = regs[0], regs[1], regs[2]
    vd = regs[4:8]
    p.v("v_lshlrev_b32", vcoff, 2, vtid2)
    p.bload(aC, vcoff, rTMP2)
    p.v("v_lshrrev_b32", vt0, 2, vl)
    p.s("s_mov_b32", st0, 6144)
    p.v("v_mul_lo_u32", vt0, vt0, st0)
    p.v("v_and_b32", vt1, 3, vl)
    p.v("v_lshl_add_u32", vd[0], vt1, 4, vt0)
    for j in range(1, 4):
        p.v("v_add_u32", vd[j], j * (16 * 6144 - 1024), vd[0])
    p.s("s_mul_i32", st0, sw, 128 * 6144)
    p.s("s_lshl_b32", st1, sslab, 6)
    p.s("s_add_u32", so, st0, st1)
    for grp in range(2):
        p.s("s_add_u32", M0, sMS, grp * 4096)
        if grp:
            p.s("s_add_u32", so, so, 64 * 6144)
        else:
            p.nop(0)
        for j in range(4):
            p.dma(vd[j], rTMP, so, off=1024 * j, tag=("slab", grp))


def slab_finish(p, T, sslab, name):
    regs = V(136, 64) if name == "slab0" else mreg
    st0, st1 = st[0], st[1]
    vt0, vt1, vt2, vc, vcoff = regs[0], regs[1], regs[2], regs[3], regs[4]
    s0, s1, e0, e1, vpk = regs[12], regs[13], regs[14], regs[15], regs[5]
    p.v("v_lshlrev_b32", vcoff, 2, vtid2)
    p.v("v_accvgpr_read_b32", vc, aC)
    p.v("v_lshlrev_b32", s0, 16, vc)
    p.v("v_and_b32", s1, sHi, vc)
    for s_, e_ in ((s0, e0), (s1, e1)):
        p.v("v_mul_f32", e_, -1.4426950408889634, s_)
    for s_, e_ in ((s0, e0), (s1, e1)):
        p.v("v_exp_f32", e_, e_)
    for s_, e_ in ((s0, e0), (s1, e1)):
        p.v("v_add_f32", e_, 1.0, e_)
    for s_, e_ in ((s0, e0), (s1, e1)):
        p.v("v_rcp_f32", e_, e_)
    for s_, e_ in ((s0, e0), (s1, e1)):
        p.v("v_mul_f32", s_, s_, e_)
    p.v("v_cvt_pk_bf16_f32", vpk, s0, s1)
    p.v("v_add_u32", vt0, SIL, vcoff)
    p.ds_write("ds_write_b32", vt0, vpk)
    vtr_ = regs[7]
    p.v("v_lshrrev_b32", vt1, 2, vl)
    p.v("v_lshlrev_b32", vt1, 6, vt1)
    p.v("v_and_b32", vt0, 3, vl)
    p.v("v_lshl_add_u32", vt0, vt0, 3, vt1)
    p.v("v_add_u32", vtr_, sMS, vt0)
    vb = regs[6]
    p.v("v_lshrrev_b32", vb, 4, vl)
    p.v("v_lshlrev_b32", vb, 3, vb)
    p.s("s_lshl_b32", st0, sw, 8)
    p.s("s_add_u32", st0, st0, SIL)
    p.v("v_add_u32", vb, st0, vb)
    p.barrier()
    if name == "slab0":
        T("s_sil")
    acc_ = regs[16:24]
    bf = regs[24:40]
    af = regs[40:56]
    for ks in range(4):
        b = bf[4 * ks:4 * ks + 4]
        p.ds_read("ds_read_b64", b[0:2], vb, off=64 * ks)
        p.ds_read("ds_read_b64", b[2:4], vb, off=64 * ks + 32)
    for k2 in range(2):
        for ks in (2 * k2, 2 * k2 + 1):
            for t in range(2):
                a = af[8 * (ks & 1) + 4 * t:8 * (ks & 1) + 4 * t + 4]
                for h in range(2):
                    p.ds_read("ds_read_b64_tr_b16", a[2 * h:2 * h + 2], vtr_, off=ks * 2048 + 1024 * h + 32 * t,
                              dep=("slab", ks >> 1))
        for ks in (2 * k2, 2 * k2 + 1):
            for t in range(2):
                d = acc_[4 * t:4 * t + 4]
                p.mfma16(d, af[8 * (ks & 1) + 4 * t:8 * (ks & 1) + 4 * t + 4], bf[4 * ks:4 * ks + 4], d if ks else 0)
    p.v("v_lshrrev_b32", vt1, 4, vl)
    p.v("v_lshlrev_b32", vt1, 4, vt1)
    p.s("s_lshl_b32", st0, sw, 7)
    p.s("s_add_u32", st0, st0, MPART)
    p.v("v_add_u32", vt1, st0, vt1)
    for t in range(2):
        p.ds_write("ds_write_b128", vt1, acc_[4 * t:4 * t + 4], off=64 * t)
    p.barrier()
    if name == "slab0":
        T("s_gemv")
    p.s("s_cmp_lg_u32", sw, 0 if name == "slab0" else 3)
    p.branch("s_cbranch_scc1", f"M_{name}_done")
    r4 = regs[16:20]
    p.v("v_and_b32", vt0, 31, vl)
    p.v("v_lshlrev_b32", vt0, 2, vt0)
    p.v("v_add_u32", vt1, MPART, vt0)
    for w in range(4):
        p.ds_read("ds_read_b32", r4[w], vt1, off=128 * w)
    p.v("v_add_f32", r4[0], r4[0], r4[1])
    p.v("v_add_f32", r4[2], r4[2], r4[3])
    p.v("v_add_f32", r4[0], r4[0], r4[2])
    bf16_round_hi(p, r4[0], r4[0])
    p.v("v_add_f32", r4[1], 1.0, r4[0])
    bf16_round_hi(p, r4[1], r4[1])
    p.s("s_lshr_b32", st0, sslab, 4)
    p.s("s_cmp_eq_u32", st0, 1)
    p.s("s_cselect_b32", st1, 1, 0)
    p.s("s_cmp_eq_u32", st0, 4)
    p.s("s_cselect_b32", st1, 1, st1)
    p.v("v_mov_b32", vt2, st1)
    p.v("v_cmp_eq_u32", VCC, 1, vt2)
    p.v("v_cndmask_b32", r4[0], r4[0], r4[1])
    p.s("s_cmp_lt_u32", st0, 2)
    p.s("s_mov_b32", st1, QSCALE)
    p.s("s_cselect_b32", st1, st1, 1.0)
    p.v("v_mul_f32", r4[0], st1, r4[0])
    p.s("s_mov_b64", EXEC, 0xFFFFFFFF)
    if name == "slab0":
        get_tag(p)
        p.v("v_mov_b32", r4[1], sTag)
        p.v("v_lshlrev_b32", vt0, 1, vt0)
        p.s("s_lshl_b32", st0, sslab, 8)
        p.s("s_add_u32", st0, st0, WS_MODG)
        p.bstore(r4[0:2], vt0, rWS, soff=st0, flags=SC1)
        T("s_st")
    else:
        p.s("s_lshl_b32", st0, sslab, 7)
        p.s("s_add_u32", st0, st0, WS_MOD)
        p.bstore(r4[0], vt0, rWS, soff=st0, flags=SC1)
    p.s("s_mov_b64", EXEC, -1)
    p.label(f"M_{name}_done")


aC4 = A(236, 4)


def slabw_issue(p, sslab):
    regs = V(128, 8)
    st0, so = st[0], st[2]
    vt0, vt1 = regs[0], regs[1]
    vd = regs[4:8]
    p.bload(aC4, vlin, rTMP2)
    p.v("v_lshrrev_b32", vt0, 2, vl)
    p.s("s_mov_b32", st0, 6144)
    p.v("v_mul_lo_u32", vt0, vt0, st0)
    p.v("v_and_b32", vt1, 3, vl)
    p.v("v_lshl_add_u32", vd[0], vt1, 4, vt0)
    for j in range(1, 4):
        p.v("v_add_u32", vd[j], j * (16 * 6144 - 1024), vd[0])
    p.s("s_lshl_b32", so, sslab, 6)
    for grp in range(8):
        p.s("s_mov_b32", M0, SH + grp * 4096)
        if grp:
            p.s("s_add_u32", so, so, 64 * 6144)
        else:
            p.nop(0)
        for j in range(4):
            p.dma(vd[j], rTMP, so, off=1024 * j, tag=("slab", grp))


def slabw_finish(p, T, sslab, name):
    regs = V(136, 64) if name == "slab0" else mreg
    st0, st1 = st[0], st[1]
    vt0, vt1, vt2, vtr_, vb = regs[0], regs[1], regs[2], regs[3], regs[4]
    cs, es, pk = regs[8:16], regs[16:24], regs[24:28]
    for i in range(4):
        p.v("v_accvgpr_read_b32", vt0, aC4[i])
        p.v("v_lshlrev_b32", cs[2 * i], 16, vt0)
        p.v("v_and_b32", cs[2 * i + 1], sHi, vt0)
    for k in range(8):
        p.v("v_mul_f32", es[k], -1.4426950408889634, cs[k])
    for k in range(8):
        p.v("v_exp_f32", es[k], es[k])
    for k in range(8):
        p.v("v_add_f32", es[k], 1.0, es[k])
    for k in range(8):
        p.v("v_rcp_f32", es[k], es[k])
    for k in range(8):
        p.v("v_mul_f32", cs[k], cs[k], es[k])
    for i in range(4):
        p.v("v_cvt_pk_bf16_f32", pk[i], cs[2 * i], cs[2 * i + 1])
    p.v("v_add_u32", vt0, SIL, vlin)
    p.ds_write("ds_write_b128", vt0, pk, tag="sil")
    p.v("v_lshrrev_b32", vt1, 2, vl)
    p.v("v_lshlrev_b32", vt1, 6, vt1)
    p.v("v_and_b32", vt0, 3, vl)
    p.v("v_lshl_add_u32", vt0, vt0, 3, vt1)
    p.v("v_add_u32", vtr_, SH, vt0)
    p.v("v_lshrrev_b32", vb, 4, vl)
    p.v("v_lshlrev_b32", vb, 3, vb)
    p.v("v_add_u32", vb, SIL, vb)
    acc_ = regs[8:16]
    bf = regs[16:32]
    af = regs[32:64]
    for k4 in range(4):
        for kk in range(4):
            ks = 4 * k4 + kk
            b = bf[4 * kk:4 * kk + 4]
            p.ds_read("ds_read_b64", b[0:2], vb, off=64 * ks, dep="sil")
            p.ds_read("ds_read_b64", b[2:4], vb, off=64 * ks + 32, dep="sil")
            for t in range(2):
                a = af[8 * kk + 4 * t:8 * kk + 4 * t + 4]
                for h in range(2):
                    p.ds_read("ds_read_b64_tr_b16", a[2 * h:2 * h + 2], vtr_, off=ks * 2048 + 1024 * h + 32 * t,
                              dep=("slab", ks >> 1))
        for kk in range(4):
            ks = 4 * k4 + kk
            for t in range(2):
                d = acc_[4 * t:4 * t + 4]
                p.mfma16(d, af[8 * kk + 4 * t:8 * kk + 4 * t + 4], bf[4 * kk:4 * kk + 4], d if ks else 0)
    if name == "slab0":
        T("s_gemv")
    r4 = regs[16:20]
    x0, x1 = regs[20], regs[21]
    p.v("v_and_b32", vt0, 1, vl)
    p.v("v_cmp_eq_u32", VCC, 1, vt0)
    for t in range(2):
        p.v("v_cndmask_b32", regs[22 + 2 * t], acc_[4 * t], acc_[4 * t + 1])
        p.v("v_cndmask_b32", regs[23 + 2 * t], acc_[4 * t + 2], acc_[4 * t + 3])
    p.v("v_and_b32", vt0, 2, vl)
    p.v("v_cmp_eq_u32", VCC, 2, vt0)
    p.v("v_cndmask_b32", x0, regs[22], regs[23])
    p.v("v_cndmask_b32", x1, regs[24], regs[25])
    p.v("v_and_b32", vt0, 4, vl)
    p.v("v_cmp_eq_u32", VCC, 4, vt0)
    p.v("v_cndmask_b32", r4[0], x0, x1)
    p.v("v_lshlrev_b32", vt0, 2, vt0)
    p.v("v_lshrrev_b32", vt1, 4, vl)
    p.v("v_lshl_add_u32", vt0, vt1, 2, vt0)
    p.v("v_and_b32", vt1, 3, vl)
    p.v("v_add_u32", vt0, vt0, vt1)
    p.v("v_lshlrev_b32", vt0, 2, vt0)
    bf16_round_hi(p, r4[0], r4[0])
    p.v("v_add_f32", r4[1], 1.0, r4[0])
    bf16_round_hi(p, r4[1], r4[1])
    p.s("s_lshr_b32", st0, sslab, 4)
    p.s("s_cmp_eq_u32", st0, 1)
    p.s("s_cselect_b32", st1, 1, 0)
    p.s("s_cmp_eq_u32", st0, 4)
    p.s("s_cselect_b32", st1, 1, st1)
    p.v("v_mov_b32", vt2, st1)
    p.v("v_cmp_eq_u32", VCC, 1, vt2)
    p.v("v_cndmask_b32", r4[0], r4[0], r4[1])
    p.s("s_cmp_lt_u32", st0, 2)
    p.s("s_mov_b32", st1, QSCALE)
    p.s("s_cselect_b32", st1, st1, 1.0)
    p.v("v_mul_f32", r4[0], st1, r4[0])
    if name == "slab0":
        get_tag(p)
        p.v("v_mov_b32", r4[1], sTag)
        p.v("v_lshlrev_b32", vt0, 1, vt0)
    p.raw("s_mov_b32 exec_lo, 0x00ff00ff")
    p.raw("s_mov_b32 exec_hi, 0x00ff00ff")
    if name == "slab0":
        p.s("s_lshl_b32", st0, sslab, 8)
        p.s("s_add_u32", st0, st0, WS_MODG)
        p.bstore(r4[0:2], vt0, rWS, soff=st0, flags=SC1)
        T("s_st")
    else:
        p.s("s_lshl_b32", st0, sslab, 7)
        p.s("s_add_u32", st0, st0, WS_MOD)
        p.bstore(r4[0], vt0, rWS, soff=st0, flags=SC1)
    p.s("s_mov_b64", EXEC, -1)


def late_signals(p):
    p.s("s_cmp_lg_u32", sw, 3)
    p.branch("s_cbranch_scc1", "M_late_done")
    p.wait(vm=0)
    add_one(p, rDBG, DBG_CLR)
    p.s("s_sub_u32", sp0, sSlab, N_MOD0)
    p.s("s_cmp_ge_u32", sp0, N_MOD1)
    p.branch("s_cbranch_scc1", "M_late_done")
    add_one(p, rDBG, DBG_MOD1)
    p.label("M_late_done")


R_LDS = SH + 65536 - 512


rVg, rVq, rVf, rVfr, rVxo, rVmo = V(2), V(3), V(4), V(8), V(9), V(10)
rVx, rX1p, rH2p = V(12, 8), V(20, 8), V(48, 8)
rVp = [V(64, 32), V(96, 32)]
rA, rXf, rVm = V(128, 16), V(144, 16), V(160, 48)
sRqt, sRhalf, sRb0 = S(66), S(67), S(68)


def r_addr(p):
    st0, st1 = st[0], st[1]
    vt0, vt1, vt2 = V(5), V(6), V(7)
    p.v("v_and_b32", rVq, 7, vl)
    p.v("v_lshrrev_b32", rVg, 3, vl)
    p.v("v_and_b32", rVg, 3, rVg)
    p.v("v_lshrrev_b32", rVf, 5, vl)
    p.s("s_lshr_b32", sRqt, shg, 1)
    p.s("s_and_b32", sRhalf, shg, 1)
    p.v("v_lshlrev_b32", vt0, 4, rVg)
    p.v("v_add_u32", vt0, vt0, rVq)
    p.s("s_lshl_b32", st0, sRhalf, 3)
    p.v("v_add_u32", vt0, st0, vt0)
    p.v("v_lshlrev_b32", vt0, 4, vt0)
    p.v("v_lshlrev_b32", vt1, 12, rVf)
    p.v("v_add_u32", rVfr, vt0, vt1)
    p.s("s_mul_i32", sRb0, srb, PART_BLK)
    p.s("s_lshl_b32", st0, sw, 14)
    p.s("s_add_u32", sRb0, sRb0, st0)
    p.s("s_lshl_b32", st0, sRqt, 10)
    p.s("s_add_u32", sRb0, sRb0, st0)
    p.s("s_add_u32", sRb0, sRb0, WS_PART)


def r_partial_loads(p, i):
    for hg in range(8):
        p.s("s_add_u32", st[0], sRb0, hg * 32 * PART_BLK + i * 8192)
        p.bload(rVp[i][4 * hg:4 * hg + 4], rVfr, rWS, soff=st[0], flags=SC1)


def r_side_loads(p):
    st0, st1 = st[0], st[1]
    vt0, vt1, vt2 = V(5), V(6), V(7)
    p.s("s_lshl_b32", st0, srb, 6)
    p.s("s_lshl_b32", st1, sRqt, 4)
    p.s("s_add_u32", st0, st0, st1)
    p.s("s_lshl_b32", st1, sRhalf, 3)
    p.s("s_add_u32", st0, st0, st1)
    p.v("v_add_u32", vt0, st0, rVq)
    p.v("v_lshlrev_b32", vt0, 10, vt0)
    p.v("v_lshlrev_b32", vt1, 6, rVf)
    p.v("v_lshlrev_b32", vt2, 3, rVg)
    p.v("v_add3_u32", rVxo, vt0, vt1, vt2)
    p.s("s_lshl_b32", st0, sw, 8)
    for i in range(2):
        for h in range(2):
            p.bload(rVx[4 * i + 2 * h:4 * i + 2 * h + 2], rVxo, rX, soff=st0, off=128 * i + 32 * h)
    p.v("v_lshlrev_b32", vt1, 7, rVf)
    p.v("v_lshlrev_b32", vt2, 4, rVg)
    p.v("v_add_u32", rVmo, vt1, vt2)
    r_mod_loads(p, (0, 1))


def r_mod_loads(p, which):
    st0, st1 = st[0], st[1]
    p.s("s_lshl_b32", st0, sw, 9)
    for k in which:
        vec = 2 + k
        p.s("s_add_u32", st1, st0, WS_MOD + vec * 2048)
        for i in range(2):
            for h in range(2):
                o = 16 * k + 8 * i + 4 * h
                p.bload(rVm[o:o + 4], rVmo, rWS, soff=st1, off=256 * i + 64 * h, flags=SC1)


def r_sum(p, i):
    slo, shi = st[1], sp1
    p.s("s_mov_b32", slo, 0x00003F80)
    p.s("s_mov_b32", shi, 0x3F800000)
    for hg in range(8):
        for r in range(4):
            src = rVp[i][4 * hg + r]
            for hi, sel in ((0, slo), (1, shi)):
                d = rA[8 * i + 2 * r + hi]
                p.v("v_dot2_f32_bf16", d, src, sel, d if hg else 0)


def phase_r_compute(p, T):
    st0, so = st[0], st[5]
    vt0, vt1 = V(5), V(6)
    a, xf, vm, vx, x1p = rA, rXf, rVm, rVx, rX1p
    for i in range(2):
        for h in range(2):
            for j in range(2):
                src = vx[4 * i + 2 * h + j]
                p.v("v_lshlrev_b32", xf[8 * i + 4 * h + 2 * j], 16, src)
                p.v("v_and_b32", xf[8 * i + 4 * h + 2 * j + 1], sHi, src)
    for k in range(16):
        p.v("v_fmac_f32", xf[k], a[k], vm[k])
    for i in range(2):
        for j in range(4):
            p.v("v_cvt_pk_bf16_f32", x1p[4 * i + j], xf[8 * i + 2 * j], xf[8 * i + 2 * j + 1])
    p.s("s_lshl_b32", so, srb, 16)
    p.s("s_lshl_b32", st0, sw, 14)
    p.s("s_add_u32", so, so, st0)
    p.s("s_lshl_b32", st0, sRqt, 10)
    p.s("s_add_u32", so, so, st0)
    for i in range(2):
        p.s("s_add_u32", st0, so, WS_X1 + i * 8192)
        p.bstore(x1p[4 * i:4 * i + 4], rVfr, rWS, soff=st0, flags=SC1)
    for i in range(2):
        for j in range(4):
            p.v("v_lshlrev_b32", xf[8 * i + 2 * j], 16, x1p[4 * i + j])
            p.v("v_and_b32", xf[8 * i + 2 * j + 1], sHi, x1p[4 * i + j])
    s1, s2 = V(28), V(29)
    p.v("v_add_f32", s1, xf[0], xf[1])
    p.v("v_mul_f32", s2, xf[0], xf[0])
    p.v("v_fmac_f32", s2, xf[1], xf[1])
    for k in range(2, 16):
        p.v("v_add_f32", s1, s1, xf[k])
        p.v("v_fmac_f32", s2, xf[k], xf[k])
    for s_ in (s1, s2):
        p.v("v_add_f32_dpp", s_, s_, s_, mods="row_ror:8 row_mask:0xf bank_mask:0xf")
    for op in ("v_permlane16_swap_b32", "v_permlane32_swap_b32"):
        for s_, t_ in ((s1, vt0), (s2, vt1)):
            p.v("v_mov_b32", t_, s_)
        for s_, t_ in ((s1, vt0), (s2, vt1)):
            p.v(op, s_, t_)
        for s_, t_ in ((s1, vt0), (s2, vt1)):
            p.v("v_add_f32", s_, s_, t_)
    p.v("v_lshlrev_b32", vt0, 3, rVq)
    p.v("v_add_u32", vt0, R_LDS, vt0)
    p.s("s_lshl_b32", st0, sw, 6)
    p.v("v_add_u32", vt1, st0, vt0)
    s12 = V(30, 2)
    p.v("v_mov_b32", s12[0], s1)
    p.v("v_mov_b32", s12[1], s2)
    p.ds_write("ds_write_b64", vt1, s12)
    p.barrier()
    rr = V(32, 8)
    for w in range(4):
        p.ds_read("ds_read_b64", rr[2 * w:2 * w + 2], vt0, off=64 * w)
    p.v("v_add_f32", s1, rr[0], rr[2])
    p.v("v_add_f32", s2, rr[1], rr[3])
    p.v("v_add_f32", rr[4], rr[4], rr[6])
    p.v("v_add_f32", rr[5], rr[5], rr[7])
    p.v("v_add_f32", s1, s1, rr[4])
    p.v("v_add_f32", s2, s2, rr[5])
    mu, rs2, nm2 = V(40), V(42, 2), V(44, 2)
    p.v("v_mul_f32", mu, 1.0 / 512, s1)
    p.v("v_mul_f32", s2, 1.0 / 512, s2)
    p.v("v_fma_f32", s2, Neg(mu), mu, s2)
    p.v("v_max_f32", s2, 0, s2)
    p.v("v_add_f32", s2, 1e-5, s2)
    p.v("v_rsq_f32", rs2[0], s2)
    p.v("v_mul_f32_e64", nm2[0], Neg(mu), rs2[0])
    p.v("v_mov_b32", rs2[1], rs2[0])
    p.v("v_mov_b32", nm2[1], nm2[0])
    for k in range(8):
        p.v("v_pk_fma_f32", xf[2 * k:2 * k + 2], xf[2 * k:2 * k + 2], rs2, nm2)
    for k in range(8):
        p.v("v_pk_fma_f32", xf[2 * k:2 * k + 2], xf[2 * k:2 * k + 2], vm[32 + 2 * k:34 + 2 * k], vm[16 + 2 * k:18 + 2 * k])
    h2p = rH2p
    for i in range(2):
        for j in range(4):
            p.v("v_cvt_pk_bf16_f32", h2p[4 * i + j], xf[8 * i + 2 * j], xf[8 * i + 2 * j + 1])
        p.s("s_add_u32", st0, so, WS_H2 + i * 8192)
        p.bstore(h2p[4 * i:4 * i + 4], rVfr, rWS, soff=st0, flags=SC1)


aF1 = A(250)


def check_mod1(p):
    p.v("v_accvgpr_read_b32", V(62), aEarly[0])
    p.v("v_readfirstlane_b32", sp0, V(62))
    p.s("s_cmp_ge_u32", sp0, N_MOD1)
    p.branch("s_cbranch_scc1", "C_mod1_ok")
    spin(p, rDBG, DBG_MOD1, N_MOD1, "mod1")
    p.label("C_mod1_ok")


def o2_hooks():
    h = {}
    q = Prog()
    q.v("v_mov_b32", V(62), sTag)
    q.s("s_lshl_b32", S(47), S(2), 7)
    q.s("s_add_u32", S(47), S(47), WS_FLAG + F_PART1 * 256 * 128)
    pre = q.ins
    q = Prog()
    q.need("part1")
    q.barrier(drain_lds=False)
    q.bstore(V(62), vpoll, rWS, soff=S(47), flags=SC1)
    h[12] = {6: pre, 9: q.ins}
    q = Prog()
    q.v("v_min_u32", V(45), 7, vl)
    q.v("v_lshlrev_b32", V(45), 7, V(45))
    q.s("s_lshl_b32", S(47), srb, 10)
    q.s("s_add_u32", S(47), S(47), WS_FLAG + F_PART1 * 256 * 128)
    pre = q.ins
    q = Prog()
    q.bload(aF1, V(45), rWS, soff=S(47), flags=SC1)
    h[14] = {2: pre, 6: q.ins}

    def before_last(p):
        r_addr(p)
        check_mod1(p)
        r_side_loads(p)
        p.v("v_accvgpr_read_b32", V(62), aF1)
        p.s("s_mov_b32", sp1, 0)
        p.label("P_part1")
        p.v("v_cmp_eq_u32", VCC, sTag, V(62))
        p.add(I("s_cmp_eq_u64 vcc, exec", "salu", (), units(VCC)))
        p.branch("s_cbranch_scc1", "P_part1_done")
        p.bload(V(62), V(45), rWS, soff=S(47), flags=SC1)
        p.wait(vm=0)
        p.s("s_add_u32", sp1, sp1, 1)
        p.s("s_cmp_lt_u32", sp1, 0x40000)
        p.add(I("s_cbranch_scc1 P_part1", "salu"))
        p.label("P_part1_done")
        r_partial_loads(p, 0)

    h["before_last_stores"] = before_last
    return h


ROWB = 2752
sDrb, sDcg, sDact, sDH = S(40 + 12), S(40 + 13), S(40 + 14), S(40 + 15)
sErb, sEcb, sEact, sEwd = S(56), S(57), S(58), S(59)
sDrot = S(91)


def d_ids(p):
    st0, st1 = st[0], st[1]
    p.s("s_and_b32", st0, shg, 1)
    p.s("s_lshl_b32", st0, st0, 2)
    p.s("s_and_b32", st1, srb, 3)
    p.s("s_add_u32", sDrb, st0, st1)
    p.s("s_lshr_b32", st0, shg, 1)
    p.s("s_mul_i32", st1, st0, 7)
    p.s("s_add_u32", st1, st1, 1)
    p.s("s_cmp_eq_u32", st0, 0)
    p.s("s_cselect_b32", sDcg, 0, st1)
    p.s("s_cselect_b32", st0, 8, 7)
    p.s("s_lshr_b32", st1, srb, 2)
    p.s("s_add_u32", sDcg, sDcg, st1)
    p.s("s_cmp_lt_u32", st1, st0)
    p.s("s_cselect_b32", sDact, 1, 0)
    p.s("s_lshl_b32", sDrot, st1, 1)


def d_weights(p, drain=True):
    st0, st1 = st[0], st[1]
    vt_ = V(216, 5)
    vd = V(224, 3)
    smag = S(61)
    p.s("s_cmp_eq_u32", sw, 0)
    p.branch("s_cbranch_scc1", "M_dw_done")
    p.s("s_mov_b32", smag, 0xAAAB)
    p.s("s_mov_b32", st0, ROWB)
    for k in range(3):
        p.v("v_add_u32", vt_[0], 64 * k, vl)
        p.v("v_mul_lo_u32", vt_[1], vt_[0], smag)
        p.v("v_lshrrev_b32", vt_[1], 18, vt_[1])
        p.v("v_mul_u32_u24", vt_[2], 6, vt_[1])
        p.v("v_sub_u32", vt_[2], vt_[0], vt_[2])
        p.v("v_lshlrev_b32", vt_[2], 4, vt_[2])
        p.v("v_mul_lo_u32", vt_[1], vt_[1], st0)
        p.v("v_add_u32", vd[k], vt_[1], vt_[2])
        if k:
            p.v("v_subrev_u32", vd[k], 1024 * k, vd[k])
    sPos, sCol = S(62), S(63)
    p.s("s_mul_i32", sCol, sDcg, 96)
    p.s("s_sub_u32", sPos, sw, 1)
    p.label("M_dw_loop")
    p.s("s_add_u32", st0, sPos, sDrot)
    p.s("s_and_b32", st0, st0, 15)
    p.s("s_mul_i32", st0, st0, 32 * ROWB)
    p.s("s_add_u32", st0, st0, sCol)
    p.s("s_mul_i32", st1, sPos, 3072)
    for m, r_ in enumerate((rG, rU)):
        p.s("s_add_u32", M0, st1, m * 49152)
        p.nop(0)
        for k in range(3):
            p.dma(vd[k], r_, st0, off=1024 * k, tag="dw")
    p.s("s_add_u32", sPos, sPos, 3)
    p.s("s_cmp_lt_u32", sPos, 16)
    p.add(I("s_cbranch_scc1 M_dw_loop", "salu"))
    if drain:
        p.wait(vm=0)
    p.label("M_dw_done")


E_RING = SH
E_NSLOT = 4


def phase_d(p, T, e_prefetch):
    st0, st1 = st[0], st[1]
    sH, sAct = st[2], st[3]
    vlin_ = V(2)
    vt_ = V(3, 5)
    vtr_ = V(12, 2)
    p.v("v_lshlrev_b32", vlin_, 4, vl)
    p.s("s_lshl_b32", sH, sDrb, 2)
    p.s("s_add_u32", sH, sH, sw)
    p.s("s_mul_i32", sAct, sH, ACT_RB)
    p.s("s_lshl_b32", sH, sH, 16)
    p.s("s_add_u32", sH, sH, WS_H2)
    p.s("s_mul_i32", st0, sDcg, 6144)
    p.s("s_add_u32", sAct, sAct, st0)
    p.s("s_add_u32", sAct, sAct, WS_ACT)
    NB = 4
    vB_ = V(128, 16 * NB)

    def bfr(ks, qt):
        o = 16 * (ks % NB) + 4 * qt
        return vB_[o:o + 4]

    sK_ = S(63)

    def load_b(ks):
        q = Prog()
        if ks == 0:
            q.s("s_lshl_b32", sK_, sDrot, 12)
        else:
            q.s("s_add_u32", sK_, sK_, 4096)
            q.s("s_and_b32", sK_, sK_, 0xFFFF)
        q.s("s_add_u32", st1, sH, sK_)
        for qt in range(4):
            q.bload(bfr(ks, qt), vlin_, rWS, soff=st1, off=1024 * qt, flags=SC1)
        return q.ins

    p.v("v_lshrrev_b32", vt_[0], 2, vl)
    p.v("v_mul_u32_u24", vt_[0], 96, vt_[0])
    p.v("v_and_b32", vt_[1], 3, vl)
    p.v("v_lshlrev_b32", vt_[1], 3, vt_[1])
    p.v("v_add_u32", vtr_[0], vt_[0], vt_[1])
    p.v("v_add_u32", vtr_[1], 49152, vtr_[0])
    accd = V(16, 96)
    vA = V(112, 16)
    vz_ = V(196, 4)
    for i in range(4):
        p.v("v_mov_b32", vz_[i], 0)
    if EARLYW:
        e_early(p, "d")
    else:
        d_weights(p)
    p.s("s_lshl_b32", st[4], sDrb, 5)
    poll_flags(p, F_H2, st[4], 32, "h2")
    T("d_go")
    for ks in range(NB):
        for x in load_b(ks):
            p.add(x)
    for i in range(6):
        zero16(p, accd[16 * i:16 * i + 16], vz_)

    def accr(m, t, qt):
        o = 48 * m + 16 * t + 4 * qt
        return accd[o:o + 4]

    def afr(i):
        return vA[4 * (i % 4):4 * (i % 4) + 4]

    def rd_a(ks, f, base):
        q = Prog()
        m, t = f // 3, f % 3
        for h in range(2):
            q.ds_read("ds_read_b64_tr_b16", afr(6 * ks + f)[2 * h:2 * h + 2], vtr_[m],
                      off=(ks - base) * 3072 + 1536 * h + 32 * t)
        return q.ins

    for f in range(2):
        for x in rd_a(0, f, 0):
            p.add(x)
    for it in range(4):
        mark(p, "gd", it)
        for ks in range(4 * it, 4 * it + 4):
            mf = []
            for f in range(6):
                m, t = f // 3, f % 3
                for qt in range(4):
                    def mm(m=m, t=t, qt=qt, f=f, ks=ks):
                        d = accr(m, t, qt)
                        x = p.mfma16(d, afr(6 * ks + f), bfr(ks, qt), d)
                        if ILV and f == 0 and qt == 0:
                            also(x, [bfr(ks, k) for k in range(4)])
                    mf.append(mm)
            sc = Sched(mf)
            for f in range(6):
                nf, nks = (f + 2) % 6, ks + (f + 2) // 6
                if nks < 16:
                    r = rd_a(nks, nf, 4 * it)
                    sc.fixed(4 * f, r[:1])
                    sc.fixed(4 * f + 1, r[1:])
            if ILV:
                if ks >= 1 and ks - 1 + NB < 16:
                    ld = load_b(ks - 1 + NB)
                    sal = [x for x in ld if x.kind == "salu"]
                    vm_ = [x for x in ld if x.kind != "salu"]
                    for i, x in enumerate(sal):
                        sc.fixed(i, [x])
                    for i, x in enumerate(vm_):
                        sc.fixed(6 + 4 * i, [x])
            elif ks + NB < 16:
                sc.fixed(23, load_b(ks + NB))
            sc.emit(p)
        if it < 3:
            p.v("v_add_u32", vtr_[0], 4 * 3072, vtr_[0])
            p.v("v_add_u32", vtr_[1], 4 * 3072, vtr_[1])
        loop_dec(p)
        loop_branch(p)
    mark(p, "gd", None)
    T("d_mma")
    o = V(128, 32)
    for qt in range(4):
        for t in range(3):
            g_, u_ = accr(0, t, qt), accr(1, t, qt)
            for r in range(4):
                p.v("v_mul_f32", g_[r], g_[r], u_[r])
        full = o[8 * qt:8 * qt + 4]
        half = o[8 * qt + 4:8 * qt + 6]
        for t in range(3):
            g_ = accr(0, t, qt)
            dst = full[2 * t:2 * t + 2] if t < 2 else half
            p.v("v_cvt_pk_bf16_f32", dst[0], g_[0], g_[1])
            p.v("v_cvt_pk_bf16_f32", dst[1], g_[2], g_[3])
        p.bstore(full, vlin_, rWS, soff=sAct, off=1024 * qt, flags=SC1)
    vh = vt_[0]
    p.v("v_lshlrev_b32", vh, 3, vl)
    p.s("s_add_u32", st0, sAct, 4096)
    p.s("s_cmp_eq_u32", sDcg, 28)
    p.branch("s_cbranch_scc1", "D_skip_half")
    for qt in range(4):
        p.bstore(o[8 * qt + 4:8 * qt + 6], vh, rWS, soff=st0, off=512 * qt, flags=SC1)
    p.label("D_skip_half")
    p.s("s_lshl_b32", st[4], sDrb, 5)
    p.s("s_add_u32", st[4], st[4], sDcg)
    signal(p, F_ACT, st[4], "act")


eRing, eSa, eSd = S(60), S(61), S(62)
eSet = S(55)
ePA, ePW = S(70, 3), S(73, 3)
eVd, eVtr, eLin, eLin8 = V(232, 2), V(234, 4), V(238), V(239)
eAcc, eA, eB = V(16, 64), V(80, 16), V(96, 16 * E_NSLOT)


def e_setup(p):
    st0, st1 = st[0], st[1]
    vt_ = V(240, 4)
    p.v("v_lshlrev_b32", eLin, 4, vl)
    p.v("v_lshlrev_b32", eLin8, 3, vl)
    p.s("s_lshl_b32", st0, shg, 2)
    p.s("s_lshr_b32", st1, S(2), 6)
    p.s("s_add_u32", sErb, st0, st1)
    p.s("s_and_b32", sEcb, srb, 7)
    p.s("s_lshl_b32", eRing, sw, 14)
    p.s("s_add_u32", eRing, eRing, E_RING)
    p.v("v_lshrrev_b32", vt_[0], 3, vl)
    p.v("v_lshlrev_b32", vt_[1], 10, vt_[0])
    p.v("v_lshrrev_b32", vt_[0], 1, vt_[0])
    p.v("v_and_b32", vt_[0], 3, vt_[0])
    p.v("v_lshlrev_b32", vt_[0], 1, vt_[0])
    p.v("v_and_b32", vt_[2], 7, vl)
    p.v("v_xor_b32", vt_[0], vt_[0], vt_[2])
    p.v("v_lshlrev_b32", vt_[0], 4, vt_[0])
    p.v("v_add_u32", eVd[0], vt_[0], vt_[1])
    p.v("v_add_u32", eVd[1], 8 * 1024 - 1024, eVd[0])
    p.v("v_lshrrev_b32", vt_[0], 2, vl)
    p.v("v_lshlrev_b32", vt_[1], 7, vt_[0])
    p.v("v_lshrrev_b32", vt_[0], 1, vt_[0])
    p.v("v_and_b32", vt_[0], 3, vt_[0])
    p.v("v_lshlrev_b32", vt_[0], 1, vt_[0])
    p.v("v_and_b32", vt_[2], 3, vl)
    p.v("v_lshrrev_b32", vt_[3], 1, vt_[2])
    p.v("v_xor_b32", vt_[0], vt_[0], vt_[3])
    p.v("v_lshlrev_b32", vt_[0], 4, vt_[0])
    p.v("v_and_b32", vt_[2], 1, vt_[2])
    p.v("v_lshlrev_b32", vt_[2], 3, vt_[2])
    p.v("v_add3_u32", eVtr[0], vt_[0], vt_[1], vt_[2])
    p.v("v_add_u32", eVtr[0], eRing, eVtr[0])
    for t in range(1, 4):
        p.v("v_xor_b32", eVtr[t], t << 5, eVtr[0])
    if EROT:
        p.s("s_add_u32", eSet, sw, sEcb)
        p.s("s_and_b32", eSet, eSet, 3)
        p.s("s_lshr_b32", st1, sEcb, 2)
    else:
        p.s("s_mov_b32", eSet, sw)
        p.s("s_mov_b32", st1, 0)
    for i in range(3):
        p.s("s_add_u32", st0, st1, i)
        p.s("s_cmp_ge_u32", st0, 3)
        p.s("s_cselect_b32", ePA[i], 3, 0)
        p.s("s_sub_u32", st0, st0, ePA[i])
        p.s("s_mul_i32", ePA[i], st0, 8 * 6144)
        p.s("s_mul_i32", ePW[i], st0, 4 * 96 * 1024)
    p.s("s_mul_i32", sEact, sErb, ACT_RB)
    p.s("s_mul_i32", st0, eSet, 2 * 6144)
    p.s("s_add_u32", sEact, sEact, st0)
    p.s("s_add_u32", sEact, sEact, WS_ACT)
    p.s("s_mul_i32", sEwd, eSet, 96 * 1024)
    p.s("s_lshl_b32", st0, sEcb, 7)
    p.s("s_add_u32", sEwd, sEwd, st0)


def e_issue_w(q, n, kind, pair_off, rotated=True):
    rot = rotated and pair_off < 3
    doff = 0 if rot else pair_off * 4 * 96 * 1024
    slot = (n % E_NSLOT) * 4096
    if kind < 2:
        rows = [doff + (48 * kind) * 1024, doff + (48 * kind + 16) * 1024]
    else:
        rows = [doff + 32 * 1024, doff + (48 + 32) * 1024]
    for hf in range(2):
        q.s("s_add_u32", eSd, sEwd, rows[hf])
        if rot:
            q.s("s_add_u32", eSd, eSd, ePW[pair_off])
        q.s("s_add_u32", M0, eRing, slot + 2048 * hf)
        q.nop(0)
        for j in range(2):
            q.dma(eVd[j], rD, eSd, off=1024 * j, tag=("e", n), ovw=("e", n - E_NSLOT))


def e_early(p, name):
    sJob, sOwn, sN, sT0, sT1, sT2 = S(62), st[0], st[1], S(61), S(63), S(69)
    eSa2 = S(47)
    p.s("s_cmp_eq_u32", sw, 0)
    p.branch("s_cbranch_scc1", f"M_ee_done_{name}")
    p.s("s_sub_u32", sJob, sw, 1)
    p.label(f"M_ee_loop_{name}")
    p.s("s_lshr_b32", sOwn, sJob, 2)
    p.s("s_and_b32", sN, sJob, 3)
    p.s("s_lshl_b32", sT0, sJob, 12)
    p.s("s_add_u32", sT0, sT0, E_RING)
    p.s("s_mul_i32", sT1, sN, 48)
    p.s("s_cmp_eq_u32", sN, 2)
    p.s("s_cselect_b32", sT1, 32, sT1)
    p.s("s_cselect_b32", sT2, 48, 16)
    p.s("s_cmp_eq_u32", sN, 3)
    p.s("s_cselect_b32", sT1, 0, sT1)
    p.s("s_cselect_b32", eSa2, ePW[1], ePW[0])
    if EROT:
        p.s("s_add_u32", sOwn, sOwn, sEcb)
        p.s("s_and_b32", sOwn, sOwn, 3)
    p.s("s_mul_i32", sOwn, sOwn, 96)
    p.s("s_add_u32", sT1, sT1, sOwn)
    p.s("s_add_u32", sT2, sT2, sT1)
    p.s("s_lshl_b32", sN, sEcb, 7)
    p.s("s_add_u32", sN, sN, eSa2)
    for hf, sr in enumerate((sT1, sT2)):
        p.s("s_lshl_b32", sr, sr, 10)
        p.s("s_add_u32", sr, sr, sN)
        p.s("s_add_u32", M0, sT0, 2048 * hf)
        p.nop(0)
        for j in range(2):
            p.dma(eVd[j], rD, sr, off=1024 * j, tag="ee")
    p.s("s_add_u32", sJob, sJob, 3)
    p.s("s_cmp_lt_u32", sJob, 16)
    p.add(I(f"s_cbranch_scc1 M_ee_loop_{name}", "salu"))
    p.label(f"M_ee_done_{name}")


def e_bfr(n, qt):
    o = 16 * (n % E_NSLOT) + 4 * qt
    return eB[o:o + 4]


def e_issue_b(q, n, kind, pair_off, rotated=True):
    rot = rotated and pair_off < 3
    aoff = 0 if rot else pair_off * 8 * 6144
    if kind < 2:
        q.s("s_add_u32", eSa, sEact, aoff + kind * 6144)
        if rot:
            q.s("s_add_u32", eSa, eSa, ePA[pair_off])
        for qt in range(4):
            q.bload(e_bfr(n, qt), eLin, rWS, soff=eSa, off=1024 * qt, flags=SC1)
    else:
        for hf in range(2):
            q.s("s_add_u32", eSa, sEact, aoff + hf * 6144 + 4096)
            if rot:
                q.s("s_add_u32", eSa, eSa, ePA[pair_off])
            for qt in range(4):
                q.bload(e_bfr(n, qt)[2 * hf:2 * hf + 2], eLin8, rWS, soff=eSa, off=512 * qt, flags=SC1)


def phase_e(p, T):
    st0, st1 = st[0], st[1]
    vt_ = V(240, 4)

    def accr(t, qt):
        return eAcc[16 * t + 4 * qt:16 * t + 4 * qt + 4]

    def afr(i):
        return eA[4 * (i % 4):4 * (i % 4) + 4]

    def rd_a(n, t):
        q = Prog()
        for h in range(2):
            q.ds_read("ds_read_b64_tr_b16", afr(4 * n + t)[2 * h:2 * h + 2], eVtr[t],
                      off=(n % E_NSLOT) * 4096 + 2048 * h, dep=("e", n))
        return q.ins

    def step(n, first, nxt, have_next):
        mf = []
        for t in range(4):
            for qt in range(4):
                def mm(t=t, qt=qt):
                    d = accr(t, qt)
                    x = p.mfma16(d, afr(4 * n + t), e_bfr(n, qt), d if not first else 0)
                    if ILV and t == 0 and qt == 0:
                        also(x, [e_bfr(n, k) for k in range(4)])
                mf.append(mm)
        sc = Sched(mf)
        tg = []
        for t in range(4):
            tn, nn = (t + 2) % 4, n + (t + 2) // 4
            if nn == n or have_next:
                r = rd_a(nn, tn)
                sc.fixed(4 * t, r[:1])
                sc.fixed(4 * t + 1, r[1:])
        if ILV and nxt:
            free = [g for g in range(16) if g % 4 >= 2]
            g, k = 0, 0
            pend = []
            for x in nxt:
                if x.kind in ("salu",):
                    pend.append(x)
                elif x.kind == "nop":
                    continue
                elif k < len(free):
                    gap = free[k]
                    for y in pend:
                        sc.fixed(gap - 1, [y])
                    pend = []
                    sc.fixed(gap, [x])
                    k += 1
                else:
                    sc.oth[15] += pend + [x]
                    pend = []
            sc.oth[15] += pend
        else:
            sc.fixed(15, nxt)
        sc.emit(p)

    x1 = V(160, 8)
    gb = V(168, 16)
    p.s("s_lshl_b32", st[4], shg, 5)
    poll_flags(p, F_ACT, st[4], 29, "act")
    T("e_go")
    for n in range(E_NSLOT):
        e_issue_b(p, n, n % 3, n // 3)
    p.s("s_lshl_b32", st0, sErb, 16)
    p.s("s_lshl_b32", st1, sEcb, 13)
    p.s("s_add_u32", st0, st0, st1)
    p.s("s_lshl_b32", st1, sw, 10)
    p.s("s_add_u32", st0, st0, st1)
    p.s("s_add_u32", st0, st0, WS_X1)
    p.bload(x1[0:4], eLin, rWS, soff=st0, flags=SC1)
    p.s("s_add_u32", st0, st0, 4096)
    p.bload(x1[4:8], eLin, rWS, soff=st0, flags=SC1)
    p.v("v_lshrrev_b32", vt_[1], 4, vl)
    p.v("v_lshlrev_b32", vt_[1], 4, vt_[1])
    p.s("s_lshl_b32", st0, sEcb, 8)
    p.s("s_add_u32", st0, st0, WS_MOD + 5 * 2048)
    for t in range(4):
        p.bload(gb[4 * t:4 * t + 4], vt_[1], rWS, soff=st0, off=64 * t, flags=SC1)
    for t in range(2):
        for x in rd_a(0, t):
            p.add(x)
    for n in range(9):
        q = Prog()
        m = n - 1 + E_NSLOT if ILV else n + E_NSLOT
        if m < 9 and m >= E_NSLOT:
            e_issue_w(q, m, m % 3, m // 3)
            e_issue_b(q, m, m % 3, m // 3)
        step(n, n == 0, q.ins, n < 8)
    T("e_main")
    p.s("s_cmp_lt_u32", eSet, 2)
    p.branch("s_cbranch_scc1", "E_four")
    p.s("s_cmp_eq_u32", eSet, 3)
    p.branch("s_cbranch_scc1", "E_red")
    n = 9
    p.s("s_sub_u32", sEact, sEact, 2 * 2 * 6144 - 28 * 6144)
    p.s("s_sub_u32", sEwd, sEwd, 2 * 96 * 1024 - 1344 * 1024)
    e_issue_w(p, n, 0, 0, rotated=False)
    e_issue_b(p, n, 0, 0, rotated=False)
    for t in range(2):
        for x in rd_a(n, t):
            p.add(x)
    step(n, False, [], False)
    p.branch("s_branch", "E_red")
    p.label("E_four")
    for n in range(9, 12):
        e_issue_w(p, n, n % 3, 3)
        e_issue_b(p, n, n % 3, 3)
    for t in range(2):
        for x in rd_a(9, t):
            p.add(x)
    for n in range(9, 12):
        step(n, False, [], n < 11)
    p.label("E_red")
    T("e_tail")
    p.wait(vm=0, lgkm=0)
    p.s("s_lshl_b32", st0, sw, 12)
    p.v("v_add_u32", vt_[0], st0, eLin)
    for qt in range(4):
        for t in range(4):
            p.ds_write("ds_write_b128", vt_[0], accr(t, qt), off=qt * 16384 + t * 1024)
    p.barrier()
    red = V(96, 64)
    p.s("s_lshl_b32", st0, sw, 14)
    p.v("v_add_u32", vt_[0], st0, eLin)
    for w in range(4):
        for t in range(4):
            p.ds_read("ds_read_b128", red[16 * w + 4 * t:16 * w + 4 * t + 4], vt_[0], off=w * 4096 + t * 1024)
    for k in range(8):
        p.v("v_pk_add_f32", red[2 * k:2 * k + 2], red[2 * k:2 * k + 2], red[16 + 2 * k:18 + 2 * k])
        p.v("v_pk_add_f32", red[32 + 2 * k:34 + 2 * k], red[32 + 2 * k:34 + 2 * k], red[48 + 2 * k:50 + 2 * k])
    for k in range(8):
        p.v("v_pk_add_f32", red[2 * k:2 * k + 2], red[2 * k:2 * k + 2], red[32 + 2 * k:34 + 2 * k])
    xf = V(184, 16)
    for j in range(2):
        for h in range(2):
            for i in range(2):
                src = x1[4 * j + 2 * h + i]
                k = 8 * j + 4 * h + 2 * i
                p.v("v_lshlrev_b32", xf[k], 16, src)
                p.v("v_and_b32", xf[k + 1], sHi, src)
    for k in range(16):
        p.v("v_fmac_f32", xf[k], red[k], gb[k])
    op = V(200, 8)
    for k in range(8):
        p.v("v_cvt_pk_bf16_f32", op[k], xf[2 * k], xf[2 * k + 1])
    p.v("v_and_b32", vt_[0], 15, vl)
    p.v("v_lshlrev_b32", vt_[0], 10, vt_[0])
    p.v("v_lshrrev_b32", vt_[1], 4, vl)
    p.v("v_lshlrev_b32", vt_[1], 3, vt_[1])
    p.v("v_add_u32", vt_[0], vt_[0], vt_[1])
    p.s("s_lshl_b32", st0, sErb, 6)
    p.s("s_lshl_b32", st1, sw, 4)
    p.s("s_add_u32", st0, st0, st1)
    p.s("s_lshl_b32", st0, st0, 10)
    p.s("s_lshl_b32", st1, sEcb, 7)
    p.s("s_add_u32", st0, st0, st1)
    for t in range(4):
        p.bstore(op[2 * t:2 * t + 2], vt_[0], rOut, soff=st0, off=32 * t, flags=SC1)


aTouch = A(240, 8)


CODE_LINES = 24


def code_prefetch(p):
    p.s("s_cmp_lg_u32", sw, 1)
    p.branch("s_cbranch_scc1", "M_no_codepf")
    sPC = S(92, 2)
    p.add(I(f"s_getpc_b64 {sPC}", "salu", units(sPC), ()))
    p.label("M_pc")
    p.add(I(f"s_sub_u32 {sPC[0]}, {sPC[0]}, M_pc-{KNAME}", "salu", units(sPC[0]), units(sPC[0])))
    p.add(I(f"s_subb_u32 {sPC[1]}, {sPC[1]}, 0", "salu", units(sPC[1]), units(sPC[1])))
    p.s("s_mul_i32", st[1], srb, CODE_LINES)
    p.v("v_min_u32", vt[0], CODE_LINES - 1, vl)
    p.v("v_add_u32", vt[0], st[1], vt[0])
    p.v("v_lshlrev_b32", vt[0], 6, vt[0])
    p.v("v_min_u32", vt[0], f"(B_end-{KNAME})", vt[0])
    p.add(I(f"global_load_dword {A(254)}, {vt[0]}, {sPC}", "vload", units(A(254)), units(vt[0], sPC)))
    p.label("M_no_codepf")


def get_tag(p):
    p.v("v_accvgpr_read_b32", V(62), aT)
    p.v("v_readfirstlane_b32", sTag, V(62))
    p.s("s_add_u32", sTag, sTag, 1)


sTch = S(69)


def bg_touch():
    q = Prog()
    q.bload(aTouch[0], vlin, rTMP, soff=sTch)
    q.s("s_add_u32", sTch, sTch, 1024)
    return q.ins


def bg_q_setup(p):
    p.s("s_cmp_lt_u32", srb, 16)
    for h in range(4):
        p.s("s_cselect_b32", rTMP[h], rK[h], rV[h])
    p.s("s_lshl_b32", sTch, srot, 13)


def bg_q(n):
    if n < 12 and n % 3 < 2:
        return {9: bg_touch()}
    return None


def bg_att_setup(p, ptr2):
    for k, name in enumerate(("wg", "wu", "wd")):
        for h in range(2):
            if k == 0:
                p.s("s_mov_b32", rTMP[h], ptr2[name][h])
            else:
                p.s("s_cmp_eq_u32", sw, k + 1)
                p.s("s_cselect_b32", rTMP[h], ptr2[name][h], rTMP[h])
    p.s("s_cmp_eq_u32", sw, 0)
    p.s("s_cselect_b32", rTMP[2], 0, SZ["wd"])
    p.s("s_mul_i32", sTch, S(2), 5504)


def bg_att(t):
    if t % 2 == 0 and t < 12:
        return {12: bg_touch()}
    return None


def touch_mlp_window(p, ptr2):
    p.s("s_cmp_lt_u32", S(2), N_MOD0 + N_MOD1)
    p.branch("s_cbranch_scc1", "M_no_win")
    p.s("s_cmp_eq_u32", sw, 0)
    p.branch("s_cbranch_scc1", "M_no_win")
    vo = vt[6]
    p.v("v_lshlrev_b32", vo, 6, vl)
    for k, name in enumerate(("wg", "wu", "wd")):
        for h in range(2):
            if k == 0:
                p.s("s_mov_b32", rTMP[h], ptr2[name][h])
            else:
                p.s("s_cmp_eq_u32", sw, k + 1)
                p.s("s_cselect_b32", rTMP[h], ptr2[name][h], rTMP[h])
    p.s("s_mov_b32", rTMP[2], SZ["wd"])
    p.s("s_mov_b32", rTMP[3], 0x20000)
    p.s("s_sub_u32", st[2], S(2), N_MOD0 + N_MOD1)
    p.s("s_lshl_b32", st[2], st[2], 12)
    for i in range(3):
        p.bload(aTouch[i], vo, rTMP, soff=st[2])
        if i < 2:
            p.s("s_add_u32", st[2], st[2], 160 * 4096)
    p.label("M_no_win")


def touch_all(p, ptr2):
    vo = vt[6]
    p.v("v_lshlrev_b32", vo, 6, vl)
    p.s("s_cmp_lt_u32", srb, 16)
    for h in range(4):
        p.s("s_cselect_b32", rTMP[h], rK[h], rV[h])
    p.s("s_lshl_b32", st[2], srot, 13)
    p.bload(aTouch[0], vo, rTMP, soff=st[2])
    p.s("s_add_u32", st[2], st[2], 4096)
    p.bload(aTouch[1], vo, rTMP, soff=st[2])
    for k, name in enumerate(("wg", "wu", "wd")):
        for h in range(2):
            if k == 0:
                p.s("s_mov_b32", rTMP[h], ptr2[name][h])
            else:
                p.s("s_cmp_eq_u32", sw, k + 1)
                p.s("s_cselect_b32", rTMP[h], ptr2[name][h], rTMP[h])
    p.s("s_mov_b32", rTMP[2], SZ["wd"])
    p.s("s_lshl_b32", st[2], S(2), 12)
    p.s("s_cmp_eq_u32", sw, 0)
    p.s("s_cselect_b32", st[2], SZ["wd"], st[2])
    p.bload(aTouch[3], vo, rTMP, soff=st[2])
    p.s("s_add_u32", st[2], st[2], 256 * 4096)
    p.bload(aTouch[4], vo, rTMP, soff=st[2])


def touch_streams(p, ptr2, all_waves=False):
    if all_waves:
        return touch_all(p, ptr2)
    p.s("s_cmp_eq_u32", sw, 0)
    p.branch("s_cbranch_scc1", "M_no_touch")
    vo = vt[6]
    p.v("v_lshlrev_b32", vo, 6, vl)
    p.s("s_cmp_lt_u32", srb, 16)
    p.s("s_cselect_b32", rTMP[0], ptr2["k"][0], ptr2["v"][0])
    p.s("s_cselect_b32", rTMP[1], ptr2["k"][1], ptr2["v"][1])
    p.s("s_lshl_b32", st[1], shg, 21)
    p.s("s_add_u32", st[1], st[1], 1536 * 256)
    p.s("s_add_u32", rTMP[0], rTMP[0], st[1])
    p.s("s_addc_u32", rTMP[1], rTMP[1], 0)
    p.s("s_mov_b32", rTMP[2], 4 << 19)
    p.s("s_mov_b32", rTMP[3], 0x20000)
    p.s("s_lshl_b32", st[2], srot, 13)
    for m in range(3 if KVTOUCH else 0):
        p.s("s_add_u32", st[1], sw, 3 * m - 1)
        p.s("s_lshr_b32", st[3], st[1], 1)
        p.s("s_lshl_b32", st[3], st[3], 19)
        p.s("s_and_b32", st[1], st[1], 1)
        p.s("s_lshl_b32", st[1], st[1], 12)
        p.s("s_add_u32", st[1], st[1], st[3])
        p.s("s_add_u32", st[1], st[1], st[2])
        p.bload(aTouch[m], vo, rTMP, soff=st[1])
    if MLPTOUCH == "wd":
        p.s("s_cmp_lg_u32", sw, 3)
        p.branch("s_cbranch_scc1", "M_no_touch")
    for k, name in enumerate(("wg", "wu", "wd")):
        for h in range(2):
            if k == 0:
                p.s("s_mov_b32", rTMP[h], ptr2[name][h])
            else:
                p.s("s_cmp_eq_u32", sw, k + 1)
                p.s("s_cselect_b32", rTMP[h], ptr2[name][h], rTMP[h])
    p.s("s_mov_b32", rTMP[2], SZ["wd"])
    p.s("s_lshl_b32", st[2], S(2), 12)
    p.bload(aTouch[3], vo, rTMP, soff=st[2])
    p.s("s_add_u32", st[2], st[2], 256 * 4096)
    p.bload(aTouch[4], vo, rTMP, soff=st[2])
    p.label("M_no_touch")


def touch_d_weights(p):
    p.s("s_cmp_eq_u32", sw, 0)
    p.branch("s_cbranch_scc1", "M_no_touch_d")
    p.s("s_cmp_eq_u32", sDact, 0)
    p.branch("s_cbranch_scc1", "M_no_touch_d")
    vo = V(170)
    p.v("v_lshrrev_b32", V(171), 1, vl)
    p.s("s_mov_b32", st[0], ROWB)
    p.v("v_mul_lo_u32", V(171), V(171), st[0])
    p.v("v_and_b32", vo, 1, vl)
    p.v("v_lshlrev_b32", vo, 6, vo)
    p.v("v_add_u32", vo, vo, V(171))
    p.s("s_and_b32", st[0], srb, 3)
    p.s("s_mul_i32", st[0], st[0], 128 * ROWB)
    p.s("s_mul_i32", st[1], sDcg, 96)
    p.s("s_add_u32", st[0], st[0], st[1])
    p.s("s_sub_u32", st[1], sw, 1)
    p.s("s_mul_i32", st[1], st[1], 32 * ROWB)
    p.s("s_add_u32", st[1], st[1], st[0])
    p.bload(aTouch[0], vo, rG, soff=st[1])
    p.bload(aTouch[1], vo, rU, soff=st[1])
    p.s("s_add_u32", st[1], st[0], 3 * 32 * ROWB)
    p.s("s_cmp_eq_u32", sw, 3)
    p.s("s_cselect_b32", st[1], st[1], SZ["wg"])
    p.bload(aTouch[2], vo, rG, soff=st[1])
    p.bload(aTouch[3], vo, rU, soff=st[1])
    p.label("M_no_touch_d")


DBGSTAMPS = ["rt0", "ln", "h_ready", "q_done", "att_loop", "o_done", "r_go", "r_done", "d_go", "d_mma", "e_go", "e_main", "rt1"]
DBGWG = 128


def gen_mega(diag=False):
    p = Prog()
    T = Stamps(p, diag, vreg=V(0), early=0, only=DBGSTAMPS if diag == "dbg" else None)
    p.s("s_cmp_ge_u32", S(2), 256)
    p.branch("s_cbranch_scc1", "B_end")
    p.v("v_mov_b32", vtid2, V(0))
    T("rt0", True)
    T("start")
    ptr = {k: S(52 + 2 * i, 2) for i, k in enumerate(["x", "ws", "dbg", "wmod", "c", "wq"])}
    for k in ptr:
        p.s_load(ptr[k], S(0, 2), ARG[k])
    p.v("v_lshrrev_b32", vt[0], 6, vtid2)
    p.v("v_and_b32", vl, 63, vtid2)
    p.v("v_readfirstlane_b32", sw, vt[0])
    p.s("s_and_b32", shg, S(2), 7)
    p.s("s_lshr_b32", srb, S(2), 3)
    p.s("s_and_b32", srot, srb, 15)
    p.s("s_lshl_b32", shead, shg, 2)
    p.s("s_mov_b32", sHi, 0xFFFF0000)
    vq, vg = vtmp[0], vtmp[1]
    p.v("v_and_b32", vq, 15, vl)
    p.v("v_lshrrev_b32", vg, 4, vl)
    p.v("v_lshlrev_b32", vlin, 4, vl)
    p.v("v_mov_b32", vpoll, 0)
    p.s("s_add_u32", shead, shead, sw)
    p.s("s_mul_i32", sMW, sw, WRING)
    p.s("s_lshl_b32", sMS, sw, 14)
    p.s("s_add_u32", sMS, sMS, SH)
    vxo = vtmp[2]
    p.s("s_lshl_b32", st[0], srb, 6)
    p.s("s_lshl_b32", st[1], sw, 4)
    p.s("s_add_u32", st[0], st[0], st[1])
    p.v("v_add_u32", vxo, st[0], vq)
    p.v("v_lshlrev_b32", vxo, 10, vxo)
    p.v("v_lshl_add_u32", vxo, vg, 4, vxo)
    p.wait(lgkm=0)
    srd(p, rX, ptr["x"], SZ["x"])
    srd(p, rWS, ptr["ws"], WS_DIAG_END if diag == "diag" else WS_END)
    srd(p, rDBG, ptr["dbg"], 256)
    srd(p, rWQ, ptr["wq"], SZ["wq"])
    ptr2 = {k: S(64 + 12 + 2 * i, 2) for i, k in enumerate(["k", "v", "wo", "wg", "wu", "wd", "out"])}
    for k in ptr2:
        p.s_load(ptr2[k], S(0, 2), ARG[k])
    p.s("s_mov_b32", st[0], WS_EPOCH)
    p.bload(aT, vpoll, rWS, soff=st[0], flags=SC1)
    if CODEPF:
        code_prefetch(p)
    srd(p, rTMP, ptr["wmod"], SZ["wmod"])
    srd(p, rTMP2, ptr["c"], SZ["c"])
    slab_map(p)
    if SLABW:
        p.s("s_cmp_lt_u32", S(2), N_MOD0)
        p.s("s_cselect_b32", st[3], 0, 3)
        p.s("s_cmp_lg_u32", sw, st[3])
        p.branch("s_cbranch_scc1", "M_no_slab")
        p.s("s_cmp_ge_u32", S(2), N_MOD0 + N_MOD1)
        p.branch("s_cbranch_scc1", "M_no_slab")
        slabw_issue(p, S(2))
    else:
        p.s("s_cmp_ge_u32", sSlab, N_MOD0 + N_MOD1 if SLAB1EARLY else N_MOD0)
        p.branch("s_cbranch_scc1", "M_no_slab")
        slab_issue(p, sSlab)
    p.label("M_no_slab")
    T("s_iss")
    p.wait(lgkm=0)
    bc_setup(p, ptr2)
    if NOMEM:
        for r_ in (rK, rV, rWO, rWQ):
            p.s("s_mov_b32", r_[2], 0)
    vone, vz = vtmp[4:8], vtmp[8:12]
    dma_voffs(p, vdQ, 8192, "n8", 8)
    p.s("s_lshl_b32", sA, srot, 18)
    p.s("s_lshl_b32", st[1], shead, 8)
    p.s("s_add_u32", sA, sA, st[1])
    vX = V(64, 64)
    sX = S(91)

    def x_loads(lo, hi):
        for n in range(lo, hi):
            p.bload(vX[4 * n:4 * n + 4], vxo, rX, soff=sX)
            if n < 15:
                p.s("s_add_u32", sX, sX, 64)
                p.s("s_and_b32", sX, sX, 0x3FF)

    p.s("s_lshl_b32", sX, srot, 6)
    p.s("s_cmp_ge_u32", sSlab, N_MOD0)
    p.branch("s_cbranch_scc1", "M_no_slab_f")
    if SLABW:
        p.s("s_cmp_lg_u32", sw, 0)
        p.branch("s_cbranch_scc1", "M_no_slab_f")
        slabw_finish(p, T, S(2), "slab0")
    else:
        slab_finish(p, T, sSlab, "slab0")
        p.barrier()
    p.label("M_no_slab_f")
    x_loads(0, 16)
    if TOUCH == "early":
        p.s("s_cmp_lt_u32", S(2), N_MOD0 + N_MOD1)
        p.branch("s_cbranch_scc1", "M_skip_touch")
        touch_streams(p, ptr2)
        p.label("M_skip_touch")
    T("issued")
    if not SLAB1EARLY and not SLABW:
        p.s("s_sub_u32", st[5], sSlab, N_MOD0)
        p.s("s_cmp_ge_u32", st[5], N_MOD1)
        p.branch("s_cbranch_scc1", "M_no_slab1i")
        slab_issue(p, sSlab)
        p.label("M_no_slab1i")
    dma_now(p, "wq", 0)
    T("setup")

    gram, rsum = vtmp[12:16], A(232, 4)
    for n in range(16):
        xs = vX[4 * n:4 * n + 4]
        p.mfma16(gram, xs, xs, gram if n else 0)
        p.mfma16(rsum, vone, xs, rsum if n else 0)
    rs0 = vt[6]
    p.v("v_accvgpr_read_b32", rs0, rsum[0])
    mu, rs2, nm2 = vt[7], V(50, 2), V(52, 2)
    row_stats(p, gram, [rs0], vq, vg, mu, rs2[0], nm2[0], vt[0], vt[1])
    p.v("v_mov_b32", rs2[1], rs2[0])
    p.v("v_mov_b32", nm2[1], nm2[0])
    vY = V(128, 128)
    for n in range(16):
        xs = vX[4 * n:4 * n + 4]
        y = vY[8 * n:8 * n + 8]
        for i in range(4):
            p.v("v_lshlrev_b32", y[2 * i], 16, xs[i])
            p.v("v_and_b32", y[2 * i + 1], sHi, xs[i])
        for i in range(4):
            p.v("v_pk_fma_f32", y[2 * i:2 * i + 2], y[2 * i:2 * i + 2], rs2, nm2)
    T("ln")
    p.s("s_sub_u32", st[5], sSlab, N_MOD0)
    p.s("s_cmp_ge_u32", st[5], N_MOD1)
    p.branch("s_cbranch_scc1", "M_no_slab1")
    if SLABW:
        p.s("s_cmp_lg_u32", sw, 3)
        p.branch("s_cbranch_scc1", "M_no_slab1")
        slabw_finish(p, T, S(2), "slab1")
    else:
        slab_finish(p, T, sSlab, "slab1")
    p.label("M_no_slab1")
    vts = vt[5]
    p.s("s_lshl_b32", st[1], sw, 2)
    p.s("s_add_u32", st[1], st[1], srot)
    p.v("v_add_u32", vt[0], st[1], vg)
    p.v("v_and_b32", vt[0], 15, vt[0])
    p.v("v_lshlrev_b32", vt[0], 8, vt[0])
    p.v("v_lshrrev_b32", vt[1], 3, vq)
    p.v("v_lshl_add_u32", vt[0], vt[1], 12, vt[0])
    p.v("v_and_b32", vt[1], 7, vq)
    p.v("v_lshl_add_u32", vts, vt[1], 5, vt[0])
    if TOUCH in ("midq", "win", "bg"):
        dma_now(p, "wq", 1)
    if TOUCH == "win":
        touch_mlp_window(p, ptr2)
    get_tag(p)
    g8 = V(64, 8)
    p.s("s_mov_b32", sp1, 0)
    p.s("s_mov_b32", st[1], WS_MODG)
    p.label("P_modg")
    p.bload(g8[0:4], vts, rWS, soff=st[1], flags=SC1)
    p.bload(g8[4:8], vts, rWS, soff=st[1], off=16, flags=SC1)
    p.v("v_cmp_eq_u32", VCC, sTag, g8[1])
    p.s("s_mov_b64", sexec, VCC)
    for k in (3, 5, 7):
        p.v("v_cmp_eq_u32", VCC, sTag, g8[k])
        p.s("s_and_b64", sexec, sexec, VCC)
    p.add(I(f"s_cmp_eq_u64 {sexec}, exec", "salu", (), units(sexec)))
    p.branch("s_cbranch_scc1", "P_modg_done")
    p.s("s_add_u32", sp1, sp1, 1)
    p.s("s_cmp_lt_u32", sp1, 0x40000)
    p.raw(f"s_sleep {POLLSLEEP}") if POLLSLEEP else p.nop(0)
    p.add(I("s_cbranch_scc1 P_modg", "salu"))
    p.label("P_modg_done")
    T("mod0")
    if TOUCH == "v1":
        dma_now(p, "wq", 1)
        touch_streams(p, ptr2)
    p.v("v_mov_b32", g8[1], g8[2])
    p.v("v_mov_b32", g8[2], g8[4])
    p.v("v_mov_b32", g8[3], g8[6])
    p.s("s_lshl_b32", st[1], sw, 10)
    p.s("s_add_u32", st[1], st[1], TAB)
    p.v("v_add_u32", vt[4], st[1], vlin)
    p.ds_write("ds_write_b128", vt[4], g8[0:4])
    vtab, vhw = vt[2], vt[3]
    p.v("v_lshlrev_b32", vtab, 5, vg)
    p.v("v_add_u32", vtab, TAB, vtab)
    p.s("s_lshl_b32", st[1], sw, 10)
    p.s("s_add_u32", st[1], st[1], SH)
    p.v("v_add_u32", vhw, st[1], vlin)
    p.barrier()
    T("tab")
    if TOUCH not in ("v1", "midq", "win", "bg"):
        dma_now(p, "wq", 1)
    if TOUCH == "aftertab":
        touch_streams(p, ptr2)

    def rd_tab(n):
        tb = V(64 + 16 * (n % 3), 16)
        for i, o in enumerate((0, 16, 128, 144)):
            p.ds_read("ds_read_b128", tb[4 * i:4 * i + 4], vtab, off=n * 256 + o)

    rd_tab(0)
    rd_tab(1)
    for n in range(16):
        tb = V(64 + 16 * (n % 3), 16)
        y = vY[8 * n:8 * n + 8]
        o4 = V(112 + 4 * (n & 3), 4)
        if n + 2 < 16:
            rd_tab(n + 2)
        for i in range(4):
            p.v("v_pk_fma_f32", y[2 * i:2 * i + 2], y[2 * i:2 * i + 2], tb[8 + 2 * i:10 + 2 * i], tb[2 * i:2 * i + 2])
        for i in range(4):
            p.v("v_cvt_pk_bf16_f32", o4[i], y[2 * i], y[2 * i + 1])
        p.ds_write("ds_write_b128", vhw, o4, off=n * 4096)
        if n == 7:
            T("h_half")
    T("h_tr")
    for i in range(8):
        zero16(p, vACC[16 * i:16 * i + 16], vz)
    if TOUCH == "bg":
        bg_q_setup(p)
    T("h_zero")
    p.barrier()
    T("h_ready")

    bc_main(p, T, store_flags=SC1, at_q_done=late_signals, before_norm=early_sample,
            o2_hooks=o2_hooks() if TWOPASS else None,
            mid_q={1: lambda q: touch_streams(q, ptr2, all_waves=True)} if TOUCH == "midq" else None,
            bg_q=bg_q if TOUCH == "bg" else None, bg_att=bg_att if TOUCH == "bg" else None,
            before_att=(lambda q: bg_att_setup(q, ptr2)) if TOUCH == "bg" else None)
    T("o_done")

    ptr3 = ptr2
    srd(p, rG, ptr3["wg"], SZ["wg"])
    srd(p, rU, ptr3["wu"], SZ["wu"])
    srd(p, rD, ptr3["wd"], SZ["wd"])
    srd(p, rOut, ptr3["out"], SZ["out"])
    d_ids(p)
    if not TWOPASS:
        r_addr(p)
        check_mod1(p)
        r_side_loads(p)
        r_mod_loads(p, (2,))
    signal(p, F_PART, S(2), "part", pre=confirm_early, T=T)
    T("part_sig")
    if EARLYW:
        p.s("s_cmp_eq_u32", sDact, 0)
        p.branch("s_cbranch_scc1", "M_no_dw_early")
        d_weights(p, drain=False)
        p.label("M_no_dw_early")
    if TWOPASS:
        r_mod_loads(p, (2,))
        r_sum(p, 0)
        T("r_sum0")
    p.s("s_lshl_b32", st[5], srb, 3)
    poll_flags(p, F_PART, st[5], 8, "part")
    T("r_go")
    if not TWOPASS:
        r_partial_loads(p, 0)
    r_partial_loads(p, 1)
    if not TWOPASS:
        r_sum(p, 0)
    r_sum(p, 1)
    T("r_sum")
    phase_r_compute(p, T)
    signal(p, F_H2, S(2), "h2")
    T("r_done")
    e_setup(p)

    def e_prefetch():
        for n in range(E_NSLOT):
            e_issue_w(p, n, n % 3, n // 3)

    p.s("s_cmp_eq_u32", sDact, 0)
    p.branch("s_cbranch_scc1", "M_no_d")
    phase_d(p, T, e_prefetch)
    if EARLYW:
        p.branch("s_branch", "M_e")
        p.label("M_no_d")
        e_early(p, "n")
        p.wait(vm=0)
        p.label("M_e")
    else:
        p.label("M_no_d")
        e_prefetch()
    T("d_done")
    phase_e(p, T)
    T("e_done")
    if diag:
        p.wait(vm=0)
    T("rt1", True)
    if diag == "dbg":
        p.s("s_cmp_lg_u32", S(2), DBGWG)
        p.branch("s_cbranch_scc1", "M_dbg_done")
        p.s("s_cmp_lg_u32", sw, 0)
        p.branch("s_cbranch_scc1", "M_dbg_done")
        p.v("v_readlane_b32", S(100), V(0), 0)
        p.v("v_subrev_u32", V(0), S(100), V(0))
        p.v("v_mbcnt_lo_u32_b32", vt[1], -1, 0)
        p.v("v_mbcnt_hi_u32_b32", vt[1], -1, vt[1])
        p.v("v_lshlrev_b32", vt[1], 2, vt[1])
        p.v("v_add_u32", vt[1], 12, vt[1])
        p.s("s_mov_b64", EXEC, 0x1FFE)
        p.bstore(V(0), vt[1], rDBG, soff=0)
        p.s("s_mov_b64", EXEC, -1)
        p.label("M_dbg_done")
    else:
        T.flush(rWS, sw, 1, vt[0], vt[1])
    gen_mega.stamp_names = T.names
    p.branch("s_branch", "B_end")
    slow_attention(p)
    p.label("B_end")
    resolve_ovw(p.ins)
    return finalize(p, {"gq": sLoop, "ga": sLoop, "go": sLoop, "gd": sLoop}, verbose=4, name="MEGA")


def assemble_mega(diag=False):
    from build import HEAD
    body = gen_mega(diag)
    s = HEAD + f"; @launch grid=(256,1,1) block=(256,1,1) lds={M_LDS}\n"
    s += '.amdgcn_target "amdgcn-amd-amdhsa--gfx950"\n'
    s += kernel_text(KNAME, body, 512, 256)
    return s


if __name__ == "__main__":
    import sys
    diag = len(sys.argv) > 2 and sys.argv[2] in ("diag", "dbg") and sys.argv[2]
    for a in sys.argv[3:]:
        k, v = a.split("=")
        globals()[k] = int(v) if v.isdigit() else v
        if k == "EXP":
            kb2.EXP = v
        if k == "DMAC":
            kb2.DMA_COST = int(v)
        if k == "NEWS":
            kb2.NEWS = int(v)
        if k == "DIST":
            kb2.DIST = int(v)
        if k == "ALIGN":
            import asmlib
            asmlib.ALIGN_LOOPS = int(v)
    txt = assemble_mega(diag)
    open(sys.argv[1], "w").write(txt)
    print("wrote", sys.argv[1], len(txt))
    if diag:
        print(",".join(gen_mega.stamp_names))
```

```python
from asmlib import *
from layout import *
from ka import srd

SLOT = 8192
WRING = 3 * SLOT
SH = 4 * WRING
B_LDS = SH + 65536
TAB = 2 * SLOT
LIMIT = float(2 ** 40)

vtid, vl = V(0), V(1)
vdQ, vdK, vdV = V(2, 8), V(10, 8), V(18, 4)
vtr, vK, vB, vlin = V(22, 8), V(30, 4), V(34), V(35)
vt = V(36, 8)
vtrP = V(44)
vtmp = V(46, 18)
vQ = V(64, 64)
vACC = V(128, 128)
vS = [V(128, 32), V(160, 32)]
vP = V(192, 16)
vNM = V(208, 16)
vW = V(224, 32)
aO, aL, aONE = A(0, 128), A(128, 16), A(144, 4)
aA, aK, aB = A(148, 16), A(164, 16), A(180, 48)
rWQ, rK, rV, rWO, rWS, rX = S(4, 4), S(8, 4), S(12, 4), S(16, 4), S(20, 4), S(24, 4)
sw, shg, srb, shead, srot = S(28), S(29), S(30), S(31), S(32)
sMW, sMS = S(33), S(34)
sA, sK, sV = S(35), S(36), S(37)
sLoop = S(38)
st = S(39, 6)
sPart = S(45)
sHi = S(46)
sexec = S(48, 2)


def acc(t, qt):
    return vACC[16 * t + 4 * qt:16 * t + 4 * qt + 4]


def oacc(dt, qt):
    return aO[16 * dt + 4 * qt:16 * dt + 4 * qt + 4]


def sreg(buf, kt, qt):
    return vS[buf][16 * kt + 4 * qt:16 * kt + 4 * qt + 4]


def afrag(i):
    return aA[4 * (i % 4):4 * (i % 4) + 4]


DIST = 2
aK8, aV8 = A(148, 32), A(180, 32)


def kfrag(i):
    if DIST == 4:
        return aK8[4 * (i % 8):4 * (i % 8) + 4]
    return aK[4 * (i % 4):4 * (i % 4) + 4]


def vfrag(i):
    if DIST == 4:
        return aV8[4 * (i % 8):4 * (i % 8) + 4]
    return afrag(i)


def bfrag(n, qt):
    o = 16 * (n % 3) + 4 * qt
    return aB[o:o + 4]


def qfrag(qt, s_):
    return vQ[16 * qt + 4 * s_:16 * qt + 4 * s_ + 4]


def dma_voffs(p, dst, stride, swz, n):
    p.v("v_lshrrev_b32", vt[0], 4, vl)
    p.v("v_and_b32", vt[1], 15, vl)
    p.s("s_mov_b32", st[0], stride)
    p.v("v_mul_lo_u32", vt[2], vt[0], st[0])
    npat = {"tr": 2, "n8": 4, "k": 4}[swz]
    for j in range(min(n, npat)):
        if swz == "tr":
            p.v("v_add_u32", vt[3], 4 * (j & 1), vt[0])
            p.v("v_lshlrev_b32", vt[3], 1, vt[3])
        elif swz == "n8":
            p.v("v_add_u32", vt[3], 4 * ((j >> 1) & 1), vt[0])
            p.v("v_lshlrev_b32", vt[3], 1, vt[3])
        else:
            p.v("v_add_u32", vt[3], 4 * (j & 3), vt[0])
        p.v("v_xor_b32", vt[3], vt[3], vt[1])
        p.v("v_lshlrev_b32", vt[3], 4, vt[3])
        p.v("v_add_u32", vt[4 + j], vt[3], vt[2])
    for j in range(n):
        k = 4 * j * stride - 1024 * (j & 3)
        src = vt[4 + j % npat]
        if k:
            p.v("v_add_u32", dst[j], k, src)
        else:
            p.v("v_mov_b32", dst[j], src)


KIND = {
    "wq": (rWQ, vdQ, sA, 32 * 8192, 0x3FFFFF),
    "wo": (rWO, vdQ, sA, 32 * 1024, 0x7FFFF),
    "wo2": (rWO, vdQ, sA, 64 * 1024, 0x7FFFF),
    "k": (rK, vdK, sK, SLOT, 0x1FFFF),
    "v": (rV, vdV, sV, SLOT, 0x1FFFF),
}


def ring_pos(kind, n):
    if kind in ("wq", "wo", "wo2"):
        return ("W", n % 3)
    if kind == "k":
        return ("W", 1 + (n & 1))
    return ("V", n & 1)


def dma_piece(kind, n, j):
    srd_, voffs, so, step, mask = KIND[kind]
    ring, pos = ring_pos(kind, n)
    q = Prog()
    pre = []
    if (j & 3) == 0:
        q.s("s_add_u32", M0, sMW if ring == "W" else sMS, pos * SLOT + (j >> 2) * 4096)
        pre, q.ins = q.ins, []
    voff = voffs[j] if kind != "v" else voffs[(j & 1) + 2 * (j >> 2)]
    x = q.dma(voff, srd_, so, off=1024 * (j & 3), tag=(kind, n))
    x.meta["into"] = (ring, pos)
    if j == 7:
        q.s("s_add_u32", so, so, step)
        q.s("s_and_b32", so, so, mask)
        if kind == "wo2" and n == 7:
            q.s("s_add_u32", so, so, 128)
    return pre, q.ins


def dma_piece3(kind, n, j):
    pre, main = dma_piece(kind, n, j)
    return pre, main[:1], main[1:]


def put_dma_alone(sc, kind, n, gaps, post_gaps):
    if "nodma" in EXP:
        return
    for j in range(8):
        pre, d, post = dma_piece3(kind, n, j)
        sc.fixed(gaps[j] - 1, pre)
        sc.fixed(gaps[j], d)
        for x, g in zip(post, post_gaps):
            sc.fixed(g, [x])


def dma_now(p, kind, n):
    for j in range(8):
        pre, main = dma_piece(kind, n, j)
        for x in pre:
            p.add(x)
        if pre:
            p.nop(0)
        for x in main:
            p.add(x)


def rd_tr(kind, n, t, dst):
    q = Prog()
    ring, pos = ring_pos(kind, n)
    second = 1024 if kind == "wq" else 4096
    for h in range(2):
        i = q.ds_read("ds_read_b64_tr_b16", dst[2 * h:2 * h + 2], vtr[t], off=pos * SLOT + second * h, dep=(kind, n))
        i.meta["from"] = (ring, pos)
    return q.ins


def rd_k(n, f, dst):
    q = Prog()
    kt, s_ = f >> 2, f & 3
    ring, pos = ring_pos("k", n)
    i = q.ds_read("ds_read_b128", dst, vK[s_], off=pos * SLOT + kt * 4096, dep=("k", n))
    i.meta["from"] = (ring, pos)
    return q.ins


def rd_b(n, qt, base_step):
    q = Prog()
    q.ds_read("ds_read_b128", bfrag(n, qt), vB, off=(n - base_step) * 4096 + qt * 1024)
    return q.ins


def resolve_ovw(ins):
    last = {}
    for x in ins:
        if x.kind == "ds_read" and "from" in x.meta:
            last[x.meta["from"]] = x.dep
        elif x.kind == "dma" and "into" in x.meta:
            x.ovw = last.get(x.meta["into"])


DMA_COST = 4
NEWS = 1
NEWS_XD, NEWS_XP = [3, 6, 11, 14, 19, 22, 26 + 2, 30], [31, 31]
NEWS_YD, NEWS_YP = [2, 8, 14, 16, 22, 24, 30, 32], [33, 34]


def cost(x):
    if x.kind == "trans":
        return 8
    if x.kind == "dma":
        return DMA_COST
    if x.kind in ("comment", "label", "need"):
        return 0
    return 4


class Sched:
    def __init__(self, mf):
        self.mf = mf
        n = len(mf)
        self.mem = [[] for _ in range(n)]
        self.oth = [[] for _ in range(n)]
        self.res = [0] * n

    def fixed(self, g, ins):
        g = max(0, min(g, len(self.mf) - 1))
        for x in ins:
            (self.mem if x.kind in ("ds_read", "dma", "vstore", "ds_write", "vload") else self.oth)[g].append(x)

    def reserve(self, g, c=4):
        if 0 <= g < len(self.mf):
            self.res[g] += c

    def used(self, g):
        return sum(map(cost, self.mem[g] + self.oth[g])) + self.res[g]

    def flow(self, seq, first=0, last=None, budget=8):
        n = len(self.mf) if last is None else last + 1
        rem = sum(cost(x) for x, _ in seq)
        i = 0
        for g in range(first, n):
            cap_after = sum(max(0, budget - self.used(h)) for h in range(g + 1, n))
            while i < len(seq) and seq[i][1] <= g:
                c = cost(seq[i][0])
                u = self.used(g)
                if u + c <= budget or (rem > cap_after and u + c <= budget + 4) or g == n - 1:
                    self.oth[g].append(seq[i][0])
                    rem -= c
                    i += 1
                else:
                    break
        assert i == len(seq), "unplaced fillers"

    def pack(self, exps, cvts, first=0, last=None):
        n = len(self.mf) if last is None else last + 1
        ei = ci = 0
        for g in range(first, n):
            done = ei
            while True:
                u = self.used(g)
                e_ok = ei < len(exps) and exps[ei][1] <= g
                c_ok = ci < len(cvts) and cvts[ci][1] <= done
                free8 = sum(1 for h in range(g + 1, n) if self.used(h) == 0)
                free4 = sum(max(0, 8 - self.used(h)) // 4 for h in range(g + 1, n))
                need8 = len(exps) - ei
                need4 = len(cvts) - ci
                behind = need8 * 2 + need4 > free4 or need8 > free8
                lastg = g == n - 1
                if e_ok and (u == 0 or lastg or (behind and u <= 4 and not (c_ok and u == 4))):
                    self.oth[g].append(exps[ei][0])
                    ei += 1
                elif c_ok and (u + 4 <= 8 or lastg or (behind and u <= 8 and need8 * 2 + need4 > free4 + 1)):
                    self.oth[g].append(cvts[ci][0])
                    ci += 1
                else:
                    break
        while ei < len(exps):
            self.oth[n - 1].append(exps[ei][0])
            ei += 1
        while ci < len(cvts):
            self.oth[n - 1].append(cvts[ci][0])
            ci += 1

    def profile(self):
        return [self.used(g) for g in range(len(self.mf))]

    def emit(self, p):
        for g, m in enumerate(self.mf):
            m()
            for x in self.mem[g] + self.oth[g]:
                p.add(x)


EXP = ""


def put_dma(sc, kind, n, gaps):
    if "nodma" in EXP:
        return
    for j in range(8):
        pre, main = dma_piece(kind, n, j)
        sc.fixed(gaps[j] - 1, pre)
        sc.fixed(gaps[j], main)


def gemm_step(p, kind, n, nxt, base_step, first, last, extra=None, tail=None):
    mf = []
    for t in range(8):
        for qt in range(4):
            def m(t=t, qt=qt):
                x = p.mfma16(acc(t, qt), afrag(t), bfrag(n, qt), acc(t, qt) if not first else 0)
                if qt == 0 and t % 2 == 0:
                    also(x, afrag(t + 1))
                if qt == 0 and t == 0:
                    also(x, [bfrag(n, k) for k in range(4)])
            mf.append(m)
    sc = Sched(mf)
    if NEWS:
        for t in range(0, 8, 2):
            g = 4 * t
            for k in range(2):
                tn, nn = (t + 2 + k) % 8, n + (t + 2 + k) // 8
                if not (last and nn > n) and "noa" not in EXP:
                    r = rd_tr(kind, nn, tn, afrag(t + 2 + k))
                    sc.fixed(g + 3 * k, r[:1])
                    sc.fixed(g + 3 * k + 1, r[1:])
            if not last and "nob" not in EXP:
                sc.fixed(g + (5 if t < 6 else 6), rd_b(n + 1, t // 2, base_step))
        if nxt is not None:
            put_dma_alone(sc, nxt[0], nxt[1], [2, 6, 10, 14, 18, 22, 26, 29], [30, 31, 31])
        if extra:
            for g, ins in extra.items():
                sc.fixed(g, ins)
        if tail:
            sc.flow(tail, budget=12)
        sc.emit(p)
        return
    for t in range(0, 8, 2):
        g = 4 * t
        for k in range(2):
            tn, nn = (t + 2 + k) % 8, n + (t + 2 + k) // 8
            if not (last and nn > n) and "noa" not in EXP:
                r = rd_tr(kind, nn, tn, afrag(t + 2 + k))
                sc.fixed(g + 2 * k, r[:1])
                sc.fixed(g + 2 * k + 1, r[1:])
        sc.reserve(g + 7)
        if not last and "nob" not in EXP:
            sc.fixed(g + 5, rd_b(n + 1, t // 2, base_step))
    if nxt is not None:
        put_dma(sc, nxt[0], nxt[1], [4 * t + (4 if t % 2 == 0 else 2) for t in range(8)])
    if extra:
        for g, ins in extra.items():
            sc.fixed(g, ins)
    if tail:
        sc.flow(tail, budget=12)
    if PROFILE:
        print("G", n, sc.profile())
    sc.emit(p)


def gemm_stage(p, kind, nxt_of, extra_of=None, group="gq", zeroed=False, tail=None, after_iter=None):
    for qt in range(4):
        for x in rd_b(0, qt, 0):
            p.add(x)
    for t in range(2):
        for x in rd_tr(kind, 0, t, afrag(t)):
            p.add(x)
    for it in range(6):
        mark(p, group, it)
        for n in range(3 * it, min(3 * it + 3, 16)):
            gemm_step(p, kind, n, nxt_of(n), 3 * it, n == 0 and not zeroed, n == 15,
                      extra_of(n) if extra_of else None, tail if n == 15 else None)
        if it < 5:
            p.v("v_add_u32", vB, 3 * 4096, vB)
        loop_dec(p)
        loop_branch(p)
        if after_iter and it in after_iter:
            mark(p, group, None)
            after_iter[it](p)
    mark(p, group, None) if not (after_iter and 5 in after_iter) else None
    p.v("v_subrev_u32", vB, 15 * 4096, vB)


def exp_list(buf, start, stop):
    q = Prog()
    order = [(qt, kt, r) for qt in range(4) for kt in range(2) for r in range(4)]
    for qt, kt, r in order[start:stop]:
        x = sreg(buf, kt, qt)[r]
        q.v("v_exp_f32", x, x)
    return q.ins


def cvt_list(buf):
    q = Prog()
    for qt in range(4):
        for kt in range(2):
            s_ = sreg(buf, kt, qt)
            for i in range(2):
                q.v("v_cvt_pk_bf16_f32", vP[4 * qt + 2 * kt + i], s_[2 * i], s_[2 * i + 1])
    return q.ins


N1 = 20


def x_tail_seq(cur):
    ex = exp_list(cur, N1, 32)
    cv = cvt_list(cur)
    return cv[0:4] + ex[0:2] + cv[4:8] + ex[2:4] + cv[8:10] + ex[4:8] + cv[10:12] + ex[8:12] + cv[12:16]


def also(x, regs):
    x.r |= set(units(regs))


def phase_x(p, t, first=False, dma=None, extra=None, late_dma=None):
    buf = (t + 1) & 1
    mf = []
    for f in range(8):
        kt, s_ = f >> 2, f & 3
        for qt in range(4):
            def m(kt=kt, s_=s_, qt=qt, f=f):
                d = sreg(buf, kt, qt)
                c = d if s_ else (0 if first else vNM[4 * qt:4 * qt + 4])
                x = p.mfma16(d, kfrag(f), qfrag(qt, s_), c)
                if qt == 0 and f % 2 == 0:
                    also(x, kfrag(f + 1))
            mf.append(m)
    sc = Sched(mf)
    if NEWS:
        for f in range(0, 6, 2):
            g = 4 * f
            sc.fixed(g, rd_k(t + 1, f + 2, kfrag(f + 2)))
            sc.fixed(g + 1, rd_k(t + 1, f + 3, kfrag(f + 3)))
            sc.reserve(g + 7)
        if not first:
            r = rd_tr("v", t, 0, vfrag(0)) + rd_tr("v", t, 1, vfrag(1))
            for k in range(4):
                sc.fixed(24 + k, [r[k]])
        sc.reserve(31)
        if late_dma is not None:
            put_dma_alone(sc, late_dma[0], late_dma[1], [24, 25, 26, 27, 28, 29, 30, 31], [31, 31])
        if dma is not None:
            put_dma_alone(sc, dma[0], dma[1], NEWS_XD, NEWS_XP)
            for g in NEWS_XD:
                sc.reserve(g, 4)
        if extra:
            for g, ins in extra.items():
                sc.fixed(g, ins)
        if not first:
            ex = exp_list(t & 1, N1, 32)
            cv = cvt_list(t & 1)
            need = [max(0, v - (N1 - 20)) for v in ([0] * 10 + [4, 4] + [8, 8, 12, 12])] if N1 >= 20 else None
            sc.pack([(x, 0) for x in ex], list(zip(cv, need)), last=30)
        if PROFILE:
            print("X", sc.profile())
        sc.emit(p)
        return
    for f in range(0, 8, 2):
        g = 4 * f
        if f + DIST < 8:
            sc.fixed(g, rd_k(t + 1, f + DIST, kfrag(f + DIST)) + rd_k(t + 1, f + DIST + 1, kfrag(f + DIST + 1)))
        elif not first:
            v0 = f + DIST - 8
            sc.fixed(g, rd_tr("v", t, v0, vfrag(v0)))
            sc.fixed(g + 1, rd_tr("v", t, v0 + 1, vfrag(v0 + 1)))
            if v0 == 0:
                sc.reserve(g - 1)
        sc.reserve(g + 7)
    if dma is not None:
        put_dma(sc, dma[0], dma[1], [2, 7, 10, 15, 18, 22, 27, 30])
    if extra:
        for g, ins in extra.items():
            sc.fixed(g, ins)
    if not first:
        ex = exp_list(t & 1, N1, 32)
        cv = cvt_list(t & 1)
        need = [0] * 10 + [4, 4] + [8, 8, 12, 12]
        sc.pack([(x, 0) for x in ex], list(zip(cv, need)), last=30)
    if PROFILE:
        print("X", sc.profile())
    sc.emit(p)


PROFILE = False


def phase_y(p, t, last=False, dma=None, tail=None):
    mf = []
    for qt in range(4):
        def m(qt=qt):
            d = aL[4 * qt:4 * qt + 4]
            p.mfma16(d, aONE, vP[4 * qt:4 * qt + 4], d)
        mf.append(m)
    for dt in range(8):
        for qt in range(4):
            def m(dt=dt, qt=qt):
                d = oacc(dt, qt)
                x = p.mfma16(d, vfrag(dt), vP[4 * qt:4 * qt + 4], d)
                if qt == 0 and dt % 2 == 0:
                    also(x, vfrag(dt + 1))
            mf.append(m)
    sc = Sched(mf)
    if NEWS:
        for dt in range(0, 6, 2):
            g = 4 + 4 * dt
            sc.fixed(g, rd_tr("v", t, dt + 2, vfrag(dt + 2)))
            sc.fixed(g + 1, rd_tr("v", t, dt + 3, vfrag(dt + 3)))
            sc.reserve(g + 7)
        if t + 2 <= 15:
            sc.fixed(28, rd_k(t + 2, 0, kfrag(0)) + rd_k(t + 2, 1, kfrag(1)))
        sc.reserve(35)
        sc.reserve(3)
        if dma is not None:
            put_dma_alone(sc, dma[0], dma[1], NEWS_YD, NEWS_YP)
            for g in NEWS_YD:
                sc.reserve(g, 4)
        if not last:
            sc.pack([(x, 1) for x in exp_list((t + 1) & 1, 0, N1)], [])
        if tail:
            sc.flow(tail, budget=12)
        if PROFILE:
            print("Y", sc.profile())
        sc.emit(p)
        return
    for dt in range(0, 8, 2):
        g = 4 + 4 * dt
        if dt + DIST < 8:
            sc.fixed(g, rd_tr("v", t, dt + DIST, vfrag(dt + DIST)))
            sc.fixed(g + 1, rd_tr("v", t, dt + DIST + 1, vfrag(dt + DIST + 1)))
        elif t + 2 <= 15:
            k0 = dt + DIST - 8
            sc.fixed(g, rd_k(t + 2, k0, kfrag(k0)) + rd_k(t + 2, k0 + 1, kfrag(k0 + 1)))
            if k0 == 0:
                sc.reserve(g - 1)
        sc.reserve(g + 7)
    sc.reserve(3)
    if dma is not None:
        put_dma(sc, dma[0], dma[1], [3, 8, 11, 16, 19, 24, 27, 32])
    if not last:
        sc.pack([(x, 1) for x in exp_list((t + 1) & 1, 0, N1)], [])
    if tail:
        sc.flow(tail, budget=12)
    if PROFILE:
        print("Y", sc.profile())
    sc.emit(p)


def zero16(p, dst, vz):
    p.mfma32(dst, vz, vz, 0)


TRIM = 1
QNAT = 1


def tr_pattern(p, dst, natural, qperm=False):
    p.v("v_lshrrev_b32", vt[0], 4, vl)
    p.v("v_lshrrev_b32", vt[1], 2, vl)
    p.v("v_and_b32", vt[1], 3, vt[1])
    if natural:
        p.v("v_lshl_add_u32", vt[2], vt[0], 3, vt[1])
        p.v("v_and_b32", vt[0], 1, vt[0])
        p.v("v_lshl_add_u32", vt[3], vt[0], 2, vt[1])
    else:
        p.v("v_lshl_add_u32", vt[2], vt[0], 2, vt[1])
        p.v("v_and_b32", vt[3], 7, vt[2])
    p.v("v_lshlrev_b32", vt[3], 1, vt[3])
    p.v("v_and_b32", vt[4], 3, vl)
    if qperm:
        p.v("v_xor_b32", vt[3], vt[3], vt[4])
        p.v("v_lshlrev_b32", vt[3], 4, vt[3])
        p.v("v_lshlrev_b32", vt[2], 8, vt[2])
        p.v("v_add_u32", dst, vt[2], vt[3])
        return
    p.v("v_lshrrev_b32", vt[5], 1, vt[4])
    p.v("v_xor_b32", vt[3], vt[3], vt[5])
    p.v("v_lshlrev_b32", vt[3], 4, vt[3])
    p.v("v_and_b32", vt[4], 1, vt[4])
    p.v("v_lshlrev_b32", vt[4], 3, vt[4])
    p.v("v_lshlrev_b32", vt[2], 8, vt[2])
    p.v("v_add3_u32", dst, vt[2], vt[3], vt[4])


def set_vtr(p, pattern, base, qperm=False):
    p.v("v_add_u32", vtr[0], base, pattern)
    for t in range(1, 8):
        k = ((t >> 1) << 6) | ((t & 1) << 3) if qperm else t << 5
        p.v("v_xor_b32", vtr[t], k, vtr[0])


def row_stats(p, gram, rsum, vq, vg, mu, rs, nmr, t0, t1):
    sq = t1
    p.v("v_and_b32", t0, 3, vq)
    p.v("v_cmp_eq_u32", VCC, 1, t0)
    p.v("v_cndmask_b32", sq, gram[0], gram[1])
    p.v("v_cmp_eq_u32", VCC, 2, t0)
    p.v("v_cndmask_b32", sq, sq, gram[2])
    p.v("v_cmp_eq_u32", VCC, 3, t0)
    p.v("v_cndmask_b32", sq, sq, gram[3])
    p.v("v_lshrrev_b32", t0, 2, vq)
    p.v("v_cmp_eq_u32", VCC, t0, vg)
    p.v("v_cndmask_b32", sq, 0, sq)
    for op in ("v_permlane32_swap_b32", "v_permlane16_swap_b32"):
        p.v("v_mov_b32", t0, sq)
        p.v(op, sq, t0)
        p.v("v_add_f32", sq, sq, t0)
    p.v("v_mul_f32", mu, 1.0 / 512, rsum[0])
    p.v("v_mul_f32", sq, 1.0 / 512, sq)
    p.v("v_fma_f32", sq, Neg(mu), mu, sq)
    p.v("v_max_f32", sq, 0, sq)
    p.v("v_add_f32", sq, 1e-5, sq)
    p.v("v_rsq_f32", rs, sq)
    p.v("v_mul_f32_e64", nmr, Neg(mu), rs)


def slow_attention(p):
    q = p
    q.label("B_slow")
    q.wait(vm=0, lgkm=0)
    vM = vW[0:4]
    for qt in range(4):
        q.v("v_mov_b32", vM[qt], 0xFF800000)
    vz = vW[4:8]
    for i in range(4):
        q.v("v_mov_b32", vz[i], 0)
    sT = st[4]

    def load_tile(with_v):
        q.s("s_lshl_b32", sK, sT, 13)
        q.s("s_mov_b32", sV, sK)
        dma_now(q, "k", 1)
        if with_v:
            dma_now(q, "v", 0)
        q.wait(vm=0)

    def scores(cinit):
        for f in range(8):
            kt, s_ = f >> 2, f & 3
            for x in rd_k(1, f, kfrag(f)):
                q.add(x)
            for qt in range(4):
                d = sreg(0, kt, qt)
                q.mfma16(d, kfrag(f), qfrag(qt, s_), d if s_ else cinit(qt))

    q.s("s_mov_b32", sT, 0)
    q.label("B_slow_p1")
    load_tile(False)
    scores(lambda qt: 0)
    for qt in range(4):
        a, b = sreg(0, 0, qt), sreg(0, 1, qt)
        q.v("v_max3_f32", vM[qt], vM[qt], a[0], a[1])
        q.v("v_max3_f32", vM[qt], vM[qt], a[2], a[3])
        q.v("v_max3_f32", vM[qt], vM[qt], b[0], b[1])
        q.v("v_max3_f32", vM[qt], vM[qt], b[2], b[3])
    q.wait(vm=0, lgkm=0)
    q.s("s_add_u32", sT, sT, 1)
    q.s("s_cmp_lt_u32", sT, 16)
    q.add(I("s_cbranch_scc1 B_slow_p1", "salu"))
    for qt in range(4):
        m = vM[qt]
        for op in ("v_permlane32_swap_b32", "v_permlane16_swap_b32"):
            q.v("v_mov_b32", vW[8], m)
            q.v(op, m, vW[8])
            q.v("v_max_f32", m, m, vW[8])
        for r in range(4):
            q.v("v_sub_f32", vNM[4 * qt + r], 0, m)
    for i in range(8):
        zero16(q, aO[16 * i:16 * i + 16], vz)
    zero16(q, aL, vz)
    q.s("s_mov_b32", sT, 0)
    q.label("B_slow_p2")
    load_tile(True)
    scores(lambda qt: vNM[4 * qt:4 * qt + 4])
    for x in exp_list(0, 0, 32) + cvt_list(0):
        q.add(x)
    for qt in range(4):
        d = aL[4 * qt:4 * qt + 4]
        q.mfma16(d, aONE, vP[4 * qt:4 * qt + 4], d)
    for dt in range(8):
        for x in rd_tr("v", 0, dt, afrag(dt)):
            q.add(x)
        for qt in range(4):
            d = oacc(dt, qt)
            q.mfma16(d, afrag(dt), vP[4 * qt:4 * qt + 4], d)
    q.wait(vm=0, lgkm=0)
    q.nop(15)
    q.s("s_add_u32", sT, sT, 1)
    q.s("s_cmp_lt_u32", sT, 16)
    q.add(I("s_cbranch_scc1 B_slow_p2", "salu"))
    q.nop(15)
    q.add(I("s_branch B_norm", "salu"))


def wo2_setup(p):
    p.v("v_lshrrev_b32", vt[0], 3, vl)
    p.v("v_lshlrev_b32", vt[1], 10, vt[0])
    p.v("v_lshrrev_b32", vt[0], 1, vt[0])
    p.v("v_lshlrev_b32", vt[0], 1, vt[0])
    p.v("v_and_b32", vt[2], 7, vl)
    p.v("v_xor_b32", vt[0], vt[0], vt[2])
    p.v("v_lshl_add_u32", vt[0], vt[0], 4, vt[1])
    for j in range(8):
        k = 8 * j * 1024 - 1024 * (j & 3)
        if k:
            p.v("v_add_u32", vdQ[j], k, vt[0])
        else:
            p.v("v_mov_b32", vdQ[j], vt[0])
    p.s("s_and_b32", sA, srb, 7)
    p.s("s_lshl_b32", sA, sA, 16)
    p.s("s_lshl_b32", st[1], sw, 8)
    p.s("s_add_u32", sA, sA, st[1])


def wo2_read_setup(p):
    p.v("v_lshrrev_b32", vt[0], 2, vl)
    p.v("v_lshlrev_b32", vt[1], 7, vt[0])
    p.v("v_lshrrev_b32", vt[0], 1, vt[0])
    p.v("v_and_b32", vt[0], 3, vt[0])
    p.v("v_lshlrev_b32", vt[0], 1, vt[0])
    p.v("v_and_b32", vt[2], 3, vl)
    p.v("v_lshrrev_b32", vt[3], 1, vt[2])
    p.v("v_xor_b32", vt[0], vt[0], vt[3])
    p.v("v_lshlrev_b32", vt[0], 4, vt[0])
    p.v("v_and_b32", vt[2], 1, vt[2])
    p.v("v_lshlrev_b32", vt[2], 3, vt[2])
    p.v("v_add3_u32", vtr[0], vt[0], vt[1], vt[2])
    p.v("v_add_u32", vtr[0], sMW, vtr[0])
    for t in range(1, 4):
        p.v("v_xor_b32", vtr[t], t << 5, vtr[0])


def rd_o2(m, f, dst):
    q = Prog()
    ring, pos = ring_pos("wo2", m)
    kap, t = f >> 2, f & 3
    for h in range(2):
        i = q.ds_read("ds_read_b64_tr_b16", dst[2 * h:2 * h + 2], vtr[t], off=pos * SLOT + kap * 4096 + h * 2048,
                      dep=("wo2", m))
        i.meta["from"] = (ring, pos)
    return q.ins


def rd_b2(s_, qt):
    q = Prog()
    q.ds_read("ds_read_b128", bfrag(s_, qt), vB, off=(s_ & 15) * 4096 + qt * 1024)
    return q.ins


def part_store_seq(P, store_flags, tag):
    q = Prog()
    seq = []
    for jj in range(2):
        j = 2 * P + jj
        for qt in range(4):
            k = (4 * jj + qt) & 3
            o4 = vtmp[4 * k:4 * k + 4]
            a0, a1 = acc(2 * j, qt), acc(2 * j + 1, qt)
            q.v("v_cvt_pk_bf16_f32", o4[0], a0[0], a0[1])
            q.v("v_cvt_pk_bf16_f32", o4[1], a0[2], a0[3])
            q.v("v_cvt_pk_bf16_f32", o4[2], a1[0], a1[1])
            q.v("v_cvt_pk_bf16_f32", o4[3], a1[2], a1[3])
            q.bstore(o4, vlin, rWS, soff=sPart, off=qt * 1024, flags=store_flags, tag=tag)
            if qt == 3:
                q.s("s_add_u32", sPart, sPart, 4096)
            seq.append((jj, qt, q.ins))
            q.ins = []
    return seq


def stage_o2(p, T, store_flags, hooks):
    for qt in range(4):
        for x in rd_b2(0, qt):
            p.add(x)
    for f in range(2):
        for x in rd_o2(0, f, afrag(f)):
            p.add(x)
    for m in range(16):
        P = m >> 3
        first = (m & 7) == 0
        mf = []
        for f in range(8):
            kap, t = f >> 2, f & 3
            for qt in range(4):
                def mm(f=f, kap=kap, t=t, qt=qt):
                    d = acc(4 * P + t, qt)
                    x = p.mfma16(d, afrag(f), bfrag(2 * m + kap, qt), 0 if (first and kap == 0) else d)
                    if qt == 0 and f % 2 == 0:
                        also(x, afrag(f + 1))
                    if qt == 0 and t == 0:
                        also(x, [bfrag(2 * m + kap, k) for k in range(4)])
                mf.append(mm)
        sc = Sched(mf)
        for f in range(0, 8, 2):
            g = 4 * f
            for k in range(2):
                fn, mn = (f + 2 + k) % 8, m + (f + 2 + k) // 8
                if mn < 16:
                    r = rd_o2(mn, fn, afrag(f + 2 + k))
                    sc.fixed(g + 2 * k, r[:1])
                    sc.fixed(g + 2 * k + 1, r[1:])
            sc.reserve(g + 7)
        for kap in range(2):
            s_ = 2 * m + kap + 1
            if s_ < 32:
                for qt in range(4):
                    sc.fixed(16 * kap + 4 + 2 * qt + (1 if qt >= 2 else 0), rd_b2(s_, qt))
        if m + 2 < 16:
            gaps = [4 * t + (2 if t % 2 == 0 else 3) for t in range(8)] if m != 8 else list(range(1, 9))
            put_dma(sc, "wo2", m + 2, gaps)
        for g, ins in hooks.get(m, {}).items():
            sc.fixed(g, ins)
        if m == 8:
            seq = []
            for jj, qt, ins in part_store_seq(0, store_flags, "part1"):
                seq += [(x, 9) for x in ins]
            sc.flow(seq, budget=16)
        sc.emit(p)
        if m in (7, 9, 11, 13, 15):
            T(f"o_m{m}")
    if "before_last_stores" in hooks:
        hooks["before_last_stores"](p)
        T("o_ld0")
    for jj, qt, ins in part_store_seq(1, store_flags, "part2"):
        for x in ins:
            p.add(x)


def bc_setup(p, ptr):
    vq, vg = vtmp[0], vtmp[1]
    p.s("s_lshl_b32", st[1], shead, 19)
    p.s("s_add_u32", st[1], st[1], 1536 * 256)
    for r_, k in ((rK, "k"), (rV, "v")):
        p.s("s_add_u32", r_[0], ptr[k][0], st[1])
        p.s("s_addc_u32", r_[1], ptr[k][1], 0)
        p.s("s_mov_b32", r_[2], 16 * SLOT)
        p.s("s_mov_b32", r_[3], 0x20000)
    p.s("s_lshl_b32", st[1], shg, 19)
    p.s("s_add_u32", rWO[0], ptr["wo"][0], st[1])
    p.s("s_addc_u32", rWO[1], ptr["wo"][1], 0)
    p.s("s_mov_b32", rWO[2], 512 * 1024)
    p.s("s_mov_b32", rWO[3], 0x20000)
    p.s("s_lshl_b32", sK, srot, 13)
    p.s("s_mov_b32", sV, sK)
    dma_voffs(p, vdK, 256, "k", 8)
    dma_voffs(p, vt[0:8] if False else vdV, 256, "tr", 2)
    p.v("v_add_u32", vdV[2], 4096, vdV[0])
    p.v("v_add_u32", vdV[3], 4096, vdV[1])
    tr_pattern(p, vtrP, False)
    tr_pattern(p, vtr[0], True, qperm=QNAT)
    set_vtr(p, vtr[0], sMW, qperm=QNAT)
    p.v("v_xor_b32", vt[1], vg, vq)
    p.v("v_lshlrev_b32", vt[1], 4, vt[1])
    p.v("v_lshlrev_b32", vt[0], 8, vq)
    p.v("v_add3_u32", vK[0], vt[0], vt[1], sMW)
    for s_ in range(1, 4):
        p.v("v_xor_b32", vK[s_], s_ << 6, vK[0])
    p.v("v_add_u32", vB, SH, vlin)
    vone = vtmp[4:8]
    vz = vtmp[8:12]
    for i in range(4):
        p.v("v_mov_b32", vone[i], 0x3F803F80)
        p.v("v_mov_b32", vz[i], 0)
    for i in range(4):
        p.v("v_accvgpr_write_b32", aONE[i], vone[i])
    for i in range(8):
        zero16(p, aO[16 * i:16 * i + 16], vz)
    zero16(p, aL, vz)
    p.s("s_mul_i32", sPart, shg, 32)
    p.s("s_add_u32", sPart, sPart, srb)
    p.s("s_mul_i32", sPart, sPart, PART_BLK)
    p.s("s_lshl_b32", st[1], sw, 14)
    p.s("s_add_u32", sPart, sPart, st[1])
    p.s("s_add_u32", sPart, sPart, WS_PART)


def bc_main(p, T, store_flags="", after_q=None, at_q_done=None, before_norm=None, o2_hooks=None, mid_q=None, bg_q=None, bg_att=None, before_att=None):
    def nxt_q(n):
        return ("wq", n + 2) if n + 2 < 16 else ("k", n + 2 - 16)

    def extra_q(n):
        if n != 15:
            return bg_q(n) if bg_q else None
        q = Prog()
        q.barrier(drain_lds=False)
        return {3: q.ins}

    two = o2_hooks is not None

    def q_cvts(s_):
        q = Prog()
        for qt in range(4):
            d = qfrag(qt, s_)
            a0, a1 = acc(2 * s_, qt), acc(2 * s_ + 1, qt)
            q.v("v_cvt_pk_bf16_f32", d[0], a0[0], a0[1])
            q.v("v_cvt_pk_bf16_f32", d[1], a0[2], a0[3])
            q.v("v_cvt_pk_bf16_f32", d[2], a1[0], a1[1])
            q.v("v_cvt_pk_bf16_f32", d[3], a1[2], a1[3])
        return q.ins

    hidden = TRIM and QNAT and not two
    qtail = None
    if hidden:
        q = Prog()
        dma_voffs(q, vdQ, 1024, "tr", 8)
        qtail = [(x, 0) for x in q.ins]
        for s_ in range(3):
            qtail += [(x, 4 * (2 * s_ + 1) + 6) for x in q_cvts(s_)]
    gemm_stage(p, "wq", nxt_q, extra_q, "gq", zeroed=True, after_iter=mid_q, tail=qtail)
    T("q_done")
    if at_q_done:
        at_q_done(p)
    dma_now(p, "v", 0)
    for f in range(DIST):
        if hidden:
            for x in rd_k(0, f, kfrag(f)):
                p.add(x)
    for s_ in range(4):
        if hidden and s_ < 3:
            continue
        for x in q_cvts(s_):
            p.add(x)
        for op in ("v_permlane32_swap_b32", "v_permlane16_swap_b32") if not QNAT else ():
            for qt in range(4):
                d = qfrag(qt, s_)
                p.v(op, d[0], d[2])
                p.v(op, d[1], d[3])
        if s_ == 0:
            for f in range(DIST):
                for x in rd_k(0, f, kfrag(f)):
                    p.add(x)
    set_vtr(p, vtrP, sMS)
    wo = "wo2" if two else "wo"
    if two:
        wo2_setup(p)
    else:
        if not hidden:
            dma_voffs(p, vdQ, 1024, "tr", 8)
        p.s("s_lshl_b32", sA, srot, 15)
        p.s("s_lshl_b32", st[1], sw, 8)
        p.s("s_add_u32", sA, sA, st[1])

    T("q_epi")
    if before_att:
        before_att(p)
    if after_q:
        after_q(p)
    if TRIM:
        phase_x(p, -1, first=True, late_dma=("k", 2))
    else:
        phase_x(p, -1, first=True)
        dma_now(p, "k", 2)
    for qt in range(4):
        a, b = sreg(0, 0, qt), sreg(0, 1, qt)
        m = vt[qt]
        p.v("v_max3_f32", m, a[0], a[1], a[2])
        p.v("v_max3_f32", m, m, a[3], b[0])
        p.v("v_max3_f32", m, m, b[1], b[2])
        p.v("v_max_f32", m, m, b[3])
    for op in ("v_permlane32_swap_b32", "v_permlane16_swap_b32"):
        for qt in range(4):
            p.v("v_mov_b32", vt[4 + qt], vt[qt])
        for qt in range(4):
            p.v(op, vt[qt], vt[4 + qt])
        for qt in range(4):
            p.v("v_max_f32", vt[qt], vt[qt], vt[4 + qt])
    for qt in range(4):
        for r in range(4):
            p.v("v_sub_f32", vNM[4 * qt + r], 0, vt[qt])
    for qt in range(4):
        for kt in range(2):
            for r in range(4):
                x = sreg(0, kt, qt)[r]
                p.v("v_sub_f32", x, x, vt[qt])
    for f in range(DIST):
        for x in rd_k(1, f, kfrag(f)):
            p.add(x)
    for x in exp_list(0, 0, N1):
        p.add(x)
    T("att_pro")
    for it in range(7):
        mark(p, "ga", it)
        for t in (2 * it, 2 * it + 1):
            phase_x(p, t, dma=("v", t + 1), extra=bg_att(t) if bg_att else None)
            phase_y(p, t, dma=("k", t + 3))
        loop_dec(p)
        loop_branch(p)
    mark(p, "ga", None)
    T("att_loop")
    phase_x(p, 14, dma=("v", 15))
    phase_y(p, 14, dma=(wo, 0))
    for i, x in enumerate(x_tail_seq(1)):
        p.add(x)
        if i == 4:
            for t in range(DIST):
                for y in rd_tr("v", 15, t, vfrag(t)):
                    p.add(y)
    phase_y(p, 15, last=True, dma=(wo, 1))

    T("att_done")
    if before_norm:
        before_norm(p)
    rinv = vW[0:4]
    for qt in range(4):
        p.v("v_accvgpr_read_b32", rinv[qt], aL[4 * qt])
    p.v("v_add_f32", vt[0], rinv[0], rinv[1])
    p.v("v_add_f32", vt[1], rinv[2], rinv[3])
    p.v("v_add_f32", vt[0], vt[0], vt[1])
    p.v("v_cmp_gt_f32", VCC, LIMIT, vt[0])
    p.add(I("s_cmp_eq_u64 vcc, exec", "salu", (), units(VCC)))
    p.branch("s_cbranch_scc0", "B_slow")
    p.label("B_norm")
    p.barrier()
    for qt in range(4):
        p.v("v_accvgpr_read_b32", rinv[qt], aL[4 * qt])
    for qt in range(4):
        p.v("v_rcp_f32", rinv[qt], rinv[qt])
    r2 = vW[4:12]
    for qt in range(4):
        p.v("v_mov_b32", r2[2 * qt], rinv[qt])
        p.v("v_mov_b32", r2[2 * qt + 1], rinv[qt])
    vow = vW[12:16]
    for s_ in range(4):
        p.s("s_lshl_b32", st[1], sw, 2)
        p.s("s_add_u32", st[1], st[1], s_ + 16)
        if two:
            p.s("s_and_b32", st[2], srb, 7)
            p.s("s_lshl_b32", st[2], st[2], 1)
            p.s("s_sub_u32", st[1], st[1], st[2])
        else:
            p.s("s_sub_u32", st[1], st[1], srot)
        p.s("s_and_b32", st[1], st[1], 15)
        p.s("s_lshl_b32", st[1], st[1], 12)
        p.s("s_add_u32", st[1], st[1], SH)
        p.v("v_add_u32", vow[s_], st[1], vlin)
    first = True
    for s_ in range(4):
        for qt in range(4):
            k = (4 * s_ + qt) & 3
            x = V(128 + 8 * k, 8)
            o4 = V(160 + 4 * (4 * s_ + qt), 4)
            for h in range(2):
                src = oacc(2 * s_ + h, qt)
                for r in range(4):
                    p.v("v_accvgpr_read_b32", x[4 * h + r], src[r])
            for e in range(4):
                p.v("v_pk_mul_f32", x[2 * e:2 * e + 2], x[2 * e:2 * e + 2], r2[2 * qt:2 * qt + 2])
            for i in range(4):
                p.v("v_cvt_pk_bf16_f32", o4[i], x[2 * i], x[2 * i + 1])
            p.ds_write("ds_write_b128", vow[s_], o4, off=qt * 1024)
    T("norm")
    if two:
        wo2_read_setup(p)
    else:
        set_vtr(p, vtrP, sMW)
    p.barrier()
    T("o_xchg")

    if two:
        stage_o2(p, T, store_flags, o2_hooks)
        return
    q = Prog()
    tail = []
    for j in range(4):
        for qt in range(4):
            k = (4 * j + qt) & 3
            o4 = vtmp[4 * k:4 * k + 4]
            a0, a1 = acc(2 * j, qt), acc(2 * j + 1, qt)
            g0 = 4 * (2 * j + 1) + qt + 3
            q.v("v_cvt_pk_bf16_f32", o4[0], a0[0], a0[1])
            q.v("v_cvt_pk_bf16_f32", o4[1], a0[2], a0[3])
            q.v("v_cvt_pk_bf16_f32", o4[2], a1[0], a1[1])
            q.v("v_cvt_pk_bf16_f32", o4[3], a1[2], a1[3])
            q.bstore(o4, vlin, rWS, soff=sPart, off=qt * 1024, flags=store_flags)
            if qt == 3 and j < 3:
                q.s("s_add_u32", sPart, sPart, 4096)
            tail += [(x, min(g0, 31)) for x in q.ins]
            q.ins = []
    gemm_stage(p, "wo", lambda n: ("wo", n + 2) if n + 2 < 16 else None, None, "go", tail=tail)


def gen_b(diag=False):
    p = Prog()
    T = Stamps(p, diag)
    p.s("s_cmp_ge_u32", S(2), 256)
    p.branch("s_cbranch_scc1", "B_end")
    T("rt0", True)
    T("start")
    ptr = {k: S(52 + 2 * i, 2) for i, k in enumerate(["x", "wq", "ws", "k", "v", "wo"])}
    for k in ptr:
        p.s_load(ptr[k], S(0, 2), ARG[k])
    p.v("v_lshrrev_b32", vt[0], 6, vtid)
    p.v("v_and_b32", vl, 63, vtid)
    p.v("v_readfirstlane_b32", sw, vt[0])
    p.s("s_and_b32", shg, S(2), 7)
    p.s("s_lshr_b32", srb, S(2), 3)
    p.s("s_and_b32", srot, srb, 15)
    p.s("s_lshl_b32", shead, shg, 2)
    p.s("s_mov_b32", sHi, 0xFFFF0000)
    vq, vg = vtmp[0], vtmp[1]
    p.v("v_and_b32", vq, 15, vl)
    p.v("v_lshrrev_b32", vg, 4, vl)
    p.v("v_lshlrev_b32", vlin, 4, vl)
    p.s("s_add_u32", shead, shead, sw)
    p.s("s_mul_i32", sMW, sw, WRING)
    p.s("s_lshl_b32", sMS, sw, 14)
    p.s("s_add_u32", sMS, sMS, SH)
    vxo = vtmp[2]
    p.s("s_lshl_b32", st[0], srb, 6)
    p.s("s_lshl_b32", st[1], sw, 4)
    p.s("s_add_u32", st[0], st[0], st[1])
    p.v("v_add_u32", vxo, st[0], vq)
    p.v("v_lshlrev_b32", vxo, 10, vxo)
    p.v("v_lshl_add_u32", vxo, vg, 4, vxo)
    p.wait(lgkm=0)
    srd(p, rX, ptr["x"], SZ["x"])
    vX = V(64, 64)
    p.s("s_lshl_b32", st[0], srot, 6)
    for n in range(16):
        p.bload(vX[4 * n:4 * n + 4], vxo, rX, soff=st[0])
        if n < 15:
            p.s("s_add_u32", st[0], st[0], 64)
            p.s("s_and_b32", st[0], st[0], 0x3FF)
    T("issued")
    bc_setup(p, ptr)
    vone, vz = vtmp[4:8], vtmp[8:12]
    srd(p, rWQ, ptr["wq"], SZ["wq"])
    srd(p, rWS, ptr["ws"], WS_DIAG_END if diag else WS_END)
    dma_voffs(p, vdQ, 8192, "n8", 8)
    p.s("s_lshl_b32", sA, srot, 18)
    p.s("s_lshl_b32", st[1], shead, 8)
    p.s("s_add_u32", sA, sA, st[1])
    dma_now(p, "wq", 0)
    p.s("s_lshl_b32", st[1], sw, 2)
    p.s("s_add_u32", st[1], st[1], srot)
    p.v("v_add_u32", vt[0], st[1], vg)
    p.v("v_and_b32", vt[0], 15, vt[0])
    p.v("v_lshlrev_b32", vt[0], 7, vt[0])
    p.v("v_lshrrev_b32", vt[1], 3, vq)
    p.v("v_lshl_add_u32", vt[0], vt[1], 11, vt[0])
    p.v("v_and_b32", vt[1], 7, vq)
    p.v("v_lshl_add_u32", vt[0], vt[1], 4, vt[0])
    p.s("s_lshl_b32", st[1], sw, 10)
    p.s("s_add_u32", M0, st[1], TAB)
    p.s("s_mov_b32", st[1], WS_MOD)
    p.dma(vt[0], rWS, st[1], tag="tab")
    dma_now(p, "wq", 1)
    T("setup")

    gram, rsum = vtmp[12:16], V(224, 4)
    for n in range(16):
        xs = vX[4 * n:4 * n + 4]
        p.mfma16(gram, xs, xs, gram if n else 0)
        p.mfma16(rsum, vone, xs, rsum if n else 0)
    vwu = A(240, 8)
    p.v("v_lshlrev_b32", vt[0], 6, vl)
    p.s("s_add_u32", st[1], sK, 4096)
    p.bload(vwu[0], vt[0], rK, soff=sK)
    p.bload(vwu[1], vt[0], rK, soff=st[1])
    p.bload(vwu[2], vt[0], rV, soff=sK)
    p.bload(vwu[3], vt[0], rV, soff=st[1])
    p.v("v_lshrrev_b32", vt[0], 2, vl)
    p.v("v_lshlrev_b32", vt[0], 10, vt[0])
    p.v("v_and_b32", vt[1], 3, vl)
    p.v("v_lshl_add_u32", vt[0], vt[1], 6, vt[0])
    p.s("s_lshl_b32", st[1], srot, 15)
    p.s("s_lshl_b32", st[2], sw, 8)
    p.s("s_add_u32", st[1], st[1], st[2])
    p.bload(vwu[4], vt[0], rWO, soff=st[1])
    p.s("s_add_u32", st[1], st[1], 16384)
    p.bload(vwu[5], vt[0], rWO, soff=st[1])
    mu, rs2, nm2 = V(236), V(238, 2), V(240, 2)
    row_stats(p, gram, rsum, vq, vg, mu, rs2[0], nm2[0], vt[0], vt[1])
    p.v("v_mov_b32", rs2[1], rs2[0])
    p.v("v_mov_b32", nm2[1], nm2[0])
    T("stats")
    p.barrier(dep="tab")
    T("tab")
    vtab = vt[2]
    p.v("v_lshlrev_b32", vtab, 5, vg)
    p.v("v_add_u32", vtab, TAB, vtab)
    vhw = vt[3]
    p.s("s_lshl_b32", st[1], sw, 10)
    p.s("s_add_u32", st[1], st[1], SH)
    p.v("v_add_u32", vhw, st[1], vlin)
    def rd_tab(n):
        tb = V(128 + 16 * (n % 3), 16)
        for i, o in enumerate((0, 16, 128, 144)):
            p.ds_read("ds_read_b128", tb[4 * i:4 * i + 4], vtab, off=n * 256 + o)

    rd_tab(0)
    rd_tab(1)
    for n in range(16):
        k = n & 1
        tb = V(128 + 16 * (n % 3), 16)
        y = V(176 + 8 * k, 8)
        o4 = V(192 + 4 * k, 4)
        if n + 2 < 16:
            rd_tab(n + 2)
        xs = vX[4 * n:4 * n + 4]
        for i in range(4):
            p.v("v_lshlrev_b32", y[2 * i], 16, xs[i])
            p.v("v_and_b32", y[2 * i + 1], sHi, xs[i])
        for i in range(4):
            p.v("v_pk_fma_f32", y[2 * i:2 * i + 2], y[2 * i:2 * i + 2], rs2, nm2)
        for i in range(4):
            p.v("v_pk_fma_f32", y[2 * i:2 * i + 2], y[2 * i:2 * i + 2], tb[8 + 2 * i:10 + 2 * i], tb[2 * i:2 * i + 2])
        for i in range(4):
            p.v("v_cvt_pk_bf16_f32", o4[i], y[2 * i], y[2 * i + 1])
        p.ds_write("ds_write_b128", vhw, o4, off=n * 4096)
    for i in range(8):
        zero16(p, vACC[16 * i:16 * i + 16], vz)
    T("h")
    p.barrier()
    T("h_ready")

    bc_main(p, T)
    T("o_done")
    if diag:
        p.wait(vm=0)
    T("drained")
    T("rt1", True)
    T.flush(rWS, sw, 1, vt[0], vt[1])
    gen_b.stamp_names = T.names
    p.branch("s_branch", "B_end")
    slow_attention(p)
    p.label("B_end")
    resolve_ovw(p.ins)
    return finalize(p, {"gq": sLoop, "ga": sLoop, "go": sLoop}, verbose=8, name="BC")


if __name__ == "__main__":
    txt = gen_b()
    open("kb2.s", "w").write(txt)
    print(len(txt.splitlines()))
```

```python
from asmlib import *
from layout import *
from ka import srd, bf16_round_hi
import kb2
from kb2 import *

KNAME = NAME + "_kernel"
M_LDS = B_LDS
SC1 = "sc1"
TOUCH = "v1"
CODEPF = 1
SLAB1EARLY = 0
TWOPASS = 0
POLLSLEEP = 1
SLABMAP = 0
ILV = 1
EROT = 1
SLABW = 0
MLPTOUCH = "all"
EARLYW = 1
NOMEM = 0
KVTOUCH = 1

DBG_MOD0 = 0
DBG_MOD1 = 8
DBG_CLR = 12
DBG_FLAG0 = 128
N_CNT = 256
N_MOD0, N_MOD1 = 32, 64
F_PART, F_H2, F_ACT, F_PART1 = 0, 1, 2, 3

rDBG = S(96, 4)
rTMP = S(92, 4)
rTMP2 = S(72, 4)
sTag = S(90)
aT = A(253)
sp0, sp1 = S(50), S(51)
rG, rU, rD, rOut = rWQ, rK, rV, rWO
vpoll = V(63)
vtid2 = V(45)


def poll(p, srd_, off, target, name, sleep=16):
    lab, done = f"P_{name}", f"P_{name}_done"
    p.s("s_cmp_lg_u32", sw, 0)
    p.branch("s_cbranch_scc1", done)
    p.s("s_mov_b32", sp1, 0)
    p.label(lab)
    p.bload(V(62), vpoll, srd_, soff=0, off=off, flags=SC1)
    p.wait(vm=0)
    p.v("v_readfirstlane_b32", sp0, V(62))
    p.s("s_cmp_ge_u32", sp0, target)
    p.branch("s_cbranch_scc1", done)
    p.s("s_add_u32", sp1, sp1, 1)
    p.s("s_cmp_lt_u32", sp1, 0x20000)
    p.raw(f"s_sleep {sleep}")
    p.add(I(f"s_cbranch_scc1 {lab}", "salu"))
    p.label(done)
    p.barrier(drain_lds=True)


vflag = V(61)


def poll_flags(p, kind, sfirst, count, name):
    lab, done = f"P_{name}", f"P_{name}_done"
    p.s("s_cmp_lg_u32", sw, 0)
    p.branch("s_cbranch_scc1", done)
    p.s("s_mov_b32", sp1, 0)
    p.v("v_min_u32", vflag, count - 1, vl)
    p.v("v_lshlrev_b32", vflag, 7, vflag)
    p.s("s_lshl_b32", sp0, sfirst, 7)
    p.s("s_add_u32", S(47), sp0, WS_FLAG + kind * 256 * 128)
    p.label(lab)
    p.bload(V(62), vflag, rWS, soff=S(47), flags=SC1)
    p.wait(vm=0)
    p.v("v_cmp_eq_u32", VCC, sTag, V(62))
    p.add(I("s_cmp_eq_u64 vcc, exec", "salu", (), units(VCC)))
    p.branch("s_cbranch_scc1", done)
    p.s("s_add_u32", sp1, sp1, 1)
    p.s("s_cmp_lt_u32", sp1, 0x40000)
    p.raw(f"s_sleep {POLLSLEEP}") if POLLSLEEP else p.nop(0)
    p.add(I(f"s_cbranch_scc1 {lab}", "salu"))
    p.label(done)
    p.barrier(drain_lds=True)


def set_flag(p, kind, sindex, value):
    p.v("v_mov_b32", V(62), value)
    p.v("v_mov_b32", vpoll, 0)
    p.s("s_lshl_b32", sp0, sindex, 7)
    p.s("s_add_u32", sp0, sp0, WS_FLAG + kind * 256 * 128)
    p.s("s_mov_b64", EXEC, 1)
    p.bstore(V(62), vpoll, rWS, soff=sp0, flags=SC1)
    p.s("s_mov_b64", EXEC, -1)


def spin(p, srd_, off, target, name):
    lab, done = f"W_{name}", f"W_{name}_done"
    p.s("s_mov_b32", sp1, 0)
    p.label(lab)
    p.bload(V(62), vpoll, srd_, soff=0, off=off, flags=SC1)
    p.wait(vm=0)
    p.v("v_readfirstlane_b32", sp0, V(62))
    p.s("s_cmp_ge_u32", sp0, target)
    p.branch("s_cbranch_scc1", done)
    p.s("s_add_u32", sp1, sp1, 1)
    p.s("s_cmp_lt_u32", sp1, 0x40000)
    p.raw("s_sleep 1")
    p.add(I(f"s_cbranch_scc1 {lab}", "salu"))
    p.label(done)


aEarly = A(248, 2)


def early_sample(p):
    p.bload(aEarly, vpoll, rDBG, soff=0, off=DBG_MOD1, flags=SC1)


def confirm_early(p):
    for k, (off, target) in ((1, (DBG_CLR, N_CNT)),):
        ok = f"C_early{k}_ok"
        p.v("v_accvgpr_read_b32", V(62), aEarly[k])
        p.v("v_readfirstlane_b32", sp0, V(62))
        p.s("s_cmp_ge_u32", sp0, target)
        p.branch("s_cbranch_scc1", ok)
        spin(p, rDBG, off, target, f"early{k}")
        p.label(ok)
    p.s("s_cmp_lg_u32", S(2), 0)
    p.branch("s_cbranch_scc1", "C_epoch_done")
    p.v("v_mov_b32", V(62), sTag)
    p.s("s_mov_b32", sp0, WS_EPOCH)
    p.s("s_mov_b64", EXEC, 1)
    p.bstore(V(62), vpoll, rWS, soff=sp0, flags=SC1)
    p.s("s_mov_b64", EXEC, -1)
    p.label("C_epoch_done")


def signal(p, kind, sindex, name, pre=None, T=None):
    done = f"S_{name}_done"
    p.wait(vm=0)
    if T:
        T(name + "_drain")
    if pre:
        p.s("s_cmp_lg_u32", sw, 0)
        p.branch("s_cbranch_scc1", f"S_{name}_pre")
        pre(p)
        p.label(f"S_{name}_pre")
    p.barrier(drain_lds=True)
    p.s("s_cmp_lg_u32", sw, 0)
    p.branch("s_cbranch_scc1", done)
    set_flag(p, kind, sindex, sTag)
    p.label(done)


def add_one(p, srd_, off):
    p.v("v_mov_b32", V(62), 1)
    p.v("v_mov_b32", vpoll, 0)
    p.s("s_mov_b64", EXEC, 1)
    so, io = (off, 0) if not isinstance(off, int) else (0, off)
    t = f"buffer_atomic_add {V(62)}, " + Prog._bt(vpoll, srd_, so, io, SC1)
    p.add(I(t, "vstore", (), units(V(62), vpoll, srd_, so), meta={"data": units(V(62)), "wide": False}))
    p.s("s_mov_b64", EXEC, -1)


SIL = WRING + 2 * SLOT
MPART = SIL + 1024
mreg = V(64, 64)
aC = A(250)
sSlab = S(71)


def slab_map(p):
    if not SLABMAP:
        p.s("s_cmp_lt_u32", S(2), N_MOD0 + N_MOD1)
        p.s("s_cselect_b32", sSlab, S(2), 255)
        return
    t0, t1 = st[0], st[1]
    p.s("s_lshl_b32", t0, srb, 1)
    p.s("s_and_b32", t1, shg, 1)
    p.s("s_add_u32", t0, t0, t1)
    p.s("s_mov_b32", sSlab, 255)
    p.s("s_add_u32", t1, t0, N_MOD0)
    p.s("s_lshr_b32", sp0, shg, 1)
    p.s("s_cmp_eq_u32", sp0, 1)
    p.s("s_cselect_b32", sSlab, t1, sSlab)
    p.s("s_cmp_lt_u32", t0, N_MOD0)
    p.s("s_cselect_b32", t1, t0, 255)
    p.s("s_cmp_eq_u32", sp0, 0)
    p.s("s_cselect_b32", sSlab, t1, sSlab)


def slab_issue(p, sslab):
    regs = V(128, 8)
    st0, st1, so = st[0], st[1], st[2]
    vt0, vt1, vcoff = regs[0], regs[1], regs[2]
    vd = regs[4:8]
    p.v("v_lshlrev_b32", vcoff, 2, vtid2)
    p.bload(aC, vcoff, rTMP2)
    p.v("v_lshrrev_b32", vt0, 2, vl)
    p.s("s_mov_b32", st0, 6144)
    p.v("v_mul_lo_u32", vt0, vt0, st0)
    p.v("v_and_b32", vt1, 3, vl)
    p.v("v_lshl_add_u32", vd[0], vt1, 4, vt0)
    for j in range(1, 4):
        p.v("v_add_u32", vd[j], j * (16 * 6144 - 1024), vd[0])
    p.s("s_mul_i32", st0, sw, 128 * 6144)
    p.s("s_lshl_b32", st1, sslab, 6)
    p.s("s_add_u32", so, st0, st1)
    for grp in range(2):
        p.s("s_add_u32", M0, sMS, grp * 4096)
        if grp:
            p.s("s_add_u32", so, so, 64 * 6144)
        else:
            p.nop(0)
        for j in range(4):
            p.dma(vd[j], rTMP, so, off=1024 * j, tag=("slab", grp))


def slab_finish(p, T, sslab, name):
    regs = V(136, 64) if name == "slab0" else mreg
    st0, st1 = st[0], st[1]
    vt0, vt1, vt2, vc, vcoff = regs[0], regs[1], regs[2], regs[3], regs[4]
    s0, s1, e0, e1, vpk = regs[12], regs[13], regs[14], regs[15], regs[5]
    p.v("v_lshlrev_b32", vcoff, 2, vtid2)
    p.v("v_accvgpr_read_b32", vc, aC)
    p.v("v_lshlrev_b32", s0, 16, vc)
    p.v("v_and_b32", s1, sHi, vc)
    for s_, e_ in ((s0, e0), (s1, e1)):
        p.v("v_mul_f32", e_, -1.4426950408889634, s_)
    for s_, e_ in ((s0, e0), (s1, e1)):
        p.v("v_exp_f32", e_, e_)
    for s_, e_ in ((s0, e0), (s1, e1)):
        p.v("v_add_f32", e_, 1.0, e_)
    for s_, e_ in ((s0, e0), (s1, e1)):
        p.v("v_rcp_f32", e_, e_)
    for s_, e_ in ((s0, e0), (s1, e1)):
        p.v("v_mul_f32", s_, s_, e_)
    p.v("v_cvt_pk_bf16_f32", vpk, s0, s1)
    p.v("v_add_u32", vt0, SIL, vcoff)
    p.ds_write("ds_write_b32", vt0, vpk)
    vtr_ = regs[7]
    p.v("v_lshrrev_b32", vt1, 2, vl)
    p.v("v_lshlrev_b32", vt1, 6, vt1)
    p.v("v_and_b32", vt0, 3, vl)
    p.v("v_lshl_add_u32", vt0, vt0, 3, vt1)
    p.v("v_add_u32", vtr_, sMS, vt0)
    vb = regs[6]
    p.v("v_lshrrev_b32", vb, 4, vl)
    p.v("v_lshlrev_b32", vb, 3, vb)
    p.s("s_lshl_b32", st0, sw, 8)
    p.s("s_add_u32", st0, st0, SIL)
    p.v("v_add_u32", vb, st0, vb)
    p.barrier()
    if name == "slab0":
        T("s_sil")
    acc_ = regs[16:24]
    bf = regs[24:40]
    af = regs[40:56]
    for ks in range(4):
        b = bf[4 * ks:4 * ks + 4]
        p.ds_read("ds_read_b64", b[0:2], vb, off=64 * ks)
        p.ds_read("ds_read_b64", b[2:4], vb, off=64 * ks + 32)
    for k2 in range(2):
        for ks in (2 * k2, 2 * k2 + 1):
            for t in range(2):
                a = af[8 * (ks & 1) + 4 * t:8 * (ks & 1) + 4 * t + 4]
                for h in range(2):
                    p.ds_read("ds_read_b64_tr_b16", a[2 * h:2 * h + 2], vtr_, off=ks * 2048 + 1024 * h + 32 * t,
                              dep=("slab", ks >> 1))
        for ks in (2 * k2, 2 * k2 + 1):
            for t in range(2):
                d = acc_[4 * t:4 * t + 4]
                p.mfma16(d, af[8 * (ks & 1) + 4 * t:8 * (ks & 1) + 4 * t + 4], bf[4 * ks:4 * ks + 4], d if ks else 0)
    p.v("v_lshrrev_b32", vt1, 4, vl)
    p.v("v_lshlrev_b32", vt1, 4, vt1)
    p.s("s_lshl_b32", st0, sw, 7)
    p.s("s_add_u32", st0, st0, MPART)
    p.v("v_add_u32", vt1, st0, vt1)
    for t in range(2):
        p.ds_write("ds_write_b128", vt1, acc_[4 * t:4 * t + 4], off=64 * t)
    p.barrier()
    if name == "slab0":
        T("s_gemv")
    p.s("s_cmp_lg_u32", sw, 0 if name == "slab0" else 3)
    p.branch("s_cbranch_scc1", f"M_{name}_done")
    r4 = regs[16:20]
    p.v("v_and_b32", vt0, 31, vl)
    p.v("v_lshlrev_b32", vt0, 2, vt0)
    p.v("v_add_u32", vt1, MPART, vt0)
    for w in range(4):
        p.ds_read("ds_read_b32", r4[w], vt1, off=128 * w)
    p.v("v_add_f32", r4[0], r4[0], r4[1])
    p.v("v_add_f32", r4[2], r4[2], r4[3])
    p.v("v_add_f32", r4[0], r4[0], r4[2])
    bf16_round_hi(p, r4[0], r4[0])
    p.v("v_add_f32", r4[1], 1.0, r4[0])
    bf16_round_hi(p, r4[1], r4[1])
    p.s("s_lshr_b32", st0, sslab, 4)
    p.s("s_cmp_eq_u32", st0, 1)
    p.s("s_cselect_b32", st1, 1, 0)
    p.s("s_cmp_eq_u32", st0, 4)
    p.s("s_cselect_b32", st1, 1, st1)
    p.v("v_mov_b32", vt2, st1)
    p.v("v_cmp_eq_u32", VCC, 1, vt2)
    p.v("v_cndmask_b32", r4[0], r4[0], r4[1])
    p.s("s_cmp_lt_u32", st0, 2)
    p.s("s_mov_b32", st1, QSCALE)
    p.s("s_cselect_b32", st1, st1, 1.0)
    p.v("v_mul_f32", r4[0], st1, r4[0])
    p.s("s_mov_b64", EXEC, 0xFFFFFFFF)
    if name == "slab0":
        get_tag(p)
        p.v("v_mov_b32", r4[1], sTag)
        p.v("v_lshlrev_b32", vt0, 1, vt0)
        p.s("s_lshl_b32", st0, sslab, 8)
        p.s("s_add_u32", st0, st0, WS_MODG)
        p.bstore(r4[0:2], vt0, rWS, soff=st0, flags=SC1)
        T("s_st")
    else:
        p.s("s_lshl_b32", st0, sslab, 7)
        p.s("s_add_u32", st0, st0, WS_MOD)
        p.bstore(r4[0], vt0, rWS, soff=st0, flags=SC1)
    p.s("s_mov_b64", EXEC, -1)
    p.label(f"M_{name}_done")


aC4 = A(236, 4)


def slabw_issue(p, sslab):
    regs = V(128, 8)
    st0, so = st[0], st[2]
    vt0, vt1 = regs[0], regs[1]
    vd = regs[4:8]
    p.bload(aC4, vlin, rTMP2)
    p.v("v_lshrrev_b32", vt0, 2, vl)
    p.s("s_mov_b32", st0, 6144)
    p.v("v_mul_lo_u32", vt0, vt0, st0)
    p.v("v_and_b32", vt1, 3, vl)
    p.v("v_lshl_add_u32", vd[0], vt1, 4, vt0)
    for j in range(1, 4):
        p.v("v_add_u32", vd[j], j * (16 * 6144 - 1024), vd[0])
    p.s("s_lshl_b32", so, sslab, 6)
    for grp in range(8):
        p.s("s_mov_b32", M0, SH + grp * 4096)
        if grp:
            p.s("s_add_u32", so, so, 64 * 6144)
        else:
            p.nop(0)
        for j in range(4):
            p.dma(vd[j], rTMP, so, off=1024 * j, tag=("slab", grp))


def slabw_finish(p, T, sslab, name):
    regs = V(136, 64) if name == "slab0" else mreg
    st0, st1 = st[0], st[1]
    vt0, vt1, vt2, vtr_, vb = regs[0], regs[1], regs[2], regs[3], regs[4]
    cs, es, pk = regs[8:16], regs[16:24], regs[24:28]
    for i in range(4):
        p.v("v_accvgpr_read_b32", vt0, aC4[i])
        p.v("v_lshlrev_b32", cs[2 * i], 16, vt0)
        p.v("v_and_b32", cs[2 * i + 1], sHi, vt0)
    for k in range(8):
        p.v("v_mul_f32", es[k], -1.4426950408889634, cs[k])
    for k in range(8):
        p.v("v_exp_f32", es[k], es[k])
    for k in range(8):
        p.v("v_add_f32", es[k], 1.0, es[k])
    for k in range(8):
        p.v("v_rcp_f32", es[k], es[k])
    for k in range(8):
        p.v("v_mul_f32", cs[k], cs[k], es[k])
    for i in range(4):
        p.v("v_cvt_pk_bf16_f32", pk[i], cs[2 * i], cs[2 * i + 1])
    p.v("v_add_u32", vt0, SIL, vlin)
    p.ds_write("ds_write_b128", vt0, pk, tag="sil")
    p.v("v_lshrrev_b32", vt1, 2, vl)
    p.v("v_lshlrev_b32", vt1, 6, vt1)
    p.v("v_and_b32", vt0, 3, vl)
    p.v("v_lshl_add_u32", vt0, vt0, 3, vt1)
    p.v("v_add_u32", vtr_, SH, vt0)
    p.v("v_lshrrev_b32", vb, 4, vl)
    p.v("v_lshlrev_b32", vb, 3, vb)
    p.v("v_add_u32", vb, SIL, vb)
    acc_ = regs[8:16]
    bf = regs[16:32]
    af = regs[32:64]
    for k4 in range(4):
        for kk in range(4):
            ks = 4 * k4 + kk
            b = bf[4 * kk:4 * kk + 4]
            p.ds_read("ds_read_b64", b[0:2], vb, off=64 * ks, dep="sil")
            p.ds_read("ds_read_b64", b[2:4], vb, off=64 * ks + 32, dep="sil")
            for t in range(2):
                a = af[8 * kk + 4 * t:8 * kk + 4 * t + 4]
                for h in range(2):
                    p.ds_read("ds_read_b64_tr_b16", a[2 * h:2 * h + 2], vtr_, off=ks * 2048 + 1024 * h + 32 * t,
                              dep=("slab", ks >> 1))
        for kk in range(4):
            ks = 4 * k4 + kk
            for t in range(2):
                d = acc_[4 * t:4 * t + 4]
                p.mfma16(d, af[8 * kk + 4 * t:8 * kk + 4 * t + 4], bf[4 * kk:4 * kk + 4], d if ks else 0)
    if name == "slab0":
        T("s_gemv")
    r4 = regs[16:20]
    x0, x1 = regs[20], regs[21]
    p.v("v_and_b32", vt0, 1, vl)
    p.v("v_cmp_eq_u32", VCC, 1, vt0)
    for t in range(2):
        p.v("v_cndmask_b32", regs[22 + 2 * t], acc_[4 * t], acc_[4 * t + 1])
        p.v("v_cndmask_b32", regs[23 + 2 * t], acc_[4 * t + 2], acc_[4 * t + 3])
    p.v("v_and_b32", vt0, 2, vl)
    p.v("v_cmp_eq_u32", VCC, 2, vt0)
    p.v("v_cndmask_b32", x0, regs[22], regs[23])
    p.v("v_cndmask_b32", x1, regs[24], regs[25])
    p.v("v_and_b32", vt0, 4, vl)
    p.v("v_cmp_eq_u32", VCC, 4, vt0)
    p.v("v_cndmask_b32", r4[0], x0, x1)
    p.v("v_lshlrev_b32", vt0, 2, vt0)
    p.v("v_lshrrev_b32", vt1, 4, vl)
    p.v("v_lshl_add_u32", vt0, vt1, 2, vt0)
    p.v("v_and_b32", vt1, 3, vl)
    p.v("v_add_u32", vt0, vt0, vt1)
    p.v("v_lshlrev_b32", vt0, 2, vt0)
    bf16_round_hi(p, r4[0], r4[0])
    p.v("v_add_f32", r4[1], 1.0, r4[0])
    bf16_round_hi(p, r4[1], r4[1])
    p.s("s_lshr_b32", st0, sslab, 4)
    p.s("s_cmp_eq_u32", st0, 1)
    p.s("s_cselect_b32", st1, 1, 0)
    p.s("s_cmp_eq_u32", st0, 4)
    p.s("s_cselect_b32", st1, 1, st1)
    p.v("v_mov_b32", vt2, st1)
    p.v("v_cmp_eq_u32", VCC, 1, vt2)
    p.v("v_cndmask_b32", r4[0], r4[0], r4[1])
    p.s("s_cmp_lt_u32", st0, 2)
    p.s("s_mov_b32", st1, QSCALE)
    p.s("s_cselect_b32", st1, st1, 1.0)
    p.v("v_mul_f32", r4[0], st1, r4[0])
    if name == "slab0":
        get_tag(p)
        p.v("v_mov_b32", r4[1], sTag)
        p.v("v_lshlrev_b32", vt0, 1, vt0)
    p.raw("s_mov_b32 exec_lo, 0x00ff00ff")
    p.raw("s_mov_b32 exec_hi, 0x00ff00ff")
    if name == "slab0":
        p.s("s_lshl_b32", st0, sslab, 8)
        p.s("s_add_u32", st0, st0, WS_MODG)
        p.bstore(r4[0:2], vt0, rWS, soff=st0, flags=SC1)
        T("s_st")
    else:
        p.s("s_lshl_b32", st0, sslab, 7)
        p.s("s_add_u32", st0, st0, WS_MOD)
        p.bstore(r4[0], vt0, rWS, soff=st0, flags=SC1)
    p.s("s_mov_b64", EXEC, -1)


def late_signals(p):
    p.s("s_cmp_lg_u32", sw, 3)
    p.branch("s_cbranch_scc1", "M_late_done")
    p.wait(vm=0)
    add_one(p, rDBG, DBG_CLR)
    p.s("s_sub_u32", sp0, sSlab, N_MOD0)
    p.s("s_cmp_ge_u32", sp0, N_MOD1)
    p.branch("s_cbranch_scc1", "M_late_done")
    add_one(p, rDBG, DBG_MOD1)
    p.label("M_late_done")


R_LDS = SH + 65536 - 512


rVg, rVq, rVf, rVfr, rVxo, rVmo = V(2), V(3), V(4), V(8), V(9), V(10)
rVx, rX1p, rH2p = V(12, 8), V(20, 8), V(48, 8)
rVp = [V(64, 32), V(96, 32)]
rA, rXf, rVm = V(128, 16), V(144, 16), V(160, 48)
sRqt, sRhalf, sRb0 = S(66), S(67), S(68)


def r_addr(p):
    st0, st1 = st[0], st[1]
    vt0, vt1, vt2 = V(5), V(6), V(7)
    p.v("v_and_b32", rVq, 7, vl)
    p.v("v_lshrrev_b32", rVg, 3, vl)
    p.v("v_and_b32", rVg, 3, rVg)
    p.v("v_lshrrev_b32", rVf, 5, vl)
    p.s("s_lshr_b32", sRqt, shg, 1)
    p.s("s_and_b32", sRhalf, shg, 1)
    p.v("v_lshlrev_b32", vt0, 4, rVg)
    p.v("v_add_u32", vt0, vt0, rVq)
    p.s("s_lshl_b32", st0, sRhalf, 3)
    p.v("v_add_u32", vt0, st0, vt0)
    p.v("v_lshlrev_b32", vt0, 4, vt0)
    p.v("v_lshlrev_b32", vt1, 12, rVf)
    p.v("v_add_u32", rVfr, vt0, vt1)
    p.s("s_mul_i32", sRb0, srb, PART_BLK)
    p.s("s_lshl_b32", st0, sw, 14)
    p.s("s_add_u32", sRb0, sRb0, st0)
    p.s("s_lshl_b32", st0, sRqt, 10)
    p.s("s_add_u32", sRb0, sRb0, st0)
    p.s("s_add_u32", sRb0, sRb0, WS_PART)


def r_partial_loads(p, i):
    for hg in range(8):
        p.s("s_add_u32", st[0], sRb0, hg * 32 * PART_BLK + i * 8192)
        p.bload(rVp[i][4 * hg:4 * hg + 4], rVfr, rWS, soff=st[0], flags=SC1)


def r_side_loads(p):
    st0, st1 = st[0], st[1]
    vt0, vt1, vt2 = V(5), V(6), V(7)
    p.s("s_lshl_b32", st0, srb, 6)
    p.s("s_lshl_b32", st1, sRqt, 4)
    p.s("s_add_u32", st0, st0, st1)
    p.s("s_lshl_b32", st1, sRhalf, 3)
    p.s("s_add_u32", st0, st0, st1)
    p.v("v_add_u32", vt0, st0, rVq)
    p.v("v_lshlrev_b32", vt0, 10, vt0)
    p.v("v_lshlrev_b32", vt1, 6, rVf)
    p.v("v_lshlrev_b32", vt2, 3, rVg)
    p.v("v_add3_u32", rVxo, vt0, vt1, vt2)
    p.s("s_lshl_b32", st0, sw, 8)
    for i in range(2):
        for h in range(2):
            p.bload(rVx[4 * i + 2 * h:4 * i + 2 * h + 2], rVxo, rX, soff=st0, off=128 * i + 32 * h)
    p.v("v_lshlrev_b32", vt1, 7, rVf)
    p.v("v_lshlrev_b32", vt2, 4, rVg)
    p.v("v_add_u32", rVmo, vt1, vt2)
    r_mod_loads(p, (0, 1))


def r_mod_loads(p, which):
    st0, st1 = st[0], st[1]
    p.s("s_lshl_b32", st0, sw, 9)
    for k in which:
        vec = 2 + k
        p.s("s_add_u32", st1, st0, WS_MOD + vec * 2048)
        for i in range(2):
            for h in range(2):
                o = 16 * k + 8 * i + 4 * h
                p.bload(rVm[o:o + 4], rVmo, rWS, soff=st1, off=256 * i + 64 * h, flags=SC1)


def r_sum(p, i):
    slo, shi = st[1], sp1
    p.s("s_mov_b32", slo, 0x00003F80)
    p.s("s_mov_b32", shi, 0x3F800000)
    for hg in range(8):
        for r in range(4):
            src = rVp[i][4 * hg + r]
            for hi, sel in ((0, slo), (1, shi)):
                d = rA[8 * i + 2 * r + hi]
                p.v("v_dot2_f32_bf16", d, src, sel, d if hg else 0)


def phase_r_compute(p, T):
    st0, so = st[0], st[5]
    vt0, vt1 = V(5), V(6)
    a, xf, vm, vx, x1p = rA, rXf, rVm, rVx, rX1p
    for i in range(2):
        for h in range(2):
            for j in range(2):
                src = vx[4 * i + 2 * h + j]
                p.v("v_lshlrev_b32", xf[8 * i + 4 * h + 2 * j], 16, src)
                p.v("v_and_b32", xf[8 * i + 4 * h + 2 * j + 1], sHi, src)
    for k in range(16):
        p.v("v_fmac_f32", xf[k], a[k], vm[k])
    for i in range(2):
        for j in range(4):
            p.v("v_cvt_pk_bf16_f32", x1p[4 * i + j], xf[8 * i + 2 * j], xf[8 * i + 2 * j + 1])
    p.s("s_lshl_b32", so, srb, 16)
    p.s("s_lshl_b32", st0, sw, 14)
    p.s("s_add_u32", so, so, st0)
    p.s("s_lshl_b32", st0, sRqt, 10)
    p.s("s_add_u32", so, so, st0)
    for i in range(2):
        p.s("s_add_u32", st0, so, WS_X1 + i * 8192)
        p.bstore(x1p[4 * i:4 * i + 4], rVfr, rWS, soff=st0, flags=SC1)
    for i in range(2):
        for j in range(4):
            p.v("v_lshlrev_b32", xf[8 * i + 2 * j], 16, x1p[4 * i + j])
            p.v("v_and_b32", xf[8 * i + 2 * j + 1], sHi, x1p[4 * i + j])
    s1, s2 = V(28), V(29)
    p.v("v_add_f32", s1, xf[0], xf[1])
    p.v("v_mul_f32", s2, xf[0], xf[0])
    p.v("v_fmac_f32", s2, xf[1], xf[1])
    for k in range(2, 16):
        p.v("v_add_f32", s1, s1, xf[k])
        p.v("v_fmac_f32", s2, xf[k], xf[k])
    for s_ in (s1, s2):
        p.v("v_add_f32_dpp", s_, s_, s_, mods="row_ror:8 row_mask:0xf bank_mask:0xf")
    for op in ("v_permlane16_swap_b32", "v_permlane32_swap_b32"):
        for s_, t_ in ((s1, vt0), (s2, vt1)):
            p.v("v_mov_b32", t_, s_)
        for s_, t_ in ((s1, vt0), (s2, vt1)):
            p.v(op, s_, t_)
        for s_, t_ in ((s1, vt0), (s2, vt1)):
            p.v("v_add_f32", s_, s_, t_)
    p.v("v_lshlrev_b32", vt0, 3, rVq)
    p.v("v_add_u32", vt0, R_LDS, vt0)
    p.s("s_lshl_b32", st0, sw, 6)
    p.v("v_add_u32", vt1, st0, vt0)
    s12 = V(30, 2)
    p.v("v_mov_b32", s12[0], s1)
    p.v("v_mov_b32", s12[1], s2)
    p.ds_write("ds_write_b64", vt1, s12)
    p.barrier()
    rr = V(32, 8)
    for w in range(4):
        p.ds_read("ds_read_b64", rr[2 * w:2 * w + 2], vt0, off=64 * w)
    p.v("v_add_f32", s1, rr[0], rr[2])
    p.v("v_add_f32", s2, rr[1], rr[3])
    p.v("v_add_f32", rr[4], rr[4], rr[6])
    p.v("v_add_f32", rr[5], rr[5], rr[7])
    p.v("v_add_f32", s1, s1, rr[4])
    p.v("v_add_f32", s2, s2, rr[5])
    mu, rs2, nm2 = V(40), V(42, 2), V(44, 2)
    p.v("v_mul_f32", mu, 1.0 / 512, s1)
    p.v("v_mul_f32", s2, 1.0 / 512, s2)
    p.v("v_fma_f32", s2, Neg(mu), mu, s2)
    p.v("v_max_f32", s2, 0, s2)
    p.v("v_add_f32", s2, 1e-5, s2)
    p.v("v_rsq_f32", rs2[0], s2)
    p.v("v_mul_f32_e64", nm2[0], Neg(mu), rs2[0])
    p.v("v_mov_b32", rs2[1], rs2[0])
    p.v("v_mov_b32", nm2[1], nm2[0])
    for k in range(8):
        p.v("v_pk_fma_f32", xf[2 * k:2 * k + 2], xf[2 * k:2 * k + 2], rs2, nm2)
    for k in range(8):
        p.v("v_pk_fma_f32", xf[2 * k:2 * k + 2], xf[2 * k:2 * k + 2], vm[32 + 2 * k:34 + 2 * k], vm[16 + 2 * k:18 + 2 * k])
    h2p = rH2p
    for i in range(2):
        for j in range(4):
            p.v("v_cvt_pk_bf16_f32", h2p[4 * i + j], xf[8 * i + 2 * j], xf[8 * i + 2 * j + 1])
        p.s("s_add_u32", st0, so, WS_H2 + i * 8192)
        p.bstore(h2p[4 * i:4 * i + 4], rVfr, rWS, soff=st0, flags=SC1)


aF1 = A(250)


def check_mod1(p):
    p.v("v_accvgpr_read_b32", V(62), aEarly[0])
    p.v("v_readfirstlane_b32", sp0, V(62))
    p.s("s_cmp_ge_u32", sp0, N_MOD1)
    p.branch("s_cbranch_scc1", "C_mod1_ok")
    spin(p, rDBG, DBG_MOD1, N_MOD1, "mod1")
    p.label("C_mod1_ok")


def o2_hooks():
    h = {}
    q = Prog()
    q.v("v_mov_b32", V(62), sTag)
    q.s("s_lshl_b32", S(47), S(2), 7)
    q.s("s_add_u32", S(47), S(47), WS_FLAG + F_PART1 * 256 * 128)
    pre = q.ins
    q = Prog()
    q.need("part1")
    q.barrier(drain_lds=False)
    q.bstore(V(62), vpoll, rWS, soff=S(47), flags=SC1)
    h[12] = {6: pre, 9: q.ins}
    q = Prog()
    q.v("v_min_u32", V(45), 7, vl)
    q.v("v_lshlrev_b32", V(45), 7, V(45))
    q.s("s_lshl_b32", S(47), srb, 10)
    q.s("s_add_u32", S(47), S(47), WS_FLAG + F_PART1 * 256 * 128)
    pre = q.ins
    q = Prog()
    q.bload(aF1, V(45), rWS, soff=S(47), flags=SC1)
    h[14] = {2: pre, 6: q.ins}

    def before_last(p):
        r_addr(p)
        check_mod1(p)
        r_side_loads(p)
        p.v("v_accvgpr_read_b32", V(62), aF1)
        p.s("s_mov_b32", sp1, 0)
        p.label("P_part1")
        p.v("v_cmp_eq_u32", VCC, sTag, V(62))
        p.add(I("s_cmp_eq_u64 vcc, exec", "salu", (), units(VCC)))
        p.branch("s_cbranch_scc1", "P_part1_done")
        p.bload(V(62), V(45), rWS, soff=S(47), flags=SC1)
        p.wait(vm=0)
        p.s("s_add_u32", sp1, sp1, 1)
        p.s("s_cmp_lt_u32", sp1, 0x40000)
        p.add(I("s_cbranch_scc1 P_part1", "salu"))
        p.label("P_part1_done")
        r_partial_loads(p, 0)

    h["before_last_stores"] = before_last
    return h


ROWB = 2752
sDrb, sDcg, sDact, sDH = S(40 + 12), S(40 + 13), S(40 + 14), S(40 + 15)
sErb, sEcb, sEact, sEwd = S(56), S(57), S(58), S(59)
sDrot = S(91)


def d_ids(p):
    st0, st1 = st[0], st[1]
    p.s("s_and_b32", st0, shg, 1)
    p.s("s_lshl_b32", st0, st0, 2)
    p.s("s_and_b32", st1, srb, 3)
    p.s("s_add_u32", sDrb, st0, st1)
    p.s("s_lshr_b32", st0, shg, 1)
    p.s("s_mul_i32", st1, st0, 7)
    p.s("s_add_u32", st1, st1, 1)
    p.s("s_cmp_eq_u32", st0, 0)
    p.s("s_cselect_b32", sDcg, 0, st1)
    p.s("s_cselect_b32", st0, 8, 7)
    p.s("s_lshr_b32", st1, srb, 2)
    p.s("s_add_u32", sDcg, sDcg, st1)
    p.s("s_cmp_lt_u32", st1, st0)
    p.s("s_cselect_b32", sDact, 1, 0)
    p.s("s_lshl_b32", sDrot, st1, 1)


def d_weights(p, drain=True):
    st0, st1 = st[0], st[1]
    vt_ = V(216, 5)
    vd = V(224, 3)
    smag = S(61)
    p.s("s_cmp_eq_u32", sw, 0)
    p.branch("s_cbranch_scc1", "M_dw_done")
    p.s("s_mov_b32", smag, 0xAAAB)
    p.s("s_mov_b32", st0, ROWB)
    for k in range(3):
        p.v("v_add_u32", vt_[0], 64 * k, vl)
        p.v("v_mul_lo_u32", vt_[1], vt_[0], smag)
        p.v("v_lshrrev_b32", vt_[1], 18, vt_[1])
        p.v("v_mul_u32_u24", vt_[2], 6, vt_[1])
        p.v("v_sub_u32", vt_[2], vt_[0], vt_[2])
        p.v("v_lshlrev_b32", vt_[2], 4, vt_[2])
        p.v("v_mul_lo_u32", vt_[1], vt_[1], st0)
        p.v("v_add_u32", vd[k], vt_[1], vt_[2])
        if k:
            p.v("v_subrev_u32", vd[k], 1024 * k, vd[k])
    sPos, sCol = S(62), S(63)
    p.s("s_mul_i32", sCol, sDcg, 96)
    p.s("s_sub_u32", sPos, sw, 1)
    p.label("M_dw_loop")
    p.s("s_add_u32", st0, sPos, sDrot)
    p.s("s_and_b32", st0, st0, 15)
    p.s("s_mul_i32", st0, st0, 32 * ROWB)
    p.s("s_add_u32", st0, st0, sCol)
    p.s("s_mul_i32", st1, sPos, 3072)
    for m, r_ in enumerate((rG, rU)):
        p.s("s_add_u32", M0, st1, m * 49152)
        p.nop(0)
        for k in range(3):
            p.dma(vd[k], r_, st0, off=1024 * k, tag="dw")
    p.s("s_add_u32", sPos, sPos, 3)
    p.s("s_cmp_lt_u32", sPos, 16)
    p.add(I("s_cbranch_scc1 M_dw_loop", "salu"))
    if drain:
        p.wait(vm=0)
    p.label("M_dw_done")


E_RING = SH
E_NSLOT = 4


def phase_d(p, T, e_prefetch):
    st0, st1 = st[0], st[1]
    sH, sAct = st[2], st[3]
    vlin_ = V(2)
    vt_ = V(3, 5)
    vtr_ = V(12, 2)
    p.v("v_lshlrev_b32", vlin_, 4, vl)
    p.s("s_lshl_b32", sH, sDrb, 2)
    p.s("s_add_u32", sH, sH, sw)
    p.s("s_mul_i32", sAct, sH, ACT_RB)
    p.s("s_lshl_b32", sH, sH, 16)
    p.s("s_add_u32", sH, sH, WS_H2)
    p.s("s_mul_i32", st0, sDcg, 6144)
    p.s("s_add_u32", sAct, sAct, st0)
    p.s("s_add_u32", sAct, sAct, WS_ACT)
    NB = 4
    vB_ = V(128, 16 * NB)

    def bfr(ks, qt):
        o = 16 * (ks % NB) + 4 * qt
        return vB_[o:o + 4]

    sK_ = S(63)

    def load_b(ks):
        q = Prog()
        if ks == 0:
            q.s("s_lshl_b32", sK_, sDrot, 12)
        else:
            q.s("s_add_u32", sK_, sK_, 4096)
            q.s("s_and_b32", sK_, sK_, 0xFFFF)
        q.s("s_add_u32", st1, sH, sK_)
        for qt in range(4):
            q.bload(bfr(ks, qt), vlin_, rWS, soff=st1, off=1024 * qt, flags=SC1)
        return q.ins

    p.v("v_lshrrev_b32", vt_[0], 2, vl)
    p.v("v_mul_u32_u24", vt_[0], 96, vt_[0])
    p.v("v_and_b32", vt_[1], 3, vl)
    p.v("v_lshlrev_b32", vt_[1], 3, vt_[1])
    p.v("v_add_u32", vtr_[0], vt_[0], vt_[1])
    p.v("v_add_u32", vtr_[1], 49152, vtr_[0])
    accd = V(16, 96)
    vA = V(112, 16)
    vz_ = V(196, 4)
    for i in range(4):
        p.v("v_mov_b32", vz_[i], 0)
    if EARLYW:
        e_early(p, "d")
    else:
        d_weights(p)
    p.s("s_lshl_b32", st[4], sDrb, 5)
    poll_flags(p, F_H2, st[4], 32, "h2")
    T("d_go")
    for ks in range(NB):
        for x in load_b(ks):
            p.add(x)
    for i in range(6):
        zero16(p, accd[16 * i:16 * i + 16], vz_)

    def accr(m, t, qt):
        o = 48 * m + 16 * t + 4 * qt
        return accd[o:o + 4]

    def afr(i):
        return vA[4 * (i % 4):4 * (i % 4) + 4]

    def rd_a(ks, f, base):
        q = Prog()
        m, t = f // 3, f % 3
        for h in range(2):
            q.ds_read("ds_read_b64_tr_b16", afr(6 * ks + f)[2 * h:2 * h + 2], vtr_[m],
                      off=(ks - base) * 3072 + 1536 * h + 32 * t)
        return q.ins

    for f in range(2):
        for x in rd_a(0, f, 0):
            p.add(x)
    for it in range(4):
        mark(p, "gd", it)
        for ks in range(4 * it, 4 * it + 4):
            mf = []
            for f in range(6):
                m, t = f // 3, f % 3
                for qt in range(4):
                    def mm(m=m, t=t, qt=qt, f=f, ks=ks):
                        d = accr(m, t, qt)
                        x = p.mfma16(d, afr(6 * ks + f), bfr(ks, qt), d)
                        if ILV and f == 0 and qt == 0:
                            also(x, [bfr(ks, k) for k in range(4)])
                    mf.append(mm)
            sc = Sched(mf)
            for f in range(6):
                nf, nks = (f + 2) % 6, ks + (f + 2) // 6
                if nks < 16:
                    r = rd_a(nks, nf, 4 * it)
                    sc.fixed(4 * f, r[:1])
                    sc.fixed(4 * f + 1, r[1:])
            if ILV:
                if ks >= 1 and ks - 1 + NB < 16:
                    ld = load_b(ks - 1 + NB)
                    sal = [x for x in ld if x.kind == "salu"]
                    vm_ = [x for x in ld if x.kind != "salu"]
                    for i, x in enumerate(sal):
                        sc.fixed(i, [x])
                    for i, x in enumerate(vm_):
                        sc.fixed(6 + 4 * i, [x])
            elif ks + NB < 16:
                sc.fixed(23, load_b(ks + NB))
            sc.emit(p)
        if it < 3:
            p.v("v_add_u32", vtr_[0], 4 * 3072, vtr_[0])
            p.v("v_add_u32", vtr_[1], 4 * 3072, vtr_[1])
        loop_dec(p)
        loop_branch(p)
    mark(p, "gd", None)
    T("d_mma")
    o = V(128, 32)
    for qt in range(4):
        for t in range(3):
            g_, u_ = accr(0, t, qt), accr(1, t, qt)
            for r in range(4):
                p.v("v_mul_f32", g_[r], g_[r], u_[r])
        full = o[8 * qt:8 * qt + 4]
        half = o[8 * qt + 4:8 * qt + 6]
        for t in range(3):
            g_ = accr(0, t, qt)
            dst = full[2 * t:2 * t + 2] if t < 2 else half
            p.v("v_cvt_pk_bf16_f32", dst[0], g_[0], g_[1])
            p.v("v_cvt_pk_bf16_f32", dst[1], g_[2], g_[3])
        p.bstore(full, vlin_, rWS, soff=sAct, off=1024 * qt, flags=SC1)
    vh = vt_[0]
    p.v("v_lshlrev_b32", vh, 3, vl)
    p.s("s_add_u32", st0, sAct, 4096)
    p.s("s_cmp_eq_u32", sDcg, 28)
    p.branch("s_cbranch_scc1", "D_skip_half")
    for qt in range(4):
        p.bstore(o[8 * qt + 4:8 * qt + 6], vh, rWS, soff=st0, off=512 * qt, flags=SC1)
    p.label("D_skip_half")
    p.s("s_lshl_b32", st[4], sDrb, 5)
    p.s("s_add_u32", st[4], st[4], sDcg)
    signal(p, F_ACT, st[4], "act")


eRing, eSa, eSd = S(60), S(61), S(62)
eSet = S(55)
ePA, ePW = S(70, 3), S(73, 3)
eVd, eVtr, eLin, eLin8 = V(232, 2), V(234, 4), V(238), V(239)
eAcc, eA, eB = V(16, 64), V(80, 16), V(96, 16 * E_NSLOT)


def e_setup(p):
    st0, st1 = st[0], st[1]
    vt_ = V(240, 4)
    p.v("v_lshlrev_b32", eLin, 4, vl)
    p.v("v_lshlrev_b32", eLin8, 3, vl)
    p.s("s_lshl_b32", st0, shg, 2)
    p.s("s_lshr_b32", st1, S(2), 6)
    p.s("s_add_u32", sErb, st0, st1)
    p.s("s_and_b32", sEcb, srb, 7)
    p.s("s_lshl_b32", eRing, sw, 14)
    p.s("s_add_u32", eRing, eRing, E_RING)
    p.v("v_lshrrev_b32", vt_[0], 3, vl)
    p.v("v_lshlrev_b32", vt_[1], 10, vt_[0])
    p.v("v_lshrrev_b32", vt_[0], 1, vt_[0])
    p.v("v_and_b32", vt_[0], 3, vt_[0])
    p.v("v_lshlrev_b32", vt_[0], 1, vt_[0])
    p.v("v_and_b32", vt_[2], 7, vl)
    p.v("v_xor_b32", vt_[0], vt_[0], vt_[2])
    p.v("v_lshlrev_b32", vt_[0], 4, vt_[0])
    p.v("v_add_u32", eVd[0], vt_[0], vt_[1])
    p.v("v_add_u32", eVd[1], 8 * 1024 - 1024, eVd[0])
    p.v("v_lshrrev_b32", vt_[0], 2, vl)
    p.v("v_lshlrev_b32", vt_[1], 7, vt_[0])
    p.v("v_lshrrev_b32", vt_[0], 1, vt_[0])
    p.v("v_and_b32", vt_[0], 3, vt_[0])
    p.v("v_lshlrev_b32", vt_[0], 1, vt_[0])
    p.v("v_and_b32", vt_[2], 3, vl)
    p.v("v_lshrrev_b32", vt_[3], 1, vt_[2])
    p.v("v_xor_b32", vt_[0], vt_[0], vt_[3])
    p.v("v_lshlrev_b32", vt_[0], 4, vt_[0])
    p.v("v_and_b32", vt_[2], 1, vt_[2])
    p.v("v_lshlrev_b32", vt_[2], 3, vt_[2])
    p.v("v_add3_u32", eVtr[0], vt_[0], vt_[1], vt_[2])
    p.v("v_add_u32", eVtr[0], eRing, eVtr[0])
    for t in range(1, 4):
        p.v("v_xor_b32", eVtr[t], t << 5, eVtr[0])
    if EROT:
        p.s("s_add_u32", eSet, sw, sEcb)
        p.s("s_and_b32", eSet, eSet, 3)
        p.s("s_lshr_b32", st1, sEcb, 2)
    else:
        p.s("s_mov_b32", eSet, sw)
        p.s("s_mov_b32", st1, 0)
    for i in range(3):
        p.s("s_add_u32", st0, st1, i)
        p.s("s_cmp_ge_u32", st0, 3)
        p.s("s_cselect_b32", ePA[i], 3, 0)
        p.s("s_sub_u32", st0, st0, ePA[i])
        p.s("s_mul_i32", ePA[i], st0, 8 * 6144)
        p.s("s_mul_i32", ePW[i], st0, 4 * 96 * 1024)
    p.s("s_mul_i32", sEact, sErb, ACT_RB)
    p.s("s_mul_i32", st0, eSet, 2 * 6144)
    p.s("s_add_u32", sEact, sEact, st0)
    p.s("s_add_u32", sEact, sEact, WS_ACT)
    p.s("s_mul_i32", sEwd, eSet, 96 * 1024)
    p.s("s_lshl_b32", st0, sEcb, 7)
    p.s("s_add_u32", sEwd, sEwd, st0)


def e_issue_w(q, n, kind, pair_off, rotated=True):
    rot = rotated and pair_off < 3
    doff = 0 if rot else pair_off * 4 * 96 * 1024
    slot = (n % E_NSLOT) * 4096
    if kind < 2:
        rows = [doff + (48 * kind) * 1024, doff + (48 * kind + 16) * 1024]
    else:
        rows = [doff + 32 * 1024, doff + (48 + 32) * 1024]
    for hf in range(2):
        q.s("s_add_u32", eSd, sEwd, rows[hf])
        if rot:
            q.s("s_add_u32", eSd, eSd, ePW[pair_off])
        q.s("s_add_u32", M0, eRing, slot + 2048 * hf)
        q.nop(0)
        for j in range(2):
            q.dma(eVd[j], rD, eSd, off=1024 * j, tag=("e", n), ovw=("e", n - E_NSLOT))


def e_early(p, name):
    sJob, sOwn, sN, sT0, sT1, sT2 = S(62), st[0], st[1], S(61), S(63), S(69)
    eSa2 = S(47)
    p.s("s_cmp_eq_u32", sw, 0)
    p.branch("s_cbranch_scc1", f"M_ee_done_{name}")
    p.s("s_sub_u32", sJob, sw, 1)
    p.label(f"M_ee_loop_{name}")
    p.s("s_lshr_b32", sOwn, sJob, 2)
    p.s("s_and_b32", sN, sJob, 3)
    p.s("s_lshl_b32", sT0, sJob, 12)
    p.s("s_add_u32", sT0, sT0, E_RING)
    p.s("s_mul_i32", sT1, sN, 48)
    p.s("s_cmp_eq_u32", sN, 2)
    p.s("s_cselect_b32", sT1, 32, sT1)
    p.s("s_cselect_b32", sT2, 48, 16)
    p.s("s_cmp_eq_u32", sN, 3)
    p.s("s_cselect_b32", sT1, 0, sT1)
    p.s("s_cselect_b32", eSa2, ePW[1], ePW[0])
    if EROT:
        p.s("s_add_u32", sOwn, sOwn, sEcb)
        p.s("s_and_b32", sOwn, sOwn, 3)
    p.s("s_mul_i32", sOwn, sOwn, 96)
    p.s("s_add_u32", sT1, sT1, sOwn)
    p.s("s_add_u32", sT2, sT2, sT1)
    p.s("s_lshl_b32", sN, sEcb, 7)
    p.s("s_add_u32", sN, sN, eSa2)
    for hf, sr in enumerate((sT1, sT2)):
        p.s("s_lshl_b32", sr, sr, 10)
        p.s("s_add_u32", sr, sr, sN)
        p.s("s_add_u32", M0, sT0, 2048 * hf)
        p.nop(0)
        for j in range(2):
            p.dma(eVd[j], rD, sr, off=1024 * j, tag="ee")
    p.s("s_add_u32", sJob, sJob, 3)
    p.s("s_cmp_lt_u32", sJob, 16)
    p.add(I(f"s_cbranch_scc1 M_ee_loop_{name}", "salu"))
    p.label(f"M_ee_done_{name}")


def e_bfr(n, qt):
    o = 16 * (n % E_NSLOT) + 4 * qt
    return eB[o:o + 4]


def e_issue_b(q, n, kind, pair_off, rotated=True):
    rot = rotated and pair_off < 3
    aoff = 0 if rot else pair_off * 8 * 6144
    if kind < 2:
        q.s("s_add_u32", eSa, sEact, aoff + kind * 6144)
        if rot:
            q.s("s_add_u32", eSa, eSa, ePA[pair_off])
        for qt in range(4):
            q.bload(e_bfr(n, qt), eLin, rWS, soff=eSa, off=1024 * qt, flags=SC1)
    else:
        for hf in range(2):
            q.s("s_add_u32", eSa, sEact, aoff + hf * 6144 + 4096)
            if rot:
                q.s("s_add_u32", eSa, eSa, ePA[pair_off])
            for qt in range(4):
                q.bload(e_bfr(n, qt)[2 * hf:2 * hf + 2], eLin8, rWS, soff=eSa, off=512 * qt, flags=SC1)


def phase_e(p, T):
    st0, st1 = st[0], st[1]
    vt_ = V(240, 4)

    def accr(t, qt):
        return eAcc[16 * t + 4 * qt:16 * t + 4 * qt + 4]

    def afr(i):
        return eA[4 * (i % 4):4 * (i % 4) + 4]

    def rd_a(n, t):
        q = Prog()
        for h in range(2):
            q.ds_read("ds_read_b64_tr_b16", afr(4 * n + t)[2 * h:2 * h + 2], eVtr[t],
                      off=(n % E_NSLOT) * 4096 + 2048 * h, dep=("e", n))
        return q.ins

    def step(n, first, nxt, have_next):
        mf = []
        for t in range(4):
            for qt in range(4):
                def mm(t=t, qt=qt):
                    d = accr(t, qt)
                    x = p.mfma16(d, afr(4 * n + t), e_bfr(n, qt), d if not first else 0)
                    if ILV and t == 0 and qt == 0:
                        also(x, [e_bfr(n, k) for k in range(4)])
                mf.append(mm)
        sc = Sched(mf)
        tg = []
        for t in range(4):
            tn, nn = (t + 2) % 4, n + (t + 2) // 4
            if nn == n or have_next:
                r = rd_a(nn, tn)
                sc.fixed(4 * t, r[:1])
                sc.fixed(4 * t + 1, r[1:])
        if ILV and nxt:
            free = [g for g in range(16) if g % 4 >= 2]
            g, k = 0, 0
            pend = []
            for x in nxt:
                if x.kind in ("salu",):
                    pend.append(x)
                elif x.kind == "nop":
                    continue
                elif k < len(free):
                    gap = free[k]
                    for y in pend:
                        sc.fixed(gap - 1, [y])
                    pend = []
                    sc.fixed(gap, [x])
                    k += 1
                else:
                    sc.oth[15] += pend + [x]
                    pend = []
            sc.oth[15] += pend
        else:
            sc.fixed(15, nxt)
        sc.emit(p)

    x1 = V(160, 8)
    gb = V(168, 16)
    p.s("s_lshl_b32", st[4], shg, 5)
    poll_flags(p, F_ACT, st[4], 29, "act")
    T("e_go")
    for n in range(E_NSLOT):
        e_issue_b(p, n, n % 3, n // 3)
    p.s("s_lshl_b32", st0, sErb, 16)
    p.s("s_lshl_b32", st1, sEcb, 13)
    p.s("s_add_u32", st0, st0, st1)
    p.s("s_lshl_b32", st1, sw, 10)
    p.s("s_add_u32", st0, st0, st1)
    p.s("s_add_u32", st0, st0, WS_X1)
    p.bload(x1[0:4], eLin, rWS, soff=st0, flags=SC1)
    p.s("s_add_u32", st0, st0, 4096)
    p.bload(x1[4:8], eLin, rWS, soff=st0, flags=SC1)
    p.v("v_lshrrev_b32", vt_[1], 4, vl)
    p.v("v_lshlrev_b32", vt_[1], 4, vt_[1])
    p.s("s_lshl_b32", st0, sEcb, 8)
    p.s("s_add_u32", st0, st0, WS_MOD + 5 * 2048)
    for t in range(4):
        p.bload(gb[4 * t:4 * t + 4], vt_[1], rWS, soff=st0, off=64 * t, flags=SC1)
    for t in range(2):
        for x in rd_a(0, t):
            p.add(x)
    for n in range(9):
        q = Prog()
        m = n - 1 + E_NSLOT if ILV else n + E_NSLOT
        if m < 9 and m >= E_NSLOT:
            e_issue_w(q, m, m % 3, m // 3)
            e_issue_b(q, m, m % 3, m // 3)
        step(n, n == 0, q.ins, n < 8)
    T("e_main")
    p.s("s_cmp_lt_u32", eSet, 2)
    p.branch("s_cbranch_scc1", "E_four")
    p.s("s_cmp_eq_u32", eSet, 3)
    p.branch("s_cbranch_scc1", "E_red")
    n = 9
    p.s("s_sub_u32", sEact, sEact, 2 * 2 * 6144 - 28 * 6144)
    p.s("s_sub_u32", sEwd, sEwd, 2 * 96 * 1024 - 1344 * 1024)
    e_issue_w(p, n, 0, 0, rotated=False)
    e_issue_b(p, n, 0, 0, rotated=False)
    for t in range(2):
        for x in rd_a(n, t):
            p.add(x)
    step(n, False, [], False)
    p.branch("s_branch", "E_red")
    p.label("E_four")
    for n in range(9, 12):
        e_issue_w(p, n, n % 3, 3)
        e_issue_b(p, n, n % 3, 3)
    for t in range(2):
        for x in rd_a(9, t):
            p.add(x)
    for n in range(9, 12):
        step(n, False, [], n < 11)
    p.label("E_red")
    T("e_tail")
    p.wait(vm=0, lgkm=0)
    p.s("s_lshl_b32", st0, sw, 12)
    p.v("v_add_u32", vt_[0], st0, eLin)
    for qt in range(4):
        for t in range(4):
            p.ds_write("ds_write_b128", vt_[0], accr(t, qt), off=qt * 16384 + t * 1024)
    p.barrier()
    red = V(96, 64)
    p.s("s_lshl_b32", st0, sw, 14)
    p.v("v_add_u32", vt_[0], st0, eLin)
    for w in range(4):
        for t in range(4):
            p.ds_read("ds_read_b128", red[16 * w + 4 * t:16 * w + 4 * t + 4], vt_[0], off=w * 4096 + t * 1024)
    for k in range(8):
        p.v("v_pk_add_f32", red[2 * k:2 * k + 2], red[2 * k:2 * k + 2], red[16 + 2 * k:18 + 2 * k])
        p.v("v_pk_add_f32", red[32 + 2 * k:34 + 2 * k], red[32 + 2 * k:34 + 2 * k], red[48 + 2 * k:50 + 2 * k])
    for k in range(8):
        p.v("v_pk_add_f32", red[2 * k:2 * k + 2], red[2 * k:2 * k + 2], red[32 + 2 * k:34 + 2 * k])
    xf = V(184, 16)
    for j in range(2):
        for h in range(2):
            for i in range(2):
                src = x1[4 * j + 2 * h + i]
                k = 8 * j + 4 * h + 2 * i
                p.v("v_lshlrev_b32", xf[k], 16, src)
                p.v("v_and_b32", xf[k + 1], sHi, src)
    for k in range(16):
        p.v("v_fmac_f32", xf[k], red[k], gb[k])
    op = V(200, 8)
    for k in range(8):
        p.v("v_cvt_pk_bf16_f32", op[k], xf[2 * k], xf[2 * k + 1])
    p.v("v_and_b32", vt_[0], 15, vl)
    p.v("v_lshlrev_b32", vt_[0], 10, vt_[0])
    p.v("v_lshrrev_b32", vt_[1], 4, vl)
    p.v("v_lshlrev_b32", vt_[1], 3, vt_[1])
    p.v("v_add_u32", vt_[0], vt_[0], vt_[1])
    p.s("s_lshl_b32", st0, sErb, 6)
    p.s("s_lshl_b32", st1, sw, 4)
    p.s("s_add_u32", st0, st0, st1)
    p.s("s_lshl_b32", st0, st0, 10)
    p.s("s_lshl_b32", st1, sEcb, 7)
    p.s("s_add_u32", st0, st0, st1)
    for t in range(4):
        p.bstore(op[2 * t:2 * t + 2], vt_[0], rOut, soff=st0, off=32 * t, flags=SC1)


aTouch = A(240, 8)


CODE_LINES = 24


def code_prefetch(p):
    p.s("s_cmp_lg_u32", sw, 1)
    p.branch("s_cbranch_scc1", "M_no_codepf")
    sPC = S(92, 2)
    p.add(I(f"s_getpc_b64 {sPC}", "salu", units(sPC), ()))
    p.label("M_pc")
    p.add(I(f"s_sub_u32 {sPC[0]}, {sPC[0]}, M_pc-{KNAME}", "salu", units(sPC[0]), units(sPC[0])))
    p.add(I(f"s_subb_u32 {sPC[1]}, {sPC[1]}, 0", "salu", units(sPC[1]), units(sPC[1])))
    p.s("s_mul_i32", st[1], srb, CODE_LINES)
    p.v("v_min_u32", vt[0], CODE_LINES - 1, vl)
    p.v("v_add_u32", vt[0], st[1], vt[0])
    p.v("v_lshlrev_b32", vt[0], 6, vt[0])
    p.v("v_min_u32", vt[0], f"(B_end-{KNAME})", vt[0])
    p.add(I(f"global_load_dword {A(254)}, {vt[0]}, {sPC}", "vload", units(A(254)), units(vt[0], sPC)))
    p.label("M_no_codepf")


def get_tag(p):
    p.v("v_accvgpr_read_b32", V(62), aT)
    p.v("v_readfirstlane_b32", sTag, V(62))
    p.s("s_add_u32", sTag, sTag, 1)


sTch = S(69)


def bg_touch():
    q = Prog()
    q.bload(aTouch[0], vlin, rTMP, soff=sTch)
    q.s("s_add_u32", sTch, sTch, 1024)
    return q.ins


def bg_q_setup(p):
    p.s("s_cmp_lt_u32", srb, 16)
    for h in range(4):
        p.s("s_cselect_b32", rTMP[h], rK[h], rV[h])
    p.s("s_lshl_b32", sTch, srot, 13)


def bg_q(n):
    if n < 12 and n % 3 < 2:
        return {9: bg_touch()}
    return None


def bg_att_setup(p, ptr2):
    for k, name in enumerate(("wg", "wu", "wd")):
        for h in range(2):
            if k == 0:
                p.s("s_mov_b32", rTMP[h], ptr2[name][h])
            else:
                p.s("s_cmp_eq_u32", sw, k + 1)
                p.s("s_cselect_b32", rTMP[h], ptr2[name][h], rTMP[h])
    p.s("s_cmp_eq_u32", sw, 0)
    p.s("s_cselect_b32", rTMP[2], 0, SZ["wd"])
    p.s("s_mul_i32", sTch, S(2), 5504)


def bg_att(t):
    if t % 2 == 0 and t < 12:
        return {12: bg_touch()}
    return None


def touch_mlp_window(p, ptr2):
    p.s("s_cmp_lt_u32", S(2), N_MOD0 + N_MOD1)
    p.branch("s_cbranch_scc1", "M_no_win")
    p.s("s_cmp_eq_u32", sw, 0)
    p.branch("s_cbranch_scc1", "M_no_win")
    vo = vt[6]
    p.v("v_lshlrev_b32", vo, 6, vl)
    for k, name in enumerate(("wg", "wu", "wd")):
        for h in range(2):
            if k == 0:
                p.s("s_mov_b32", rTMP[h], ptr2[name][h])
            else:
                p.s("s_cmp_eq_u32", sw, k + 1)
                p.s("s_cselect_b32", rTMP[h], ptr2[name][h], rTMP[h])
    p.s("s_mov_b32", rTMP[2], SZ["wd"])
    p.s("s_mov_b32", rTMP[3], 0x20000)
    p.s("s_sub_u32", st[2], S(2), N_MOD0 + N_MOD1)
    p.s("s_lshl_b32", st[2], st[2], 12)
    for i in range(3):
        p.bload(aTouch[i], vo, rTMP, soff=st[2])
        if i < 2:
            p.s("s_add_u32", st[2], st[2], 160 * 4096)
    p.label("M_no_win")


def touch_all(p, ptr2):
    vo = vt[6]
    p.v("v_lshlrev_b32", vo, 6, vl)
    p.s("s_cmp_lt_u32", srb, 16)
    for h in range(4):
        p.s("s_cselect_b32", rTMP[h], rK[h], rV[h])
    p.s("s_lshl_b32", st[2], srot, 13)
    p.bload(aTouch[0], vo, rTMP, soff=st[2])
    p.s("s_add_u32", st[2], st[2], 4096)
    p.bload(aTouch[1], vo, rTMP, soff=st[2])
    for k, name in enumerate(("wg", "wu", "wd")):
        for h in range(2):
            if k == 0:
                p.s("s_mov_b32", rTMP[h], ptr2[name][h])
            else:
                p.s("s_cmp_eq_u32", sw, k + 1)
                p.s("s_cselect_b32", rTMP[h], ptr2[name][h], rTMP[h])
    p.s("s_mov_b32", rTMP[2], SZ["wd"])
    p.s("s_lshl_b32", st[2], S(2), 12)
    p.s("s_cmp_eq_u32", sw, 0)
    p.s("s_cselect_b32", st[2], SZ["wd"], st[2])
    p.bload(aTouch[3], vo, rTMP, soff=st[2])
    p.s("s_add_u32", st[2], st[2], 256 * 4096)
    p.bload(aTouch[4], vo, rTMP, soff=st[2])


def touch_streams(p, ptr2, all_waves=False):
    if all_waves:
        return touch_all(p, ptr2)
    p.s("s_cmp_eq_u32", sw, 0)
    p.branch("s_cbranch_scc1", "M_no_touch")
    vo = vt[6]
    p.v("v_lshlrev_b32", vo, 6, vl)
    p.s("s_cmp_lt_u32", srb, 16)
    p.s("s_cselect_b32", rTMP[0], ptr2["k"][0], ptr2["v"][0])
    p.s("s_cselect_b32", rTMP[1], ptr2["k"][1], ptr2["v"][1])
    p.s("s_lshl_b32", st[1], shg, 21)
    p.s("s_add_u32", st[1], st[1], 1536 * 256)
    p.s("s_add_u32", rTMP[0], rTMP[0], st[1])
    p.s("s_addc_u32", rTMP[1], rTMP[1], 0)
    p.s("s_mov_b32", rTMP[2], 4 << 19)
    p.s("s_mov_b32", rTMP[3], 0x20000)
    p.s("s_lshl_b32", st[2], srot, 13)
    for m in range(3 if KVTOUCH else 0):
        p.s("s_add_u32", st[1], sw, 3 * m - 1)
        p.s("s_lshr_b32", st[3], st[1], 1)
        p.s("s_lshl_b32", st[3], st[3], 19)
        p.s("s_and_b32", st[1], st[1], 1)
        p.s("s_lshl_b32", st[1], st[1], 12)
        p.s("s_add_u32", st[1], st[1], st[3])
        p.s("s_add_u32", st[1], st[1], st[2])
        p.bload(aTouch[m], vo, rTMP, soff=st[1])
    if MLPTOUCH == "wd":
        p.s("s_cmp_lg_u32", sw, 3)
        p.branch("s_cbranch_scc1", "M_no_touch")
    for k, name in enumerate(("wg", "wu", "wd")):
        for h in range(2):
            if k == 0:
                p.s("s_mov_b32", rTMP[h], ptr2[name][h])
            else:
                p.s("s_cmp_eq_u32", sw, k + 1)
                p.s("s_cselect_b32", rTMP[h], ptr2[name][h], rTMP[h])
    p.s("s_mov_b32", rTMP[2], SZ["wd"])
    p.s("s_lshl_b32", st[2], S(2), 12)
    p.bload(aTouch[3], vo, rTMP, soff=st[2])
    p.s("s_add_u32", st[2], st[2], 256 * 4096)
    p.bload(aTouch[4], vo, rTMP, soff=st[2])
    p.label("M_no_touch")


def touch_d_weights(p):
    p.s("s_cmp_eq_u32", sw, 0)
    p.branch("s_cbranch_scc1", "M_no_touch_d")
    p.s("s_cmp_eq_u32", sDact, 0)
    p.branch("s_cbranch_scc1", "M_no_touch_d")
    vo = V(170)
    p.v("v_lshrrev_b32", V(171), 1, vl)
    p.s("s_mov_b32", st[0], ROWB)
    p.v("v_mul_lo_u32", V(171), V(171), st[0])
    p.v("v_and_b32", vo, 1, vl)
    p.v("v_lshlrev_b32", vo, 6, vo)
    p.v("v_add_u32", vo, vo, V(171))
    p.s("s_and_b32", st[0], srb, 3)
    p.s("s_mul_i32", st[0], st[0], 128 * ROWB)
    p.s("s_mul_i32", st[1], sDcg, 96)
    p.s("s_add_u32", st[0], st[0], st[1])
    p.s("s_sub_u32", st[1], sw, 1)
    p.s("s_mul_i32", st[1], st[1], 32 * ROWB)
    p.s("s_add_u32", st[1], st[1], st[0])
    p.bload(aTouch[0], vo, rG, soff=st[1])
    p.bload(aTouch[1], vo, rU, soff=st[1])
    p.s("s_add_u32", st[1], st[0], 3 * 32 * ROWB)
    p.s("s_cmp_eq_u32", sw, 3)
    p.s("s_cselect_b32", st[1], st[1], SZ["wg"])
    p.bload(aTouch[2], vo, rG, soff=st[1])
    p.bload(aTouch[3], vo, rU, soff=st[1])
    p.label("M_no_touch_d")


DBGSTAMPS = ["rt0", "ln", "h_ready", "q_done", "att_loop", "o_done", "r_go", "r_done", "d_go", "d_mma", "e_go", "e_main", "rt1"]
DBGWG = 128


def gen_mega(diag=False):
    p = Prog()
    T = Stamps(p, diag, vreg=V(0), early=0, only=DBGSTAMPS if diag == "dbg" else None)
    p.s("s_cmp_ge_u32", S(2), 256)
    p.branch("s_cbranch_scc1", "B_end")
    p.v("v_mov_b32", vtid2, V(0))
    T("rt0", True)
    T("start")
    ptr = {k: S(52 + 2 * i, 2) for i, k in enumerate(["x", "ws", "dbg", "wmod", "c", "wq"])}
    for k in ptr:
        p.s_load(ptr[k], S(0, 2), ARG[k])
    p.v("v_lshrrev_b32", vt[0], 6, vtid2)
    p.v("v_and_b32", vl, 63, vtid2)
    p.v("v_readfirstlane_b32", sw, vt[0])
    p.s("s_and_b32", shg, S(2), 7)
    p.s("s_lshr_b32", srb, S(2), 3)
    p.s("s_and_b32", srot, srb, 15)
    p.s("s_lshl_b32", shead, shg, 2)
    p.s("s_mov_b32", sHi, 0xFFFF0000)
    vq, vg = vtmp[0], vtmp[1]
    p.v("v_and_b32", vq, 15, vl)
    p.v("v_lshrrev_b32", vg, 4, vl)
    p.v("v_lshlrev_b32", vlin, 4, vl)
    p.v("v_mov_b32", vpoll, 0)
    p.s("s_add_u32", shead, shead, sw)
    p.s("s_mul_i32", sMW, sw, WRING)
    p.s("s_lshl_b32", sMS, sw, 14)
    p.s("s_add_u32", sMS, sMS, SH)
    vxo = vtmp[2]
    p.s("s_lshl_b32", st[0], srb, 6)
    p.s("s_lshl_b32", st[1], sw, 4)
    p.s("s_add_u32", st[0], st[0], st[1])
    p.v("v_add_u32", vxo, st[0], vq)
    p.v("v_lshlrev_b32", vxo, 10, vxo)
    p.v("v_lshl_add_u32", vxo, vg, 4, vxo)
    p.wait(lgkm=0)
    srd(p, rX, ptr["x"], SZ["x"])
    srd(p, rWS, ptr["ws"], WS_DIAG_END if diag == "diag" else WS_END)
    srd(p, rDBG, ptr["dbg"], 256)
    srd(p, rWQ, ptr["wq"], SZ["wq"])
    ptr2 = {k: S(64 + 12 + 2 * i, 2) for i, k in enumerate(["k", "v", "wo", "wg", "wu", "wd", "out"])}
    for k in ptr2:
        p.s_load(ptr2[k], S(0, 2), ARG[k])
    p.s("s_mov_b32", st[0], WS_EPOCH)
    p.bload(aT, vpoll, rWS, soff=st[0], flags=SC1)
    if CODEPF:
        code_prefetch(p)
    srd(p, rTMP, ptr["wmod"], SZ["wmod"])
    srd(p, rTMP2, ptr["c"], SZ["c"])
    slab_map(p)
    if SLABW:
        p.s("s_cmp_lt_u32", S(2), N_MOD0)
        p.s("s_cselect_b32", st[3], 0, 3)
        p.s("s_cmp_lg_u32", sw, st[3])
        p.branch("s_cbranch_scc1", "M_no_slab")
        p.s("s_cmp_ge_u32", S(2), N_MOD0 + N_MOD1)
        p.branch("s_cbranch_scc1", "M_no_slab")
        slabw_issue(p, S(2))
    else:
        p.s("s_cmp_ge_u32", sSlab, N_MOD0 + N_MOD1 if SLAB1EARLY else N_MOD0)
        p.branch("s_cbranch_scc1", "M_no_slab")
        slab_issue(p, sSlab)
    p.label("M_no_slab")
    T("s_iss")
    p.wait(lgkm=0)
    bc_setup(p, ptr2)
    if NOMEM:
        for r_ in (rK, rV, rWO, rWQ):
            p.s("s_mov_b32", r_[2], 0)
    vone, vz = vtmp[4:8], vtmp[8:12]
    dma_voffs(p, vdQ, 8192, "n8", 8)
    p.s("s_lshl_b32", sA, srot, 18)
    p.s("s_lshl_b32", st[1], shead, 8)
    p.s("s_add_u32", sA, sA, st[1])
    vX = V(64, 64)
    sX = S(91)

    def x_loads(lo, hi):
        for n in range(lo, hi):
            p.bload(vX[4 * n:4 * n + 4], vxo, rX, soff=sX)
            if n < 15:
                p.s("s_add_u32", sX, sX, 64)
                p.s("s_and_b32", sX, sX, 0x3FF)

    p.s("s_lshl_b32", sX, srot, 6)
    p.s("s_cmp_ge_u32", sSlab, N_MOD0)
    p.branch("s_cbranch_scc1", "M_no_slab_f")
    if SLABW:
        p.s("s_cmp_lg_u32", sw, 0)
        p.branch("s_cbranch_scc1", "M_no_slab_f")
        slabw_finish(p, T, S(2), "slab0")
    else:
        slab_finish(p, T, sSlab, "slab0")
        p.barrier()
    p.label("M_no_slab_f")
    x_loads(0, 16)
    if TOUCH == "early":
        p.s("s_cmp_lt_u32", S(2), N_MOD0 + N_MOD1)
        p.branch("s_cbranch_scc1", "M_skip_touch")
        touch_streams(p, ptr2)
        p.label("M_skip_touch")
    T("issued")
    if not SLAB1EARLY and not SLABW:
        p.s("s_sub_u32", st[5], sSlab, N_MOD0)
        p.s("s_cmp_ge_u32", st[5], N_MOD1)
        p.branch("s_cbranch_scc1", "M_no_slab1i")
        slab_issue(p, sSlab)
        p.label("M_no_slab1i")
    dma_now(p, "wq", 0)
    T("setup")

    gram, rsum = vtmp[12:16], A(232, 4)
    for n in range(16):
        xs = vX[4 * n:4 * n + 4]
        p.mfma16(gram, xs, xs, gram if n else 0)
        p.mfma16(rsum, vone, xs, rsum if n else 0)
    rs0 = vt[6]
    p.v("v_accvgpr_read_b32", rs0, rsum[0])
    mu, rs2, nm2 = vt[7], V(50, 2), V(52, 2)
    row_stats(p, gram, [rs0], vq, vg, mu, rs2[0], nm2[0], vt[0], vt[1])
    p.v("v_mov_b32", rs2[1], rs2[0])
    p.v("v_mov_b32", nm2[1], nm2[0])
    vY = V(128, 128)
    for n in range(16):
        xs = vX[4 * n:4 * n + 4]
        y = vY[8 * n:8 * n + 8]
        for i in range(4):
            p.v("v_lshlrev_b32", y[2 * i], 16, xs[i])
            p.v("v_and_b32", y[2 * i + 1], sHi, xs[i])
        for i in range(4):
            p.v("v_pk_fma_f32", y[2 * i:2 * i + 2], y[2 * i:2 * i + 2], rs2, nm2)
    T("ln")
    p.s("s_sub_u32", st[5], sSlab, N_MOD0)
    p.s("s_cmp_ge_u32", st[5], N_MOD1)
    p.branch("s_cbranch_scc1", "M_no_slab1")
    if SLABW:
        p.s("s_cmp_lg_u32", sw, 3)
        p.branch("s_cbranch_scc1", "M_no_slab1")
        slabw_finish(p, T, S(2), "slab1")
    else:
        slab_finish(p, T, sSlab, "slab1")
    p.label("M_no_slab1")
    vts = vt[5]
    p.s("s_lshl_b32", st[1], sw, 2)
    p.s("s_add_u32", st[1], st[1], srot)
    p.v("v_add_u32", vt[0], st[1], vg)
    p.v("v_and_b32", vt[0], 15, vt[0])
    p.v("v_lshlrev_b32", vt[0], 8, vt[0])
    p.v("v_lshrrev_b32", vt[1], 3, vq)
    p.v("v_lshl_add_u32", vt[0], vt[1], 12, vt[0])
    p.v("v_and_b32", vt[1], 7, vq)
    p.v("v_lshl_add_u32", vts, vt[1], 5, vt[0])
    if TOUCH in ("midq", "win", "bg"):
        dma_now(p, "wq", 1)
    if TOUCH == "win":
        touch_mlp_window(p, ptr2)
    get_tag(p)
    g8 = V(64, 8)
    p.s("s_mov_b32", sp1, 0)
    p.s("s_mov_b32", st[1], WS_MODG)
    p.label("P_modg")
    p.bload(g8[0:4], vts, rWS, soff=st[1], flags=SC1)
    p.bload(g8[4:8], vts, rWS, soff=st[1], off=16, flags=SC1)
    p.v("v_cmp_eq_u32", VCC, sTag, g8[1])
    p.s("s_mov_b64", sexec, VCC)
    for k in (3, 5, 7):
        p.v("v_cmp_eq_u32", VCC, sTag, g8[k])
        p.s("s_and_b64", sexec, sexec, VCC)
    p.add(I(f"s_cmp_eq_u64 {sexec}, exec", "salu", (), units(sexec)))
    p.branch("s_cbranch_scc1", "P_modg_done")
    p.s("s_add_u32", sp1, sp1, 1)
    p.s("s_cmp_lt_u32", sp1, 0x40000)
    p.raw(f"s_sleep {POLLSLEEP}") if POLLSLEEP else p.nop(0)
    p.add(I("s_cbranch_scc1 P_modg", "salu"))
    p.label("P_modg_done")
    T("mod0")
    if TOUCH == "v1":
        dma_now(p, "wq", 1)
        touch_streams(p, ptr2)
    p.v("v_mov_b32", g8[1], g8[2])
    p.v("v_mov_b32", g8[2], g8[4])
    p.v("v_mov_b32", g8[3], g8[6])
    p.s("s_lshl_b32", st[1], sw, 10)
    p.s("s_add_u32", st[1], st[1], TAB)
    p.v("v_add_u32", vt[4], st[1], vlin)
    p.ds_write("ds_write_b128", vt[4], g8[0:4])
    vtab, vhw = vt[2], vt[3]
    p.v("v_lshlrev_b32", vtab, 5, vg)
    p.v("v_add_u32", vtab, TAB, vtab)
    p.s("s_lshl_b32", st[1], sw, 10)
    p.s("s_add_u32", st[1], st[1], SH)
    p.v("v_add_u32", vhw, st[1], vlin)
    p.barrier()
    T("tab")
    if TOUCH not in ("v1", "midq", "win", "bg"):
        dma_now(p, "wq", 1)
    if TOUCH == "aftertab":
        touch_streams(p, ptr2)

    def rd_tab(n):
        tb = V(64 + 16 * (n % 3), 16)
        for i, o in enumerate((0, 16, 128, 144)):
            p.ds_read("ds_read_b128", tb[4 * i:4 * i + 4], vtab, off=n * 256 + o)

    rd_tab(0)
    rd_tab(1)
    for n in range(16):
        tb = V(64 + 16 * (n % 3), 16)
        y = vY[8 * n:8 * n + 8]
        o4 = V(112 + 4 * (n & 3), 4)
        if n + 2 < 16:
            rd_tab(n + 2)
        for i in range(4):
            p.v("v_pk_fma_f32", y[2 * i:2 * i + 2], y[2 * i:2 * i + 2], tb[8 + 2 * i:10 + 2 * i], tb[2 * i:2 * i + 2])
        for i in range(4):
            p.v("v_cvt_pk_bf16_f32", o4[i], y[2 * i], y[2 * i + 1])
        p.ds_write("ds_write_b128", vhw, o4, off=n * 4096)
        if n == 7:
            T("h_half")
    T("h_tr")
    for i in range(8):
        zero16(p, vACC[16 * i:16 * i + 16], vz)
    if TOUCH == "bg":
        bg_q_setup(p)
    T("h_zero")
    p.barrier()
    T("h_ready")

    bc_main(p, T, store_flags=SC1, at_q_done=late_signals, before_norm=early_sample,
            o2_hooks=o2_hooks() if TWOPASS else None,
            mid_q={1: lambda q: touch_streams(q, ptr2, all_waves=True)} if TOUCH == "midq" else None,
            bg_q=bg_q if TOUCH == "bg" else None, bg_att=bg_att if TOUCH == "bg" else None,
            before_att=(lambda q: bg_att_setup(q, ptr2)) if TOUCH == "bg" else None)
    T("o_done")

    ptr3 = ptr2
    srd(p, rG, ptr3["wg"], SZ["wg"])
    srd(p, rU, ptr3["wu"], SZ["wu"])
    srd(p, rD, ptr3["wd"], SZ["wd"])
    srd(p, rOut, ptr3["out"], SZ["out"])
    d_ids(p)
    if not TWOPASS:
        r_addr(p)
        check_mod1(p)
        r_side_loads(p)
        r_mod_loads(p, (2,))
    signal(p, F_PART, S(2), "part", pre=confirm_early, T=T)
    T("part_sig")
    if EARLYW:
        p.s("s_cmp_eq_u32", sDact, 0)
        p.branch("s_cbranch_scc1", "M_no_dw_early")
        d_weights(p, drain=False)
        p.label("M_no_dw_early")
    if TWOPASS:
        r_mod_loads(p, (2,))
        r_sum(p, 0)
        T("r_sum0")
    p.s("s_lshl_b32", st[5], srb, 3)
    poll_flags(p, F_PART, st[5], 8, "part")
    T("r_go")
    if not TWOPASS:
        r_partial_loads(p, 0)
    r_partial_loads(p, 1)
    if not TWOPASS:
        r_sum(p, 0)
    r_sum(p, 1)
    T("r_sum")
    phase_r_compute(p, T)
    signal(p, F_H2, S(2), "h2")
    T("r_done")
    e_setup(p)

    def e_prefetch():
        for n in range(E_NSLOT):
            e_issue_w(p, n, n % 3, n // 3)

    p.s("s_cmp_eq_u32", sDact, 0)
    p.branch("s_cbranch_scc1", "M_no_d")
    phase_d(p, T, e_prefetch)
    if EARLYW:
        p.branch("s_branch", "M_e")
        p.label("M_no_d")
        e_early(p, "n")
        p.wait(vm=0)
        p.label("M_e")
    else:
        p.label("M_no_d")
        e_prefetch()
    T("d_done")
    phase_e(p, T)
    T("e_done")
    if diag:
        p.wait(vm=0)
    T("rt1", True)
    if diag == "dbg":
        p.s("s_cmp_lg_u32", S(2), DBGWG)
        p.branch("s_cbranch_scc1", "M_dbg_done")
        p.s("s_cmp_lg_u32", sw, 0)
        p.branch("s_cbranch_scc1", "M_dbg_done")
        p.v("v_readlane_b32", S(100), V(0), 0)
        p.v("v_subrev_u32", V(0), S(100), V(0))
        p.v("v_mbcnt_lo_u32_b32", vt[1], -1, 0)
        p.v("v_mbcnt_hi_u32_b32", vt[1], -1, vt[1])
        p.v("v_lshlrev_b32", vt[1], 2, vt[1])
        p.v("v_add_u32", vt[1], 12, vt[1])
        p.s("s_mov_b64", EXEC, 0x1FFE)
        p.bstore(V(0), vt[1], rDBG, soff=0)
        p.s("s_mov_b64", EXEC, -1)
        p.label("M_dbg_done")
    else:
        T.flush(rWS, sw, 1, vt[0], vt[1])
    gen_mega.stamp_names = T.names
    p.branch("s_branch", "B_end")
    slow_attention(p)
    p.label("B_end")
    resolve_ovw(p.ins)
    return finalize(p, {"gq": sLoop, "ga": sLoop, "go": sLoop, "gd": sLoop}, verbose=4, name="MEGA")


def assemble_mega(diag=False):
    from build import HEAD
    body = gen_mega(diag)
    s = HEAD + f"; @launch grid=(256,1,1) block=(256,1,1) lds={M_LDS}\n"
    s += '.amdgcn_target "amdgcn-amd-amdhsa--gfx950"\n'
    s += kernel_text(KNAME, body, 512, 256)
    return s


if __name__ == "__main__":
    import sys
    diag = len(sys.argv) > 2 and sys.argv[2] in ("diag", "dbg") and sys.argv[2]
    for a in sys.argv[3:]:
        k, v = a.split("=")
        globals()[k] = int(v) if v.isdigit() else v
        if k == "EXP":
            kb2.EXP = v
        if k == "DMAC":
            kb2.DMA_COST = int(v)
        if k == "TRIM":
            kb2.TRIM = int(v)
        if k == "QNAT":
            kb2.QNAT = int(v)
        if k == "NEWS":
            kb2.NEWS = int(v)
        if k == "DIST":
            kb2.DIST = int(v)
        if k == "ALIGN":
            import asmlib
            asmlib.ALIGN_LOOPS = int(v)
    txt = assemble_mega(diag)
    open(sys.argv[1], "w").write(txt)
    print("wrote", sys.argv[1], len(txt))
    if diag:
        print(",".join(gen_mega.stamp_names))
```

```python
from asmlib import *
from layout import *
from ka import srd, bf16_round_hi
import kb2
from kb2 import *

KNAME = NAME + "_kernel"
M_LDS = B_LDS
SC1 = "sc1"
TOUCH = "v1"
CODEPF = 1
SLAB1EARLY = 0
TWOPASS = 0
POLLSLEEP = 1
SLABMAP = 0
ILV = 1
EROT = 1
SLABW = 0
MLPTOUCH = "all"
EARLYW = 1
NOMEM = 0
KVTOUCH = 1

DBG_MOD0 = 0
DBG_MOD1 = 8
DBG_CLR = 12
DBG_FLAG0 = 128
N_CNT = 256
N_MOD0, N_MOD1 = 32, 64
F_PART, F_H2, F_ACT, F_PART1 = 0, 1, 2, 3

rDBG = S(96, 4)
rTMP = S(92, 4)
rTMP2 = S(72, 4)
sTag = S(90)
aT = A(253)
sp0, sp1 = S(50), S(51)
rG, rU, rD, rOut = rWQ, rK, rV, rWO
vpoll = V(63)
vtid2 = V(45)


def poll(p, srd_, off, target, name, sleep=16):
    lab, done = f"P_{name}", f"P_{name}_done"
    p.s("s_cmp_lg_u32", sw, 0)
    p.branch("s_cbranch_scc1", done)
    p.s("s_mov_b32", sp1, 0)
    p.label(lab)
    p.bload(V(62), vpoll, srd_, soff=0, off=off, flags=SC1)
    p.wait(vm=0)
    p.v("v_readfirstlane_b32", sp0, V(62))
    p.s("s_cmp_ge_u32", sp0, target)
    p.branch("s_cbranch_scc1", done)
    p.s("s_add_u32", sp1, sp1, 1)
    p.s("s_cmp_lt_u32", sp1, 0x20000)
    p.raw(f"s_sleep {sleep}")
    p.add(I(f"s_cbranch_scc1 {lab}", "salu"))
    p.label(done)
    p.barrier(drain_lds=True)


vflag = V(61)


def poll_flags(p, kind, sfirst, count, name):
    lab, done = f"P_{name}", f"P_{name}_done"
    p.s("s_cmp_lg_u32", sw, 0)
    p.branch("s_cbranch_scc1", done)
    p.s("s_mov_b32", sp1, 0)
    p.v("v_min_u32", vflag, count - 1, vl)
    p.v("v_lshlrev_b32", vflag, 7, vflag)
    p.s("s_lshl_b32", sp0, sfirst, 7)
    p.s("s_add_u32", S(47), sp0, WS_FLAG + kind * 256 * 128)
    p.label(lab)
    p.bload(V(62), vflag, rWS, soff=S(47), flags=SC1)
    p.wait(vm=0)
    p.v("v_cmp_eq_u32", VCC, sTag, V(62))
    p.add(I("s_cmp_eq_u64 vcc, exec", "salu", (), units(VCC)))
    p.branch("s_cbranch_scc1", done)
    p.s("s_add_u32", sp1, sp1, 1)
    p.s("s_cmp_lt_u32", sp1, 0x40000)
    p.raw(f"s_sleep {POLLSLEEP}") if POLLSLEEP else p.nop(0)
    p.add(I(f"s_cbranch_scc1 {lab}", "salu"))
    p.label(done)
    p.barrier(drain_lds=True)


def set_flag(p, kind, sindex, value):
    p.v("v_mov_b32", V(62), value)
    p.v("v_mov_b32", vpoll, 0)
    p.s("s_lshl_b32", sp0, sindex, 7)
    p.s("s_add_u32", sp0, sp0, WS_FLAG + kind * 256 * 128)
    p.s("s_mov_b64", EXEC, 1)
    p.bstore(V(62), vpoll, rWS, soff=sp0, flags=SC1)
    p.s("s_mov_b64", EXEC, -1)


def spin(p, srd_, off, target, name):
    lab, done = f"W_{name}", f"W_{name}_done"
    p.s("s_mov_b32", sp1, 0)
    p.label(lab)
    p.bload(V(62), vpoll, srd_, soff=0, off=off, flags=SC1)
    p.wait(vm=0)
    p.v("v_readfirstlane_b32", sp0, V(62))
    p.s("s_cmp_ge_u32", sp0, target)
    p.branch("s_cbranch_scc1", done)
    p.s("s_add_u32", sp1, sp1, 1)
    p.s("s_cmp_lt_u32", sp1, 0x40000)
    p.raw("s_sleep 1")
    p.add(I(f"s_cbranch_scc1 {lab}", "salu"))
    p.label(done)


aEarly = A(248, 2)


def early_sample(p):
    p.bload(aEarly, vpoll, rDBG, soff=0, off=DBG_MOD1, flags=SC1)


def confirm_early(p):
    for k, (off, target) in ((1, (DBG_CLR, N_CNT)),):
        ok = f"C_early{k}_ok"
        p.v("v_accvgpr_read_b32", V(62), aEarly[k])
        p.v("v_readfirstlane_b32", sp0, V(62))
        p.s("s_cmp_ge_u32", sp0, target)
        p.branch("s_cbranch_scc1", ok)
        spin(p, rDBG, off, target, f"early{k}")
        p.label(ok)
    p.s("s_cmp_lg_u32", S(2), 0)
    p.branch("s_cbranch_scc1", "C_epoch_done")
    p.v("v_mov_b32", V(62), sTag)
    p.s("s_mov_b32", sp0, WS_EPOCH)
    p.s("s_mov_b64", EXEC, 1)
    p.bstore(V(62), vpoll, rWS, soff=sp0, flags=SC1)
    p.s("s_mov_b64", EXEC, -1)
    p.label("C_epoch_done")


def signal(p, kind, sindex, name, pre=None, T=None):
    done = f"S_{name}_done"
    p.wait(vm=0)
    if T:
        T(name + "_drain")
    if pre:
        p.s("s_cmp_lg_u32", sw, 0)
        p.branch("s_cbranch_scc1", f"S_{name}_pre")
        pre(p)
        p.label(f"S_{name}_pre")
    p.barrier(drain_lds=True)
    p.s("s_cmp_lg_u32", sw, 0)
    p.branch("s_cbranch_scc1", done)
    set_flag(p, kind, sindex, sTag)
    p.label(done)


def add_one(p, srd_, off):
    p.v("v_mov_b32", V(62), 1)
    p.v("v_mov_b32", vpoll, 0)
    p.s("s_mov_b64", EXEC, 1)
    so, io = (off, 0) if not isinstance(off, int) else (0, off)
    t = f"buffer_atomic_add {V(62)}, " + Prog._bt(vpoll, srd_, so, io, SC1)
    p.add(I(t, "vstore", (), units(V(62), vpoll, srd_, so), meta={"data": units(V(62)), "wide": False}))
    p.s("s_mov_b64", EXEC, -1)


SIL = WRING + 2 * SLOT
MPART = SIL + 1024
mreg = V(64, 64)
aC = A(250)
sSlab = S(71)


def slab_map(p):
    if not SLABMAP:
        p.s("s_cmp_lt_u32", S(2), N_MOD0 + N_MOD1)
        p.s("s_cselect_b32", sSlab, S(2), 255)
        return
    t0, t1 = st[0], st[1]
    p.s("s_lshl_b32", t0, srb, 1)
    p.s("s_and_b32", t1, shg, 1)
    p.s("s_add_u32", t0, t0, t1)
    p.s("s_mov_b32", sSlab, 255)
    p.s("s_add_u32", t1, t0, N_MOD0)
    p.s("s_lshr_b32", sp0, shg, 1)
    p.s("s_cmp_eq_u32", sp0, 1)
    p.s("s_cselect_b32", sSlab, t1, sSlab)
    p.s("s_cmp_lt_u32", t0, N_MOD0)
    p.s("s_cselect_b32", t1, t0, 255)
    p.s("s_cmp_eq_u32", sp0, 0)
    p.s("s_cselect_b32", sSlab, t1, sSlab)


def slab_issue(p, sslab):
    regs = V(128, 8)
    st0, st1, so = st[0], st[1], st[2]
    vt0, vt1, vcoff = regs[0], regs[1], regs[2]
    vd = regs[4:8]
    p.v("v_lshlrev_b32", vcoff, 2, vtid2)
    p.bload(aC, vcoff, rTMP2)
    p.v("v_lshrrev_b32", vt0, 2, vl)
    p.s("s_mov_b32", st0, 6144)
    p.v("v_mul_lo_u32", vt0, vt0, st0)
    p.v("v_and_b32", vt1, 3, vl)
    p.v("v_lshl_add_u32", vd[0], vt1, 4, vt0)
    for j in range(1, 4):
        p.v("v_add_u32", vd[j], j * (16 * 6144 - 1024), vd[0])
    p.s("s_mul_i32", st0, sw, 128 * 6144)
    p.s("s_lshl_b32", st1, sslab, 6)
    p.s("s_add_u32", so, st0, st1)
    for grp in range(2):
        p.s("s_add_u32", M0, sMS, grp * 4096)
        if grp:
            p.s("s_add_u32", so, so, 64 * 6144)
        else:
            p.nop(0)
        for j in range(4):
            p.dma(vd[j], rTMP, so, off=1024 * j, tag=("slab", grp))


def slab_finish(p, T, sslab, name):
    regs = V(136, 64) if name == "slab0" else mreg
    st0, st1 = st[0], st[1]
    vt0, vt1, vt2, vc, vcoff = regs[0], regs[1], regs[2], regs[3], regs[4]
    s0, s1, e0, e1, vpk = regs[12], regs[13], regs[14], regs[15], regs[5]
    p.v("v_lshlrev_b32", vcoff, 2, vtid2)
    p.v("v_accvgpr_read_b32", vc, aC)
    p.v("v_lshlrev_b32", s0, 16, vc)
    p.v("v_and_b32", s1, sHi, vc)
    for s_, e_ in ((s0, e0), (s1, e1)):
        p.v("v_mul_f32", e_, -1.4426950408889634, s_)
    for s_, e_ in ((s0, e0), (s1, e1)):
        p.v("v_exp_f32", e_, e_)
    for s_, e_ in ((s0, e0), (s1, e1)):
        p.v("v_add_f32", e_, 1.0, e_)
    for s_, e_ in ((s0, e0), (s1, e1)):
        p.v("v_rcp_f32", e_, e_)
    for s_, e_ in ((s0, e0), (s1, e1)):
        p.v("v_mul_f32", s_, s_, e_)
    p.v("v_cvt_pk_bf16_f32", vpk, s0, s1)
    p.v("v_add_u32", vt0, SIL, vcoff)
    p.ds_write("ds_write_b32", vt0, vpk)
    vtr_ = regs[7]
    p.v("v_lshrrev_b32", vt1, 2, vl)
    p.v("v_lshlrev_b32", vt1, 6, vt1)
    p.v("v_and_b32", vt0, 3, vl)
    p.v("v_lshl_add_u32", vt0, vt0, 3, vt1)
    p.v("v_add_u32", vtr_, sMS, vt0)
    vb = regs[6]
    p.v("v_lshrrev_b32", vb, 4, vl)
    p.v("v_lshlrev_b32", vb, 3, vb)
    p.s("s_lshl_b32", st0, sw, 8)
    p.s("s_add_u32", st0, st0, SIL)
    p.v("v_add_u32", vb, st0, vb)
    p.barrier()
    if name == "slab0":
        T("s_sil")
    acc_ = regs[16:24]
    bf = regs[24:40]
    af = regs[40:56]
    for ks in range(4):
        b = bf[4 * ks:4 * ks + 4]
        p.ds_read("ds_read_b64", b[0:2], vb, off=64 * ks)
        p.ds_read("ds_read_b64", b[2:4], vb, off=64 * ks + 32)
    for k2 in range(2):
        for ks in (2 * k2, 2 * k2 + 1):
            for t in range(2):
                a = af[8 * (ks & 1) + 4 * t:8 * (ks & 1) + 4 * t + 4]
                for h in range(2):
                    p.ds_read("ds_read_b64_tr_b16", a[2 * h:2 * h + 2], vtr_, off=ks * 2048 + 1024 * h + 32 * t,
                              dep=("slab", ks >> 1))
        for ks in (2 * k2, 2 * k2 + 1):
            for t in range(2):
                d = acc_[4 * t:4 * t + 4]
                p.mfma16(d, af[8 * (ks & 1) + 4 * t:8 * (ks & 1) + 4 * t + 4], bf[4 * ks:4 * ks + 4], d if ks else 0)
    p.v("v_lshrrev_b32", vt1, 4, vl)
    p.v("v_lshlrev_b32", vt1, 4, vt1)
    p.s("s_lshl_b32", st0, sw, 7)
    p.s("s_add_u32", st0, st0, MPART)
    p.v("v_add_u32", vt1, st0, vt1)
    for t in range(2):
        p.ds_write("ds_write_b128", vt1, acc_[4 * t:4 * t + 4], off=64 * t)
    p.barrier()
    if name == "slab0":
        T("s_gemv")
    p.s("s_cmp_lg_u32", sw, 0 if name == "slab0" else 3)
    p.branch("s_cbranch_scc1", f"M_{name}_done")
    r4 = regs[16:20]
    p.v("v_and_b32", vt0, 31, vl)
    p.v("v_lshlrev_b32", vt0, 2, vt0)
    p.v("v_add_u32", vt1, MPART, vt0)
    for w in range(4):
        p.ds_read("ds_read_b32", r4[w], vt1, off=128 * w)
    p.v("v_add_f32", r4[0], r4[0], r4[1])
    p.v("v_add_f32", r4[2], r4[2], r4[3])
    p.v("v_add_f32", r4[0], r4[0], r4[2])
    bf16_round_hi(p, r4[0], r4[0])
    p.v("v_add_f32", r4[1], 1.0, r4[0])
    bf16_round_hi(p, r4[1], r4[1])
    p.s("s_lshr_b32", st0, sslab, 4)
    p.s("s_cmp_eq_u32", st0, 1)
    p.s("s_cselect_b32", st1, 1, 0)
    p.s("s_cmp_eq_u32", st0, 4)
    p.s("s_cselect_b32", st1, 1, st1)
    p.v("v_mov_b32", vt2, st1)
    p.v("v_cmp_eq_u32", VCC, 1, vt2)
    p.v("v_cndmask_b32", r4[0], r4[0], r4[1])
    p.s("s_cmp_lt_u32", st0, 2)
    p.s("s_mov_b32", st1, QSCALE)
    p.s("s_cselect_b32", st1, st1, 1.0)
    p.v("v_mul_f32", r4[0], st1, r4[0])
    p.s("s_mov_b64", EXEC, 0xFFFFFFFF)
    if name == "slab0":
        get_tag(p)
        p.v("v_mov_b32", r4[1], sTag)
        p.v("v_lshlrev_b32", vt0, 1, vt0)
        p.s("s_lshl_b32", st0, sslab, 8)
        p.s("s_add_u32", st0, st0, WS_MODG)
        p.bstore(r4[0:2], vt0, rWS, soff=st0, flags=SC1)
        T("s_st")
    else:
        p.s("s_lshl_b32", st0, sslab, 7)
        p.s("s_add_u32", st0, st0, WS_MOD)
        p.bstore(r4[0], vt0, rWS, soff=st0, flags=SC1)
    p.s("s_mov_b64", EXEC, -1)
    p.label(f"M_{name}_done")


aC4 = A(236, 4)


def slabw_issue(p, sslab):
    regs = V(128, 8)
    st0, so = st[0], st[2]
    vt0, vt1 = regs[0], regs[1]
    vd = regs[4:8]
    p.bload(aC4, vlin, rTMP2)
    p.v("v_lshrrev_b32", vt0, 2, vl)
    p.s("s_mov_b32", st0, 6144)
    p.v("v_mul_lo_u32", vt0, vt0, st0)
    p.v("v_and_b32", vt1, 3, vl)
    p.v("v_lshl_add_u32", vd[0], vt1, 4, vt0)
    for j in range(1, 4):
        p.v("v_add_u32", vd[j], j * (16 * 6144 - 1024), vd[0])
    p.s("s_lshl_b32", so, sslab, 6)
    for grp in range(8):
        p.s("s_mov_b32", M0, SH + grp * 4096)
        if grp:
            p.s("s_add_u32", so, so, 64 * 6144)
        else:
            p.nop(0)
        for j in range(4):
            p.dma(vd[j], rTMP, so, off=1024 * j, tag=("slab", grp))


def slabw_finish(p, T, sslab, name):
    regs = V(136, 64) if name == "slab0" else mreg
    st0, st1 = st[0], st[1]
    vt0, vt1, vt2, vtr_, vb = regs[0], regs[1], regs[2], regs[3], regs[4]
    cs, es, pk = regs[8:16], regs[16:24], regs[24:28]
    for i in range(4):
        p.v("v_accvgpr_read_b32", vt0, aC4[i])
        p.v("v_lshlrev_b32", cs[2 * i], 16, vt0)
        p.v("v_and_b32", cs[2 * i + 1], sHi, vt0)
    for k in range(8):
        p.v("v_mul_f32", es[k], -1.4426950408889634, cs[k])
    for k in range(8):
        p.v("v_exp_f32", es[k], es[k])
    for k in range(8):
        p.v("v_add_f32", es[k], 1.0, es[k])
    for k in range(8):
        p.v("v_rcp_f32", es[k], es[k])
    for k in range(8):
        p.v("v_mul_f32", cs[k], cs[k], es[k])
    for i in range(4):
        p.v("v_cvt_pk_bf16_f32", pk[i], cs[2 * i], cs[2 * i + 1])
    p.v("v_add_u32", vt0, SIL, vlin)
    p.ds_write("ds_write_b128", vt0, pk, tag="sil")
    p.v("v_lshrrev_b32", vt1, 2, vl)
    p.v("v_lshlrev_b32", vt1, 6, vt1)
    p.v("v_and_b32", vt0, 3, vl)
    p.v("v_lshl_add_u32", vt0, vt0, 3, vt1)
    p.v("v_add_u32", vtr_, SH, vt0)
    p.v("v_lshrrev_b32", vb, 4, vl)
    p.v("v_lshlrev_b32", vb, 3, vb)
    p.v("v_add_u32", vb, SIL, vb)
    acc_ = regs[8:16]
    bf = regs[16:32]
    af = regs[32:64]
    for k4 in range(4):
        for kk in range(4):
            ks = 4 * k4 + kk
            b = bf[4 * kk:4 * kk + 4]
            p.ds_read("ds_read_b64", b[0:2], vb, off=64 * ks, dep="sil")
            p.ds_read("ds_read_b64", b[2:4], vb, off=64 * ks + 32, dep="sil")
            for t in range(2):
                a = af[8 * kk + 4 * t:8 * kk + 4 * t + 4]
                for h in range(2):
                    p.ds_read("ds_read_b64_tr_b16", a[2 * h:2 * h + 2], vtr_, off=ks * 2048 + 1024 * h + 32 * t,
                              dep=("slab", ks >> 1))
        for kk in range(4):
            ks = 4 * k4 + kk
            for t in range(2):
                d = acc_[4 * t:4 * t + 4]
                p.mfma16(d, af[8 * kk + 4 * t:8 * kk + 4 * t + 4], bf[4 * kk:4 * kk + 4], d if ks else 0)
    if name == "slab0":
        T("s_gemv")
    r4 = regs[16:20]
    x0, x1 = regs[20], regs[21]
    p.v("v_and_b32", vt0, 1, vl)
    p.v("v_cmp_eq_u32", VCC, 1, vt0)
    for t in range(2):
        p.v("v_cndmask_b32", regs[22 + 2 * t], acc_[4 * t], acc_[4 * t + 1])
        p.v("v_cndmask_b32", regs[23 + 2 * t], acc_[4 * t + 2], acc_[4 * t + 3])
    p.v("v_and_b32", vt0, 2, vl)
    p.v("v_cmp_eq_u32", VCC, 2, vt0)
    p.v("v_cndmask_b32", x0, regs[22], regs[23])
    p.v("v_cndmask_b32", x1, regs[24], regs[25])
    p.v("v_and_b32", vt0, 4, vl)
    p.v("v_cmp_eq_u32", VCC, 4, vt0)
    p.v("v_cndmask_b32", r4[0], x0, x1)
    p.v("v_lshlrev_b32", vt0, 2, vt0)
    p.v("v_lshrrev_b32", vt1, 4, vl)
    p.v("v_lshl_add_u32", vt0, vt1, 2, vt0)
    p.v("v_and_b32", vt1, 3, vl)
    p.v("v_add_u32", vt0, vt0, vt1)
    p.v("v_lshlrev_b32", vt0, 2, vt0)
    bf16_round_hi(p, r4[0], r4[0])
    p.v("v_add_f32", r4[1], 1.0, r4[0])
    bf16_round_hi(p, r4[1], r4[1])
    p.s("s_lshr_b32", st0, sslab, 4)
    p.s("s_cmp_eq_u32", st0, 1)
    p.s("s_cselect_b32", st1, 1, 0)
    p.s("s_cmp_eq_u32", st0, 4)
    p.s("s_cselect_b32", st1, 1, st1)
    p.v("v_mov_b32", vt2, st1)
    p.v("v_cmp_eq_u32", VCC, 1, vt2)
    p.v("v_cndmask_b32", r4[0], r4[0], r4[1])
    p.s("s_cmp_lt_u32", st0, 2)
    p.s("s_mov_b32", st1, QSCALE)
    p.s("s_cselect_b32", st1, st1, 1.0)
    p.v("v_mul_f32", r4[0], st1, r4[0])
    if name == "slab0":
        get_tag(p)
        p.v("v_mov_b32", r4[1], sTag)
        p.v("v_lshlrev_b32", vt0, 1, vt0)
    p.raw("s_mov_b32 exec_lo, 0x00ff00ff")
    p.raw("s_mov_b32 exec_hi, 0x00ff00ff")
    if name == "slab0":
        p.s("s_lshl_b32", st0, sslab, 8)
        p.s("s_add_u32", st0, st0, WS_MODG)
        p.bstore(r4[0:2], vt0, rWS, soff=st0, flags=SC1)
        T("s_st")
    else:
        p.s("s_lshl_b32", st0, sslab, 7)
        p.s("s_add_u32", st0, st0, WS_MOD)
        p.bstore(r4[0], vt0, rWS, soff=st0, flags=SC1)
    p.s("s_mov_b64", EXEC, -1)


def late_signals(p):
    p.s("s_cmp_lg_u32", sw, 3)
    p.branch("s_cbranch_scc1", "M_late_done")
    p.wait(vm=0)
    add_one(p, rDBG, DBG_CLR)
    p.s("s_sub_u32", sp0, sSlab, N_MOD0)
    p.s("s_cmp_ge_u32", sp0, N_MOD1)
    p.branch("s_cbranch_scc1", "M_late_done")
    add_one(p, rDBG, DBG_MOD1)
    p.label("M_late_done")


R_LDS = SH + 65536 - 512


rVg, rVq, rVf, rVfr, rVxo, rVmo = V(2), V(3), V(4), V(8), V(9), V(10)
rVx, rX1p, rH2p = V(12, 8), V(20, 8), V(48, 8)
rVp = [V(64, 32), V(96, 32)]
rA, rXf, rVm = V(128, 16), V(144, 16), V(160, 48)
sRqt, sRhalf, sRb0 = S(66), S(67), S(68)


def r_addr(p):
    st0, st1 = st[0], st[1]
    vt0, vt1, vt2 = V(5), V(6), V(7)
    p.v("v_and_b32", rVq, 7, vl)
    p.v("v_lshrrev_b32", rVg, 3, vl)
    p.v("v_and_b32", rVg, 3, rVg)
    p.v("v_lshrrev_b32", rVf, 5, vl)
    p.s("s_lshr_b32", sRqt, shg, 1)
    p.s("s_and_b32", sRhalf, shg, 1)
    p.v("v_lshlrev_b32", vt0, 4, rVg)
    p.v("v_add_u32", vt0, vt0, rVq)
    p.s("s_lshl_b32", st0, sRhalf, 3)
    p.v("v_add_u32", vt0, st0, vt0)
    p.v("v_lshlrev_b32", vt0, 4, vt0)
    p.v("v_lshlrev_b32", vt1, 12, rVf)
    p.v("v_add_u32", rVfr, vt0, vt1)
    p.s("s_mul_i32", sRb0, srb, PART_BLK)
    p.s("s_lshl_b32", st0, sw, 14)
    p.s("s_add_u32", sRb0, sRb0, st0)
    p.s("s_lshl_b32", st0, sRqt, 10)
    p.s("s_add_u32", sRb0, sRb0, st0)
    p.s("s_add_u32", sRb0, sRb0, WS_PART)


def r_partial_loads(p, i):
    for hg in range(8):
        p.s("s_add_u32", st[0], sRb0, hg * 32 * PART_BLK + i * 8192)
        p.bload(rVp[i][4 * hg:4 * hg + 4], rVfr, rWS, soff=st[0], flags=SC1)


def r_side_loads(p):
    st0, st1 = st[0], st[1]
    vt0, vt1, vt2 = V(5), V(6), V(7)
    p.s("s_lshl_b32", st0, srb, 6)
    p.s("s_lshl_b32", st1, sRqt, 4)
    p.s("s_add_u32", st0, st0, st1)
    p.s("s_lshl_b32", st1, sRhalf, 3)
    p.s("s_add_u32", st0, st0, st1)
    p.v("v_add_u32", vt0, st0, rVq)
    p.v("v_lshlrev_b32", vt0, 10, vt0)
    p.v("v_lshlrev_b32", vt1, 6, rVf)
    p.v("v_lshlrev_b32", vt2, 3, rVg)
    p.v("v_add3_u32", rVxo, vt0, vt1, vt2)
    p.s("s_lshl_b32", st0, sw, 8)
    for i in range(2):
        for h in range(2):
            p.bload(rVx[4 * i + 2 * h:4 * i + 2 * h + 2], rVxo, rX, soff=st0, off=128 * i + 32 * h)
    p.v("v_lshlrev_b32", vt1, 7, rVf)
    p.v("v_lshlrev_b32", vt2, 4, rVg)
    p.v("v_add_u32", rVmo, vt1, vt2)
    r_mod_loads(p, (0, 1))


def r_mod_loads(p, which):
    st0, st1 = st[0], st[1]
    p.s("s_lshl_b32", st0, sw, 9)
    for k in which:
        vec = 2 + k
        p.s("s_add_u32", st1, st0, WS_MOD + vec * 2048)
        for i in range(2):
            for h in range(2):
                o = 16 * k + 8 * i + 4 * h
                p.bload(rVm[o:o + 4], rVmo, rWS, soff=st1, off=256 * i + 64 * h, flags=SC1)


def r_sum(p, i):
    slo, shi = st[1], sp1
    p.s("s_mov_b32", slo, 0x00003F80)
    p.s("s_mov_b32", shi, 0x3F800000)
    for hg in range(8):
        for r in range(4):
            src = rVp[i][4 * hg + r]
            for hi, sel in ((0, slo), (1, shi)):
                d = rA[8 * i + 2 * r + hi]
                p.v("v_dot2_f32_bf16", d, src, sel, d if hg else 0)


def phase_r_compute(p, T):
    st0, so = st[0], st[5]
    vt0, vt1 = V(5), V(6)
    a, xf, vm, vx, x1p = rA, rXf, rVm, rVx, rX1p
    for i in range(2):
        for h in range(2):
            for j in range(2):
                src = vx[4 * i + 2 * h + j]
                p.v("v_lshlrev_b32", xf[8 * i + 4 * h + 2 * j], 16, src)
                p.v("v_and_b32", xf[8 * i + 4 * h + 2 * j + 1], sHi, src)
    for k in range(16):
        p.v("v_fmac_f32", xf[k], a[k], vm[k])
    for i in range(2):
        for j in range(4):
            p.v("v_cvt_pk_bf16_f32", x1p[4 * i + j], xf[8 * i + 2 * j], xf[8 * i + 2 * j + 1])
    p.s("s_lshl_b32", so, srb, 16)
    p.s("s_lshl_b32", st0, sw, 14)
    p.s("s_add_u32", so, so, st0)
    p.s("s_lshl_b32", st0, sRqt, 10)
    p.s("s_add_u32", so, so, st0)
    for i in range(2):
        p.s("s_add_u32", st0, so, WS_X1 + i * 8192)
        p.bstore(x1p[4 * i:4 * i + 4], rVfr, rWS, soff=st0, flags=SC1)
    for i in range(2):
        for j in range(4):
            p.v("v_lshlrev_b32", xf[8 * i + 2 * j], 16, x1p[4 * i + j])
            p.v("v_and_b32", xf[8 * i + 2 * j + 1], sHi, x1p[4 * i + j])
    s1, s2 = V(28), V(29)
    p.v("v_add_f32", s1, xf[0], xf[1])
    p.v("v_mul_f32", s2, xf[0], xf[0])
    p.v("v_fmac_f32", s2, xf[1], xf[1])
    for k in range(2, 16):
        p.v("v_add_f32", s1, s1, xf[k])
        p.v("v_fmac_f32", s2, xf[k], xf[k])
    for s_ in (s1, s2):
        p.v("v_add_f32_dpp", s_, s_, s_, mods="row_ror:8 row_mask:0xf bank_mask:0xf")
    for op in ("v_permlane16_swap_b32", "v_permlane32_swap_b32"):
        for s_, t_ in ((s1, vt0), (s2, vt1)):
            p.v("v_mov_b32", t_, s_)
        for s_, t_ in ((s1, vt0), (s2, vt1)):
            p.v(op, s_, t_)
        for s_, t_ in ((s1, vt0), (s2, vt1)):
            p.v("v_add_f32", s_, s_, t_)
    p.v("v_lshlrev_b32", vt0, 3, rVq)
    p.v("v_add_u32", vt0, R_LDS, vt0)
    p.s("s_lshl_b32", st0, sw, 6)
    p.v("v_add_u32", vt1, st0, vt0)
    s12 = V(30, 2)
    p.v("v_mov_b32", s12[0], s1)
    p.v("v_mov_b32", s12[1], s2)
    p.ds_write("ds_write_b64", vt1, s12)
    p.barrier()
    rr = V(32, 8)
    for w in range(4):
        p.ds_read("ds_read_b64", rr[2 * w:2 * w + 2], vt0, off=64 * w)
    p.v("v_add_f32", s1, rr[0], rr[2])
    p.v("v_add_f32", s2, rr[1], rr[3])
    p.v("v_add_f32", rr[4], rr[4], rr[6])
    p.v("v_add_f32", rr[5], rr[5], rr[7])
    p.v("v_add_f32", s1, s1, rr[4])
    p.v("v_add_f32", s2, s2, rr[5])
    mu, rs2, nm2 = V(40), V(42, 2), V(44, 2)
    p.v("v_mul_f32", mu, 1.0 / 512, s1)
    p.v("v_mul_f32", s2, 1.0 / 512, s2)
    p.v("v_fma_f32", s2, Neg(mu), mu, s2)
    p.v("v_max_f32", s2, 0, s2)
    p.v("v_add_f32", s2, 1e-5, s2)
    p.v("v_rsq_f32", rs2[0], s2)
    p.v("v_mul_f32_e64", nm2[0], Neg(mu), rs2[0])
    p.v("v_mov_b32", rs2[1], rs2[0])
    p.v("v_mov_b32", nm2[1], nm2[0])
    for k in range(8):
        p.v("v_pk_fma_f32", xf[2 * k:2 * k + 2], xf[2 * k:2 * k + 2], rs2, nm2)
    for k in range(8):
        p.v("v_pk_fma_f32", xf[2 * k:2 * k + 2], xf[2 * k:2 * k + 2], vm[32 + 2 * k:34 + 2 * k], vm[16 + 2 * k:18 + 2 * k])
    h2p = rH2p
    for i in range(2):
        for j in range(4):
            p.v("v_cvt_pk_bf16_f32", h2p[4 * i + j], xf[8 * i + 2 * j], xf[8 * i + 2 * j + 1])
        p.s("s_add_u32", st0, so, WS_H2 + i * 8192)
        p.bstore(h2p[4 * i:4 * i + 4], rVfr, rWS, soff=st0, flags=SC1)


aF1 = A(250)


def check_mod1(p):
    p.v("v_accvgpr_read_b32", V(62), aEarly[0])
    p.v("v_readfirstlane_b32", sp0, V(62))
    p.s("s_cmp_ge_u32", sp0, N_MOD1)
    p.branch("s_cbranch_scc1", "C_mod1_ok")
    spin(p, rDBG, DBG_MOD1, N_MOD1, "mod1")
    p.label("C_mod1_ok")


def o2_hooks():
    h = {}
    q = Prog()
    q.v("v_mov_b32", V(62), sTag)
    q.s("s_lshl_b32", S(47), S(2), 7)
    q.s("s_add_u32", S(47), S(47), WS_FLAG + F_PART1 * 256 * 128)
    pre = q.ins
    q = Prog()
    q.need("part1")
    q.barrier(drain_lds=False)
    q.bstore(V(62), vpoll, rWS, soff=S(47), flags=SC1)
    h[12] = {6: pre, 9: q.ins}
    q = Prog()
    q.v("v_min_u32", V(45), 7, vl)
    q.v("v_lshlrev_b32", V(45), 7, V(45))
    q.s("s_lshl_b32", S(47), srb, 10)
    q.s("s_add_u32", S(47), S(47), WS_FLAG + F_PART1 * 256 * 128)
    pre = q.ins
    q = Prog()
    q.bload(aF1, V(45), rWS, soff=S(47), flags=SC1)
    h[14] = {2: pre, 6: q.ins}

    def before_last(p):
        r_addr(p)
        check_mod1(p)
        r_side_loads(p)
        p.v("v_accvgpr_read_b32", V(62), aF1)
        p.s("s_mov_b32", sp1, 0)
        p.label("P_part1")
        p.v("v_cmp_eq_u32", VCC, sTag, V(62))
        p.add(I("s_cmp_eq_u64 vcc, exec", "salu", (), units(VCC)))
        p.branch("s_cbranch_scc1", "P_part1_done")
        p.bload(V(62), V(45), rWS, soff=S(47), flags=SC1)
        p.wait(vm=0)
        p.s("s_add_u32", sp1, sp1, 1)
        p.s("s_cmp_lt_u32", sp1, 0x40000)
        p.add(I("s_cbranch_scc1 P_part1", "salu"))
        p.label("P_part1_done")
        r_partial_loads(p, 0)

    h["before_last_stores"] = before_last
    return h


ROWB = 2752
sDrb, sDcg, sDact, sDH = S(40 + 12), S(40 + 13), S(40 + 14), S(40 + 15)
sErb, sEcb, sEact, sEwd = S(56), S(57), S(58), S(59)
sDrot = S(91)


def d_ids(p):
    st0, st1 = st[0], st[1]
    p.s("s_and_b32", st0, shg, 1)
    p.s("s_lshl_b32", st0, st0, 2)
    p.s("s_and_b32", st1, srb, 3)
    p.s("s_add_u32", sDrb, st0, st1)
    p.s("s_lshr_b32", st0, shg, 1)
    p.s("s_mul_i32", st1, st0, 7)
    p.s("s_add_u32", st1, st1, 1)
    p.s("s_cmp_eq_u32", st0, 0)
    p.s("s_cselect_b32", sDcg, 0, st1)
    p.s("s_cselect_b32", st0, 8, 7)
    p.s("s_lshr_b32", st1, srb, 2)
    p.s("s_add_u32", sDcg, sDcg, st1)
    p.s("s_cmp_lt_u32", st1, st0)
    p.s("s_cselect_b32", sDact, 1, 0)
    p.s("s_lshl_b32", sDrot, st1, 1)


def d_weights(p, drain=True):
    st0, st1 = st[0], st[1]
    vt_ = V(216, 5)
    vd = V(224, 3)
    smag = S(61)
    p.s("s_cmp_eq_u32", sw, 0)
    p.branch("s_cbranch_scc1", "M_dw_done")
    p.s("s_mov_b32", smag, 0xAAAB)
    p.s("s_mov_b32", st0, ROWB)
    for k in range(3):
        p.v("v_add_u32", vt_[0], 64 * k, vl)
        p.v("v_mul_lo_u32", vt_[1], vt_[0], smag)
        p.v("v_lshrrev_b32", vt_[1], 18, vt_[1])
        p.v("v_mul_u32_u24", vt_[2], 6, vt_[1])
        p.v("v_sub_u32", vt_[2], vt_[0], vt_[2])
        p.v("v_lshlrev_b32", vt_[2], 4, vt_[2])
        p.v("v_mul_lo_u32", vt_[1], vt_[1], st0)
        p.v("v_add_u32", vd[k], vt_[1], vt_[2])
        if k:
            p.v("v_subrev_u32", vd[k], 1024 * k, vd[k])
    sPos, sCol = S(62), S(63)
    p.s("s_mul_i32", sCol, sDcg, 96)
    p.s("s_sub_u32", sPos, sw, 1)
    p.label("M_dw_loop")
    p.s("s_add_u32", st0, sPos, sDrot)
    p.s("s_and_b32", st0, st0, 15)
    p.s("s_mul_i32", st0, st0, 32 * ROWB)
    p.s("s_add_u32", st0, st0, sCol)
    p.s("s_mul_i32", st1, sPos, 3072)
    for m, r_ in enumerate((rG, rU)):
        p.s("s_add_u32", M0, st1, m * 49152)
        p.nop(0)
        for k in range(3):
            p.dma(vd[k], r_, st0, off=1024 * k, tag="dw")
    p.s("s_add_u32", sPos, sPos, 3)
    p.s("s_cmp_lt_u32", sPos, 16)
    p.add(I("s_cbranch_scc1 M_dw_loop", "salu"))
    if drain:
        p.wait(vm=0)
    p.label("M_dw_done")


E_RING = SH
E_NSLOT = 4


def phase_d(p, T, e_prefetch):
    st0, st1 = st[0], st[1]
    sH, sAct = st[2], st[3]
    vlin_ = V(2)
    vt_ = V(3, 5)
    vtr_ = V(12, 2)
    p.v("v_lshlrev_b32", vlin_, 4, vl)
    p.s("s_lshl_b32", sH, sDrb, 2)
    p.s("s_add_u32", sH, sH, sw)
    p.s("s_mul_i32", sAct, sH, ACT_RB)
    p.s("s_lshl_b32", sH, sH, 16)
    p.s("s_add_u32", sH, sH, WS_H2)
    p.s("s_mul_i32", st0, sDcg, 6144)
    p.s("s_add_u32", sAct, sAct, st0)
    p.s("s_add_u32", sAct, sAct, WS_ACT)
    NB = 4
    vB_ = V(128, 16 * NB)

    def bfr(ks, qt):
        o = 16 * (ks % NB) + 4 * qt
        return vB_[o:o + 4]

    sK_ = S(63)

    def load_b(ks):
        q = Prog()
        if ks == 0:
            q.s("s_lshl_b32", sK_, sDrot, 12)
        else:
            q.s("s_add_u32", sK_, sK_, 4096)
            q.s("s_and_b32", sK_, sK_, 0xFFFF)
        q.s("s_add_u32", st1, sH, sK_)
        for qt in range(4):
            q.bload(bfr(ks, qt), vlin_, rWS, soff=st1, off=1024 * qt, flags=SC1)
        return q.ins

    p.v("v_lshrrev_b32", vt_[0], 2, vl)
    p.v("v_mul_u32_u24", vt_[0], 96, vt_[0])
    p.v("v_and_b32", vt_[1], 3, vl)
    p.v("v_lshlrev_b32", vt_[1], 3, vt_[1])
    p.v("v_add_u32", vtr_[0], vt_[0], vt_[1])
    p.v("v_add_u32", vtr_[1], 49152, vtr_[0])
    accd = V(16, 96)
    vA = V(112, 16)
    vz_ = V(196, 4)
    for i in range(4):
        p.v("v_mov_b32", vz_[i], 0)
    if EARLYW:
        e_early(p, "d")
    else:
        d_weights(p)
    p.s("s_lshl_b32", st[4], sDrb, 5)
    poll_flags(p, F_H2, st[4], 32, "h2")
    T("d_go")
    for ks in range(NB):
        for x in load_b(ks):
            p.add(x)
    for i in range(6):
        zero16(p, accd[16 * i:16 * i + 16], vz_)

    def accr(m, t, qt):
        o = 48 * m + 16 * t + 4 * qt
        return accd[o:o + 4]

    def afr(i):
        return vA[4 * (i % 4):4 * (i % 4) + 4]

    def rd_a(ks, f, base):
        q = Prog()
        m, t = f // 3, f % 3
        for h in range(2):
            q.ds_read("ds_read_b64_tr_b16", afr(6 * ks + f)[2 * h:2 * h + 2], vtr_[m],
                      off=(ks - base) * 3072 + 1536 * h + 32 * t)
        return q.ins

    for f in range(2):
        for x in rd_a(0, f, 0):
            p.add(x)
    for it in range(4):
        mark(p, "gd", it)
        for ks in range(4 * it, 4 * it + 4):
            mf = []
            for f in range(6):
                m, t = f // 3, f % 3
                for qt in range(4):
                    def mm(m=m, t=t, qt=qt, f=f, ks=ks):
                        d = accr(m, t, qt)
                        x = p.mfma16(d, afr(6 * ks + f), bfr(ks, qt), d)
                        if ILV and f == 0 and qt == 0:
                            also(x, [bfr(ks, k) for k in range(4)])
                    mf.append(mm)
            sc = Sched(mf)
            for f in range(6):
                nf, nks = (f + 2) % 6, ks + (f + 2) // 6
                if nks < 16:
                    r = rd_a(nks, nf, 4 * it)
                    sc.fixed(4 * f, r[:1])
                    sc.fixed(4 * f + 1, r[1:])
            if ILV:
                if ks >= 1 and ks - 1 + NB < 16:
                    ld = load_b(ks - 1 + NB)
                    sal = [x for x in ld if x.kind == "salu"]
                    vm_ = [x for x in ld if x.kind != "salu"]
                    for i, x in enumerate(sal):
                        sc.fixed(i, [x])
                    for i, x in enumerate(vm_):
                        sc.fixed(6 + 4 * i, [x])
            elif ks + NB < 16:
                sc.fixed(23, load_b(ks + NB))
            sc.emit(p)
        if it < 3:
            p.v("v_add_u32", vtr_[0], 4 * 3072, vtr_[0])
            p.v("v_add_u32", vtr_[1], 4 * 3072, vtr_[1])
        loop_dec(p)
        loop_branch(p)
    mark(p, "gd", None)
    T("d_mma")
    o = V(128, 32)
    for qt in range(4):
        for t in range(3):
            g_, u_ = accr(0, t, qt), accr(1, t, qt)
            for r in range(4):
                p.v("v_mul_f32", g_[r], g_[r], u_[r])
        full = o[8 * qt:8 * qt + 4]
        half = o[8 * qt + 4:8 * qt + 6]
        for t in range(3):
            g_ = accr(0, t, qt)
            dst = full[2 * t:2 * t + 2] if t < 2 else half
            p.v("v_cvt_pk_bf16_f32", dst[0], g_[0], g_[1])
            p.v("v_cvt_pk_bf16_f32", dst[1], g_[2], g_[3])
        p.bstore(full, vlin_, rWS, soff=sAct, off=1024 * qt, flags=SC1)
    vh = vt_[0]
    p.v("v_lshlrev_b32", vh, 3, vl)
    p.s("s_add_u32", st0, sAct, 4096)
    p.s("s_cmp_eq_u32", sDcg, 28)
    p.branch("s_cbranch_scc1", "D_skip_half")
    for qt in range(4):
        p.bstore(o[8 * qt + 4:8 * qt + 6], vh, rWS, soff=st0, off=512 * qt, flags=SC1)
    p.label("D_skip_half")
    p.s("s_lshl_b32", st[4], sDrb, 5)
    p.s("s_add_u32", st[4], st[4], sDcg)
    signal(p, F_ACT, st[4], "act")


eRing, eSa, eSd = S(60), S(61), S(62)
eSet = S(55)
ePA, ePW = S(70, 3), S(73, 3)
eVd, eVtr, eLin, eLin8 = V(232, 2), V(234, 4), V(238), V(239)
eAcc, eA, eB = V(16, 64), V(80, 16), V(96, 16 * E_NSLOT)


def e_setup(p):
    st0, st1 = st[0], st[1]
    vt_ = V(240, 4)
    p.v("v_lshlrev_b32", eLin, 4, vl)
    p.v("v_lshlrev_b32", eLin8, 3, vl)
    p.s("s_lshl_b32", st0, shg, 2)
    p.s("s_lshr_b32", st1, S(2), 6)
    p.s("s_add_u32", sErb, st0, st1)
    p.s("s_and_b32", sEcb, srb, 7)
    p.s("s_lshl_b32", eRing, sw, 14)
    p.s("s_add_u32", eRing, eRing, E_RING)
    p.v("v_lshrrev_b32", vt_[0], 3, vl)
    p.v("v_lshlrev_b32", vt_[1], 10, vt_[0])
    p.v("v_lshrrev_b32", vt_[0], 1, vt_[0])
    p.v("v_and_b32", vt_[0], 3, vt_[0])
    p.v("v_lshlrev_b32", vt_[0], 1, vt_[0])
    p.v("v_and_b32", vt_[2], 7, vl)
    p.v("v_xor_b32", vt_[0], vt_[0], vt_[2])
    p.v("v_lshlrev_b32", vt_[0], 4, vt_[0])
    p.v("v_add_u32", eVd[0], vt_[0], vt_[1])
    p.v("v_add_u32", eVd[1], 8 * 1024 - 1024, eVd[0])
    p.v("v_lshrrev_b32", vt_[0], 2, vl)
    p.v("v_lshlrev_b32", vt_[1], 7, vt_[0])
    p.v("v_lshrrev_b32", vt_[0], 1, vt_[0])
    p.v("v_and_b32", vt_[0], 3, vt_[0])
    p.v("v_lshlrev_b32", vt_[0], 1, vt_[0])
    p.v("v_and_b32", vt_[2], 3, vl)
    p.v("v_lshrrev_b32", vt_[3], 1, vt_[2])
    p.v("v_xor_b32", vt_[0], vt_[0], vt_[3])
    p.v("v_lshlrev_b32", vt_[0], 4, vt_[0])
    p.v("v_and_b32", vt_[2], 1, vt_[2])
    p.v("v_lshlrev_b32", vt_[2], 3, vt_[2])
    p.v("v_add3_u32", eVtr[0], vt_[0], vt_[1], vt_[2])
    p.v("v_add_u32", eVtr[0], eRing, eVtr[0])
    for t in range(1, 4):
        p.v("v_xor_b32", eVtr[t], t << 5, eVtr[0])
    if EROT:
        p.s("s_add_u32", eSet, sw, sEcb)
        p.s("s_and_b32", eSet, eSet, 3)
        p.s("s_lshr_b32", st1, sEcb, 2)
    else:
        p.s("s_mov_b32", eSet, sw)
        p.s("s_mov_b32", st1, 0)
    for i in range(3):
        p.s("s_add_u32", st0, st1, i)
        p.s("s_cmp_ge_u32", st0, 3)
        p.s("s_cselect_b32", ePA[i], 3, 0)
        p.s("s_sub_u32", st0, st0, ePA[i])
        p.s("s_mul_i32", ePA[i], st0, 8 * 6144)
        p.s("s_mul_i32", ePW[i], st0, 4 * 96 * 1024)
    p.s("s_mul_i32", sEact, sErb, ACT_RB)
    p.s("s_mul_i32", st0, eSet, 2 * 6144)
    p.s("s_add_u32", sEact, sEact, st0)
    p.s("s_add_u32", sEact, sEact, WS_ACT)
    p.s("s_mul_i32", sEwd, eSet, 96 * 1024)
    p.s("s_lshl_b32", st0, sEcb, 7)
    p.s("s_add_u32", sEwd, sEwd, st0)


def e_issue_w(q, n, kind, pair_off, rotated=True):
    rot = rotated and pair_off < 3
    doff = 0 if rot else pair_off * 4 * 96 * 1024
    slot = (n % E_NSLOT) * 4096
    if kind < 2:
        rows = [doff + (48 * kind) * 1024, doff + (48 * kind + 16) * 1024]
    else:
        rows = [doff + 32 * 1024, doff + (48 + 32) * 1024]
    for hf in range(2):
        q.s("s_add_u32", eSd, sEwd, rows[hf])
        if rot:
            q.s("s_add_u32", eSd, eSd, ePW[pair_off])
        q.s("s_add_u32", M0, eRing, slot + 2048 * hf)
        q.nop(0)
        for j in range(2):
            q.dma(eVd[j], rD, eSd, off=1024 * j, tag=("e", n), ovw=("e", n - E_NSLOT))


def e_early(p, name):
    sJob, sOwn, sN, sT0, sT1, sT2 = S(62), st[0], st[1], S(61), S(63), S(69)
    eSa2 = S(47)
    p.s("s_cmp_eq_u32", sw, 0)
    p.branch("s_cbranch_scc1", f"M_ee_done_{name}")
    p.s("s_sub_u32", sJob, sw, 1)
    p.label(f"M_ee_loop_{name}")
    p.s("s_lshr_b32", sOwn, sJob, 2)
    p.s("s_and_b32", sN, sJob, 3)
    p.s("s_lshl_b32", sT0, sJob, 12)
    p.s("s_add_u32", sT0, sT0, E_RING)
    p.s("s_mul_i32", sT1, sN, 48)
    p.s("s_cmp_eq_u32", sN, 2)
    p.s("s_cselect_b32", sT1, 32, sT1)
    p.s("s_cselect_b32", sT2, 48, 16)
    p.s("s_cmp_eq_u32", sN, 3)
    p.s("s_cselect_b32", sT1, 0, sT1)
    p.s("s_cselect_b32", eSa2, ePW[1], ePW[0])
    if EROT:
        p.s("s_add_u32", sOwn, sOwn, sEcb)
        p.s("s_and_b32", sOwn, sOwn, 3)
    p.s("s_mul_i32", sOwn, sOwn, 96)
    p.s("s_add_u32", sT1, sT1, sOwn)
    p.s("s_add_u32", sT2, sT2, sT1)
    p.s("s_lshl_b32", sN, sEcb, 7)
    p.s("s_add_u32", sN, sN, eSa2)
    for hf, sr in enumerate((sT1, sT2)):
        p.s("s_lshl_b32", sr, sr, 10)
        p.s("s_add_u32", sr, sr, sN)
        p.s("s_add_u32", M0, sT0, 2048 * hf)
        p.nop(0)
        for j in range(2):
            p.dma(eVd[j], rD, sr, off=1024 * j, tag="ee")
    p.s("s_add_u32", sJob, sJob, 3)
    p.s("s_cmp_lt_u32", sJob, 16)
    p.add(I(f"s_cbranch_scc1 M_ee_loop_{name}", "salu"))
    p.label(f"M_ee_done_{name}")


def e_bfr(n, qt):
    o = 16 * (n % E_NSLOT) + 4 * qt
    return eB[o:o + 4]


def e_issue_b(q, n, kind, pair_off, rotated=True):
    rot = rotated and pair_off < 3
    aoff = 0 if rot else pair_off * 8 * 6144
    if kind < 2:
        q.s("s_add_u32", eSa, sEact, aoff + kind * 6144)
        if rot:
            q.s("s_add_u32", eSa, eSa, ePA[pair_off])
        for qt in range(4):
            q.bload(e_bfr(n, qt), eLin, rWS, soff=eSa, off=1024 * qt, flags=SC1)
    else:
        for hf in range(2):
            q.s("s_add_u32", eSa, sEact, aoff + hf * 6144 + 4096)
            if rot:
                q.s("s_add_u32", eSa, eSa, ePA[pair_off])
            for qt in range(4):
                q.bload(e_bfr(n, qt)[2 * hf:2 * hf + 2], eLin8, rWS, soff=eSa, off=512 * qt, flags=SC1)


def phase_e(p, T):
    st0, st1 = st[0], st[1]
    vt_ = V(240, 4)

    def accr(t, qt):
        return eAcc[16 * t + 4 * qt:16 * t + 4 * qt + 4]

    def afr(i):
        return eA[4 * (i % 4):4 * (i % 4) + 4]

    def rd_a(n, t):
        q = Prog()
        for h in range(2):
            q.ds_read("ds_read_b64_tr_b16", afr(4 * n + t)[2 * h:2 * h + 2], eVtr[t],
                      off=(n % E_NSLOT) * 4096 + 2048 * h, dep=("e", n))
        return q.ins

    def step(n, first, nxt, have_next):
        mf = []
        for t in range(4):
            for qt in range(4):
                def mm(t=t, qt=qt):
                    d = accr(t, qt)
                    x = p.mfma16(d, afr(4 * n + t), e_bfr(n, qt), d if not first else 0)
                    if ILV and t == 0 and qt == 0:
                        also(x, [e_bfr(n, k) for k in range(4)])
                mf.append(mm)
        sc = Sched(mf)
        tg = []
        for t in range(4):
            tn, nn = (t + 2) % 4, n + (t + 2) // 4
            if nn == n or have_next:
                r = rd_a(nn, tn)
                sc.fixed(4 * t, r[:1])
                sc.fixed(4 * t + 1, r[1:])
        if ILV and nxt:
            free = [g for g in range(16) if g % 4 >= 2]
            g, k = 0, 0
            pend = []
            for x in nxt:
                if x.kind in ("salu",):
                    pend.append(x)
                elif x.kind == "nop":
                    continue
                elif k < len(free):
                    gap = free[k]
                    for y in pend:
                        sc.fixed(gap - 1, [y])
                    pend = []
                    sc.fixed(gap, [x])
                    k += 1
                else:
                    sc.oth[15] += pend + [x]
                    pend = []
            sc.oth[15] += pend
        else:
            sc.fixed(15, nxt)
        sc.emit(p)

    x1 = V(160, 8)
    gb = V(168, 16)
    p.s("s_lshl_b32", st[4], shg, 5)
    poll_flags(p, F_ACT, st[4], 29, "act")
    T("e_go")
    for n in range(E_NSLOT):
        e_issue_b(p, n, n % 3, n // 3)
    p.s("s_lshl_b32", st0, sErb, 16)
    p.s("s_lshl_b32", st1, sEcb, 13)
    p.s("s_add_u32", st0, st0, st1)
    p.s("s_lshl_b32", st1, sw, 10)
    p.s("s_add_u32", st0, st0, st1)
    p.s("s_add_u32", st0, st0, WS_X1)
    p.bload(x1[0:4], eLin, rWS, soff=st0, flags=SC1)
    p.s("s_add_u32", st0, st0, 4096)
    p.bload(x1[4:8], eLin, rWS, soff=st0, flags=SC1)
    p.v("v_lshrrev_b32", vt_[1], 4, vl)
    p.v("v_lshlrev_b32", vt_[1], 4, vt_[1])
    p.s("s_lshl_b32", st0, sEcb, 8)
    p.s("s_add_u32", st0, st0, WS_MOD + 5 * 2048)
    for t in range(4):
        p.bload(gb[4 * t:4 * t + 4], vt_[1], rWS, soff=st0, off=64 * t, flags=SC1)
    for t in range(2):
        for x in rd_a(0, t):
            p.add(x)
    for n in range(9):
        q = Prog()
        m = n - 1 + E_NSLOT if ILV else n + E_NSLOT
        if m < 9 and m >= E_NSLOT:
            e_issue_w(q, m, m % 3, m // 3)
            e_issue_b(q, m, m % 3, m // 3)
        step(n, n == 0, q.ins, n < 8)
    T("e_main")
    p.s("s_cmp_lt_u32", eSet, 2)
    p.branch("s_cbranch_scc1", "E_four")
    p.s("s_cmp_eq_u32", eSet, 3)
    p.branch("s_cbranch_scc1", "E_red")
    n = 9
    p.s("s_sub_u32", sEact, sEact, 2 * 2 * 6144 - 28 * 6144)
    p.s("s_sub_u32", sEwd, sEwd, 2 * 96 * 1024 - 1344 * 1024)
    e_issue_w(p, n, 0, 0, rotated=False)
    e_issue_b(p, n, 0, 0, rotated=False)
    for t in range(2):
        for x in rd_a(n, t):
            p.add(x)
    step(n, False, [], False)
    p.branch("s_branch", "E_red")
    p.label("E_four")
    for n in range(9, 12):
        e_issue_w(p, n, n % 3, 3)
        e_issue_b(p, n, n % 3, 3)
    for t in range(2):
        for x in rd_a(9, t):
            p.add(x)
    for n in range(9, 12):
        step(n, False, [], n < 11)
    p.label("E_red")
    T("e_tail")
    p.wait(vm=0, lgkm=0)
    p.s("s_lshl_b32", st0, sw, 12)
    p.v("v_add_u32", vt_[0], st0, eLin)
    for qt in range(4):
        for t in range(4):
            p.ds_write("ds_write_b128", vt_[0], accr(t, qt), off=qt * 16384 + t * 1024)
    p.barrier()
    red = V(96, 64)
    p.s("s_lshl_b32", st0, sw, 14)
    p.v("v_add_u32", vt_[0], st0, eLin)
    for w in range(4):
        for t in range(4):
            p.ds_read("ds_read_b128", red[16 * w + 4 * t:16 * w + 4 * t + 4], vt_[0], off=w * 4096 + t * 1024)
    for k in range(8):
        p.v("v_pk_add_f32", red[2 * k:2 * k + 2], red[2 * k:2 * k + 2], red[16 + 2 * k:18 + 2 * k])
        p.v("v_pk_add_f32", red[32 + 2 * k:34 + 2 * k], red[32 + 2 * k:34 + 2 * k], red[48 + 2 * k:50 + 2 * k])
    for k in range(8):
        p.v("v_pk_add_f32", red[2 * k:2 * k + 2], red[2 * k:2 * k + 2], red[32 + 2 * k:34 + 2 * k])
    xf = V(184, 16)
    for j in range(2):
        for h in range(2):
            for i in range(2):
                src = x1[4 * j + 2 * h + i]
                k = 8 * j + 4 * h + 2 * i
                p.v("v_lshlrev_b32", xf[k], 16, src)
                p.v("v_and_b32", xf[k + 1], sHi, src)
    for k in range(16):
        p.v("v_fmac_f32", xf[k], red[k], gb[k])
    op = V(200, 8)
    for k in range(8):
        p.v("v_cvt_pk_bf16_f32", op[k], xf[2 * k], xf[2 * k + 1])
    p.v("v_and_b32", vt_[0], 15, vl)
    p.v("v_lshlrev_b32", vt_[0], 10, vt_[0])
    p.v("v_lshrrev_b32", vt_[1], 4, vl)
    p.v("v_lshlrev_b32", vt_[1], 3, vt_[1])
    p.v("v_add_u32", vt_[0], vt_[0], vt_[1])
    p.s("s_lshl_b32", st0, sErb, 6)
    p.s("s_lshl_b32", st1, sw, 4)
    p.s("s_add_u32", st0, st0, st1)
    p.s("s_lshl_b32", st0, st0, 10)
    p.s("s_lshl_b32", st1, sEcb, 7)
    p.s("s_add_u32", st0, st0, st1)
    for t in range(4):
        p.bstore(op[2 * t:2 * t + 2], vt_[0], rOut, soff=st0, off=32 * t, flags=SC1)


aTouch = A(240, 8)


CODE_LINES = 24


def code_prefetch(p):
    p.s("s_cmp_lg_u32", sw, 1)
    p.branch("s_cbranch_scc1", "M_no_codepf")
    sPC = S(92, 2)
    p.add(I(f"s_getpc_b64 {sPC}", "salu", units(sPC), ()))
    p.label("M_pc")
    p.add(I(f"s_sub_u32 {sPC[0]}, {sPC[0]}, M_pc-{KNAME}", "salu", units(sPC[0]), units(sPC[0])))
    p.add(I(f"s_subb_u32 {sPC[1]}, {sPC[1]}, 0", "salu", units(sPC[1]), units(sPC[1])))
    p.s("s_mul_i32", st[1], srb, CODE_LINES)
    p.v("v_min_u32", vt[0], CODE_LINES - 1, vl)
    p.v("v_add_u32", vt[0], st[1], vt[0])
    p.v("v_lshlrev_b32", vt[0], 6, vt[0])
    p.v("v_min_u32", vt[0], f"(B_end-{KNAME})", vt[0])
    p.add(I(f"global_load_dword {A(254)}, {vt[0]}, {sPC}", "vload", units(A(254)), units(vt[0], sPC)))
    p.label("M_no_codepf")


def get_tag(p):
    p.v("v_accvgpr_read_b32", V(62), aT)
    p.v("v_readfirstlane_b32", sTag, V(62))
    p.s("s_add_u32", sTag, sTag, 1)


sTch = S(69)


def bg_touch():
    q = Prog()
    q.bload(aTouch[0], vlin, rTMP, soff=sTch)
    q.s("s_add_u32", sTch, sTch, 1024)
    return q.ins


def bg_q_setup(p):
    p.s("s_cmp_lt_u32", srb, 16)
    for h in range(4):
        p.s("s_cselect_b32", rTMP[h], rK[h], rV[h])
    p.s("s_lshl_b32", sTch, srot, 13)


def bg_q(n):
    if n < 12 and n % 3 < 2:
        return {9: bg_touch()}
    return None


def bg_att_setup(p, ptr2):
    for k, name in enumerate(("wg", "wu", "wd")):
        for h in range(2):
            if k == 0:
                p.s("s_mov_b32", rTMP[h], ptr2[name][h])
            else:
                p.s("s_cmp_eq_u32", sw, k + 1)
                p.s("s_cselect_b32", rTMP[h], ptr2[name][h], rTMP[h])
    p.s("s_cmp_eq_u32", sw, 0)
    p.s("s_cselect_b32", rTMP[2], 0, SZ["wd"])
    p.s("s_mul_i32", sTch, S(2), 5504)


def bg_att(t):
    if t % 2 == 0 and t < 12:
        return {12: bg_touch()}
    return None


def touch_mlp_window(p, ptr2):
    p.s("s_cmp_lt_u32", S(2), N_MOD0 + N_MOD1)
    p.branch("s_cbranch_scc1", "M_no_win")
    p.s("s_cmp_eq_u32", sw, 0)
    p.branch("s_cbranch_scc1", "M_no_win")
    vo = vt[6]
    p.v("v_lshlrev_b32", vo, 6, vl)
    for k, name in enumerate(("wg", "wu", "wd")):
        for h in range(2):
            if k == 0:
                p.s("s_mov_b32", rTMP[h], ptr2[name][h])
            else:
                p.s("s_cmp_eq_u32", sw, k + 1)
                p.s("s_cselect_b32", rTMP[h], ptr2[name][h], rTMP[h])
    p.s("s_mov_b32", rTMP[2], SZ["wd"])
    p.s("s_mov_b32", rTMP[3], 0x20000)
    p.s("s_sub_u32", st[2], S(2), N_MOD0 + N_MOD1)
    p.s("s_lshl_b32", st[2], st[2], 12)
    for i in range(3):
        p.bload(aTouch[i], vo, rTMP, soff=st[2])
        if i < 2:
            p.s("s_add_u32", st[2], st[2], 160 * 4096)
    p.label("M_no_win")


def touch_all(p, ptr2):
    vo = vt[6]
    p.v("v_lshlrev_b32", vo, 6, vl)
    p.s("s_cmp_lt_u32", srb, 16)
    for h in range(4):
        p.s("s_cselect_b32", rTMP[h], rK[h], rV[h])
    p.s("s_lshl_b32", st[2], srot, 13)
    p.bload(aTouch[0], vo, rTMP, soff=st[2])
    p.s("s_add_u32", st[2], st[2], 4096)
    p.bload(aTouch[1], vo, rTMP, soff=st[2])
    for k, name in enumerate(("wg", "wu", "wd")):
        for h in range(2):
            if k == 0:
                p.s("s_mov_b32", rTMP[h], ptr2[name][h])
            else:
                p.s("s_cmp_eq_u32", sw, k + 1)
                p.s("s_cselect_b32", rTMP[h], ptr2[name][h], rTMP[h])
    p.s("s_mov_b32", rTMP[2], SZ["wd"])
    p.s("s_lshl_b32", st[2], S(2), 12)
    p.s("s_cmp_eq_u32", sw, 0)
    p.s("s_cselect_b32", st[2], SZ["wd"], st[2])
    p.bload(aTouch[3], vo, rTMP, soff=st[2])
    p.s("s_add_u32", st[2], st[2], 256 * 4096)
    p.bload(aTouch[4], vo, rTMP, soff=st[2])


def touch_streams(p, ptr2, all_waves=False):
    if all_waves:
        return touch_all(p, ptr2)
    p.s("s_cmp_eq_u32", sw, 0)
    p.branch("s_cbranch_scc1", "M_no_touch")
    vo = vt[6]
    p.v("v_lshlrev_b32", vo, 6, vl)
    p.s("s_cmp_lt_u32", srb, 16)
    p.s("s_cselect_b32", rTMP[0], ptr2["k"][0], ptr2["v"][0])
    p.s("s_cselect_b32", rTMP[1], ptr2["k"][1], ptr2["v"][1])
    p.s("s_lshl_b32", st[1], shg, 21)
    p.s("s_add_u32", st[1], st[1], 1536 * 256)
    p.s("s_add_u32", rTMP[0], rTMP[0], st[1])
    p.s("s_addc_u32", rTMP[1], rTMP[1], 0)
    p.s("s_mov_b32", rTMP[2], 4 << 19)
    p.s("s_mov_b32", rTMP[3], 0x20000)
    p.s("s_lshl_b32", st[2], srot, 13)
    for m in range(3 if KVTOUCH else 0):
        p.s("s_add_u32", st[1], sw, 3 * m - 1)
        p.s("s_lshr_b32", st[3], st[1], 1)
        p.s("s_lshl_b32", st[3], st[3], 19)
        p.s("s_and_b32", st[1], st[1], 1)
        p.s("s_lshl_b32", st[1], st[1], 12)
        p.s("s_add_u32", st[1], st[1], st[3])
        p.s("s_add_u32", st[1], st[1], st[2])
        p.bload(aTouch[m], vo, rTMP, soff=st[1])
    if MLPTOUCH == "wd":
        p.s("s_cmp_lg_u32", sw, 3)
        p.branch("s_cbranch_scc1", "M_no_touch")
    for k, name in enumerate(("wg", "wu", "wd")):
        for h in range(2):
            if k == 0:
                p.s("s_mov_b32", rTMP[h], ptr2[name][h])
            else:
                p.s("s_cmp_eq_u32", sw, k + 1)
                p.s("s_cselect_b32", rTMP[h], ptr2[name][h], rTMP[h])
    p.s("s_mov_b32", rTMP[2], SZ["wd"])
    p.s("s_lshl_b32", st[2], S(2), 12)
    p.bload(aTouch[3], vo, rTMP, soff=st[2])
    p.s("s_add_u32", st[2], st[2], 256 * 4096)
    p.bload(aTouch[4], vo, rTMP, soff=st[2])
    p.label("M_no_touch")


def touch_d_weights(p):
    p.s("s_cmp_eq_u32", sw, 0)
    p.branch("s_cbranch_scc1", "M_no_touch_d")
    p.s("s_cmp_eq_u32", sDact, 0)
    p.branch("s_cbranch_scc1", "M_no_touch_d")
    vo = V(170)
    p.v("v_lshrrev_b32", V(171), 1, vl)
    p.s("s_mov_b32", st[0], ROWB)
    p.v("v_mul_lo_u32", V(171), V(171), st[0])
    p.v("v_and_b32", vo, 1, vl)
    p.v("v_lshlrev_b32", vo, 6, vo)
    p.v("v_add_u32", vo, vo, V(171))
    p.s("s_and_b32", st[0], srb, 3)
    p.s("s_mul_i32", st[0], st[0], 128 * ROWB)
    p.s("s_mul_i32", st[1], sDcg, 96)
    p.s("s_add_u32", st[0], st[0], st[1])
    p.s("s_sub_u32", st[1], sw, 1)
    p.s("s_mul_i32", st[1], st[1], 32 * ROWB)
    p.s("s_add_u32", st[1], st[1], st[0])
    p.bload(aTouch[0], vo, rG, soff=st[1])
    p.bload(aTouch[1], vo, rU, soff=st[1])
    p.s("s_add_u32", st[1], st[0], 3 * 32 * ROWB)
    p.s("s_cmp_eq_u32", sw, 3)
    p.s("s_cselect_b32", st[1], st[1], SZ["wg"])
    p.bload(aTouch[2], vo, rG, soff=st[1])
    p.bload(aTouch[3], vo, rU, soff=st[1])
    p.label("M_no_touch_d")


DBGSTAMPS = ["rt0", "ln", "h_ready", "q_done", "att_loop", "o_done", "r_go", "r_done", "d_go", "d_mma", "e_go", "e_main", "rt1"]
DBGWG = 128


def gen_mega(diag=False):
    p = Prog()
    T = Stamps(p, diag, vreg=V(0), early=0, only=DBGSTAMPS if diag == "dbg" else None)
    p.s("s_cmp_ge_u32", S(2), 256)
    p.branch("s_cbranch_scc1", "B_end")
    p.v("v_mov_b32", vtid2, V(0))
    T("rt0", True)
    T("start")
    ptr = {k: S(52 + 2 * i, 2) for i, k in enumerate(["x", "ws", "dbg", "wmod", "c", "wq"])}
    for k in ptr:
        p.s_load(ptr[k], S(0, 2), ARG[k])
    p.v("v_lshrrev_b32", vt[0], 6, vtid2)
    p.v("v_and_b32", vl, 63, vtid2)
    p.v("v_readfirstlane_b32", sw, vt[0])
    p.s("s_and_b32", shg, S(2), 7)
    p.s("s_lshr_b32", srb, S(2), 3)
    p.s("s_and_b32", srot, srb, 15)
    p.s("s_lshl_b32", shead, shg, 2)
    p.s("s_mov_b32", sHi, 0xFFFF0000)
    vq, vg = vtmp[0], vtmp[1]
    p.v("v_and_b32", vq, 15, vl)
    p.v("v_lshrrev_b32", vg, 4, vl)
    p.v("v_lshlrev_b32", vlin, 4, vl)
    p.v("v_mov_b32", vpoll, 0)
    p.s("s_add_u32", shead, shead, sw)
    p.s("s_mul_i32", sMW, sw, WRING)
    p.s("s_lshl_b32", sMS, sw, 14)
    p.s("s_add_u32", sMS, sMS, SH)
    vxo = vtmp[2]
    p.s("s_lshl_b32", st[0], srb, 6)
    p.s("s_lshl_b32", st[1], sw, 4)
    p.s("s_add_u32", st[0], st[0], st[1])
    p.v("v_add_u32", vxo, st[0], vq)
    p.v("v_lshlrev_b32", vxo, 10, vxo)
    p.v("v_lshl_add_u32", vxo, vg, 4, vxo)
    p.wait(lgkm=0)
    srd(p, rX, ptr["x"], SZ["x"])
    srd(p, rWS, ptr["ws"], WS_DIAG_END if diag == "diag" else WS_END)
    srd(p, rDBG, ptr["dbg"], 256)
    srd(p, rWQ, ptr["wq"], SZ["wq"])
    ptr2 = {k: S(64 + 12 + 2 * i, 2) for i, k in enumerate(["k", "v", "wo", "wg", "wu", "wd", "out"])}
    for k in ptr2:
        p.s_load(ptr2[k], S(0, 2), ARG[k])
    p.s("s_mov_b32", st[0], WS_EPOCH)
    p.bload(aT, vpoll, rWS, soff=st[0], flags=SC1)
    if CODEPF:
        code_prefetch(p)
    srd(p, rTMP, ptr["wmod"], SZ["wmod"])
    srd(p, rTMP2, ptr["c"], SZ["c"])
    slab_map(p)
    if SLABW:
        p.s("s_cmp_lt_u32", S(2), N_MOD0)
        p.s("s_cselect_b32", st[3], 0, 3)
        p.s("s_cmp_lg_u32", sw, st[3])
        p.branch("s_cbranch_scc1", "M_no_slab")
        p.s("s_cmp_ge_u32", S(2), N_MOD0 + N_MOD1)
        p.branch("s_cbranch_scc1", "M_no_slab")
        slabw_issue(p, S(2))
    else:
        p.s("s_cmp_ge_u32", sSlab, N_MOD0 + N_MOD1 if SLAB1EARLY else N_MOD0)
        p.branch("s_cbranch_scc1", "M_no_slab")
        slab_issue(p, sSlab)
    p.label("M_no_slab")
    T("s_iss")
    p.wait(lgkm=0)
    bc_setup(p, ptr2)
    if NOMEM:
        for r_ in (rK, rV, rWO, rWQ):
            p.s("s_mov_b32", r_[2], 0)
    vone, vz = vtmp[4:8], vtmp[8:12]
    dma_voffs(p, vdQ, 8192, "n8", 8)
    p.s("s_lshl_b32", sA, srot, 18)
    p.s("s_lshl_b32", st[1], shead, 8)
    p.s("s_add_u32", sA, sA, st[1])
    vX = V(64, 64)
    sX = S(91)

    def x_loads(lo, hi):
        for n in range(lo, hi):
            p.bload(vX[4 * n:4 * n + 4], vxo, rX, soff=sX)
            if n < 15:
                p.s("s_add_u32", sX, sX, 64)
                p.s("s_and_b32", sX, sX, 0x3FF)

    p.s("s_lshl_b32", sX, srot, 6)
    p.s("s_cmp_ge_u32", sSlab, N_MOD0)
    p.branch("s_cbranch_scc1", "M_no_slab_f")
    if SLABW:
        p.s("s_cmp_lg_u32", sw, 0)
        p.branch("s_cbranch_scc1", "M_no_slab_f")
        slabw_finish(p, T, S(2), "slab0")
    else:
        slab_finish(p, T, sSlab, "slab0")
        p.barrier()
    p.label("M_no_slab_f")
    x_loads(0, 16)
    if TOUCH == "early":
        p.s("s_cmp_lt_u32", S(2), N_MOD0 + N_MOD1)
        p.branch("s_cbranch_scc1", "M_skip_touch")
        touch_streams(p, ptr2)
        p.label("M_skip_touch")
    T("issued")
    if not SLAB1EARLY and not SLABW:
        p.s("s_sub_u32", st[5], sSlab, N_MOD0)
        p.s("s_cmp_ge_u32", st[5], N_MOD1)
        p.branch("s_cbranch_scc1", "M_no_slab1i")
        slab_issue(p, sSlab)
        p.label("M_no_slab1i")
    dma_now(p, "wq", 0)
    T("setup")

    gram, rsum = vtmp[12:16], A(232, 4)
    for n in range(16):
        xs = vX[4 * n:4 * n + 4]
        p.mfma16(gram, xs, xs, gram if n else 0)
        p.mfma16(rsum, vone, xs, rsum if n else 0)
    rs0 = vt[6]
    p.v("v_accvgpr_read_b32", rs0, rsum[0])
    mu, rs2, nm2 = vt[7], V(50, 2), V(52, 2)
    row_stats(p, gram, [rs0], vq, vg, mu, rs2[0], nm2[0], vt[0], vt[1])
    p.v("v_mov_b32", rs2[1], rs2[0])
    p.v("v_mov_b32", nm2[1], nm2[0])
    vY = V(128, 128)
    for n in range(16):
        xs = vX[4 * n:4 * n + 4]
        y = vY[8 * n:8 * n + 8]
        for i in range(4):
            p.v("v_lshlrev_b32", y[2 * i], 16, xs[i])
            p.v("v_and_b32", y[2 * i + 1], sHi, xs[i])
        for i in range(4):
            p.v("v_pk_fma_f32", y[2 * i:2 * i + 2], y[2 * i:2 * i + 2], rs2, nm2)
    T("ln")
    p.s("s_sub_u32", st[5], sSlab, N_MOD0)
    p.s("s_cmp_ge_u32", st[5], N_MOD1)
    p.branch("s_cbranch_scc1", "M_no_slab1")
    if SLABW:
        p.s("s_cmp_lg_u32", sw, 3)
        p.branch("s_cbranch_scc1", "M_no_slab1")
        slabw_finish(p, T, S(2), "slab1")
    else:
        slab_finish(p, T, sSlab, "slab1")
    p.label("M_no_slab1")
    vts = vt[5]
    p.s("s_lshl_b32", st[1], sw, 2)
    p.s("s_add_u32", st[1], st[1], srot)
    p.v("v_add_u32", vt[0], st[1], vg)
    p.v("v_and_b32", vt[0], 15, vt[0])
    p.v("v_lshlrev_b32", vt[0], 8, vt[0])
    p.v("v_lshrrev_b32", vt[1], 3, vq)
    p.v("v_lshl_add_u32", vt[0], vt[1], 12, vt[0])
    p.v("v_and_b32", vt[1], 7, vq)
    p.v("v_lshl_add_u32", vts, vt[1], 5, vt[0])
    if TOUCH in ("midq", "win", "bg"):
        dma_now(p, "wq", 1)
    if TOUCH == "win":
        touch_mlp_window(p, ptr2)
    get_tag(p)
    g8 = V(64, 8)
    p.s("s_mov_b32", sp1, 0)
    p.s("s_mov_b32", st[1], WS_MODG)
    p.label("P_modg")
    p.bload(g8[0:4], vts, rWS, soff=st[1], flags=SC1)
    p.bload(g8[4:8], vts, rWS, soff=st[1], off=16, flags=SC1)
    p.v("v_cmp_eq_u32", VCC, sTag, g8[1])
    p.s("s_mov_b64", sexec, VCC)
    for k in (3, 5, 7):
        p.v("v_cmp_eq_u32", VCC, sTag, g8[k])
        p.s("s_and_b64", sexec, sexec, VCC)
    p.add(I(f"s_cmp_eq_u64 {sexec}, exec", "salu", (), units(sexec)))
    p.branch("s_cbranch_scc1", "P_modg_done")
    p.s("s_add_u32", sp1, sp1, 1)
    p.s("s_cmp_lt_u32", sp1, 0x40000)
    p.raw(f"s_sleep {POLLSLEEP}") if POLLSLEEP else p.nop(0)
    p.add(I("s_cbranch_scc1 P_modg", "salu"))
    p.label("P_modg_done")
    T("mod0")
    if TOUCH == "v1":
        dma_now(p, "wq", 1)
        touch_streams(p, ptr2)
    p.v("v_mov_b32", g8[1], g8[2])
    p.v("v_mov_b32", g8[2], g8[4])
    p.v("v_mov_b32", g8[3], g8[6])
    p.s("s_lshl_b32", st[1], sw, 10)
    p.s("s_add_u32", st[1], st[1], TAB)
    p.v("v_add_u32", vt[4], st[1], vlin)
    p.ds_write("ds_write_b128", vt[4], g8[0:4])
    vtab, vhw = vt[2], vt[3]
    p.v("v_lshlrev_b32", vtab, 5, vg)
    p.v("v_add_u32", vtab, TAB, vtab)
    p.s("s_lshl_b32", st[1], sw, 10)
    p.s("s_add_u32", st[1], st[1], SH)
    p.v("v_add_u32", vhw, st[1], vlin)
    p.barrier()
    T("tab")
    if TOUCH not in ("v1", "midq", "win", "bg"):
        dma_now(p, "wq", 1)
    if TOUCH == "aftertab":
        touch_streams(p, ptr2)

    def rd_tab(n):
        tb = V(64 + 16 * (n % 3), 16)
        for i, o in enumerate((0, 16, 128, 144)):
            p.ds_read("ds_read_b128", tb[4 * i:4 * i + 4], vtab, off=n * 256 + o)

    rd_tab(0)
    rd_tab(1)
    for n in range(16):
        tb = V(64 + 16 * (n % 3), 16)
        y = vY[8 * n:8 * n + 8]
        o4 = V(112 + 4 * (n & 3), 4)
        if n + 2 < 16:
            rd_tab(n + 2)
        for i in range(4):
            p.v("v_pk_fma_f32", y[2 * i:2 * i + 2], y[2 * i:2 * i + 2], tb[8 + 2 * i:10 + 2 * i], tb[2 * i:2 * i + 2])
        for i in range(4):
            p.v("v_cvt_pk_bf16_f32", o4[i], y[2 * i], y[2 * i + 1])
        p.ds_write("ds_write_b128", vhw, o4, off=n * 4096)
        if n == 7:
            T("h_half")
    T("h_tr")
    for i in range(8):
        zero16(p, vACC[16 * i:16 * i + 16], vz)
    if TOUCH == "bg":
        bg_q_setup(p)
    T("h_zero")
    p.barrier()
    T("h_ready")

    bc_main(p, T, store_flags=SC1, at_q_done=late_signals, before_norm=early_sample,
            o2_hooks=o2_hooks() if TWOPASS else None,
            mid_q={1: lambda q: touch_streams(q, ptr2, all_waves=True)} if TOUCH == "midq" else None,
            bg_q=bg_q if TOUCH == "bg" else None, bg_att=bg_att if TOUCH == "bg" else None,
            before_att=(lambda q: bg_att_setup(q, ptr2)) if TOUCH == "bg" else None)
    T("o_done")

    ptr3 = ptr2
    srd(p, rG, ptr3["wg"], SZ["wg"])
    srd(p, rU, ptr3["wu"], SZ["wu"])
    srd(p, rD, ptr3["wd"], SZ["wd"])
    srd(p, rOut, ptr3["out"], SZ["out"])
    d_ids(p)
    if not TWOPASS:
        r_addr(p)
        check_mod1(p)
        r_side_loads(p)
        r_mod_loads(p, (2,))
    signal(p, F_PART, S(2), "part", pre=confirm_early, T=T)
    T("part_sig")
    if EARLYW:
        p.s("s_cmp_eq_u32", sDact, 0)
        p.branch("s_cbranch_scc1", "M_no_dw_early")
        d_weights(p, drain=False)
        p.label("M_no_dw_early")
    if TWOPASS:
        r_mod_loads(p, (2,))
        r_sum(p, 0)
        T("r_sum0")
    p.s("s_lshl_b32", st[5], srb, 3)
    poll_flags(p, F_PART, st[5], 8, "part")
    T("r_go")
    if not TWOPASS:
        r_partial_loads(p, 0)
    r_partial_loads(p, 1)
    if not TWOPASS:
        r_sum(p, 0)
    r_sum(p, 1)
    T("r_sum")
    phase_r_compute(p, T)
    signal(p, F_H2, S(2), "h2")
    T("r_done")
    e_setup(p)

    def e_prefetch():
        for n in range(E_NSLOT):
            e_issue_w(p, n, n % 3, n // 3)

    p.s("s_cmp_eq_u32", sDact, 0)
    p.branch("s_cbranch_scc1", "M_no_d")
    phase_d(p, T, e_prefetch)
    if EARLYW:
        p.branch("s_branch", "M_e")
        p.label("M_no_d")
        e_early(p, "n")
        p.wait(vm=0)
        p.label("M_e")
    else:
        p.label("M_no_d")
        e_prefetch()
    T("d_done")
    phase_e(p, T)
    T("e_done")
    if diag:
        p.wait(vm=0)
    T("rt1", True)
    if diag == "dbg":
        p.s("s_cmp_lg_u32", S(2), DBGWG)
        p.branch("s_cbranch_scc1", "M_dbg_done")
        p.s("s_cmp_lg_u32", sw, 0)
        p.branch("s_cbranch_scc1", "M_dbg_done")
        p.v("v_readlane_b32", S(100), V(0), 0)
        p.v("v_subrev_u32", V(0), S(100), V(0))
        p.v("v_mbcnt_lo_u32_b32", vt[1], -1, 0)
        p.v("v_mbcnt_hi_u32_b32", vt[1], -1, vt[1])
        p.v("v_lshlrev_b32", vt[1], 2, vt[1])
        p.v("v_add_u32", vt[1], 12, vt[1])
        p.s("s_mov_b64", EXEC, 0x1FFE)
        p.bstore(V(0), vt[1], rDBG, soff=0)
        p.s("s_mov_b64", EXEC, -1)
        p.label("M_dbg_done")
    else:
        T.flush(rWS, sw, 1, vt[0], vt[1])
    gen_mega.stamp_names = T.names
    p.branch("s_branch", "B_end")
    slow_attention(p)
    p.label("B_end")
    resolve_ovw(p.ins)
    return finalize(p, {"gq": sLoop, "ga": sLoop, "go": sLoop, "gd": sLoop}, verbose=4, name="MEGA")


DESCRIPTION = """;
;   2. Q projection, attention over the 512-key window, output projection partial [64 x 512] (bf16, write-through)
; Hand-offs between workgroups: sc1 stores, drained, then a flag (or {value, tag} granules); sc1 loads after the poll.
;
"""


def assemble_mega(diag=False):
    from build import HEAD
    body = gen_mega(diag)
    s = HEAD + DESCRIPTION + f"; @launch grid=(256,1,1) block=(256,1,1) lds={M_LDS}\n"
    s += '.amdgcn_target "amdgcn-amd-amdhsa--gfx950"\n'
    s += kernel_text(KNAME, body, 512, 256)
    return s


if __name__ == "__main__":
    import sys
    diag = len(sys.argv) > 2 and sys.argv[2] in ("diag", "dbg") and sys.argv[2]
    for a in sys.argv[3:]:
        k, v = a.split("=")
        globals()[k] = int(v) if v.isdigit() else v
        if k == "EXP":
            kb2.EXP = v
        if k == "DMAC":
            kb2.DMA_COST = int(v)
        if k == "TRIM":
            kb2.TRIM = int(v)
        if k == "QNAT":
            kb2.QNAT = int(v)
        if k == "NEWS":
            kb2.NEWS = int(v)
        if k == "DIST":
            kb2.DIST = int(v)
        if k == "ALIGN":
            import asmlib
            asmlib.ALIGN_LOOPS = int(v)
    txt = assemble_mega(diag)
    open(sys.argv[1], "w").write(txt)
    print("wrote", sys.argv[1], len(txt))
    if diag:
        print(",".join(gen_mega.stamp_names))
```

```python
from asmlib import *
from layout import *
from ka import srd

SLOT = 8192
WRING = 3 * SLOT
SH = 4 * WRING
B_LDS = SH + 65536
TAB = 2 * SLOT
LIMIT = float(2 ** 40)

vtid, vl = V(0), V(1)
vdQ, vdK, vdV = V(2, 8), V(10, 8), V(18, 4)
vtr, vK, vB, vlin = V(22, 8), V(30, 4), V(34), V(35)
vt = V(36, 8)
vtrP = V(44)
vtmp = V(46, 18)
vQ = V(64, 64)
vACC = V(128, 128)
vS = [V(128, 32), V(160, 32)]
vP = V(192, 16)
vNM = V(208, 16)
vW = V(224, 32)
aO, aL, aONE = A(0, 128), A(128, 16), A(144, 4)
aA, aK, aB = A(148, 16), A(164, 16), A(180, 48)
rWQ, rK, rV, rWO, rWS, rX = S(4, 4), S(8, 4), S(12, 4), S(16, 4), S(20, 4), S(24, 4)
sw, shg, srb, shead, srot = S(28), S(29), S(30), S(31), S(32)
sMW, sMS = S(33), S(34)
sA, sK, sV = S(35), S(36), S(37)
sLoop = S(38)
st = S(39, 6)
sPart = S(45)
sHi = S(46)
sexec = S(48, 2)


def acc(t, qt):
    return vACC[16 * t + 4 * qt:16 * t + 4 * qt + 4]


def oacc(dt, qt):
    return aO[16 * dt + 4 * qt:16 * dt + 4 * qt + 4]


def sreg(buf, kt, qt):
    return vS[buf][16 * kt + 4 * qt:16 * kt + 4 * qt + 4]


def afrag(i):
    return aA[4 * (i % 4):4 * (i % 4) + 4]


DIST = 2
aK8, aV8 = A(148, 32), A(180, 32)


def kfrag(i):
    if DIST == 4:
        return aK8[4 * (i % 8):4 * (i % 8) + 4]
    return aK[4 * (i % 4):4 * (i % 4) + 4]


def vfrag(i):
    if DIST == 4:
        return aV8[4 * (i % 8):4 * (i % 8) + 4]
    return afrag(i)


def bfrag(n, qt):
    o = 16 * (n % 3) + 4 * qt
    return aB[o:o + 4]


def qfrag(qt, s_):
    return vQ[16 * qt + 4 * s_:16 * qt + 4 * s_ + 4]


def dma_voffs(p, dst, stride, swz, n):
    p.v("v_lshrrev_b32", vt[0], 4, vl)
    p.v("v_and_b32", vt[1], 15, vl)
    p.s("s_mov_b32", st[0], stride)
    p.v("v_mul_lo_u32", vt[2], vt[0], st[0])
    npat = {"tr": 2, "n8": 4, "k": 4}[swz]
    for j in range(min(n, npat)):
        if swz == "tr":
            p.v("v_add_u32", vt[3], 4 * (j & 1), vt[0])
            p.v("v_lshlrev_b32", vt[3], 1, vt[3])
        elif swz == "n8":
            p.v("v_add_u32", vt[3], 4 * ((j >> 1) & 1), vt[0])
            p.v("v_lshlrev_b32", vt[3], 1, vt[3])
        else:
            p.v("v_add_u32", vt[3], 4 * (j & 3), vt[0])
        p.v("v_xor_b32", vt[3], vt[3], vt[1])
        p.v("v_lshlrev_b32", vt[3], 4, vt[3])
        p.v("v_add_u32", vt[4 + j], vt[3], vt[2])
    for j in range(n):
        k = 4 * j * stride - 1024 * (j & 3)
        src = vt[4 + j % npat]
        if k:
            p.v("v_add_u32", dst[j], k, src)
        else:
            p.v("v_mov_b32", dst[j], src)


KIND = {
    "wq": (rWQ, vdQ, sA, 32 * 8192, 0x3FFFFF),
    "wo": (rWO, vdQ, sA, 32 * 1024, 0x7FFFF),
    "wo2": (rWO, vdQ, sA, 64 * 1024, 0x7FFFF),
    "k": (rK, vdK, sK, SLOT, 0x1FFFF),
    "v": (rV, vdV, sV, SLOT, 0x1FFFF),
}


def ring_pos(kind, n):
    if kind in ("wq", "wo", "wo2"):
        return ("W", n % 3)
    if kind == "k":
        return ("W", 1 + (n & 1))
    return ("V", n & 1)


def dma_piece(kind, n, j):
    srd_, voffs, so, step, mask = KIND[kind]
    ring, pos = ring_pos(kind, n)
    q = Prog()
    pre = []
    if (j & 3) == 0:
        q.s("s_add_u32", M0, sMW if ring == "W" else sMS, pos * SLOT + (j >> 2) * 4096)
        pre, q.ins = q.ins, []
    voff = voffs[j] if kind != "v" else voffs[(j & 1) + 2 * (j >> 2)]
    x = q.dma(voff, srd_, so, off=1024 * (j & 3), tag=(kind, n))
    x.meta["into"] = (ring, pos)
    if j == 7:
        q.s("s_add_u32", so, so, step)
        q.s("s_and_b32", so, so, mask)
        if kind == "wo2" and n == 7:
            q.s("s_add_u32", so, so, 128)
    return pre, q.ins


def dma_piece3(kind, n, j):
    pre, main = dma_piece(kind, n, j)
    return pre, main[:1], main[1:]


def put_dma_alone(sc, kind, n, gaps, post_gaps):
    if "nodma" in EXP:
        return
    for j in range(8):
        pre, d, post = dma_piece3(kind, n, j)
        sc.fixed(gaps[j] - 1, pre)
        sc.fixed(gaps[j], d)
        for x, g in zip(post, post_gaps):
            sc.fixed(g, [x])


def dma_now(p, kind, n):
    for j in range(8):
        pre, main = dma_piece(kind, n, j)
        for x in pre:
            p.add(x)
        if pre:
            p.nop(0)
        for x in main:
            p.add(x)


def rd_tr(kind, n, t, dst):
    q = Prog()
    ring, pos = ring_pos(kind, n)
    second = 1024 if kind == "wq" else 4096
    for h in range(2):
        i = q.ds_read("ds_read_b64_tr_b16", dst[2 * h:2 * h + 2], vtr[t], off=pos * SLOT + second * h, dep=(kind, n))
        i.meta["from"] = (ring, pos)
    return q.ins


def rd_k(n, f, dst):
    q = Prog()
    kt, s_ = f >> 2, f & 3
    ring, pos = ring_pos("k", n)
    i = q.ds_read("ds_read_b128", dst, vK[s_], off=pos * SLOT + kt * 4096, dep=("k", n))
    i.meta["from"] = (ring, pos)
    return q.ins


def rd_b(n, qt, base_step):
    q = Prog()
    q.ds_read("ds_read_b128", bfrag(n, qt), vB, off=(n - base_step) * 4096 + qt * 1024)
    return q.ins


def resolve_ovw(ins):
    last = {}
    for x in ins:
        if x.kind == "ds_read" and "from" in x.meta:
            last[x.meta["from"]] = x.dep
        elif x.kind == "dma" and "into" in x.meta:
            x.ovw = last.get(x.meta["into"])


DMA_COST = 4
NEWS = 1
NEWS_XD, NEWS_XP = [3, 6, 11, 14, 19, 22, 26 + 2, 30], [31, 31]
NEWS_YD, NEWS_YP = [2, 8, 14, 16, 22, 24, 30, 32], [33, 34]


def cost(x):
    if x.kind == "trans":
        return 8
    if x.kind == "dma":
        return DMA_COST
    if x.kind in ("comment", "label", "need"):
        return 0
    return 4


class Sched:
    def __init__(self, mf):
        self.mf = mf
        n = len(mf)
        self.mem = [[] for _ in range(n)]
        self.oth = [[] for _ in range(n)]
        self.res = [0] * n

    def fixed(self, g, ins):
        g = max(0, min(g, len(self.mf) - 1))
        for x in ins:
            (self.mem if x.kind in ("ds_read", "dma", "vstore", "ds_write", "vload") else self.oth)[g].append(x)

    def reserve(self, g, c=4):
        if 0 <= g < len(self.mf):
            self.res[g] += c

    def used(self, g):
        return sum(map(cost, self.mem[g] + self.oth[g])) + self.res[g]

    def flow(self, seq, first=0, last=None, budget=8):
        n = len(self.mf) if last is None else last + 1
        rem = sum(cost(x) for x, _ in seq)
        i = 0
        for g in range(first, n):
            cap_after = sum(max(0, budget - self.used(h)) for h in range(g + 1, n))
            while i < len(seq) and seq[i][1] <= g:
                c = cost(seq[i][0])
                u = self.used(g)
                if u + c <= budget or (rem > cap_after and u + c <= budget + 4) or g == n - 1:
                    self.oth[g].append(seq[i][0])
                    rem -= c
                    i += 1
                else:
                    break
        assert i == len(seq), "unplaced fillers"

    def pack(self, exps, cvts, first=0, last=None):
        n = len(self.mf) if last is None else last + 1
        ei = ci = 0
        for g in range(first, n):
            done = ei
            while True:
                u = self.used(g)
                e_ok = ei < len(exps) and exps[ei][1] <= g
                c_ok = ci < len(cvts) and cvts[ci][1] <= done
                free8 = sum(1 for h in range(g + 1, n) if self.used(h) == 0)
                free4 = sum(max(0, 8 - self.used(h)) // 4 for h in range(g + 1, n))
                need8 = len(exps) - ei
                need4 = len(cvts) - ci
                behind = need8 * 2 + need4 > free4 or need8 > free8
                lastg = g == n - 1
                if e_ok and (u == 0 or lastg or (behind and u <= 4 and not (c_ok and u == 4))):
                    self.oth[g].append(exps[ei][0])
                    ei += 1
                elif c_ok and (u + 4 <= 8 or lastg or (behind and u <= 8 and need8 * 2 + need4 > free4 + 1)):
                    self.oth[g].append(cvts[ci][0])
                    ci += 1
                else:
                    break
        while ei < len(exps):
            self.oth[n - 1].append(exps[ei][0])
            ei += 1
        while ci < len(cvts):
            self.oth[n - 1].append(cvts[ci][0])
            ci += 1

    def profile(self):
        return [self.used(g) for g in range(len(self.mf))]

    def emit(self, p):
        for g, m in enumerate(self.mf):
            m()
            for x in self.mem[g] + self.oth[g]:
                p.add(x)


EXP = ""


def put_dma(sc, kind, n, gaps):
    if "nodma" in EXP:
        return
    for j in range(8):
        pre, main = dma_piece(kind, n, j)
        sc.fixed(gaps[j] - 1, pre)
        sc.fixed(gaps[j], main)


def gemm_step(p, kind, n, nxt, base_step, first, last, extra=None, tail=None):
    mf = []
    for t in range(8):
        for qt in range(4):
            def m(t=t, qt=qt):
                x = p.mfma16(acc(t, qt), afrag(t), bfrag(n, qt), acc(t, qt) if not first else 0)
                if qt == 0 and t % 2 == 0:
                    also(x, afrag(t + 1))
                if qt == 0 and t == 0:
                    also(x, [bfrag(n, k) for k in range(4)])
            mf.append(m)
    sc = Sched(mf)
    if NEWS:
        for t in range(0, 8, 2):
            g = 4 * t
            for k in range(2):
                tn, nn = (t + 2 + k) % 8, n + (t + 2 + k) // 8
                if not (last and nn > n) and "noa" not in EXP:
                    r = rd_tr(kind, nn, tn, afrag(t + 2 + k))
                    sc.fixed(g + 3 * k, r[:1])
                    sc.fixed(g + 3 * k + 1, r[1:])
            if not last and "nob" not in EXP:
                sc.fixed(g + (5 if t < 6 else 6), rd_b(n + 1, t // 2, base_step))
        if nxt is not None:
            put_dma_alone(sc, nxt[0], nxt[1], [2, 6, 10, 14, 18, 22, 26, 29], [30, 31, 31])
        if extra:
            for g, ins in extra.items():
                sc.fixed(g, ins)
        if tail:
            sc.flow(tail, budget=12)
        sc.emit(p)
        return
    for t in range(0, 8, 2):
        g = 4 * t
        for k in range(2):
            tn, nn = (t + 2 + k) % 8, n + (t + 2 + k) // 8
            if not (last and nn > n) and "noa" not in EXP:
                r = rd_tr(kind, nn, tn, afrag(t + 2 + k))
                sc.fixed(g + 2 * k, r[:1])
                sc.fixed(g + 2 * k + 1, r[1:])
        sc.reserve(g + 7)
        if not last and "nob" not in EXP:
            sc.fixed(g + 5, rd_b(n + 1, t // 2, base_step))
    if nxt is not None:
        put_dma(sc, nxt[0], nxt[1], [4 * t + (4 if t % 2 == 0 else 2) for t in range(8)])
    if extra:
        for g, ins in extra.items():
            sc.fixed(g, ins)
    if tail:
        sc.flow(tail, budget=12)
    if PROFILE:
        print("G", n, sc.profile())
    sc.emit(p)


def gemm_stage(p, kind, nxt_of, extra_of=None, group="gq", zeroed=False, tail=None, after_iter=None):
    for qt in range(4):
        for x in rd_b(0, qt, 0):
            p.add(x)
    for t in range(2):
        for x in rd_tr(kind, 0, t, afrag(t)):
            p.add(x)
    if not zeroed and OROLL:
        gemm_step(p, kind, 0, nxt_of(0), 0, True, False, extra_of(0) if extra_of else None, None)
        for it in range(5):
            mark(p, group, it)
            for n in range(3 * it + 1, 3 * it + 4):
                gemm_step(p, kind, n, nxt_of(n), 3 * it, False, n == 15,
                          extra_of(n) if extra_of else None, tail if n == 15 else None)
            if it < 4:
                p.v("v_add_u32", vB, 3 * 4096, vB)
            loop_dec(p)
            loop_branch(p)
        mark(p, group, None)
        p.v("v_subrev_u32", vB, 12 * 4096, vB)
        return
    for it in range(6):
        mark(p, group, it)
        for n in range(3 * it, min(3 * it + 3, 16)):
            gemm_step(p, kind, n, nxt_of(n), 3 * it, n == 0 and not zeroed, n == 15,
                      extra_of(n) if extra_of else None, tail if n == 15 else None)
        if it < 5:
            p.v("v_add_u32", vB, 3 * 4096, vB)
        loop_dec(p)
        loop_branch(p)
        if after_iter and it in after_iter:
            mark(p, group, None)
            after_iter[it](p)
    mark(p, group, None) if not (after_iter and 5 in after_iter) else None
    p.v("v_subrev_u32", vB, 15 * 4096, vB)


def exp_list(buf, start, stop):
    q = Prog()
    order = [(qt, kt, r) for qt in range(4) for kt in range(2) for r in range(4)]
    for qt, kt, r in order[start:stop]:
        x = sreg(buf, kt, qt)[r]
        q.v("v_exp_f32", x, x)
    return q.ins


def cvt_list(buf):
    q = Prog()
    for qt in range(4):
        for kt in range(2):
            s_ = sreg(buf, kt, qt)
            for i in range(2):
                q.v("v_cvt_pk_bf16_f32", vP[4 * qt + 2 * kt + i], s_[2 * i], s_[2 * i + 1])
    return q.ins


N1 = 20


def x_tail_seq(cur):
    ex = exp_list(cur, N1, 32)
    cv = cvt_list(cur)
    return cv[0:4] + ex[0:2] + cv[4:8] + ex[2:4] + cv[8:10] + ex[4:8] + cv[10:12] + ex[8:12] + cv[12:16]


def also(x, regs):
    x.r |= set(units(regs))


def phase_x(p, t, first=False, dma=None, extra=None, late_dma=None):
    buf = (t + 1) & 1
    mf = []
    for f in range(8):
        kt, s_ = f >> 2, f & 3
        for qt in range(4):
            def m(kt=kt, s_=s_, qt=qt, f=f):
                d = sreg(buf, kt, qt)
                c = d if s_ else (0 if first else vNM[4 * qt:4 * qt + 4])
                x = p.mfma16(d, kfrag(f), qfrag(qt, s_), c)
                if qt == 0 and f % 2 == 0:
                    also(x, kfrag(f + 1))
            mf.append(m)
    sc = Sched(mf)
    if NEWS:
        for f in range(0, 6, 2):
            g = 4 * f
            sc.fixed(g, rd_k(t + 1, f + 2, kfrag(f + 2)))
            sc.fixed(g + 1, rd_k(t + 1, f + 3, kfrag(f + 3)))
            sc.reserve(g + 7)
        if not first:
            r = rd_tr("v", t, 0, vfrag(0)) + rd_tr("v", t, 1, vfrag(1))
            for k in range(4):
                sc.fixed(24 + k, [r[k]])
        sc.reserve(31)
        if late_dma is not None:
            put_dma_alone(sc, late_dma[0], late_dma[1], [24, 25, 26, 27, 28, 29, 30, 31], [31, 31])
        if dma is not None:
            put_dma_alone(sc, dma[0], dma[1], NEWS_XD, NEWS_XP)
            for g in NEWS_XD:
                sc.reserve(g, 4)
        if extra:
            for g, ins in extra.items():
                sc.fixed(g, ins)
        if not first:
            ex = exp_list(t & 1, N1, 32)
            cv = cvt_list(t & 1)
            need = [max(0, v - (N1 - 20)) for v in ([0] * 10 + [4, 4] + [8, 8, 12, 12])] if N1 >= 20 else None
            sc.pack([(x, 0) for x in ex], list(zip(cv, need)), last=30)
        if PROFILE:
            print("X", sc.profile())
        sc.emit(p)
        return
    for f in range(0, 8, 2):
        g = 4 * f
        if f + DIST < 8:
            sc.fixed(g, rd_k(t + 1, f + DIST, kfrag(f + DIST)) + rd_k(t + 1, f + DIST + 1, kfrag(f + DIST + 1)))
        elif not first:
            v0 = f + DIST - 8
            sc.fixed(g, rd_tr("v", t, v0, vfrag(v0)))
            sc.fixed(g + 1, rd_tr("v", t, v0 + 1, vfrag(v0 + 1)))
            if v0 == 0:
                sc.reserve(g - 1)
        sc.reserve(g + 7)
    if dma is not None:
        put_dma(sc, dma[0], dma[1], [2, 7, 10, 15, 18, 22, 27, 30])
    if extra:
        for g, ins in extra.items():
            sc.fixed(g, ins)
    if not first:
        ex = exp_list(t & 1, N1, 32)
        cv = cvt_list(t & 1)
        need = [0] * 10 + [4, 4] + [8, 8, 12, 12]
        sc.pack([(x, 0) for x in ex], list(zip(cv, need)), last=30)
    if PROFILE:
        print("X", sc.profile())
    sc.emit(p)


PROFILE = False


def phase_y(p, t, last=False, dma=None, tail=None):
    mf = []
    for qt in range(4):
        def m(qt=qt):
            d = aL[4 * qt:4 * qt + 4]
            p.mfma16(d, aONE, vP[4 * qt:4 * qt + 4], d)
        mf.append(m)
    for dt in range(8):
        for qt in range(4):
            def m(dt=dt, qt=qt):
                d = oacc(dt, qt)
                x = p.mfma16(d, vfrag(dt), vP[4 * qt:4 * qt + 4], d)
                if qt == 0 and dt % 2 == 0:
                    also(x, vfrag(dt + 1))
            mf.append(m)
    sc = Sched(mf)
    if NEWS:
        for dt in range(0, 6, 2):
            g = 4 + 4 * dt
            sc.fixed(g, rd_tr("v", t, dt + 2, vfrag(dt + 2)))
            sc.fixed(g + 1, rd_tr("v", t, dt + 3, vfrag(dt + 3)))
            sc.reserve(g + 7)
        if t + 2 <= 15:
            sc.fixed(28, rd_k(t + 2, 0, kfrag(0)) + rd_k(t + 2, 1, kfrag(1)))
        sc.reserve(35)
        sc.reserve(3)
        if dma is not None:
            put_dma_alone(sc, dma[0], dma[1], NEWS_YD, NEWS_YP)
            for g in NEWS_YD:
                sc.reserve(g, 4)
        if not last:
            sc.pack([(x, 1) for x in exp_list((t + 1) & 1, 0, N1)], [])
        if tail:
            sc.flow(tail, budget=12)
        if PROFILE:
            print("Y", sc.profile())
        sc.emit(p)
        return
    for dt in range(0, 8, 2):
        g = 4 + 4 * dt
        if dt + DIST < 8:
            sc.fixed(g, rd_tr("v", t, dt + DIST, vfrag(dt + DIST)))
            sc.fixed(g + 1, rd_tr("v", t, dt + DIST + 1, vfrag(dt + DIST + 1)))
        elif t + 2 <= 15:
            k0 = dt + DIST - 8
            sc.fixed(g, rd_k(t + 2, k0, kfrag(k0)) + rd_k(t + 2, k0 + 1, kfrag(k0 + 1)))
            if k0 == 0:
                sc.reserve(g - 1)
        sc.reserve(g + 7)
    sc.reserve(3)
    if dma is not None:
        put_dma(sc, dma[0], dma[1], [3, 8, 11, 16, 19, 24, 27, 32])
    if not last:
        sc.pack([(x, 1) for x in exp_list((t + 1) & 1, 0, N1)], [])
    if tail:
        sc.flow(tail, budget=12)
    if PROFILE:
        print("Y", sc.profile())
    sc.emit(p)


def zero16(p, dst, vz):
    p.mfma32(dst, vz, vz, 0)


OROLL = 1
TRIM = 1
QNAT = 1


def tr_pattern(p, dst, natural, qperm=False):
    p.v("v_lshrrev_b32", vt[0], 4, vl)
    p.v("v_lshrrev_b32", vt[1], 2, vl)
    p.v("v_and_b32", vt[1], 3, vt[1])
    if natural:
        p.v("v_lshl_add_u32", vt[2], vt[0], 3, vt[1])
        p.v("v_and_b32", vt[0], 1, vt[0])
        p.v("v_lshl_add_u32", vt[3], vt[0], 2, vt[1])
    else:
        p.v("v_lshl_add_u32", vt[2], vt[0], 2, vt[1])
        p.v("v_and_b32", vt[3], 7, vt[2])
    p.v("v_lshlrev_b32", vt[3], 1, vt[3])
    p.v("v_and_b32", vt[4], 3, vl)
    if qperm:
        p.v("v_xor_b32", vt[3], vt[3], vt[4])
        p.v("v_lshlrev_b32", vt[3], 4, vt[3])
        p.v("v_lshlrev_b32", vt[2], 8, vt[2])
        p.v("v_add_u32", dst, vt[2], vt[3])
        return
    p.v("v_lshrrev_b32", vt[5], 1, vt[4])
    p.v("v_xor_b32", vt[3], vt[3], vt[5])
    p.v("v_lshlrev_b32", vt[3], 4, vt[3])
    p.v("v_and_b32", vt[4], 1, vt[4])
    p.v("v_lshlrev_b32", vt[4], 3, vt[4])
    p.v("v_lshlrev_b32", vt[2], 8, vt[2])
    p.v("v_add3_u32", dst, vt[2], vt[3], vt[4])


def set_vtr(p, pattern, base, qperm=False):
    p.v("v_add_u32", vtr[0], base, pattern)
    for t in range(1, 8):
        k = ((t >> 1) << 6) | ((t & 1) << 3) if qperm else t << 5
        p.v("v_xor_b32", vtr[t], k, vtr[0])


def row_stats(p, gram, rsum, vq, vg, mu, rs, nmr, t0, t1):
    sq = t1
    p.v("v_and_b32", t0, 3, vq)
    p.v("v_cmp_eq_u32", VCC, 1, t0)
    p.v("v_cndmask_b32", sq, gram[0], gram[1])
    p.v("v_cmp_eq_u32", VCC, 2, t0)
    p.v("v_cndmask_b32", sq, sq, gram[2])
    p.v("v_cmp_eq_u32", VCC, 3, t0)
    p.v("v_cndmask_b32", sq, sq, gram[3])
    p.v("v_lshrrev_b32", t0, 2, vq)
    p.v("v_cmp_eq_u32", VCC, t0, vg)
    p.v("v_cndmask_b32", sq, 0, sq)
    for op in ("v_permlane32_swap_b32", "v_permlane16_swap_b32"):
        p.v("v_mov_b32", t0, sq)
        p.v(op, sq, t0)
        p.v("v_add_f32", sq, sq, t0)
    p.v("v_mul_f32", mu, 1.0 / 512, rsum[0])
    p.v("v_mul_f32", sq, 1.0 / 512, sq)
    p.v("v_fma_f32", sq, Neg(mu), mu, sq)
    p.v("v_max_f32", sq, 0, sq)
    p.v("v_add_f32", sq, 1e-5, sq)
    p.v("v_rsq_f32", rs, sq)
    p.v("v_mul_f32_e64", nmr, Neg(mu), rs)


def slow_attention(p):
    q = p
    q.label("B_slow")
    q.wait(vm=0, lgkm=0)
    vM = vW[0:4]
    for qt in range(4):
        q.v("v_mov_b32", vM[qt], 0xFF800000)
    vz = vW[4:8]
    for i in range(4):
        q.v("v_mov_b32", vz[i], 0)
    sT = st[4]

    def load_tile(with_v):
        q.s("s_lshl_b32", sK, sT, 13)
        q.s("s_mov_b32", sV, sK)
        dma_now(q, "k", 1)
        if with_v:
            dma_now(q, "v", 0)
        q.wait(vm=0)

    def scores(cinit):
        for f in range(8):
            kt, s_ = f >> 2, f & 3
            for x in rd_k(1, f, kfrag(f)):
                q.add(x)
            for qt in range(4):
                d = sreg(0, kt, qt)
                q.mfma16(d, kfrag(f), qfrag(qt, s_), d if s_ else cinit(qt))

    q.s("s_mov_b32", sT, 0)
    q.label("B_slow_p1")
    load_tile(False)
    scores(lambda qt: 0)
    for qt in range(4):
        a, b = sreg(0, 0, qt), sreg(0, 1, qt)
        q.v("v_max3_f32", vM[qt], vM[qt], a[0], a[1])
        q.v("v_max3_f32", vM[qt], vM[qt], a[2], a[3])
        q.v("v_max3_f32", vM[qt], vM[qt], b[0], b[1])
        q.v("v_max3_f32", vM[qt], vM[qt], b[2], b[3])
    q.wait(vm=0, lgkm=0)
    q.s("s_add_u32", sT, sT, 1)
    q.s("s_cmp_lt_u32", sT, 16)
    q.add(I("s_cbranch_scc1 B_slow_p1", "salu"))
    for qt in range(4):
        m = vM[qt]
        for op in ("v_permlane32_swap_b32", "v_permlane16_swap_b32"):
            q.v("v_mov_b32", vW[8], m)
            q.v(op, m, vW[8])
            q.v("v_max_f32", m, m, vW[8])
        for r in range(4):
            q.v("v_sub_f32", vNM[4 * qt + r], 0, m)
    for i in range(8):
        zero16(q, aO[16 * i:16 * i + 16], vz)
    zero16(q, aL, vz)
    q.s("s_mov_b32", sT, 0)
    q.label("B_slow_p2")
    load_tile(True)
    scores(lambda qt: vNM[4 * qt:4 * qt + 4])
    for x in exp_list(0, 0, 32) + cvt_list(0):
        q.add(x)
    for qt in range(4):
        d = aL[4 * qt:4 * qt + 4]
        q.mfma16(d, aONE, vP[4 * qt:4 * qt + 4], d)
    for dt in range(8):
        for x in rd_tr("v", 0, dt, afrag(dt)):
            q.add(x)
        for qt in range(4):
            d = oacc(dt, qt)
            q.mfma16(d, afrag(dt), vP[4 * qt:4 * qt + 4], d)
    q.wait(vm=0, lgkm=0)
    q.nop(15)
    q.s("s_add_u32", sT, sT, 1)
    q.s("s_cmp_lt_u32", sT, 16)
    q.add(I("s_cbranch_scc1 B_slow_p2", "salu"))
    q.nop(15)
    q.add(I("s_branch B_norm", "salu"))


def wo2_setup(p):
    p.v("v_lshrrev_b32", vt[0], 3, vl)
    p.v("v_lshlrev_b32", vt[1], 10, vt[0])
    p.v("v_lshrrev_b32", vt[0], 1, vt[0])
    p.v("v_lshlrev_b32", vt[0], 1, vt[0])
    p.v("v_and_b32", vt[2], 7, vl)
    p.v("v_xor_b32", vt[0], vt[0], vt[2])
    p.v("v_lshl_add_u32", vt[0], vt[0], 4, vt[1])
    for j in range(8):
        k = 8 * j * 1024 - 1024 * (j & 3)
        if k:
            p.v("v_add_u32", vdQ[j], k, vt[0])
        else:
            p.v("v_mov_b32", vdQ[j], vt[0])
    p.s("s_and_b32", sA, srb, 7)
    p.s("s_lshl_b32", sA, sA, 16)
    p.s("s_lshl_b32", st[1], sw, 8)
    p.s("s_add_u32", sA, sA, st[1])


def wo2_read_setup(p):
    p.v("v_lshrrev_b32", vt[0], 2, vl)
    p.v("v_lshlrev_b32", vt[1], 7, vt[0])
    p.v("v_lshrrev_b32", vt[0], 1, vt[0])
    p.v("v_and_b32", vt[0], 3, vt[0])
    p.v("v_lshlrev_b32", vt[0], 1, vt[0])
    p.v("v_and_b32", vt[2], 3, vl)
    p.v("v_lshrrev_b32", vt[3], 1, vt[2])
    p.v("v_xor_b32", vt[0], vt[0], vt[3])
    p.v("v_lshlrev_b32", vt[0], 4, vt[0])
    p.v("v_and_b32", vt[2], 1, vt[2])
    p.v("v_lshlrev_b32", vt[2], 3, vt[2])
    p.v("v_add3_u32", vtr[0], vt[0], vt[1], vt[2])
    p.v("v_add_u32", vtr[0], sMW, vtr[0])
    for t in range(1, 4):
        p.v("v_xor_b32", vtr[t], t << 5, vtr[0])


def rd_o2(m, f, dst):
    q = Prog()
    ring, pos = ring_pos("wo2", m)
    kap, t = f >> 2, f & 3
    for h in range(2):
        i = q.ds_read("ds_read_b64_tr_b16", dst[2 * h:2 * h + 2], vtr[t], off=pos * SLOT + kap * 4096 + h * 2048,
                      dep=("wo2", m))
        i.meta["from"] = (ring, pos)
    return q.ins


def rd_b2(s_, qt):
    q = Prog()
    q.ds_read("ds_read_b128", bfrag(s_, qt), vB, off=(s_ & 15) * 4096 + qt * 1024)
    return q.ins


def part_store_seq(P, store_flags, tag):
    q = Prog()
    seq = []
    for jj in range(2):
        j = 2 * P + jj
        for qt in range(4):
            k = (4 * jj + qt) & 3
            o4 = vtmp[4 * k:4 * k + 4]
            a0, a1 = acc(2 * j, qt), acc(2 * j + 1, qt)
            q.v("v_cvt_pk_bf16_f32", o4[0], a0[0], a0[1])
            q.v("v_cvt_pk_bf16_f32", o4[1], a0[2], a0[3])
            q.v("v_cvt_pk_bf16_f32", o4[2], a1[0], a1[1])
            q.v("v_cvt_pk_bf16_f32", o4[3], a1[2], a1[3])
            q.bstore(o4, vlin, rWS, soff=sPart, off=qt * 1024, flags=store_flags, tag=tag)
            if qt == 3:
                q.s("s_add_u32", sPart, sPart, 4096)
            seq.append((jj, qt, q.ins))
            q.ins = []
    return seq


def stage_o2(p, T, store_flags, hooks):
    for qt in range(4):
        for x in rd_b2(0, qt):
            p.add(x)
    for f in range(2):
        for x in rd_o2(0, f, afrag(f)):
            p.add(x)
    for m in range(16):
        P = m >> 3
        first = (m & 7) == 0
        mf = []
        for f in range(8):
            kap, t = f >> 2, f & 3
            for qt in range(4):
                def mm(f=f, kap=kap, t=t, qt=qt):
                    d = acc(4 * P + t, qt)
                    x = p.mfma16(d, afrag(f), bfrag(2 * m + kap, qt), 0 if (first and kap == 0) else d)
                    if qt == 0 and f % 2 == 0:
                        also(x, afrag(f + 1))
                    if qt == 0 and t == 0:
                        also(x, [bfrag(2 * m + kap, k) for k in range(4)])
                mf.append(mm)
        sc = Sched(mf)
        for f in range(0, 8, 2):
            g = 4 * f
            for k in range(2):
                fn, mn = (f + 2 + k) % 8, m + (f + 2 + k) // 8
                if mn < 16:
                    r = rd_o2(mn, fn, afrag(f + 2 + k))
                    sc.fixed(g + 2 * k, r[:1])
                    sc.fixed(g + 2 * k + 1, r[1:])
            sc.reserve(g + 7)
        for kap in range(2):
            s_ = 2 * m + kap + 1
            if s_ < 32:
                for qt in range(4):
                    sc.fixed(16 * kap + 4 + 2 * qt + (1 if qt >= 2 else 0), rd_b2(s_, qt))
        if m + 2 < 16:
            gaps = [4 * t + (2 if t % 2 == 0 else 3) for t in range(8)] if m != 8 else list(range(1, 9))
            put_dma(sc, "wo2", m + 2, gaps)
        for g, ins in hooks.get(m, {}).items():
            sc.fixed(g, ins)
        if m == 8:
            seq = []
            for jj, qt, ins in part_store_seq(0, store_flags, "part1"):
                seq += [(x, 9) for x in ins]
            sc.flow(seq, budget=16)
        sc.emit(p)
        if m in (7, 9, 11, 13, 15):
            T(f"o_m{m}")
    if "before_last_stores" in hooks:
        hooks["before_last_stores"](p)
        T("o_ld0")
    for jj, qt, ins in part_store_seq(1, store_flags, "part2"):
        for x in ins:
            p.add(x)


def bc_setup(p, ptr):
    vq, vg = vtmp[0], vtmp[1]
    p.s("s_lshl_b32", st[1], shead, 19)
    p.s("s_add_u32", st[1], st[1], 1536 * 256)
    for r_, k in ((rK, "k"), (rV, "v")):
        p.s("s_add_u32", r_[0], ptr[k][0], st[1])
        p.s("s_addc_u32", r_[1], ptr[k][1], 0)
        p.s("s_mov_b32", r_[2], 16 * SLOT)
        p.s("s_mov_b32", r_[3], 0x20000)
    p.s("s_lshl_b32", st[1], shg, 19)
    p.s("s_add_u32", rWO[0], ptr["wo"][0], st[1])
    p.s("s_addc_u32", rWO[1], ptr["wo"][1], 0)
    p.s("s_mov_b32", rWO[2], 512 * 1024)
    p.s("s_mov_b32", rWO[3], 0x20000)
    p.s("s_lshl_b32", sK, srot, 13)
    p.s("s_mov_b32", sV, sK)
    dma_voffs(p, vdK, 256, "k", 8)
    dma_voffs(p, vt[0:8] if False else vdV, 256, "tr", 2)
    p.v("v_add_u32", vdV[2], 4096, vdV[0])
    p.v("v_add_u32", vdV[3], 4096, vdV[1])
    tr_pattern(p, vtrP, False)
    tr_pattern(p, vtr[0], True, qperm=QNAT)
    set_vtr(p, vtr[0], sMW, qperm=QNAT)
    p.v("v_xor_b32", vt[1], vg, vq)
    p.v("v_lshlrev_b32", vt[1], 4, vt[1])
    p.v("v_lshlrev_b32", vt[0], 8, vq)
    p.v("v_add3_u32", vK[0], vt[0], vt[1], sMW)
    for s_ in range(1, 4):
        p.v("v_xor_b32", vK[s_], s_ << 6, vK[0])
    p.v("v_add_u32", vB, SH, vlin)
    vone = vtmp[4:8]
    vz = vtmp[8:12]
    for i in range(4):
        p.v("v_mov_b32", vone[i], 0x3F803F80)
        p.v("v_mov_b32", vz[i], 0)
    for i in range(4):
        p.v("v_accvgpr_write_b32", aONE[i], vone[i])
    for i in range(8):
        zero16(p, aO[16 * i:16 * i + 16], vz)
    zero16(p, aL, vz)
    p.s("s_mul_i32", sPart, shg, 32)
    p.s("s_add_u32", sPart, sPart, srb)
    p.s("s_mul_i32", sPart, sPart, PART_BLK)
    p.s("s_lshl_b32", st[1], sw, 14)
    p.s("s_add_u32", sPart, sPart, st[1])
    p.s("s_add_u32", sPart, sPart, WS_PART)


def bc_main(p, T, store_flags="", after_q=None, at_q_done=None, before_norm=None, o2_hooks=None, mid_q=None, bg_q=None, bg_att=None, before_att=None):
    def nxt_q(n):
        return ("wq", n + 2) if n + 2 < 16 else ("k", n + 2 - 16)

    def extra_q(n):
        if n != 15:
            return bg_q(n) if bg_q else None
        q = Prog()
        q.barrier(drain_lds=False)
        return {3: q.ins}

    two = o2_hooks is not None

    def q_cvts(s_):
        q = Prog()
        for qt in range(4):
            d = qfrag(qt, s_)
            a0, a1 = acc(2 * s_, qt), acc(2 * s_ + 1, qt)
            q.v("v_cvt_pk_bf16_f32", d[0], a0[0], a0[1])
            q.v("v_cvt_pk_bf16_f32", d[1], a0[2], a0[3])
            q.v("v_cvt_pk_bf16_f32", d[2], a1[0], a1[1])
            q.v("v_cvt_pk_bf16_f32", d[3], a1[2], a1[3])
        return q.ins

    hidden = TRIM and QNAT and not two
    qtail = None
    if hidden:
        q = Prog()
        dma_voffs(q, vdQ, 1024, "tr", 8)
        qtail = [(x, 0) for x in q.ins]
        for s_ in range(3):
            qtail += [(x, 4 * (2 * s_ + 1) + 6) for x in q_cvts(s_)]
    gemm_stage(p, "wq", nxt_q, extra_q, "gq", zeroed=True, after_iter=mid_q, tail=qtail)
    T("q_done")
    if at_q_done:
        at_q_done(p)
    dma_now(p, "v", 0)
    for f in range(DIST):
        if hidden:
            for x in rd_k(0, f, kfrag(f)):
                p.add(x)
    for s_ in range(4):
        if hidden and s_ < 3:
            continue
        for x in q_cvts(s_):
            p.add(x)
        for op in ("v_permlane32_swap_b32", "v_permlane16_swap_b32") if not QNAT else ():
            for qt in range(4):
                d = qfrag(qt, s_)
                p.v(op, d[0], d[2])
                p.v(op, d[1], d[3])
        if s_ == 0:
            for f in range(DIST):
                for x in rd_k(0, f, kfrag(f)):
                    p.add(x)
    set_vtr(p, vtrP, sMS)
    wo = "wo2" if two else "wo"
    if two:
        wo2_setup(p)
    else:
        if not hidden:
            dma_voffs(p, vdQ, 1024, "tr", 8)
        p.s("s_lshl_b32", sA, srot, 15)
        p.s("s_lshl_b32", st[1], sw, 8)
        p.s("s_add_u32", sA, sA, st[1])

    T("q_epi")
    if before_att:
        before_att(p)
    if after_q:
        after_q(p)
    if TRIM:
        phase_x(p, -1, first=True, late_dma=("k", 2))
    else:
        phase_x(p, -1, first=True)
        dma_now(p, "k", 2)
    for qt in range(4):
        a, b = sreg(0, 0, qt), sreg(0, 1, qt)
        m = vt[qt]
        p.v("v_max3_f32", m, a[0], a[1], a[2])
        p.v("v_max3_f32", m, m, a[3], b[0])
        p.v("v_max3_f32", m, m, b[1], b[2])
        p.v("v_max_f32", m, m, b[3])
    for op in ("v_permlane32_swap_b32", "v_permlane16_swap_b32"):
        for qt in range(4):
            p.v("v_mov_b32", vt[4 + qt], vt[qt])
        for qt in range(4):
            p.v(op, vt[qt], vt[4 + qt])
        for qt in range(4):
            p.v("v_max_f32", vt[qt], vt[qt], vt[4 + qt])
    for qt in range(4):
        for r in range(4):
            p.v("v_sub_f32", vNM[4 * qt + r], 0, vt[qt])
    for qt in range(4):
        for kt in range(2):
            for r in range(4):
                x = sreg(0, kt, qt)[r]
                p.v("v_sub_f32", x, x, vt[qt])
    for f in range(DIST):
        for x in rd_k(1, f, kfrag(f)):
            p.add(x)
    for x in exp_list(0, 0, N1):
        p.add(x)
    T("att_pro")
    for it in range(7):
        mark(p, "ga", it)
        for t in (2 * it, 2 * it + 1):
            phase_x(p, t, dma=("v", t + 1), extra=bg_att(t) if bg_att else None)
            phase_y(p, t, dma=("k", t + 3))
        loop_dec(p)
        loop_branch(p)
    mark(p, "ga", None)
    T("att_loop")
    phase_x(p, 14, dma=("v", 15))
    phase_y(p, 14, dma=(wo, 0))
    for i, x in enumerate(x_tail_seq(1)):
        p.add(x)
        if i == 4:
            for t in range(DIST):
                for y in rd_tr("v", 15, t, vfrag(t)):
                    p.add(y)
    phase_y(p, 15, last=True, dma=(wo, 1))

    T("att_done")
    if before_norm:
        before_norm(p)
    rinv = vW[0:4]
    for qt in range(4):
        p.v("v_accvgpr_read_b32", rinv[qt], aL[4 * qt])
    p.v("v_add_f32", vt[0], rinv[0], rinv[1])
    p.v("v_add_f32", vt[1], rinv[2], rinv[3])
    p.v("v_add_f32", vt[0], vt[0], vt[1])
    p.v("v_cmp_gt_f32", VCC, LIMIT, vt[0])
    p.add(I("s_cmp_eq_u64 vcc, exec", "salu", (), units(VCC)))
    p.branch("s_cbranch_scc0", "B_slow")
    p.label("B_norm")
    p.barrier()
    for qt in range(4):
        p.v("v_accvgpr_read_b32", rinv[qt], aL[4 * qt])
    for qt in range(4):
        p.v("v_rcp_f32", rinv[qt], rinv[qt])
    r2 = vW[4:12]
    for qt in range(4):
        p.v("v_mov_b32", r2[2 * qt], rinv[qt])
        p.v("v_mov_b32", r2[2 * qt + 1], rinv[qt])
    vow = vW[12:16]
    for s_ in range(4):
        p.s("s_lshl_b32", st[1], sw, 2)
        p.s("s_add_u32", st[1], st[1], s_ + 16)
        if two:
            p.s("s_and_b32", st[2], srb, 7)
            p.s("s_lshl_b32", st[2], st[2], 1)
            p.s("s_sub_u32", st[1], st[1], st[2])
        else:
            p.s("s_sub_u32", st[1], st[1], srot)
        p.s("s_and_b32", st[1], st[1], 15)
        p.s("s_lshl_b32", st[1], st[1], 12)
        p.s("s_add_u32", st[1], st[1], SH)
        p.v("v_add_u32", vow[s_], st[1], vlin)
    first = True
    for s_ in range(4):
        for qt in range(4):
            k = (4 * s_ + qt) & 3
            x = V(128 + 8 * k, 8)
            o4 = V(160 + 4 * (4 * s_ + qt), 4)
            for h in range(2):
                src = oacc(2 * s_ + h, qt)
                for r in range(4):
                    p.v("v_accvgpr_read_b32", x[4 * h + r], src[r])
            for e in range(4):
                p.v("v_pk_mul_f32", x[2 * e:2 * e + 2], x[2 * e:2 * e + 2], r2[2 * qt:2 * qt + 2])
            for i in range(4):
                p.v("v_cvt_pk_bf16_f32", o4[i], x[2 * i], x[2 * i + 1])
            p.ds_write("ds_write_b128", vow[s_], o4, off=qt * 1024)
    T("norm")
    if two:
        wo2_read_setup(p)
    else:
        set_vtr(p, vtrP, sMW)
    p.barrier()
    T("o_xchg")

    if two:
        stage_o2(p, T, store_flags, o2_hooks)
        return
    q = Prog()
    tail = []
    for j in range(4):
        for qt in range(4):
            k = (4 * j + qt) & 3
            o4 = vtmp[4 * k:4 * k + 4]
            a0, a1 = acc(2 * j, qt), acc(2 * j + 1, qt)
            g0 = 4 * (2 * j + 1) + qt + 3
            q.v("v_cvt_pk_bf16_f32", o4[0], a0[0], a0[1])
            q.v("v_cvt_pk_bf16_f32", o4[1], a0[2], a0[3])
            q.v("v_cvt_pk_bf16_f32", o4[2], a1[0], a1[1])
            q.v("v_cvt_pk_bf16_f32", o4[3], a1[2], a1[3])
            q.bstore(o4, vlin, rWS, soff=sPart, off=qt * 1024, flags=store_flags)
            if qt == 3 and j < 3:
                q.s("s_add_u32", sPart, sPart, 4096)
            tail += [(x, min(g0, 31)) for x in q.ins]
            q.ins = []
    gemm_stage(p, "wo", lambda n: ("wo", n + 2) if n + 2 < 16 else None, None, "go", tail=tail)


def gen_b(diag=False):
    p = Prog()
    T = Stamps(p, diag)
    p.s("s_cmp_ge_u32", S(2), 256)
    p.branch("s_cbranch_scc1", "B_end")
    T("rt0", True)
    T("start")
    ptr = {k: S(52 + 2 * i, 2) for i, k in enumerate(["x", "wq", "ws", "k", "v", "wo"])}
    for k in ptr:
        p.s_load(ptr[k], S(0, 2), ARG[k])
    p.v("v_lshrrev_b32", vt[0], 6, vtid)
    p.v("v_and_b32", vl, 63, vtid)
    p.v("v_readfirstlane_b32", sw, vt[0])
    p.s("s_and_b32", shg, S(2), 7)
    p.s("s_lshr_b32", srb, S(2), 3)
    p.s("s_and_b32", srot, srb, 15)
    p.s("s_lshl_b32", shead, shg, 2)
    p.s("s_mov_b32", sHi, 0xFFFF0000)
    vq, vg = vtmp[0], vtmp[1]
    p.v("v_and_b32", vq, 15, vl)
    p.v("v_lshrrev_b32", vg, 4, vl)
    p.v("v_lshlrev_b32", vlin, 4, vl)
    p.s("s_add_u32", shead, shead, sw)
    p.s("s_mul_i32", sMW, sw, WRING)
    p.s("s_lshl_b32", sMS, sw, 14)
    p.s("s_add_u32", sMS, sMS, SH)
    vxo = vtmp[2]
    p.s("s_lshl_b32", st[0], srb, 6)
    p.s("s_lshl_b32", st[1], sw, 4)
    p.s("s_add_u32", st[0], st[0], st[1])
    p.v("v_add_u32", vxo, st[0], vq)
    p.v("v_lshlrev_b32", vxo, 10, vxo)
    p.v("v_lshl_add_u32", vxo, vg, 4, vxo)
    p.wait(lgkm=0)
    srd(p, rX, ptr["x"], SZ["x"])
    vX = V(64, 64)
    p.s("s_lshl_b32", st[0], srot, 6)
    for n in range(16):
        p.bload(vX[4 * n:4 * n + 4], vxo, rX, soff=st[0])
        if n < 15:
            p.s("s_add_u32", st[0], st[0], 64)
            p.s("s_and_b32", st[0], st[0], 0x3FF)
    T("issued")
    bc_setup(p, ptr)
    vone, vz = vtmp[4:8], vtmp[8:12]
    srd(p, rWQ, ptr["wq"], SZ["wq"])
    srd(p, rWS, ptr["ws"], WS_DIAG_END if diag else WS_END)
    dma_voffs(p, vdQ, 8192, "n8", 8)
    p.s("s_lshl_b32", sA, srot, 18)
    p.s("s_lshl_b32", st[1], shead, 8)
    p.s("s_add_u32", sA, sA, st[1])
    dma_now(p, "wq", 0)
    p.s("s_lshl_b32", st[1], sw, 2)
    p.s("s_add_u32", st[1], st[1], srot)
    p.v("v_add_u32", vt[0], st[1], vg)
    p.v("v_and_b32", vt[0], 15, vt[0])
    p.v("v_lshlrev_b32", vt[0], 7, vt[0])
    p.v("v_lshrrev_b32", vt[1], 3, vq)
    p.v("v_lshl_add_u32", vt[0], vt[1], 11, vt[0])
    p.v("v_and_b32", vt[1], 7, vq)
    p.v("v_lshl_add_u32", vt[0], vt[1], 4, vt[0])
    p.s("s_lshl_b32", st[1], sw, 10)
    p.s("s_add_u32", M0, st[1], TAB)
    p.s("s_mov_b32", st[1], WS_MOD)
    p.dma(vt[0], rWS, st[1], tag="tab")
    dma_now(p, "wq", 1)
    T("setup")

    gram, rsum = vtmp[12:16], V(224, 4)
    for n in range(16):
        xs = vX[4 * n:4 * n + 4]
        p.mfma16(gram, xs, xs, gram if n else 0)
        p.mfma16(rsum, vone, xs, rsum if n else 0)
    vwu = A(240, 8)
    p.v("v_lshlrev_b32", vt[0], 6, vl)
    p.s("s_add_u32", st[1], sK, 4096)
    p.bload(vwu[0], vt[0], rK, soff=sK)
    p.bload(vwu[1], vt[0], rK, soff=st[1])
    p.bload(vwu[2], vt[0], rV, soff=sK)
    p.bload(vwu[3], vt[0], rV, soff=st[1])
    p.v("v_lshrrev_b32", vt[0], 2, vl)
    p.v("v_lshlrev_b32", vt[0], 10, vt[0])
    p.v("v_and_b32", vt[1], 3, vl)
    p.v("v_lshl_add_u32", vt[0], vt[1], 6, vt[0])
    p.s("s_lshl_b32", st[1], srot, 15)
    p.s("s_lshl_b32", st[2], sw, 8)
    p.s("s_add_u32", st[1], st[1], st[2])
    p.bload(vwu[4], vt[0], rWO, soff=st[1])
    p.s("s_add_u32", st[1], st[1], 16384)
    p.bload(vwu[5], vt[0], rWO, soff=st[1])
    mu, rs2, nm2 = V(236), V(238, 2), V(240, 2)
    row_stats(p, gram, rsum, vq, vg, mu, rs2[0], nm2[0], vt[0], vt[1])
    p.v("v_mov_b32", rs2[1], rs2[0])
    p.v("v_mov_b32", nm2[1], nm2[0])
    T("stats")
    p.barrier(dep="tab")
    T("tab")
    vtab = vt[2]
    p.v("v_lshlrev_b32", vtab, 5, vg)
    p.v("v_add_u32", vtab, TAB, vtab)
    vhw = vt[3]
    p.s("s_lshl_b32", st[1], sw, 10)
    p.s("s_add_u32", st[1], st[1], SH)
    p.v("v_add_u32", vhw, st[1], vlin)
    def rd_tab(n):
        tb = V(128 + 16 * (n % 3), 16)
        for i, o in enumerate((0, 16, 128, 144)):
            p.ds_read("ds_read_b128", tb[4 * i:4 * i + 4], vtab, off=n * 256 + o)

    rd_tab(0)
    rd_tab(1)
    for n in range(16):
        k = n & 1
        tb = V(128 + 16 * (n % 3), 16)
        y = V(176 + 8 * k, 8)
        o4 = V(192 + 4 * k, 4)
        if n + 2 < 16:
            rd_tab(n + 2)
        xs = vX[4 * n:4 * n + 4]
        for i in range(4):
            p.v("v_lshlrev_b32", y[2 * i], 16, xs[i])
            p.v("v_and_b32", y[2 * i + 1], sHi, xs[i])
        for i in range(4):
            p.v("v_pk_fma_f32", y[2 * i:2 * i + 2], y[2 * i:2 * i + 2], rs2, nm2)
        for i in range(4):
            p.v("v_pk_fma_f32", y[2 * i:2 * i + 2], y[2 * i:2 * i + 2], tb[8 + 2 * i:10 + 2 * i], tb[2 * i:2 * i + 2])
        for i in range(4):
            p.v("v_cvt_pk_bf16_f32", o4[i], y[2 * i], y[2 * i + 1])
        p.ds_write("ds_write_b128", vhw, o4, off=n * 4096)
    for i in range(8):
        zero16(p, vACC[16 * i:16 * i + 16], vz)
    T("h")
    p.barrier()
    T("h_ready")

    bc_main(p, T)
    T("o_done")
    if diag:
        p.wait(vm=0)
    T("drained")
    T("rt1", True)
    T.flush(rWS, sw, 1, vt[0], vt[1])
    gen_b.stamp_names = T.names
    p.branch("s_branch", "B_end")
    slow_attention(p)
    p.label("B_end")
    resolve_ovw(p.ins)
    return finalize(p, {"gq": sLoop, "ga": sLoop, "go": sLoop}, verbose=8, name="BC")


if __name__ == "__main__":
    txt = gen_b()
    open("kb2.s", "w").write(txt)
    print(len(txt.splitlines()))
```

```python
from asmlib import *
from layout import *
from ka import srd, bf16_round_hi
import kb2
from kb2 import *

KNAME = NAME + "_kernel"
M_LDS = B_LDS
SC1 = "sc1"
TOUCH = "v1"
CODEPF = 1
SLAB1EARLY = 0
TWOPASS = 0
PFTOP = 1
DROLL = 1
EBAL = 0
POLLSLEEP = 1
SLABMAP = 0
ILV = 1
EROT = 1
SLABW = 0
MLPTOUCH = "all"
EARLYW = 1
NOMEM = 0
KVTOUCH = 1

DBG_MOD0 = 0
DBG_MOD1 = 8
DBG_CLR = 12
DBG_FLAG0 = 128
N_CNT = 256
N_MOD0, N_MOD1 = 32, 64
F_PART, F_H2, F_ACT, F_PART1 = 0, 1, 2, 3

rDBG = S(96, 4)
rTMP = S(92, 4)
rTMP2 = S(72, 4)
sTag = S(90)
aT = A(253)
sp0, sp1 = S(50), S(51)
rG, rU, rD, rOut = rWQ, rK, rV, rWO
vpoll = V(63)
vtid2 = V(45)


def poll(p, srd_, off, target, name, sleep=16):
    lab, done = f"P_{name}", f"P_{name}_done"
    p.s("s_cmp_lg_u32", sw, 0)
    p.branch("s_cbranch_scc1", done)
    p.s("s_mov_b32", sp1, 0)
    p.label(lab)
    p.bload(V(62), vpoll, srd_, soff=0, off=off, flags=SC1)
    p.wait(vm=0)
    p.v("v_readfirstlane_b32", sp0, V(62))
    p.s("s_cmp_ge_u32", sp0, target)
    p.branch("s_cbranch_scc1", done)
    p.s("s_add_u32", sp1, sp1, 1)
    p.s("s_cmp_lt_u32", sp1, 0x20000)
    p.raw(f"s_sleep {sleep}")
    p.add(I(f"s_cbranch_scc1 {lab}", "salu"))
    p.label(done)
    p.barrier(drain_lds=True)


vflag = V(61)


def poll_flags(p, kind, sfirst, count, name):
    lab, done = f"P_{name}", f"P_{name}_done"
    p.s("s_cmp_lg_u32", sw, 0)
    p.branch("s_cbranch_scc1", done)
    p.s("s_mov_b32", sp1, 0)
    p.v("v_min_u32", vflag, count - 1, vl)
    p.v("v_lshlrev_b32", vflag, 7, vflag)
    p.s("s_lshl_b32", sp0, sfirst, 7)
    p.s("s_add_u32", S(47), sp0, WS_FLAG + kind * 256 * 128)
    p.label(lab)
    p.bload(V(62), vflag, rWS, soff=S(47), flags=SC1)
    p.wait(vm=0)
    p.v("v_cmp_eq_u32", VCC, sTag, V(62))
    p.add(I("s_cmp_eq_u64 vcc, exec", "salu", (), units(VCC)))
    p.branch("s_cbranch_scc1", done)
    p.s("s_add_u32", sp1, sp1, 1)
    p.s("s_cmp_lt_u32", sp1, 0x40000)
    p.raw(f"s_sleep {POLLSLEEP}") if POLLSLEEP else p.nop(0)
    p.add(I(f"s_cbranch_scc1 {lab}", "salu"))
    p.label(done)
    p.barrier(drain_lds=True)


def set_flag(p, kind, sindex, value):
    p.v("v_mov_b32", V(62), value)
    p.v("v_mov_b32", vpoll, 0)
    p.s("s_lshl_b32", sp0, sindex, 7)
    p.s("s_add_u32", sp0, sp0, WS_FLAG + kind * 256 * 128)
    p.s("s_mov_b64", EXEC, 1)
    p.bstore(V(62), vpoll, rWS, soff=sp0, flags=SC1)
    p.s("s_mov_b64", EXEC, -1)


def spin(p, srd_, off, target, name):
    lab, done = f"W_{name}", f"W_{name}_done"
    p.s("s_mov_b32", sp1, 0)
    p.label(lab)
    p.bload(V(62), vpoll, srd_, soff=0, off=off, flags=SC1)
    p.wait(vm=0)
    p.v("v_readfirstlane_b32", sp0, V(62))
    p.s("s_cmp_ge_u32", sp0, target)
    p.branch("s_cbranch_scc1", done)
    p.s("s_add_u32", sp1, sp1, 1)
    p.s("s_cmp_lt_u32", sp1, 0x40000)
    p.raw("s_sleep 1")
    p.add(I(f"s_cbranch_scc1 {lab}", "salu"))
    p.label(done)


aEarly = A(248, 2)


def early_sample(p):
    p.bload(aEarly, vpoll, rDBG, soff=0, off=DBG_MOD1, flags=SC1)


def confirm_early(p):
    for k, (off, target) in ((1, (DBG_CLR, N_CNT)),):
        ok = f"C_early{k}_ok"
        p.v("v_accvgpr_read_b32", V(62), aEarly[k])
        p.v("v_readfirstlane_b32", sp0, V(62))
        p.s("s_cmp_ge_u32", sp0, target)
        p.branch("s_cbranch_scc1", ok)
        spin(p, rDBG, off, target, f"early{k}")
        p.label(ok)
    p.s("s_cmp_lg_u32", S(2), 0)
    p.branch("s_cbranch_scc1", "C_epoch_done")
    p.v("v_mov_b32", V(62), sTag)
    p.s("s_mov_b32", sp0, WS_EPOCH)
    p.s("s_mov_b64", EXEC, 1)
    p.bstore(V(62), vpoll, rWS, soff=sp0, flags=SC1)
    p.s("s_mov_b64", EXEC, -1)
    p.label("C_epoch_done")


def signal(p, kind, sindex, name, pre=None, T=None):
    done = f"S_{name}_done"
    p.wait(vm=0)
    if T:
        T(name + "_drain")
    if pre:
        p.s("s_cmp_lg_u32", sw, 0)
        p.branch("s_cbranch_scc1", f"S_{name}_pre")
        pre(p)
        p.label(f"S_{name}_pre")
    p.barrier(drain_lds=True)
    p.s("s_cmp_lg_u32", sw, 0)
    p.branch("s_cbranch_scc1", done)
    set_flag(p, kind, sindex, sTag)
    p.label(done)


def add_one(p, srd_, off):
    p.v("v_mov_b32", V(62), 1)
    p.v("v_mov_b32", vpoll, 0)
    p.s("s_mov_b64", EXEC, 1)
    so, io = (off, 0) if not isinstance(off, int) else (0, off)
    t = f"buffer_atomic_add {V(62)}, " + Prog._bt(vpoll, srd_, so, io, SC1)
    p.add(I(t, "vstore", (), units(V(62), vpoll, srd_, so), meta={"data": units(V(62)), "wide": False}))
    p.s("s_mov_b64", EXEC, -1)


SIL = WRING + 2 * SLOT
MPART = SIL + 1024
mreg = V(64, 64)
aC = A(250)
sSlab = S(71)


def slab_map(p):
    if not SLABMAP:
        p.s("s_cmp_lt_u32", S(2), N_MOD0 + N_MOD1)
        p.s("s_cselect_b32", sSlab, S(2), 255)
        return
    t0, t1 = st[0], st[1]
    p.s("s_lshl_b32", t0, srb, 1)
    p.s("s_and_b32", t1, shg, 1)
    p.s("s_add_u32", t0, t0, t1)
    p.s("s_mov_b32", sSlab, 255)
    p.s("s_add_u32", t1, t0, N_MOD0)
    p.s("s_lshr_b32", sp0, shg, 1)
    p.s("s_cmp_eq_u32", sp0, 1)
    p.s("s_cselect_b32", sSlab, t1, sSlab)
    p.s("s_cmp_lt_u32", t0, N_MOD0)
    p.s("s_cselect_b32", t1, t0, 255)
    p.s("s_cmp_eq_u32", sp0, 0)
    p.s("s_cselect_b32", sSlab, t1, sSlab)


def slab_issue(p, sslab):
    regs = V(128, 8)
    st0, st1, so = st[0], st[1], st[2]
    vt0, vt1, vcoff = regs[0], regs[1], regs[2]
    vd = regs[4:8]
    p.v("v_lshlrev_b32", vcoff, 2, vtid2)
    p.bload(aC, vcoff, rTMP2)
    p.v("v_lshrrev_b32", vt0, 2, vl)
    p.s("s_mov_b32", st0, 6144)
    p.v("v_mul_lo_u32", vt0, vt0, st0)
    p.v("v_and_b32", vt1, 3, vl)
    p.v("v_lshl_add_u32", vd[0], vt1, 4, vt0)
    for j in range(1, 4):
        p.v("v_add_u32", vd[j], j * (16 * 6144 - 1024), vd[0])
    p.s("s_mul_i32", st0, sw, 128 * 6144)
    p.s("s_lshl_b32", st1, sslab, 6)
    p.s("s_add_u32", so, st0, st1)
    for grp in range(2):
        p.s("s_add_u32", M0, sMS, grp * 4096)
        if grp:
            p.s("s_add_u32", so, so, 64 * 6144)
        else:
            p.nop(0)
        for j in range(4):
            p.dma(vd[j], rTMP, so, off=1024 * j, tag=("slab", grp))


def slab_finish(p, T, sslab, name):
    regs = V(136, 64) if name == "slab0" else mreg
    st0, st1 = st[0], st[1]
    vt0, vt1, vt2, vc, vcoff = regs[0], regs[1], regs[2], regs[3], regs[4]
    s0, s1, e0, e1, vpk = regs[12], regs[13], regs[14], regs[15], regs[5]
    p.v("v_lshlrev_b32", vcoff, 2, vtid2)
    p.v("v_accvgpr_read_b32", vc, aC)
    p.v("v_lshlrev_b32", s0, 16, vc)
    p.v("v_and_b32", s1, sHi, vc)
    for s_, e_ in ((s0, e0), (s1, e1)):
        p.v("v_mul_f32", e_, -1.4426950408889634, s_)
    for s_, e_ in ((s0, e0), (s1, e1)):
        p.v("v_exp_f32", e_, e_)
    for s_, e_ in ((s0, e0), (s1, e1)):
        p.v("v_add_f32", e_, 1.0, e_)
    for s_, e_ in ((s0, e0), (s1, e1)):
        p.v("v_rcp_f32", e_, e_)
    for s_, e_ in ((s0, e0), (s1, e1)):
        p.v("v_mul_f32", s_, s_, e_)
    p.v("v_cvt_pk_bf16_f32", vpk, s0, s1)
    p.v("v_add_u32", vt0, SIL, vcoff)
    p.ds_write("ds_write_b32", vt0, vpk)
    vtr_ = regs[7]
    p.v("v_lshrrev_b32", vt1, 2, vl)
    p.v("v_lshlrev_b32", vt1, 6, vt1)
    p.v("v_and_b32", vt0, 3, vl)
    p.v("v_lshl_add_u32", vt0, vt0, 3, vt1)
    p.v("v_add_u32", vtr_, sMS, vt0)
    vb = regs[6]
    p.v("v_lshrrev_b32", vb, 4, vl)
    p.v("v_lshlrev_b32", vb, 3, vb)
    p.s("s_lshl_b32", st0, sw, 8)
    p.s("s_add_u32", st0, st0, SIL)
    p.v("v_add_u32", vb, st0, vb)
    p.barrier()
    if name == "slab0":
        T("s_sil")
    acc_ = regs[16:24]
    bf = regs[24:40]
    af = regs[40:56]
    for ks in range(4):
        b = bf[4 * ks:4 * ks + 4]
        p.ds_read("ds_read_b64", b[0:2], vb, off=64 * ks)
        p.ds_read("ds_read_b64", b[2:4], vb, off=64 * ks + 32)
    for k2 in range(2):
        for ks in (2 * k2, 2 * k2 + 1):
            for t in range(2):
                a = af[8 * (ks & 1) + 4 * t:8 * (ks & 1) + 4 * t + 4]
                for h in range(2):
                    p.ds_read("ds_read_b64_tr_b16", a[2 * h:2 * h + 2], vtr_, off=ks * 2048 + 1024 * h + 32 * t,
                              dep=("slab", ks >> 1))
        for ks in (2 * k2, 2 * k2 + 1):
            for t in range(2):
                d = acc_[4 * t:4 * t + 4]
                p.mfma16(d, af[8 * (ks & 1) + 4 * t:8 * (ks & 1) + 4 * t + 4], bf[4 * ks:4 * ks + 4], d if ks else 0)
    p.v("v_lshrrev_b32", vt1, 4, vl)
    p.v("v_lshlrev_b32", vt1, 4, vt1)
    p.s("s_lshl_b32", st0, sw, 7)
    p.s("s_add_u32", st0, st0, MPART)
    p.v("v_add_u32", vt1, st0, vt1)
    for t in range(2):
        p.ds_write("ds_write_b128", vt1, acc_[4 * t:4 * t + 4], off=64 * t)
    p.barrier()
    if name == "slab0":
        T("s_gemv")
    p.s("s_cmp_lg_u32", sw, 0 if name == "slab0" else 3)
    p.branch("s_cbranch_scc1", f"M_{name}_done")
    r4 = regs[16:20]
    p.v("v_and_b32", vt0, 31, vl)
    p.v("v_lshlrev_b32", vt0, 2, vt0)
    p.v("v_add_u32", vt1, MPART, vt0)
    for w in range(4):
        p.ds_read("ds_read_b32", r4[w], vt1, off=128 * w)
    p.v("v_add_f32", r4[0], r4[0], r4[1])
    p.v("v_add_f32", r4[2], r4[2], r4[3])
    p.v("v_add_f32", r4[0], r4[0], r4[2])
    bf16_round_hi(p, r4[0], r4[0])
    p.v("v_add_f32", r4[1], 1.0, r4[0])
    bf16_round_hi(p, r4[1], r4[1])
    p.s("s_lshr_b32", st0, sslab, 4)
    p.s("s_cmp_eq_u32", st0, 1)
    p.s("s_cselect_b32", st1, 1, 0)
    p.s("s_cmp_eq_u32", st0, 4)
    p.s("s_cselect_b32", st1, 1, st1)
    p.v("v_mov_b32", vt2, st1)
    p.v("v_cmp_eq_u32", VCC, 1, vt2)
    p.v("v_cndmask_b32", r4[0], r4[0], r4[1])
    p.s("s_cmp_lt_u32", st0, 2)
    p.s("s_mov_b32", st1, QSCALE)
    p.s("s_cselect_b32", st1, st1, 1.0)
    p.v("v_mul_f32", r4[0], st1, r4[0])
    p.s("s_mov_b64", EXEC, 0xFFFFFFFF)
    if name == "slab0":
        get_tag(p)
        p.v("v_mov_b32", r4[1], sTag)
        p.v("v_lshlrev_b32", vt0, 1, vt0)
        p.s("s_lshl_b32", st0, sslab, 8)
        p.s("s_add_u32", st0, st0, WS_MODG)
        p.bstore(r4[0:2], vt0, rWS, soff=st0, flags=SC1)
        T("s_st")
    else:
        p.s("s_lshl_b32", st0, sslab, 7)
        p.s("s_add_u32", st0, st0, WS_MOD)
        p.bstore(r4[0], vt0, rWS, soff=st0, flags=SC1)
    p.s("s_mov_b64", EXEC, -1)
    p.label(f"M_{name}_done")


aC4 = A(236, 4)


def slabw_issue(p, sslab):
    regs = V(128, 8)
    st0, so = st[0], st[2]
    vt0, vt1 = regs[0], regs[1]
    vd = regs[4:8]
    p.bload(aC4, vlin, rTMP2)
    p.v("v_lshrrev_b32", vt0, 2, vl)
    p.s("s_mov_b32", st0, 6144)
    p.v("v_mul_lo_u32", vt0, vt0, st0)
    p.v("v_and_b32", vt1, 3, vl)
    p.v("v_lshl_add_u32", vd[0], vt1, 4, vt0)
    for j in range(1, 4):
        p.v("v_add_u32", vd[j], j * (16 * 6144 - 1024), vd[0])
    p.s("s_lshl_b32", so, sslab, 6)
    for grp in range(8):
        p.s("s_mov_b32", M0, SH + grp * 4096)
        if grp:
            p.s("s_add_u32", so, so, 64 * 6144)
        else:
            p.nop(0)
        for j in range(4):
            p.dma(vd[j], rTMP, so, off=1024 * j, tag=("slab", grp))


def slabw_finish(p, T, sslab, name):
    regs = V(136, 64) if name == "slab0" else mreg
    st0, st1 = st[0], st[1]
    vt0, vt1, vt2, vtr_, vb = regs[0], regs[1], regs[2], regs[3], regs[4]
    cs, es, pk = regs[8:16], regs[16:24], regs[24:28]
    for i in range(4):
        p.v("v_accvgpr_read_b32", vt0, aC4[i])
        p.v("v_lshlrev_b32", cs[2 * i], 16, vt0)
        p.v("v_and_b32", cs[2 * i + 1], sHi, vt0)
    for k in range(8):
        p.v("v_mul_f32", es[k], -1.4426950408889634, cs[k])
    for k in range(8):
        p.v("v_exp_f32", es[k], es[k])
    for k in range(8):
        p.v("v_add_f32", es[k], 1.0, es[k])
    for k in range(8):
        p.v("v_rcp_f32", es[k], es[k])
    for k in range(8):
        p.v("v_mul_f32", cs[k], cs[k], es[k])
    for i in range(4):
        p.v("v_cvt_pk_bf16_f32", pk[i], cs[2 * i], cs[2 * i + 1])
    p.v("v_add_u32", vt0, SIL, vlin)
    p.ds_write("ds_write_b128", vt0, pk, tag="sil")
    p.v("v_lshrrev_b32", vt1, 2, vl)
    p.v("v_lshlrev_b32", vt1, 6, vt1)
    p.v("v_and_b32", vt0, 3, vl)
    p.v("v_lshl_add_u32", vt0, vt0, 3, vt1)
    p.v("v_add_u32", vtr_, SH, vt0)
    p.v("v_lshrrev_b32", vb, 4, vl)
    p.v("v_lshlrev_b32", vb, 3, vb)
    p.v("v_add_u32", vb, SIL, vb)
    acc_ = regs[8:16]
    bf = regs[16:32]
    af = regs[32:64]
    for k4 in range(4):
        for kk in range(4):
            ks = 4 * k4 + kk
            b = bf[4 * kk:4 * kk + 4]
            p.ds_read("ds_read_b64", b[0:2], vb, off=64 * ks, dep="sil")
            p.ds_read("ds_read_b64", b[2:4], vb, off=64 * ks + 32, dep="sil")
            for t in range(2):
                a = af[8 * kk + 4 * t:8 * kk + 4 * t + 4]
                for h in range(2):
                    p.ds_read("ds_read_b64_tr_b16", a[2 * h:2 * h + 2], vtr_, off=ks * 2048 + 1024 * h + 32 * t,
                              dep=("slab", ks >> 1))
        for kk in range(4):
            ks = 4 * k4 + kk
            for t in range(2):
                d = acc_[4 * t:4 * t + 4]
                p.mfma16(d, af[8 * kk + 4 * t:8 * kk + 4 * t + 4], bf[4 * kk:4 * kk + 4], d if ks else 0)
    if name == "slab0":
        T("s_gemv")
    r4 = regs[16:20]
    x0, x1 = regs[20], regs[21]
    p.v("v_and_b32", vt0, 1, vl)
    p.v("v_cmp_eq_u32", VCC, 1, vt0)
    for t in range(2):
        p.v("v_cndmask_b32", regs[22 + 2 * t], acc_[4 * t], acc_[4 * t + 1])
        p.v("v_cndmask_b32", regs[23 + 2 * t], acc_[4 * t + 2], acc_[4 * t + 3])
    p.v("v_and_b32", vt0, 2, vl)
    p.v("v_cmp_eq_u32", VCC, 2, vt0)
    p.v("v_cndmask_b32", x0, regs[22], regs[23])
    p.v("v_cndmask_b32", x1, regs[24], regs[25])
    p.v("v_and_b32", vt0, 4, vl)
    p.v("v_cmp_eq_u32", VCC, 4, vt0)
    p.v("v_cndmask_b32", r4[0], x0, x1)
    p.v("v_lshlrev_b32", vt0, 2, vt0)
    p.v("v_lshrrev_b32", vt1, 4, vl)
    p.v("v_lshl_add_u32", vt0, vt1, 2, vt0)
    p.v("v_and_b32", vt1, 3, vl)
    p.v("v_add_u32", vt0, vt0, vt1)
    p.v("v_lshlrev_b32", vt0, 2, vt0)
    bf16_round_hi(p, r4[0], r4[0])
    p.v("v_add_f32", r4[1], 1.0, r4[0])
    bf16_round_hi(p, r4[1], r4[1])
    p.s("s_lshr_b32", st0, sslab, 4)
    p.s("s_cmp_eq_u32", st0, 1)
    p.s("s_cselect_b32", st1, 1, 0)
    p.s("s_cmp_eq_u32", st0, 4)
    p.s("s_cselect_b32", st1, 1, st1)
    p.v("v_mov_b32", vt2, st1)
    p.v("v_cmp_eq_u32", VCC, 1, vt2)
    p.v("v_cndmask_b32", r4[0], r4[0], r4[1])
    p.s("s_cmp_lt_u32", st0, 2)
    p.s("s_mov_b32", st1, QSCALE)
    p.s("s_cselect_b32", st1, st1, 1.0)
    p.v("v_mul_f32", r4[0], st1, r4[0])
    if name == "slab0":
        get_tag(p)
        p.v("v_mov_b32", r4[1], sTag)
        p.v("v_lshlrev_b32", vt0, 1, vt0)
    p.raw("s_mov_b32 exec_lo, 0x00ff00ff")
    p.raw("s_mov_b32 exec_hi, 0x00ff00ff")
    if name == "slab0":
        p.s("s_lshl_b32", st0, sslab, 8)
        p.s("s_add_u32", st0, st0, WS_MODG)
        p.bstore(r4[0:2], vt0, rWS, soff=st0, flags=SC1)
        T("s_st")
    else:
        p.s("s_lshl_b32", st0, sslab, 7)
        p.s("s_add_u32", st0, st0, WS_MOD)
        p.bstore(r4[0], vt0, rWS, soff=st0, flags=SC1)
    p.s("s_mov_b64", EXEC, -1)


def late_signals(p):
    p.s("s_cmp_lg_u32", sw, 3)
    p.branch("s_cbranch_scc1", "M_late_done")
    if CODEPF >= 2:
        code_prefetch_tail(p)
    p.wait(vm=0)
    add_one(p, rDBG, DBG_CLR)
    p.s("s_sub_u32", sp0, sSlab, N_MOD0)
    p.s("s_cmp_ge_u32", sp0, N_MOD1)
    p.branch("s_cbranch_scc1", "M_late_done")
    add_one(p, rDBG, DBG_MOD1)
    p.label("M_late_done")


R_LDS = SH + 65536 - 512


rVg, rVq, rVf, rVfr, rVxo, rVmo = V(2), V(3), V(4), V(8), V(9), V(10)
rVx, rX1p, rH2p = V(12, 8), V(20, 8), V(48, 8)
rVp = [V(64, 32), V(96, 32)]
rA, rXf, rVm = V(128, 16), V(144, 16), V(160, 48)
sRqt, sRhalf, sRb0 = S(66), S(67), S(68)


def r_addr(p):
    st0, st1 = st[0], st[1]
    vt0, vt1, vt2 = V(5), V(6), V(7)
    p.v("v_and_b32", rVq, 7, vl)
    p.v("v_lshrrev_b32", rVg, 3, vl)
    p.v("v_and_b32", rVg, 3, rVg)
    p.v("v_lshrrev_b32", rVf, 5, vl)
    p.s("s_lshr_b32", sRqt, shg, 1)
    p.s("s_and_b32", sRhalf, shg, 1)
    p.v("v_lshlrev_b32", vt0, 4, rVg)
    p.v("v_add_u32", vt0, vt0, rVq)
    p.s("s_lshl_b32", st0, sRhalf, 3)
    p.v("v_add_u32", vt0, st0, vt0)
    p.v("v_lshlrev_b32", vt0, 4, vt0)
    p.v("v_lshlrev_b32", vt1, 12, rVf)
    p.v("v_add_u32", rVfr, vt0, vt1)
    p.s("s_mul_i32", sRb0, srb, PART_BLK)
    p.s("s_lshl_b32", st0, sw, 14)
    p.s("s_add_u32", sRb0, sRb0, st0)
    p.s("s_lshl_b32", st0, sRqt, 10)
    p.s("s_add_u32", sRb0, sRb0, st0)
    p.s("s_add_u32", sRb0, sRb0, WS_PART)


def r_partial_loads(p, i):
    for hg in range(8):
        p.s("s_add_u32", st[0], sRb0, hg * 32 * PART_BLK + i * 8192)
        p.bload(rVp[i][4 * hg:4 * hg + 4], rVfr, rWS, soff=st[0], flags=SC1)


def r_side_loads(p):
    st0, st1 = st[0], st[1]
    vt0, vt1, vt2 = V(5), V(6), V(7)
    p.s("s_lshl_b32", st0, srb, 6)
    p.s("s_lshl_b32", st1, sRqt, 4)
    p.s("s_add_u32", st0, st0, st1)
    p.s("s_lshl_b32", st1, sRhalf, 3)
    p.s("s_add_u32", st0, st0, st1)
    p.v("v_add_u32", vt0, st0, rVq)
    p.v("v_lshlrev_b32", vt0, 10, vt0)
    p.v("v_lshlrev_b32", vt1, 6, rVf)
    p.v("v_lshlrev_b32", vt2, 3, rVg)
    p.v("v_add3_u32", rVxo, vt0, vt1, vt2)
    p.s("s_lshl_b32", st0, sw, 8)
    for i in range(2):
        for h in range(2):
            p.bload(rVx[4 * i + 2 * h:4 * i + 2 * h + 2], rVxo, rX, soff=st0, off=128 * i + 32 * h)
    p.v("v_lshlrev_b32", vt1, 7, rVf)
    p.v("v_lshlrev_b32", vt2, 4, rVg)
    p.v("v_add_u32", rVmo, vt1, vt2)
    r_mod_loads(p, (0, 1))


def r_mod_loads(p, which):
    st0, st1 = st[0], st[1]
    p.s("s_lshl_b32", st0, sw, 9)
    for k in which:
        vec = 2 + k
        p.s("s_add_u32", st1, st0, WS_MOD + vec * 2048)
        for i in range(2):
            for h in range(2):
                o = 16 * k + 8 * i + 4 * h
                p.bload(rVm[o:o + 4], rVmo, rWS, soff=st1, off=256 * i + 64 * h, flags=SC1)


def r_sum(p, i):
    slo, shi = st[1], sp1
    p.s("s_mov_b32", slo, 0x00003F80)
    p.s("s_mov_b32", shi, 0x3F800000)
    for hg in range(8):
        for r in range(4):
            src = rVp[i][4 * hg + r]
            for hi, sel in ((0, slo), (1, shi)):
                d = rA[8 * i + 2 * r + hi]
                p.v("v_dot2_f32_bf16", d, src, sel, d if hg else 0)


def phase_r_compute(p, T):
    st0, so = st[0], st[5]
    vt0, vt1 = V(5), V(6)
    a, xf, vm, vx, x1p = rA, rXf, rVm, rVx, rX1p
    for i in range(2):
        for h in range(2):
            for j in range(2):
                src = vx[4 * i + 2 * h + j]
                p.v("v_lshlrev_b32", xf[8 * i + 4 * h + 2 * j], 16, src)
                p.v("v_and_b32", xf[8 * i + 4 * h + 2 * j + 1], sHi, src)
    for k in range(16):
        p.v("v_fmac_f32", xf[k], a[k], vm[k])
    for i in range(2):
        for j in range(4):
            p.v("v_cvt_pk_bf16_f32", x1p[4 * i + j], xf[8 * i + 2 * j], xf[8 * i + 2 * j + 1])
    p.s("s_lshl_b32", so, srb, 16)
    p.s("s_lshl_b32", st0, sw, 14)
    p.s("s_add_u32", so, so, st0)
    p.s("s_lshl_b32", st0, sRqt, 10)
    p.s("s_add_u32", so, so, st0)
    for i in range(2):
        p.s("s_add_u32", st0, so, WS_X1 + i * 8192)
        p.bstore(x1p[4 * i:4 * i + 4], rVfr, rWS, soff=st0, flags=SC1)
    for i in range(2):
        for j in range(4):
            p.v("v_lshlrev_b32", xf[8 * i + 2 * j], 16, x1p[4 * i + j])
            p.v("v_and_b32", xf[8 * i + 2 * j + 1], sHi, x1p[4 * i + j])
    s1, s2 = V(28), V(29)
    p.v("v_add_f32", s1, xf[0], xf[1])
    p.v("v_mul_f32", s2, xf[0], xf[0])
    p.v("v_fmac_f32", s2, xf[1], xf[1])
    for k in range(2, 16):
        p.v("v_add_f32", s1, s1, xf[k])
        p.v("v_fmac_f32", s2, xf[k], xf[k])
    for s_ in (s1, s2):
        p.v("v_add_f32_dpp", s_, s_, s_, mods="row_ror:8 row_mask:0xf bank_mask:0xf")
    for op in ("v_permlane16_swap_b32", "v_permlane32_swap_b32"):
        for s_, t_ in ((s1, vt0), (s2, vt1)):
            p.v("v_mov_b32", t_, s_)
        for s_, t_ in ((s1, vt0), (s2, vt1)):
            p.v(op, s_, t_)
        for s_, t_ in ((s1, vt0), (s2, vt1)):
            p.v("v_add_f32", s_, s_, t_)
    p.v("v_lshlrev_b32", vt0, 3, rVq)
    p.v("v_add_u32", vt0, R_LDS, vt0)
    p.s("s_lshl_b32", st0, sw, 6)
    p.v("v_add_u32", vt1, st0, vt0)
    s12 = V(30, 2)
    p.v("v_mov_b32", s12[0], s1)
    p.v("v_mov_b32", s12[1], s2)
    p.ds_write("ds_write_b64", vt1, s12)
    p.barrier()
    rr = V(32, 8)
    for w in range(4):
        p.ds_read("ds_read_b64", rr[2 * w:2 * w + 2], vt0, off=64 * w)
    p.v("v_add_f32", s1, rr[0], rr[2])
    p.v("v_add_f32", s2, rr[1], rr[3])
    p.v("v_add_f32", rr[4], rr[4], rr[6])
    p.v("v_add_f32", rr[5], rr[5], rr[7])
    p.v("v_add_f32", s1, s1, rr[4])
    p.v("v_add_f32", s2, s2, rr[5])
    mu, rs2, nm2 = V(40), V(42, 2), V(44, 2)
    p.v("v_mul_f32", mu, 1.0 / 512, s1)
    p.v("v_mul_f32", s2, 1.0 / 512, s2)
    p.v("v_fma_f32", s2, Neg(mu), mu, s2)
    p.v("v_max_f32", s2, 0, s2)
    p.v("v_add_f32", s2, 1e-5, s2)
    p.v("v_rsq_f32", rs2[0], s2)
    p.v("v_mul_f32_e64", nm2[0], Neg(mu), rs2[0])
    p.v("v_mov_b32", rs2[1], rs2[0])
    p.v("v_mov_b32", nm2[1], nm2[0])
    for k in range(8):
        p.v("v_pk_fma_f32", xf[2 * k:2 * k + 2], xf[2 * k:2 * k + 2], rs2, nm2)
    for k in range(8):
        p.v("v_pk_fma_f32", xf[2 * k:2 * k + 2], xf[2 * k:2 * k + 2], vm[32 + 2 * k:34 + 2 * k], vm[16 + 2 * k:18 + 2 * k])
    h2p = rH2p
    for i in range(2):
        for j in range(4):
            p.v("v_cvt_pk_bf16_f32", h2p[4 * i + j], xf[8 * i + 2 * j], xf[8 * i + 2 * j + 1])
        p.s("s_add_u32", st0, so, WS_H2 + i * 8192)
        p.bstore(h2p[4 * i:4 * i + 4], rVfr, rWS, soff=st0, flags=SC1)


aF1 = A(250)


def check_mod1(p):
    p.v("v_accvgpr_read_b32", V(62), aEarly[0])
    p.v("v_readfirstlane_b32", sp0, V(62))
    p.s("s_cmp_ge_u32", sp0, N_MOD1)
    p.branch("s_cbranch_scc1", "C_mod1_ok")
    spin(p, rDBG, DBG_MOD1, N_MOD1, "mod1")
    p.label("C_mod1_ok")


def o2_hooks():
    h = {}
    q = Prog()
    q.v("v_mov_b32", V(62), sTag)
    q.s("s_lshl_b32", S(47), S(2), 7)
    q.s("s_add_u32", S(47), S(47), WS_FLAG + F_PART1 * 256 * 128)
    pre = q.ins
    q = Prog()
    q.need("part1")
    q.barrier(drain_lds=False)
    q.bstore(V(62), vpoll, rWS, soff=S(47), flags=SC1)
    h[12] = {6: pre, 9: q.ins}
    q = Prog()
    q.v("v_min_u32", V(45), 7, vl)
    q.v("v_lshlrev_b32", V(45), 7, V(45))
    q.s("s_lshl_b32", S(47), srb, 10)
    q.s("s_add_u32", S(47), S(47), WS_FLAG + F_PART1 * 256 * 128)
    pre = q.ins
    q = Prog()
    q.bload(aF1, V(45), rWS, soff=S(47), flags=SC1)
    h[14] = {2: pre, 6: q.ins}

    def before_last(p):
        r_addr(p)
        check_mod1(p)
        r_side_loads(p)
        p.v("v_accvgpr_read_b32", V(62), aF1)
        p.s("s_mov_b32", sp1, 0)
        p.label("P_part1")
        p.v("v_cmp_eq_u32", VCC, sTag, V(62))
        p.add(I("s_cmp_eq_u64 vcc, exec", "salu", (), units(VCC)))
        p.branch("s_cbranch_scc1", "P_part1_done")
        p.bload(V(62), V(45), rWS, soff=S(47), flags=SC1)
        p.wait(vm=0)
        p.s("s_add_u32", sp1, sp1, 1)
        p.s("s_cmp_lt_u32", sp1, 0x40000)
        p.add(I("s_cbranch_scc1 P_part1", "salu"))
        p.label("P_part1_done")
        r_partial_loads(p, 0)

    h["before_last_stores"] = before_last
    return h


ROWB = 2752
sDrb, sDcg, sDact, sDH = S(40 + 12), S(40 + 13), S(40 + 14), S(40 + 15)
sErb, sEcb, sEact, sEwd = S(56), S(57), S(58), S(59)
sDrot = S(91)


def d_ids(p):
    st0, st1 = st[0], st[1]
    p.s("s_and_b32", st0, shg, 1)
    p.s("s_lshl_b32", st0, st0, 2)
    p.s("s_and_b32", st1, srb, 3)
    p.s("s_add_u32", sDrb, st0, st1)
    p.s("s_lshr_b32", st0, shg, 1)
    p.s("s_mul_i32", st1, st0, 7)
    p.s("s_add_u32", st1, st1, 1)
    p.s("s_cmp_eq_u32", st0, 0)
    p.s("s_cselect_b32", sDcg, 0, st1)
    p.s("s_cselect_b32", st0, 8, 7)
    p.s("s_lshr_b32", st1, srb, 2)
    p.s("s_add_u32", sDcg, sDcg, st1)
    p.s("s_cmp_lt_u32", st1, st0)
    p.s("s_cselect_b32", sDact, 1, 0)
    p.s("s_lshl_b32", sDrot, st1, 1)


def d_weights(p, drain=True):
    st0, st1 = st[0], st[1]
    vt_ = V(216, 5)
    vd = V(224, 3)
    smag = S(61)
    p.s("s_cmp_eq_u32", sw, 0)
    p.branch("s_cbranch_scc1", "M_dw_done")
    p.s("s_mov_b32", smag, 0xAAAB)
    p.s("s_mov_b32", st0, ROWB)
    for k in range(3):
        p.v("v_add_u32", vt_[0], 64 * k, vl)
        p.v("v_mul_lo_u32", vt_[1], vt_[0], smag)
        p.v("v_lshrrev_b32", vt_[1], 18, vt_[1])
        p.v("v_mul_u32_u24", vt_[2], 6, vt_[1])
        p.v("v_sub_u32", vt_[2], vt_[0], vt_[2])
        p.v("v_lshlrev_b32", vt_[2], 4, vt_[2])
        p.v("v_mul_lo_u32", vt_[1], vt_[1], st0)
        p.v("v_add_u32", vd[k], vt_[1], vt_[2])
        if k:
            p.v("v_subrev_u32", vd[k], 1024 * k, vd[k])
    sPos, sCol = S(62), S(63)
    p.s("s_mul_i32", sCol, sDcg, 96)
    p.s("s_sub_u32", sPos, sw, 1)
    p.label("M_dw_loop")
    p.s("s_add_u32", st0, sPos, sDrot)
    p.s("s_and_b32", st0, st0, 15)
    p.s("s_mul_i32", st0, st0, 32 * ROWB)
    p.s("s_add_u32", st0, st0, sCol)
    p.s("s_mul_i32", st1, sPos, 3072)
    for m, r_ in enumerate((rG, rU)):
        p.s("s_add_u32", M0, st1, m * 49152)
        p.nop(0)
        for k in range(3):
            p.dma(vd[k], r_, st0, off=1024 * k, tag="dw")
    p.s("s_add_u32", sPos, sPos, 3)
    p.s("s_cmp_lt_u32", sPos, 16)
    p.add(I("s_cbranch_scc1 M_dw_loop", "salu"))
    if drain:
        p.wait(vm=0)
    p.label("M_dw_done")


E_RING = SH
E_NSLOT = 4


def phase_d(p, T, e_prefetch):
    st0, st1 = st[0], st[1]
    sH, sAct = st[2], st[3]
    vlin_ = V(2)
    vt_ = V(3, 5)
    vtr_ = V(12, 2)
    p.v("v_lshlrev_b32", vlin_, 4, vl)
    p.s("s_lshl_b32", sH, sDrb, 2)
    p.s("s_add_u32", sH, sH, sw)
    p.s("s_mul_i32", sAct, sH, ACT_RB)
    p.s("s_lshl_b32", sH, sH, 16)
    p.s("s_add_u32", sH, sH, WS_H2)
    p.s("s_mul_i32", st0, sDcg, 6144)
    p.s("s_add_u32", sAct, sAct, st0)
    p.s("s_add_u32", sAct, sAct, WS_ACT)
    NB = 4
    vB_ = V(128, 16 * NB)

    def bfr(ks, qt):
        o = 16 * (ks % NB) + 4 * qt
        return vB_[o:o + 4]

    sK_ = S(63)

    def load_b(ks):
        q = Prog()
        if ks == 0:
            q.s("s_lshl_b32", sK_, sDrot, 12)
        else:
            q.s("s_add_u32", sK_, sK_, 4096)
            q.s("s_and_b32", sK_, sK_, 0xFFFF)
        q.s("s_add_u32", st1, sH, sK_)
        for qt in range(4):
            q.bload(bfr(ks, qt), vlin_, rWS, soff=st1, off=1024 * qt, flags=SC1)
        return q.ins

    p.v("v_lshrrev_b32", vt_[0], 2, vl)
    p.v("v_mul_u32_u24", vt_[0], 96, vt_[0])
    p.v("v_and_b32", vt_[1], 3, vl)
    p.v("v_lshlrev_b32", vt_[1], 3, vt_[1])
    p.v("v_add_u32", vtr_[0], vt_[0], vt_[1])
    p.v("v_add_u32", vtr_[1], 49152, vtr_[0])
    accd = V(16, 96)
    vA = V(112, 16)
    vz_ = V(196, 4)
    for i in range(4):
        p.v("v_mov_b32", vz_[i], 0)
    if EARLYW:
        e_early(p, "d")
    else:
        d_weights(p)
    p.s("s_lshl_b32", st[4], sDrb, 5)
    poll_flags(p, F_H2, st[4], 32, "h2")
    T("d_go")
    for ks in range(NB - 1 if DROLL else NB):
        for x in load_b(ks):
            p.add(x)
    for i in range(6):
        zero16(p, accd[16 * i:16 * i + 16], vz_)

    def accr(m, t, qt):
        o = 48 * m + 16 * t + 4 * qt
        return accd[o:o + 4]

    def afr(i):
        return vA[4 * (i % 4):4 * (i % 4) + 4]

    def rd_a(ks, f, base):
        q = Prog()
        m, t = f // 3, f % 3
        for h in range(2):
            q.ds_read("ds_read_b64_tr_b16", afr(6 * ks + f)[2 * h:2 * h + 2], vtr_[m],
                      off=(ks - base) * 3072 + 1536 * h + 32 * t)
        return q.ins

    for f in range(2):
        for x in rd_a(0, f, 0):
            p.add(x)
    for it in range(4):
        mark(p, "gd", it)
        for ks in range(4 * it, 4 * it + 4):
            mf = []
            for f in range(6):
                m, t = f // 3, f % 3
                for qt in range(4):
                    def mm(m=m, t=t, qt=qt, f=f, ks=ks):
                        d = accr(m, t, qt)
                        x = p.mfma16(d, afr(6 * ks + f), bfr(ks, qt), d)
                        if ILV and f == 0 and qt == 0:
                            also(x, [bfr(ks, k) for k in range(4)])
                    mf.append(mm)
            sc = Sched(mf)
            for f in range(6):
                nf, nks = (f + 2) % 6, ks + (f + 2) // 6
                if nks < 16 or DROLL:
                    r = rd_a(nks, nf, 4 * it)
                    sc.fixed(4 * f, r[:1])
                    sc.fixed(4 * f + 1, r[1:])
            if ILV:
                if DROLL or (ks >= 1 and ks - 1 + NB < 16):
                    ld = load_b(ks - 1 + NB)
                    sal = [x for x in ld if x.kind == "salu"]
                    vm_ = [x for x in ld if x.kind != "salu"]
                    for i, x in enumerate(sal):
                        sc.fixed(i, [x])
                    for i, x in enumerate(vm_):
                        sc.fixed(6 + 4 * i, [x])
            elif ks + NB < 16:
                sc.fixed(23, load_b(ks + NB))
            sc.emit(p)
        if it < 3 or DROLL:
            p.v("v_add_u32", vtr_[0], 4 * 3072, vtr_[0])
            p.v("v_add_u32", vtr_[1], 4 * 3072, vtr_[1])
        loop_dec(p)
        loop_branch(p)
    mark(p, "gd", None)
    T("d_mma")
    o = V(200, 32)
    for qt in range(4):
        for t in range(3):
            g_, u_ = accr(0, t, qt), accr(1, t, qt)
            for r in range(4):
                p.v("v_mul_f32", g_[r], g_[r], u_[r])
        full = o[8 * qt:8 * qt + 4]
        half = o[8 * qt + 4:8 * qt + 6]
        for t in range(3):
            g_ = accr(0, t, qt)
            dst = full[2 * t:2 * t + 2] if t < 2 else half
            p.v("v_cvt_pk_bf16_f32", dst[0], g_[0], g_[1])
            p.v("v_cvt_pk_bf16_f32", dst[1], g_[2], g_[3])
        p.bstore(full, vlin_, rWS, soff=sAct, off=1024 * qt, flags=SC1)
    vh = vt_[0]
    p.v("v_lshlrev_b32", vh, 3, vl)
    p.s("s_add_u32", st0, sAct, 4096)
    p.s("s_cmp_eq_u32", sDcg, 28)
    p.branch("s_cbranch_scc1", "D_skip_half")
    for qt in range(4):
        p.bstore(o[8 * qt + 4:8 * qt + 6], vh, rWS, soff=st0, off=512 * qt, flags=SC1)
    p.label("D_skip_half")
    p.s("s_lshl_b32", st[4], sDrb, 5)
    p.s("s_add_u32", st[4], st[4], sDcg)
    signal(p, F_ACT, st[4], "act")


eRing, eSa, eSd = S(60), S(61), S(62)
eSet = S(55)
ePA, ePW = S(70, 3), S(73, 3)
eVd, eVtr, eLin, eLin8 = V(232, 2), V(234, 4), V(238), V(239)
eAcc, eA, eB = V(16, 64), V(80, 16), V(96, 16 * E_NSLOT)


def e_setup(p):
    st0, st1 = st[0], st[1]
    vt_ = V(240, 4)
    p.v("v_lshlrev_b32", eLin, 4, vl)
    p.v("v_lshlrev_b32", eLin8, 3, vl)
    p.s("s_lshl_b32", st0, shg, 2)
    p.s("s_lshr_b32", st1, S(2), 6)
    p.s("s_add_u32", sErb, st0, st1)
    p.s("s_and_b32", sEcb, srb, 7)
    p.s("s_lshl_b32", eRing, sw, 14)
    p.s("s_add_u32", eRing, eRing, E_RING)
    p.v("v_lshrrev_b32", vt_[0], 3, vl)
    p.v("v_lshlrev_b32", vt_[1], 10, vt_[0])
    p.v("v_lshrrev_b32", vt_[0], 1, vt_[0])
    p.v("v_and_b32", vt_[0], 3, vt_[0])
    p.v("v_lshlrev_b32", vt_[0], 1, vt_[0])
    p.v("v_and_b32", vt_[2], 7, vl)
    p.v("v_xor_b32", vt_[0], vt_[0], vt_[2])
    p.v("v_lshlrev_b32", vt_[0], 4, vt_[0])
    p.v("v_add_u32", eVd[0], vt_[0], vt_[1])
    p.v("v_add_u32", eVd[1], 8 * 1024 - 1024, eVd[0])
    p.v("v_lshrrev_b32", vt_[0], 2, vl)
    p.v("v_lshlrev_b32", vt_[1], 7, vt_[0])
    p.v("v_lshrrev_b32", vt_[0], 1, vt_[0])
    p.v("v_and_b32", vt_[0], 3, vt_[0])
    p.v("v_lshlrev_b32", vt_[0], 1, vt_[0])
    p.v("v_and_b32", vt_[2], 3, vl)
    p.v("v_lshrrev_b32", vt_[3], 1, vt_[2])
    p.v("v_xor_b32", vt_[0], vt_[0], vt_[3])
    p.v("v_lshlrev_b32", vt_[0], 4, vt_[0])
    p.v("v_and_b32", vt_[2], 1, vt_[2])
    p.v("v_lshlrev_b32", vt_[2], 3, vt_[2])
    p.v("v_add3_u32", eVtr[0], vt_[0], vt_[1], vt_[2])
    p.v("v_add_u32", eVtr[0], eRing, eVtr[0])
    for t in range(1, 4):
        p.v("v_xor_b32", eVtr[t], t << 5, eVtr[0])
    if EROT:
        p.s("s_add_u32", eSet, sw, sEcb)
        p.s("s_and_b32", eSet, eSet, 3)
        p.s("s_lshr_b32", st1, sEcb, 2)
    else:
        p.s("s_mov_b32", eSet, sw)
        p.s("s_mov_b32", st1, 0)
    for i in range(3):
        p.s("s_add_u32", st0, st1, i)
        p.s("s_cmp_ge_u32", st0, 3)
        p.s("s_cselect_b32", ePA[i], 3, 0)
        p.s("s_sub_u32", st0, st0, ePA[i])
        p.s("s_mul_i32", ePA[i], st0, 8 * 6144)
        p.s("s_mul_i32", ePW[i], st0, 4 * 96 * 1024)
    p.s("s_mul_i32", sEact, sErb, ACT_RB)
    p.s("s_mul_i32", st0, eSet, 2 * 6144)
    p.s("s_add_u32", sEact, sEact, st0)
    p.s("s_add_u32", sEact, sEact, WS_ACT)
    p.s("s_mul_i32", sEwd, eSet, 96 * 1024)
    p.s("s_lshl_b32", st0, sEcb, 7)
    p.s("s_add_u32", sEwd, sEwd, st0)
    if EBAL:
        e_extra_setup(p)


def e_issue_w(q, n, kind, pair_off, rotated=True):
    rot = rotated and pair_off < 3
    doff = 0 if rot else pair_off * 4 * 96 * 1024
    slot = (n % E_NSLOT) * 4096
    if kind < 2:
        rows = [doff + (48 * kind) * 1024, doff + (48 * kind + 16) * 1024]
    else:
        rows = [doff + 32 * 1024, doff + (48 + 32) * 1024]
    for hf in range(2):
        q.s("s_add_u32", eSd, sEwd, rows[hf])
        if rot:
            q.s("s_add_u32", eSd, eSd, ePW[pair_off])
        q.s("s_add_u32", M0, eRing, slot + 2048 * hf)
        q.nop(0)
        for j in range(2):
            q.dma(eVd[j], rD, eSd, off=1024 * j, tag=("e", n), ovw=("e", n - E_NSLOT))


eA9, eA10, eW9, eW10 = S(76), S(77), S(78), S(79)


def e_extra_setup(p):
    t0, t1 = st[0], st[1]
    p.s("s_mul_i32", t0, sErb, ACT_RB)
    p.s("s_add_u32", t0, t0, WS_ACT)
    p.s("s_lshl_b32", t1, eSet, 1)
    p.s("s_add_u32", t1, t1, 24)
    p.s("s_cmp_eq_u32", eSet, 3)
    p.s("s_cselect_b32", t1, 28, t1)
    p.s("s_mul_i32", eA9, t1, 6144)
    p.s("s_add_u32", eA9, eA9, t0)
    p.s("s_add_u32", eA10, eA9, 6144)
    p.s("s_mul_i32", eW9, t1, 48 * 1024)
    p.s("s_lshl_b32", t0, sEcb, 7)
    p.s("s_add_u32", eW9, eW9, t0)
    p.s("s_add_u32", eW10, eW9, 48 * 1024)
    p.s("s_cmp_eq_u32", eSet, 3)
    p.s("s_cselect_b32", eA10, 0x7FFF0000, eA10)
    p.s("s_cselect_b32", eW10, 0x7FFF0000, eW10)


def e_issue_at(q, n, kind, sact, swd, aoffs, rows):
    slot = (n % E_NSLOT) * 4096
    for hf in range(2):
        q.s("s_add_u32", eSd, swd, rows[hf] * 1024)
        q.s("s_add_u32", M0, eRing, slot + 2048 * hf)
        q.nop(0)
        for j in range(2):
            q.dma(eVd[j], rD, eSd, off=1024 * j, tag=("e", n), ovw=("e", n - E_NSLOT))
    if kind < 2:
        q.s("s_add_u32", eSa, sact, aoffs[0])
        for qt in range(4):
            q.bload(e_bfr(n, qt), eLin, rWS, soff=eSa, off=1024 * qt, flags=SC1)
    else:
        for hf in range(2):
            q.s("s_add_u32", eSa, sact, aoffs[hf])
            for qt in range(4):
                q.bload(e_bfr(n, qt)[2 * hf:2 * hf + 2], eLin8, rWS, soff=eSa, off=512 * qt, flags=SC1)


def e_early(p, name):
    sJob, sOwn, sN, sT0, sT1, sT2 = S(62), st[0], st[1], S(61), S(63), S(69)
    eSa2 = S(47)
    p.s("s_cmp_eq_u32", sw, 0)
    p.branch("s_cbranch_scc1", f"M_ee_done_{name}")
    p.s("s_sub_u32", sJob, sw, 1)
    p.label(f"M_ee_loop_{name}")
    p.s("s_lshr_b32", sOwn, sJob, 2)
    p.s("s_and_b32", sN, sJob, 3)
    p.s("s_lshl_b32", sT0, sJob, 12)
    p.s("s_add_u32", sT0, sT0, E_RING)
    p.s("s_mul_i32", sT1, sN, 48)
    p.s("s_cmp_eq_u32", sN, 2)
    p.s("s_cselect_b32", sT1, 32, sT1)
    p.s("s_cselect_b32", sT2, 48, 16)
    p.s("s_cmp_eq_u32", sN, 3)
    p.s("s_cselect_b32", sT1, 0, sT1)
    p.s("s_cselect_b32", eSa2, ePW[1], ePW[0])
    if EROT:
        p.s("s_add_u32", sOwn, sOwn, sEcb)
        p.s("s_and_b32", sOwn, sOwn, 3)
    p.s("s_mul_i32", sOwn, sOwn, 96)
    p.s("s_add_u32", sT1, sT1, sOwn)
    p.s("s_add_u32", sT2, sT2, sT1)
    p.s("s_lshl_b32", sN, sEcb, 7)
    p.s("s_add_u32", sN, sN, eSa2)
    for hf, sr in enumerate((sT1, sT2)):
        p.s("s_lshl_b32", sr, sr, 10)
        p.s("s_add_u32", sr, sr, sN)
        p.s("s_add_u32", M0, sT0, 2048 * hf)
        p.nop(0)
        for j in range(2):
            p.dma(eVd[j], rD, sr, off=1024 * j, tag="ee")
    p.s("s_add_u32", sJob, sJob, 3)
    p.s("s_cmp_lt_u32", sJob, 16)
    p.add(I(f"s_cbranch_scc1 M_ee_loop_{name}", "salu"))
    p.label(f"M_ee_done_{name}")


def e_bfr(n, qt):
    o = 16 * (n % E_NSLOT) + 4 * qt
    return eB[o:o + 4]


def e_issue_b(q, n, kind, pair_off, rotated=True):
    rot = rotated and pair_off < 3
    aoff = 0 if rot else pair_off * 8 * 6144
    if kind < 2:
        q.s("s_add_u32", eSa, sEact, aoff + kind * 6144)
        if rot:
            q.s("s_add_u32", eSa, eSa, ePA[pair_off])
        for qt in range(4):
            q.bload(e_bfr(n, qt), eLin, rWS, soff=eSa, off=1024 * qt, flags=SC1)
    else:
        for hf in range(2):
            q.s("s_add_u32", eSa, sEact, aoff + hf * 6144 + 4096)
            if rot:
                q.s("s_add_u32", eSa, eSa, ePA[pair_off])
            for qt in range(4):
                q.bload(e_bfr(n, qt)[2 * hf:2 * hf + 2], eLin8, rWS, soff=eSa, off=512 * qt, flags=SC1)


def phase_e(p, T):
    st0, st1 = st[0], st[1]
    vt_ = V(240, 4)

    def accr(t, qt):
        return eAcc[16 * t + 4 * qt:16 * t + 4 * qt + 4]

    def afr(i):
        return eA[4 * (i % 4):4 * (i % 4) + 4]

    def rd_a(n, t):
        q = Prog()
        for h in range(2):
            q.ds_read("ds_read_b64_tr_b16", afr(4 * n + t)[2 * h:2 * h + 2], eVtr[t],
                      off=(n % E_NSLOT) * 4096 + 2048 * h, dep=("e", n))
        return q.ins

    def step(n, first, nxt, have_next):
        mf = []
        for t in range(4):
            for qt in range(4):
                def mm(t=t, qt=qt):
                    d = accr(t, qt)
                    x = p.mfma16(d, afr(4 * n + t), e_bfr(n, qt), d if not first else 0)
                    if ILV and t == 0 and qt == 0:
                        also(x, [e_bfr(n, k) for k in range(4)])
                mf.append(mm)
        sc = Sched(mf)
        tg = []
        for t in range(4):
            tn, nn = (t + 2) % 4, n + (t + 2) // 4
            if nn == n or have_next:
                r = rd_a(nn, tn)
                sc.fixed(4 * t, r[:1])
                sc.fixed(4 * t + 1, r[1:])
        if ILV and nxt:
            free = [g for g in range(16) if g % 4 >= 2]
            g, k = 0, 0
            pend = []
            for x in nxt:
                if x.kind in ("salu",):
                    pend.append(x)
                elif x.kind == "nop":
                    continue
                elif k < len(free):
                    gap = free[k]
                    for y in pend:
                        sc.fixed(gap - 1, [y])
                    pend = []
                    sc.fixed(gap, [x])
                    k += 1
                else:
                    sc.oth[15] += pend + [x]
                    pend = []
            sc.oth[15] += pend
        else:
            sc.fixed(15, nxt)
        sc.emit(p)

    x1 = V(160, 8)
    gb = V(168, 16)
    p.s("s_lshl_b32", st[4], shg, 5)
    poll_flags(p, F_ACT, st[4], 29, "act")
    T("e_go")
    for n in range(E_NSLOT):
        e_issue_b(p, n, n % 3, n // 3)
    p.s("s_lshl_b32", st0, sErb, 16)
    p.s("s_lshl_b32", st1, sEcb, 13)
    p.s("s_add_u32", st0, st0, st1)
    p.s("s_lshl_b32", st1, sw, 10)
    p.s("s_add_u32", st0, st0, st1)
    p.s("s_add_u32", st0, st0, WS_X1)
    p.bload(x1[0:4], eLin, rWS, soff=st0, flags=SC1)
    p.s("s_add_u32", st0, st0, 4096)
    p.bload(x1[4:8], eLin, rWS, soff=st0, flags=SC1)
    p.v("v_lshrrev_b32", vt_[1], 4, vl)
    p.v("v_lshlrev_b32", vt_[1], 4, vt_[1])
    p.s("s_lshl_b32", st0, sEcb, 8)
    p.s("s_add_u32", st0, st0, WS_MOD + 5 * 2048)
    for t in range(4):
        p.bload(gb[4 * t:4 * t + 4], vt_[1], rWS, soff=st0, off=64 * t, flags=SC1)
    for t in range(2):
        for x in rd_a(0, t):
            p.add(x)
    if EBAL:
        assert ILV

        def normal(n):
            q = Prog()
            m = n - 1 + E_NSLOT
            if E_NSLOT <= m < 9:
                e_issue_w(q, m, m % 3, m // 3)
                e_issue_b(q, m, m % 3, m // 3)
            return q.ins

        for n in range(6):
            step(n, n == 0, normal(n), True)
        T("e_main")
        p.s("s_cmp_eq_u32", eSet, 2)
        p.branch("s_cbranch_scc1", "E_split")
        for variant in ("full", "split"):
            if variant == "split":
                p.label("E_split")
            for n in range(6, 11):
                q = Prog()
                m = n - 1 + E_NSLOT
                if m in (9, 10):
                    if variant == "full":
                        e_issue_at(q, m, 0, eA9 if m == 9 else eA10, eW9 if m == 9 else eW10, [0], [0, 16])
                    else:
                        pair = 12 + (m - 9)
                        a0 = (2 * pair) * 6144 + 4096 - 2 * 2 * 6144
                        r0 = 96 * pair - 2 * 96
                        e_issue_at(q, m, 2, sEact, sEwd, [a0, a0 + 6144], [r0 + 32, r0 + 80])
                step(n, False, q.ins, n < 10)
            if variant == "full":
                p.branch("s_branch", "E_red")
    else:
        for n in range(9):
            q = Prog()
            m = n - 1 + E_NSLOT if ILV else n + E_NSLOT
            if m < 9 and m >= E_NSLOT:
                e_issue_w(q, m, m % 3, m // 3)
                e_issue_b(q, m, m % 3, m // 3)
            step(n, n == 0, q.ins, n < 8)
        T("e_main")
        p.s("s_cmp_lt_u32", eSet, 2)
        p.branch("s_cbranch_scc1", "E_four")
        p.s("s_cmp_eq_u32", eSet, 3)
        p.branch("s_cbranch_scc1", "E_red")
        n = 9
        p.s("s_sub_u32", sEact, sEact, 2 * 2 * 6144 - 28 * 6144)
        p.s("s_sub_u32", sEwd, sEwd, 2 * 96 * 1024 - 1344 * 1024)
        e_issue_w(p, n, 0, 0, rotated=False)
        e_issue_b(p, n, 0, 0, rotated=False)
        for t in range(2):
            for x in rd_a(n, t):
                p.add(x)
        step(n, False, [], False)
        p.branch("s_branch", "E_red")
        p.label("E_four")
        for n in range(9, 12):
            e_issue_w(p, n, n % 3, 3)
            e_issue_b(p, n, n % 3, 3)
        for t in range(2):
            for x in rd_a(9, t):
                p.add(x)
        for n in range(9, 12):
            step(n, False, [], n < 11)
    p.label("E_red")
    T("e_tail")
    p.wait(vm=0, lgkm=0)
    p.s("s_lshl_b32", st0, sw, 12)
    p.v("v_add_u32", vt_[0], st0, eLin)
    for qt in range(4):
        for t in range(4):
            p.ds_write("ds_write_b128", vt_[0], accr(t, qt), off=qt * 16384 + t * 1024)
    p.barrier()
    red = V(96, 64)
    p.s("s_lshl_b32", st0, sw, 14)
    p.v("v_add_u32", vt_[0], st0, eLin)
    for w in range(4):
        for t in range(4):
            p.ds_read("ds_read_b128", red[16 * w + 4 * t:16 * w + 4 * t + 4], vt_[0], off=w * 4096 + t * 1024)
    for k in range(8):
        p.v("v_pk_add_f32", red[2 * k:2 * k + 2], red[2 * k:2 * k + 2], red[16 + 2 * k:18 + 2 * k])
        p.v("v_pk_add_f32", red[32 + 2 * k:34 + 2 * k], red[32 + 2 * k:34 + 2 * k], red[48 + 2 * k:50 + 2 * k])
    for k in range(8):
        p.v("v_pk_add_f32", red[2 * k:2 * k + 2], red[2 * k:2 * k + 2], red[32 + 2 * k:34 + 2 * k])
    xf = V(184, 16)
    for j in range(2):
        for h in range(2):
            for i in range(2):
                src = x1[4 * j + 2 * h + i]
                k = 8 * j + 4 * h + 2 * i
                p.v("v_lshlrev_b32", xf[k], 16, src)
                p.v("v_and_b32", xf[k + 1], sHi, src)
    for k in range(16):
        p.v("v_fmac_f32", xf[k], red[k], gb[k])
    op = V(200, 8)
    for k in range(8):
        p.v("v_cvt_pk_bf16_f32", op[k], xf[2 * k], xf[2 * k + 1])
    p.v("v_and_b32", vt_[0], 15, vl)
    p.v("v_lshlrev_b32", vt_[0], 10, vt_[0])
    p.v("v_lshrrev_b32", vt_[1], 4, vl)
    p.v("v_lshlrev_b32", vt_[1], 3, vt_[1])
    p.v("v_add_u32", vt_[0], vt_[0], vt_[1])
    p.s("s_lshl_b32", st0, sErb, 6)
    p.s("s_lshl_b32", st1, sw, 4)
    p.s("s_add_u32", st0, st0, st1)
    p.s("s_lshl_b32", st0, st0, 10)
    p.s("s_lshl_b32", st1, sEcb, 7)
    p.s("s_add_u32", st0, st0, st1)
    for t in range(4):
        p.bstore(op[2 * t:2 * t + 2], vt_[0], rOut, soff=st0, off=32 * t, flags=SC1)


aTouch = A(240, 8)


CODE_LINES = 24


def code_prefetch_tail(p):
    sPC = S(92, 2)
    p.add(I(f"s_getpc_b64 {sPC}", "salu", units(sPC), ()))
    p.label("M_pc2")
    p.add(I(f"s_add_u32 {sPC[0]}, {sPC[0]}, B_norm-M_pc2", "salu", units(sPC[0]), units(sPC[0])))
    p.add(I(f"s_addc_u32 {sPC[1]}, {sPC[1]}, 0", "salu", units(sPC[1]), units(sPC[1])))
    p.s("s_mul_i32", st[1], srb, 10)
    p.v("v_min_u32", vt[0], 9, vl)
    p.v("v_add_u32", vt[0], st[1], vt[0])
    p.v("v_lshlrev_b32", vt[0], 6, vt[0])
    p.v("v_min_u32", vt[0], "(B_end-B_norm)", vt[0])
    p.add(I(f"global_load_dword {A(254)}, {vt[0]}, {sPC}", "vload", units(A(254)), units(vt[0], sPC)))


def code_prefetch(p):
    p.s("s_cmp_lg_u32", sw, 1)
    p.branch("s_cbranch_scc1", "M_no_codepf")
    sPC = S(92, 2)
    p.add(I(f"s_getpc_b64 {sPC}", "salu", units(sPC), ()))
    p.label("M_pc")
    p.add(I(f"s_sub_u32 {sPC[0]}, {sPC[0]}, M_pc-{KNAME}", "salu", units(sPC[0]), units(sPC[0])))
    p.add(I(f"s_subb_u32 {sPC[1]}, {sPC[1]}, 0", "salu", units(sPC[1]), units(sPC[1])))
    p.s("s_mul_i32", st[1], srb, CODE_LINES)
    p.v("v_min_u32", vt[0], CODE_LINES - 1, vl)
    p.v("v_add_u32", vt[0], st[1], vt[0])
    p.v("v_lshlrev_b32", vt[0], 6, vt[0])
    p.v("v_min_u32", vt[0], f"(B_end-{KNAME})", vt[0])
    p.add(I(f"global_load_dword {A(254)}, {vt[0]}, {sPC}", "vload", units(A(254)), units(vt[0], sPC)))
    p.label("M_no_codepf")


def get_tag(p):
    p.v("v_accvgpr_read_b32", V(62), aT)
    p.v("v_readfirstlane_b32", sTag, V(62))
    p.s("s_add_u32", sTag, sTag, 1)


sTch = S(69)


def bg_touch():
    q = Prog()
    q.bload(aTouch[0], vlin, rTMP, soff=sTch)
    q.s("s_add_u32", sTch, sTch, 1024)
    return q.ins


def bg_q_setup(p):
    p.s("s_cmp_lt_u32", srb, 16)
    for h in range(4):
        p.s("s_cselect_b32", rTMP[h], rK[h], rV[h])
    p.s("s_lshl_b32", sTch, srot, 13)


def bg_q(n):
    if n < 12 and n % 3 < 2:
        return {9: bg_touch()}
    return None


def bg_att_setup(p, ptr2):
    for k, name in enumerate(("wg", "wu", "wd")):
        for h in range(2):
            if k == 0:
                p.s("s_mov_b32", rTMP[h], ptr2[name][h])
            else:
                p.s("s_cmp_eq_u32", sw, k + 1)
                p.s("s_cselect_b32", rTMP[h], ptr2[name][h], rTMP[h])
    p.s("s_cmp_eq_u32", sw, 0)
    p.s("s_cselect_b32", rTMP[2], 0, SZ["wd"])
    p.s("s_mul_i32", sTch, S(2), 5504)


def bg_att(t):
    if t % 2 == 0 and t < 12:
        return {12: bg_touch()}
    return None


def touch_mlp_window(p, ptr2):
    p.s("s_cmp_lt_u32", S(2), N_MOD0 + N_MOD1)
    p.branch("s_cbranch_scc1", "M_no_win")
    p.s("s_cmp_eq_u32", sw, 0)
    p.branch("s_cbranch_scc1", "M_no_win")
    vo = vt[6]
    p.v("v_lshlrev_b32", vo, 6, vl)
    for k, name in enumerate(("wg", "wu", "wd")):
        for h in range(2):
            if k == 0:
                p.s("s_mov_b32", rTMP[h], ptr2[name][h])
            else:
                p.s("s_cmp_eq_u32", sw, k + 1)
                p.s("s_cselect_b32", rTMP[h], ptr2[name][h], rTMP[h])
    p.s("s_mov_b32", rTMP[2], SZ["wd"])
    p.s("s_mov_b32", rTMP[3], 0x20000)
    p.s("s_sub_u32", st[2], S(2), N_MOD0 + N_MOD1)
    p.s("s_lshl_b32", st[2], st[2], 12)
    for i in range(3):
        p.bload(aTouch[i], vo, rTMP, soff=st[2])
        if i < 2:
            p.s("s_add_u32", st[2], st[2], 160 * 4096)
    p.label("M_no_win")


def touch_all(p, ptr2):
    vo = vt[6]
    p.v("v_lshlrev_b32", vo, 6, vl)
    p.s("s_cmp_lt_u32", srb, 16)
    for h in range(4):
        p.s("s_cselect_b32", rTMP[h], rK[h], rV[h])
    p.s("s_lshl_b32", st[2], srot, 13)
    p.bload(aTouch[0], vo, rTMP, soff=st[2])
    p.s("s_add_u32", st[2], st[2], 4096)
    p.bload(aTouch[1], vo, rTMP, soff=st[2])
    for k, name in enumerate(("wg", "wu", "wd")):
        for h in range(2):
            if k == 0:
                p.s("s_mov_b32", rTMP[h], ptr2[name][h])
            else:
                p.s("s_cmp_eq_u32", sw, k + 1)
                p.s("s_cselect_b32", rTMP[h], ptr2[name][h], rTMP[h])
    p.s("s_mov_b32", rTMP[2], SZ["wd"])
    p.s("s_lshl_b32", st[2], S(2), 12)
    p.s("s_cmp_eq_u32", sw, 0)
    p.s("s_cselect_b32", st[2], SZ["wd"], st[2])
    p.bload(aTouch[3], vo, rTMP, soff=st[2])
    p.s("s_add_u32", st[2], st[2], 256 * 4096)
    p.bload(aTouch[4], vo, rTMP, soff=st[2])


def touch_streams(p, ptr2, all_waves=False):
    if all_waves:
        return touch_all(p, ptr2)
    p.s("s_cmp_eq_u32", sw, 0)
    p.branch("s_cbranch_scc1", "M_no_touch")
    vo = vt[6]
    p.v("v_lshlrev_b32", vo, 6, vl)
    p.s("s_cmp_lt_u32", srb, 16)
    p.s("s_cselect_b32", rTMP[0], ptr2["k"][0], ptr2["v"][0])
    p.s("s_cselect_b32", rTMP[1], ptr2["k"][1], ptr2["v"][1])
    p.s("s_lshl_b32", st[1], shg, 21)
    p.s("s_add_u32", st[1], st[1], 1536 * 256)
    p.s("s_add_u32", rTMP[0], rTMP[0], st[1])
    p.s("s_addc_u32", rTMP[1], rTMP[1], 0)
    p.s("s_mov_b32", rTMP[2], 4 << 19)
    p.s("s_mov_b32", rTMP[3], 0x20000)
    p.s("s_lshl_b32", st[2], srot, 13)
    for m in range(3 if KVTOUCH else 0):
        p.s("s_add_u32", st[1], sw, 3 * m - 1)
        p.s("s_lshr_b32", st[3], st[1], 1)
        p.s("s_lshl_b32", st[3], st[3], 19)
        p.s("s_and_b32", st[1], st[1], 1)
        p.s("s_lshl_b32", st[1], st[1], 12)
        p.s("s_add_u32", st[1], st[1], st[3])
        p.s("s_add_u32", st[1], st[1], st[2])
        p.bload(aTouch[m], vo, rTMP, soff=st[1])
    if MLPTOUCH == "wd":
        p.s("s_cmp_lg_u32", sw, 3)
        p.branch("s_cbranch_scc1", "M_no_touch")
    for k, name in enumerate(("wg", "wu", "wd")):
        for h in range(2):
            if k == 0:
                p.s("s_mov_b32", rTMP[h], ptr2[name][h])
            else:
                p.s("s_cmp_eq_u32", sw, k + 1)
                p.s("s_cselect_b32", rTMP[h], ptr2[name][h], rTMP[h])
    p.s("s_mov_b32", rTMP[2], SZ["wd"])
    p.s("s_lshl_b32", st[2], S(2), 12)
    p.bload(aTouch[3], vo, rTMP, soff=st[2])
    p.s("s_add_u32", st[2], st[2], 256 * 4096)
    p.bload(aTouch[4], vo, rTMP, soff=st[2])
    p.label("M_no_touch")


def touch_d_weights(p):
    p.s("s_cmp_eq_u32", sw, 0)
    p.branch("s_cbranch_scc1", "M_no_touch_d")
    p.s("s_cmp_eq_u32", sDact, 0)
    p.branch("s_cbranch_scc1", "M_no_touch_d")
    vo = V(170)
    p.v("v_lshrrev_b32", V(171), 1, vl)
    p.s("s_mov_b32", st[0], ROWB)
    p.v("v_mul_lo_u32", V(171), V(171), st[0])
    p.v("v_and_b32", vo, 1, vl)
    p.v("v_lshlrev_b32", vo, 6, vo)
    p.v("v_add_u32", vo, vo, V(171))
    p.s("s_and_b32", st[0], srb, 3)
    p.s("s_mul_i32", st[0], st[0], 128 * ROWB)
    p.s("s_mul_i32", st[1], sDcg, 96)
    p.s("s_add_u32", st[0], st[0], st[1])
    p.s("s_sub_u32", st[1], sw, 1)
    p.s("s_mul_i32", st[1], st[1], 32 * ROWB)
    p.s("s_add_u32", st[1], st[1], st[0])
    p.bload(aTouch[0], vo, rG, soff=st[1])
    p.bload(aTouch[1], vo, rU, soff=st[1])
    p.s("s_add_u32", st[1], st[0], 3 * 32 * ROWB)
    p.s("s_cmp_eq_u32", sw, 3)
    p.s("s_cselect_b32", st[1], st[1], SZ["wg"])
    p.bload(aTouch[2], vo, rG, soff=st[1])
    p.bload(aTouch[3], vo, rU, soff=st[1])
    p.label("M_no_touch_d")


DBGSTAMPS = ["rt0", "ln", "h_ready", "q_done", "att_loop", "o_done", "r_go", "r_done", "d_go", "d_mma", "e_go", "e_main", "rt1"]
DBGWG = 128


def gen_mega(diag=False):
    p = Prog()
    T = Stamps(p, diag, vreg=V(0), early=0, only=DBGSTAMPS if diag == "dbg" else None)
    p.s("s_cmp_ge_u32", S(2), 256)
    p.branch("s_cbranch_scc1", "B_end")
    p.v("v_mov_b32", vtid2, V(0))
    T("rt0", True)
    T("start")
    ptr = {k: S(52 + 2 * i, 2) for i, k in enumerate(["x", "ws", "dbg", "wmod", "c", "wq"])}
    for k in ptr:
        p.s_load(ptr[k], S(0, 2), ARG[k])
    p.v("v_lshrrev_b32", vt[0], 6, vtid2)
    p.v("v_and_b32", vl, 63, vtid2)
    p.v("v_readfirstlane_b32", sw, vt[0])
    p.s("s_and_b32", shg, S(2), 7)
    p.s("s_lshr_b32", srb, S(2), 3)
    if CODEPF and PFTOP:
        code_prefetch(p)
    p.s("s_and_b32", srot, srb, 15)
    p.s("s_lshl_b32", shead, shg, 2)
    p.s("s_mov_b32", sHi, 0xFFFF0000)
    vq, vg = vtmp[0], vtmp[1]
    p.v("v_and_b32", vq, 15, vl)
    p.v("v_lshrrev_b32", vg, 4, vl)
    p.v("v_lshlrev_b32", vlin, 4, vl)
    p.v("v_mov_b32", vpoll, 0)
    p.s("s_add_u32", shead, shead, sw)
    p.s("s_mul_i32", sMW, sw, WRING)
    p.s("s_lshl_b32", sMS, sw, 14)
    p.s("s_add_u32", sMS, sMS, SH)
    vxo = vtmp[2]
    p.s("s_lshl_b32", st[0], srb, 6)
    p.s("s_lshl_b32", st[1], sw, 4)
    p.s("s_add_u32", st[0], st[0], st[1])
    p.v("v_add_u32", vxo, st[0], vq)
    p.v("v_lshlrev_b32", vxo, 10, vxo)
    p.v("v_lshl_add_u32", vxo, vg, 4, vxo)
    p.wait(lgkm=0)
    srd(p, rX, ptr["x"], SZ["x"])
    srd(p, rWS, ptr["ws"], WS_DIAG_END if diag == "diag" else WS_END)
    srd(p, rDBG, ptr["dbg"], 256)
    srd(p, rWQ, ptr["wq"], SZ["wq"])
    ptr2 = {k: S(64 + 12 + 2 * i, 2) for i, k in enumerate(["k", "v", "wo", "wg", "wu", "wd", "out"])}
    for k in ptr2:
        p.s_load(ptr2[k], S(0, 2), ARG[k])
    p.s("s_mov_b32", st[0], WS_EPOCH)
    p.bload(aT, vpoll, rWS, soff=st[0], flags=SC1)
    if CODEPF and not PFTOP:
        code_prefetch(p)
    srd(p, rTMP, ptr["wmod"], SZ["wmod"])
    srd(p, rTMP2, ptr["c"], SZ["c"])
    slab_map(p)
    if SLABW:
        p.s("s_cmp_lt_u32", S(2), N_MOD0)
        p.s("s_cselect_b32", st[3], 0, 3)
        p.s("s_cmp_lg_u32", sw, st[3])
        p.branch("s_cbranch_scc1", "M_no_slab")
        p.s("s_cmp_ge_u32", S(2), N_MOD0 + N_MOD1)
        p.branch("s_cbranch_scc1", "M_no_slab")
        slabw_issue(p, S(2))
    else:
        p.s("s_cmp_ge_u32", sSlab, N_MOD0 + N_MOD1 if SLAB1EARLY else N_MOD0)
        p.branch("s_cbranch_scc1", "M_no_slab")
        slab_issue(p, sSlab)
    p.label("M_no_slab")
    T("s_iss")
    p.wait(lgkm=0)
    bc_setup(p, ptr2)
    if NOMEM:
        for r_ in (rK, rV, rWO, rWQ):
            p.s("s_mov_b32", r_[2], 0)
    vone, vz = vtmp[4:8], vtmp[8:12]
    dma_voffs(p, vdQ, 8192, "n8", 8)
    p.s("s_lshl_b32", sA, srot, 18)
    p.s("s_lshl_b32", st[1], shead, 8)
    p.s("s_add_u32", sA, sA, st[1])
    vX = V(64, 64)
    sX = S(91)

    def x_loads(lo, hi):
        for n in range(lo, hi):
            p.bload(vX[4 * n:4 * n + 4], vxo, rX, soff=sX)
            if n < 15:
                p.s("s_add_u32", sX, sX, 64)
                p.s("s_and_b32", sX, sX, 0x3FF)

    p.s("s_lshl_b32", sX, srot, 6)
    p.s("s_cmp_ge_u32", sSlab, N_MOD0)
    p.branch("s_cbranch_scc1", "M_no_slab_f")
    if SLABW:
        p.s("s_cmp_lg_u32", sw, 0)
        p.branch("s_cbranch_scc1", "M_no_slab_f")
        slabw_finish(p, T, S(2), "slab0")
    else:
        slab_finish(p, T, sSlab, "slab0")
        p.barrier()
    p.label("M_no_slab_f")
    x_loads(0, 16)
    if TOUCH == "early":
        p.s("s_cmp_lt_u32", S(2), N_MOD0 + N_MOD1)
        p.branch("s_cbranch_scc1", "M_skip_touch")
        touch_streams(p, ptr2)
        p.label("M_skip_touch")
    T("issued")
    if not SLAB1EARLY and not SLABW:
        p.s("s_sub_u32", st[5], sSlab, N_MOD0)
        p.s("s_cmp_ge_u32", st[5], N_MOD1)
        p.branch("s_cbranch_scc1", "M_no_slab1i")
        slab_issue(p, sSlab)
        p.label("M_no_slab1i")
    dma_now(p, "wq", 0)
    T("setup")

    gram, rsum = vtmp[12:16], A(232, 4)
    for n in range(16):
        xs = vX[4 * n:4 * n + 4]
        p.mfma16(gram, xs, xs, gram if n else 0)
        p.mfma16(rsum, vone, xs, rsum if n else 0)
    rs0 = vt[6]
    p.v("v_accvgpr_read_b32", rs0, rsum[0])
    mu, rs2, nm2 = vt[7], V(50, 2), V(52, 2)
    row_stats(p, gram, [rs0], vq, vg, mu, rs2[0], nm2[0], vt[0], vt[1])
    p.v("v_mov_b32", rs2[1], rs2[0])
    p.v("v_mov_b32", nm2[1], nm2[0])
    vY = V(128, 128)
    for n in range(16):
        xs = vX[4 * n:4 * n + 4]
        y = vY[8 * n:8 * n + 8]
        for i in range(4):
            p.v("v_lshlrev_b32", y[2 * i], 16, xs[i])
            p.v("v_and_b32", y[2 * i + 1], sHi, xs[i])
        for i in range(4):
            p.v("v_pk_fma_f32", y[2 * i:2 * i + 2], y[2 * i:2 * i + 2], rs2, nm2)
    T("ln")
    p.s("s_sub_u32", st[5], sSlab, N_MOD0)
    p.s("s_cmp_ge_u32", st[5], N_MOD1)
    p.branch("s_cbranch_scc1", "M_no_slab1")
    if SLABW:
        p.s("s_cmp_lg_u32", sw, 3)
        p.branch("s_cbranch_scc1", "M_no_slab1")
        slabw_finish(p, T, S(2), "slab1")
    else:
        slab_finish(p, T, sSlab, "slab1")
    p.label("M_no_slab1")
    vts = vt[5]
    p.s("s_lshl_b32", st[1], sw, 2)
    p.s("s_add_u32", st[1], st[1], srot)
    p.v("v_add_u32", vt[0], st[1], vg)
    p.v("v_and_b32", vt[0], 15, vt[0])
    p.v("v_lshlrev_b32", vt[0], 8, vt[0])
    p.v("v_lshrrev_b32", vt[1], 3, vq)
    p.v("v_lshl_add_u32", vt[0], vt[1], 12, vt[0])
    p.v("v_and_b32", vt[1], 7, vq)
    p.v("v_lshl_add_u32", vts, vt[1], 5, vt[0])
    if TOUCH in ("midq", "win", "bg"):
        dma_now(p, "wq", 1)
    if TOUCH == "win":
        touch_mlp_window(p, ptr2)
    get_tag(p)
    g8 = V(64, 8)
    p.s("s_mov_b32", sp1, 0)
    p.s("s_mov_b32", st[1], WS_MODG)
    p.label("P_modg")
    p.bload(g8[0:4], vts, rWS, soff=st[1], flags=SC1)
    p.bload(g8[4:8], vts, rWS, soff=st[1], off=16, flags=SC1)
    p.v("v_cmp_eq_u32", VCC, sTag, g8[1])
    p.s("s_mov_b64", sexec, VCC)
    for k in (3, 5, 7):
        p.v("v_cmp_eq_u32", VCC, sTag, g8[k])
        p.s("s_and_b64", sexec, sexec, VCC)
    p.add(I(f"s_cmp_eq_u64 {sexec}, exec", "salu", (), units(sexec)))
    p.branch("s_cbranch_scc1", "P_modg_done")
    p.s("s_add_u32", sp1, sp1, 1)
    p.s("s_cmp_lt_u32", sp1, 0x40000)
    p.raw(f"s_sleep {POLLSLEEP}") if POLLSLEEP else p.nop(0)
    p.add(I("s_cbranch_scc1 P_modg", "salu"))
    p.label("P_modg_done")
    T("mod0")
    if TOUCH == "v1":
        dma_now(p, "wq", 1)
        touch_streams(p, ptr2)
    p.v("v_mov_b32", g8[1], g8[2])
    p.v("v_mov_b32", g8[2], g8[4])
    p.v("v_mov_b32", g8[3], g8[6])
    p.s("s_lshl_b32", st[1], sw, 10)
    p.s("s_add_u32", st[1], st[1], TAB)
    p.v("v_add_u32", vt[4], st[1], vlin)
    p.ds_write("ds_write_b128", vt[4], g8[0:4])
    vtab, vhw = vt[2], vt[3]
    p.v("v_lshlrev_b32", vtab, 5, vg)
    p.v("v_add_u32", vtab, TAB, vtab)
    p.s("s_lshl_b32", st[1], sw, 10)
    p.s("s_add_u32", st[1], st[1], SH)
    p.v("v_add_u32", vhw, st[1], vlin)
    p.barrier()
    T("tab")
    if TOUCH not in ("v1", "midq", "win", "bg"):
        dma_now(p, "wq", 1)
    if TOUCH == "aftertab":
        touch_streams(p, ptr2)

    def rd_tab(n):
        tb = V(64 + 16 * (n % 3), 16)
        for i, o in enumerate((0, 16, 128, 144)):
            p.ds_read("ds_read_b128", tb[4 * i:4 * i + 4], vtab, off=n * 256 + o)

    rd_tab(0)
    rd_tab(1)
    for n in range(16):
        tb = V(64 + 16 * (n % 3), 16)
        y = vY[8 * n:8 * n + 8]
        o4 = V(112 + 4 * (n & 3), 4)
        if n + 2 < 16:
            rd_tab(n + 2)
        for i in range(4):
            p.v("v_pk_fma_f32", y[2 * i:2 * i + 2], y[2 * i:2 * i + 2], tb[8 + 2 * i:10 + 2 * i], tb[2 * i:2 * i + 2])
        for i in range(4):
            p.v("v_cvt_pk_bf16_f32", o4[i], y[2 * i], y[2 * i + 1])
        p.ds_write("ds_write_b128", vhw, o4, off=n * 4096)
        if n == 7:
            T("h_half")
    T("h_tr")
    for i in range(8):
        zero16(p, vACC[16 * i:16 * i + 16], vz)
    if TOUCH == "bg":
        bg_q_setup(p)
    T("h_zero")
    p.barrier()
    T("h_ready")

    bc_main(p, T, store_flags=SC1, at_q_done=late_signals, before_norm=early_sample,
            o2_hooks=o2_hooks() if TWOPASS else None,
            mid_q={1: lambda q: touch_streams(q, ptr2, all_waves=True)} if TOUCH == "midq" else None,
            bg_q=bg_q if TOUCH == "bg" else None, bg_att=bg_att if TOUCH == "bg" else None,
            before_att=(lambda q: bg_att_setup(q, ptr2)) if TOUCH == "bg" else None)
    T("o_done")

    ptr3 = ptr2
    srd(p, rG, ptr3["wg"], SZ["wg"])
    srd(p, rU, ptr3["wu"], SZ["wu"])
    srd(p, rD, ptr3["wd"], SZ["wd"])
    srd(p, rOut, ptr3["out"], SZ["out"])
    d_ids(p)
    if not TWOPASS:
        r_addr(p)
        check_mod1(p)
        r_side_loads(p)
        r_mod_loads(p, (2,))
    signal(p, F_PART, S(2), "part", pre=confirm_early, T=T)
    T("part_sig")
    if EARLYW:
        p.s("s_cmp_eq_u32", sDact, 0)
        p.branch("s_cbranch_scc1", "M_no_dw_early")
        d_weights(p, drain=False)
        p.label("M_no_dw_early")
    if TWOPASS:
        r_mod_loads(p, (2,))
        r_sum(p, 0)
        T("r_sum0")
    p.s("s_lshl_b32", st[5], srb, 3)
    poll_flags(p, F_PART, st[5], 8, "part")
    T("r_go")
    if not TWOPASS:
        r_partial_loads(p, 0)
    r_partial_loads(p, 1)
    if not TWOPASS:
        r_sum(p, 0)
    r_sum(p, 1)
    T("r_sum")
    phase_r_compute(p, T)
    signal(p, F_H2, S(2), "h2")
    T("r_done")
    e_setup(p)

    def e_prefetch():
        for n in range(E_NSLOT):
            e_issue_w(p, n, n % 3, n // 3)

    p.s("s_cmp_eq_u32", sDact, 0)
    p.branch("s_cbranch_scc1", "M_no_d")
    phase_d(p, T, e_prefetch)
    if EARLYW:
        p.branch("s_branch", "M_e")
        p.label("M_no_d")
        e_early(p, "n")
        p.wait(vm=0)
        p.label("M_e")
    else:
        p.label("M_no_d")
        e_prefetch()
    T("d_done")
    phase_e(p, T)
    T("e_done")
    if diag:
        p.wait(vm=0)
    T("rt1", True)
    if diag == "dbg":
        p.s("s_cmp_lg_u32", S(2), DBGWG)
        p.branch("s_cbranch_scc1", "M_dbg_done")
        p.s("s_cmp_lg_u32", sw, 0)
        p.branch("s_cbranch_scc1", "M_dbg_done")
        p.v("v_readlane_b32", S(100), V(0), 0)
        p.v("v_subrev_u32", V(0), S(100), V(0))
        p.v("v_mbcnt_lo_u32_b32", vt[1], -1, 0)
        p.v("v_mbcnt_hi_u32_b32", vt[1], -1, vt[1])
        p.v("v_lshlrev_b32", vt[1], 2, vt[1])
        p.v("v_add_u32", vt[1], 12, vt[1])
        p.s("s_mov_b64", EXEC, 0x1FFE)
        p.bstore(V(0), vt[1], rDBG, soff=0)
        p.s("s_mov_b64", EXEC, -1)
        p.label("M_dbg_done")
    else:
        T.flush(rWS, sw, 1, vt[0], vt[1])
    gen_mega.stamp_names = T.names
    p.branch("s_branch", "B_end")
    slow_attention(p)
    p.label("B_end")
    resolve_ovw(p.ins)
    return finalize(p, {"gq": sLoop, "ga": sLoop, "go": sLoop, "gd": sLoop}, verbose=4, name="MEGA")


DESCRIPTION = """;
;   2. Q projection, attention over the 512-key window, output projection partial [64 x 512] (bf16, write-through)
; Hand-offs between workgroups: sc1 stores, drained, then a flag (or {value, tag} granules); sc1 loads after the poll.
;
"""


def assemble_mega(diag=False):
    from build import HEAD
    body = gen_mega(diag)
    s = HEAD + DESCRIPTION + f"; @launch grid=(256,1,1) block=(256,1,1) lds={M_LDS}\n"
    s += '.amdgcn_target "amdgcn-amd-amdhsa--gfx950"\n'
    s += kernel_text(KNAME, body, 512, 256)
    return s


if __name__ == "__main__":
    import sys
    diag = len(sys.argv) > 2 and sys.argv[2] in ("diag", "dbg") and sys.argv[2]
    for a in sys.argv[3:]:
        k, v = a.split("=")
        globals()[k] = int(v) if v.isdigit() else v
        if k == "EXP":
            kb2.EXP = v
        if k == "DMAC":
            kb2.DMA_COST = int(v)
        if k == "OROLL":
            kb2.OROLL = int(v)
        if k == "TRIM":
            kb2.TRIM = int(v)
        if k == "QNAT":
            kb2.QNAT = int(v)
        if k == "NEWS":
            kb2.NEWS = int(v)
        if k == "DIST":
            kb2.DIST = int(v)
        if k == "ALIGN":
            import asmlib
            asmlib.ALIGN_LOOPS = int(v)
    txt = assemble_mega(diag)
    open(sys.argv[1], "w").write(txt)
    print("wrote", sys.argv[1], len(txt))
    if diag:
        print(",".join(gen_mega.stamp_names))
```

```python
from asmlib import *
from layout import *
from ka import srd, bf16_round_hi
import kb2
from kb2 import *

KNAME = NAME + "_kernel"
M_LDS = B_LDS
SC1 = "sc1"
TOUCH = "v1"
CODEPF = 1
SLAB1EARLY = 0
TWOPASS = 0
RMFMA = 1
PFTOP = 1
DROLL = 1
EBAL = 0
POLLSLEEP = 1
SLABMAP = 0
ILV = 1
EROT = 1
SLABW = 0
MLPTOUCH = "all"
EARLYW = 1
NOMEM = 0
KVTOUCH = 1

DBG_MOD0 = 0
DBG_MOD1 = 8
DBG_CLR = 12
DBG_FLAG0 = 128
N_CNT = 256
N_MOD0, N_MOD1 = 32, 64
F_PART, F_H2, F_ACT, F_PART1 = 0, 1, 2, 3

rDBG = S(96, 4)
rTMP = S(92, 4)
rTMP2 = S(72, 4)
sTag = S(90)
aT = A(253)
sp0, sp1 = S(50), S(51)
rG, rU, rD, rOut = rWQ, rK, rV, rWO
vpoll = V(63)
vtid2 = V(45)


def poll(p, srd_, off, target, name, sleep=16):
    lab, done = f"P_{name}", f"P_{name}_done"
    p.s("s_cmp_lg_u32", sw, 0)
    p.branch("s_cbranch_scc1", done)
    p.s("s_mov_b32", sp1, 0)
    p.label(lab)
    p.bload(V(62), vpoll, srd_, soff=0, off=off, flags=SC1)
    p.wait(vm=0)
    p.v("v_readfirstlane_b32", sp0, V(62))
    p.s("s_cmp_ge_u32", sp0, target)
    p.branch("s_cbranch_scc1", done)
    p.s("s_add_u32", sp1, sp1, 1)
    p.s("s_cmp_lt_u32", sp1, 0x20000)
    p.raw(f"s_sleep {sleep}")
    p.add(I(f"s_cbranch_scc1 {lab}", "salu"))
    p.label(done)
    p.barrier(drain_lds=True)


vflag = V(61)


def poll_flags(p, kind, sfirst, count, name):
    lab, done = f"P_{name}", f"P_{name}_done"
    p.s("s_cmp_lg_u32", sw, 0)
    p.branch("s_cbranch_scc1", done)
    p.s("s_mov_b32", sp1, 0)
    p.v("v_min_u32", vflag, count - 1, vl)
    p.v("v_lshlrev_b32", vflag, 7, vflag)
    p.s("s_lshl_b32", sp0, sfirst, 7)
    p.s("s_add_u32", S(47), sp0, WS_FLAG + kind * 256 * 128)
    p.label(lab)
    p.bload(V(62), vflag, rWS, soff=S(47), flags=SC1)
    p.wait(vm=0)
    p.v("v_cmp_eq_u32", VCC, sTag, V(62))
    p.add(I("s_cmp_eq_u64 vcc, exec", "salu", (), units(VCC)))
    p.branch("s_cbranch_scc1", done)
    p.s("s_add_u32", sp1, sp1, 1)
    p.s("s_cmp_lt_u32", sp1, 0x40000)
    p.raw(f"s_sleep {POLLSLEEP}") if POLLSLEEP else p.nop(0)
    p.add(I(f"s_cbranch_scc1 {lab}", "salu"))
    p.label(done)
    p.barrier(drain_lds=True)


def set_flag(p, kind, sindex, value):
    p.v("v_mov_b32", V(62), value)
    p.v("v_mov_b32", vpoll, 0)
    p.s("s_lshl_b32", sp0, sindex, 7)
    p.s("s_add_u32", sp0, sp0, WS_FLAG + kind * 256 * 128)
    p.s("s_mov_b64", EXEC, 1)
    p.bstore(V(62), vpoll, rWS, soff=sp0, flags=SC1)
    p.s("s_mov_b64", EXEC, -1)


def spin(p, srd_, off, target, name):
    lab, done = f"W_{name}", f"W_{name}_done"
    p.s("s_mov_b32", sp1, 0)
    p.label(lab)
    p.bload(V(62), vpoll, srd_, soff=0, off=off, flags=SC1)
    p.wait(vm=0)
    p.v("v_readfirstlane_b32", sp0, V(62))
    p.s("s_cmp_ge_u32", sp0, target)
    p.branch("s_cbranch_scc1", done)
    p.s("s_add_u32", sp1, sp1, 1)
    p.s("s_cmp_lt_u32", sp1, 0x40000)
    p.raw("s_sleep 1")
    p.add(I(f"s_cbranch_scc1 {lab}", "salu"))
    p.label(done)


aEarly = A(248, 2)


def early_sample(p):
    p.bload(aEarly, vpoll, rDBG, soff=0, off=DBG_MOD1, flags=SC1)


def confirm_early(p):
    for k, (off, target) in ((1, (DBG_CLR, N_CNT)),):
        ok = f"C_early{k}_ok"
        p.v("v_accvgpr_read_b32", V(62), aEarly[k])
        p.v("v_readfirstlane_b32", sp0, V(62))
        p.s("s_cmp_ge_u32", sp0, target)
        p.branch("s_cbranch_scc1", ok)
        spin(p, rDBG, off, target, f"early{k}")
        p.label(ok)
    p.s("s_cmp_lg_u32", S(2), 0)
    p.branch("s_cbranch_scc1", "C_epoch_done")
    p.v("v_mov_b32", V(62), sTag)
    p.s("s_mov_b32", sp0, WS_EPOCH)
    p.s("s_mov_b64", EXEC, 1)
    p.bstore(V(62), vpoll, rWS, soff=sp0, flags=SC1)
    p.s("s_mov_b64", EXEC, -1)
    p.label("C_epoch_done")


def signal(p, kind, sindex, name, pre=None, T=None):
    done = f"S_{name}_done"
    p.wait(vm=0)
    if T:
        T(name + "_drain")
    if pre:
        p.s("s_cmp_lg_u32", sw, 0)
        p.branch("s_cbranch_scc1", f"S_{name}_pre")
        pre(p)
        p.label(f"S_{name}_pre")
    p.barrier(drain_lds=True)
    p.s("s_cmp_lg_u32", sw, 0)
    p.branch("s_cbranch_scc1", done)
    set_flag(p, kind, sindex, sTag)
    p.label(done)


def add_one(p, srd_, off):
    p.v("v_mov_b32", V(62), 1)
    p.v("v_mov_b32", vpoll, 0)
    p.s("s_mov_b64", EXEC, 1)
    so, io = (off, 0) if not isinstance(off, int) else (0, off)
    t = f"buffer_atomic_add {V(62)}, " + Prog._bt(vpoll, srd_, so, io, SC1)
    p.add(I(t, "vstore", (), units(V(62), vpoll, srd_, so), meta={"data": units(V(62)), "wide": False}))
    p.s("s_mov_b64", EXEC, -1)


SIL = WRING + 2 * SLOT
MPART = SIL + 1024
mreg = V(64, 64)
aC = A(250)
sSlab = S(71)


def slab_map(p):
    if not SLABMAP:
        p.s("s_cmp_lt_u32", S(2), N_MOD0 + N_MOD1)
        p.s("s_cselect_b32", sSlab, S(2), 255)
        return
    t0, t1 = st[0], st[1]
    p.s("s_lshl_b32", t0, srb, 1)
    p.s("s_and_b32", t1, shg, 1)
    p.s("s_add_u32", t0, t0, t1)
    p.s("s_mov_b32", sSlab, 255)
    p.s("s_add_u32", t1, t0, N_MOD0)
    p.s("s_lshr_b32", sp0, shg, 1)
    p.s("s_cmp_eq_u32", sp0, 1)
    p.s("s_cselect_b32", sSlab, t1, sSlab)
    p.s("s_cmp_lt_u32", t0, N_MOD0)
    p.s("s_cselect_b32", t1, t0, 255)
    p.s("s_cmp_eq_u32", sp0, 0)
    p.s("s_cselect_b32", sSlab, t1, sSlab)


def slab_issue(p, sslab):
    regs = V(128, 8)
    st0, st1, so = st[0], st[1], st[2]
    vt0, vt1, vcoff = regs[0], regs[1], regs[2]
    vd = regs[4:8]
    p.v("v_lshlrev_b32", vcoff, 2, vtid2)
    p.bload(aC, vcoff, rTMP2)
    p.v("v_lshrrev_b32", vt0, 2, vl)
    p.s("s_mov_b32", st0, 6144)
    p.v("v_mul_lo_u32", vt0, vt0, st0)
    p.v("v_and_b32", vt1, 3, vl)
    p.v("v_lshl_add_u32", vd[0], vt1, 4, vt0)
    for j in range(1, 4):
        p.v("v_add_u32", vd[j], j * (16 * 6144 - 1024), vd[0])
    p.s("s_mul_i32", st0, sw, 128 * 6144)
    p.s("s_lshl_b32", st1, sslab, 6)
    p.s("s_add_u32", so, st0, st1)
    for grp in range(2):
        p.s("s_add_u32", M0, sMS, grp * 4096)
        if grp:
            p.s("s_add_u32", so, so, 64 * 6144)
        else:
            p.nop(0)
        for j in range(4):
            p.dma(vd[j], rTMP, so, off=1024 * j, tag=("slab", grp))


def slab_finish(p, T, sslab, name):
    regs = V(136, 64) if name == "slab0" else mreg
    st0, st1 = st[0], st[1]
    vt0, vt1, vt2, vc, vcoff = regs[0], regs[1], regs[2], regs[3], regs[4]
    s0, s1, e0, e1, vpk = regs[12], regs[13], regs[14], regs[15], regs[5]
    p.v("v_lshlrev_b32", vcoff, 2, vtid2)
    p.v("v_accvgpr_read_b32", vc, aC)
    p.v("v_lshlrev_b32", s0, 16, vc)
    p.v("v_and_b32", s1, sHi, vc)
    for s_, e_ in ((s0, e0), (s1, e1)):
        p.v("v_mul_f32", e_, -1.4426950408889634, s_)
    for s_, e_ in ((s0, e0), (s1, e1)):
        p.v("v_exp_f32", e_, e_)
    for s_, e_ in ((s0, e0), (s1, e1)):
        p.v("v_add_f32", e_, 1.0, e_)
    for s_, e_ in ((s0, e0), (s1, e1)):
        p.v("v_rcp_f32", e_, e_)
    for s_, e_ in ((s0, e0), (s1, e1)):
        p.v("v_mul_f32", s_, s_, e_)
    p.v("v_cvt_pk_bf16_f32", vpk, s0, s1)
    p.v("v_add_u32", vt0, SIL, vcoff)
    p.ds_write("ds_write_b32", vt0, vpk)
    vtr_ = regs[7]
    p.v("v_lshrrev_b32", vt1, 2, vl)
    p.v("v_lshlrev_b32", vt1, 6, vt1)
    p.v("v_and_b32", vt0, 3, vl)
    p.v("v_lshl_add_u32", vt0, vt0, 3, vt1)
    p.v("v_add_u32", vtr_, sMS, vt0)
    vb = regs[6]
    p.v("v_lshrrev_b32", vb, 4, vl)
    p.v("v_lshlrev_b32", vb, 3, vb)
    p.s("s_lshl_b32", st0, sw, 8)
    p.s("s_add_u32", st0, st0, SIL)
    p.v("v_add_u32", vb, st0, vb)
    p.barrier()
    if name == "slab0":
        T("s_sil")
    acc_ = regs[16:24]
    bf = regs[24:40]
    af = regs[40:56]
    for ks in range(4):
        b = bf[4 * ks:4 * ks + 4]
        p.ds_read("ds_read_b64", b[0:2], vb, off=64 * ks)
        p.ds_read("ds_read_b64", b[2:4], vb, off=64 * ks + 32)
    for k2 in range(2):
        for ks in (2 * k2, 2 * k2 + 1):
            for t in range(2):
                a = af[8 * (ks & 1) + 4 * t:8 * (ks & 1) + 4 * t + 4]
                for h in range(2):
                    p.ds_read("ds_read_b64_tr_b16", a[2 * h:2 * h + 2], vtr_, off=ks * 2048 + 1024 * h + 32 * t,
                              dep=("slab", ks >> 1))
        for ks in (2 * k2, 2 * k2 + 1):
            for t in range(2):
                d = acc_[4 * t:4 * t + 4]
                p.mfma16(d, af[8 * (ks & 1) + 4 * t:8 * (ks & 1) + 4 * t + 4], bf[4 * ks:4 * ks + 4], d if ks else 0)
    p.v("v_lshrrev_b32", vt1, 4, vl)
    p.v("v_lshlrev_b32", vt1, 4, vt1)
    p.s("s_lshl_b32", st0, sw, 7)
    p.s("s_add_u32", st0, st0, MPART)
    p.v("v_add_u32", vt1, st0, vt1)
    for t in range(2):
        p.ds_write("ds_write_b128", vt1, acc_[4 * t:4 * t + 4], off=64 * t)
    p.barrier()
    if name == "slab0":
        T("s_gemv")
    p.s("s_cmp_lg_u32", sw, 0 if name == "slab0" else 3)
    p.branch("s_cbranch_scc1", f"M_{name}_done")
    r4 = regs[16:20]
    p.v("v_and_b32", vt0, 31, vl)
    p.v("v_lshlrev_b32", vt0, 2, vt0)
    p.v("v_add_u32", vt1, MPART, vt0)
    for w in range(4):
        p.ds_read("ds_read_b32", r4[w], vt1, off=128 * w)
    p.v("v_add_f32", r4[0], r4[0], r4[1])
    p.v("v_add_f32", r4[2], r4[2], r4[3])
    p.v("v_add_f32", r4[0], r4[0], r4[2])
    bf16_round_hi(p, r4[0], r4[0])
    p.v("v_add_f32", r4[1], 1.0, r4[0])
    bf16_round_hi(p, r4[1], r4[1])
    p.s("s_lshr_b32", st0, sslab, 4)
    p.s("s_cmp_eq_u32", st0, 1)
    p.s("s_cselect_b32", st1, 1, 0)
    p.s("s_cmp_eq_u32", st0, 4)
    p.s("s_cselect_b32", st1, 1, st1)
    p.v("v_mov_b32", vt2, st1)
    p.v("v_cmp_eq_u32", VCC, 1, vt2)
    p.v("v_cndmask_b32", r4[0], r4[0], r4[1])
    p.s("s_cmp_lt_u32", st0, 2)
    p.s("s_mov_b32", st1, QSCALE)
    p.s("s_cselect_b32", st1, st1, 1.0)
    p.v("v_mul_f32", r4[0], st1, r4[0])
    p.s("s_mov_b64", EXEC, 0xFFFFFFFF)
    if name == "slab0":
        get_tag(p)
        p.v("v_mov_b32", r4[1], sTag)
        p.v("v_lshlrev_b32", vt0, 1, vt0)
        p.s("s_lshl_b32", st0, sslab, 8)
        p.s("s_add_u32", st0, st0, WS_MODG)
        p.bstore(r4[0:2], vt0, rWS, soff=st0, flags=SC1)
        T("s_st")
    else:
        p.s("s_lshl_b32", st0, sslab, 7)
        p.s("s_add_u32", st0, st0, WS_MOD)
        p.bstore(r4[0], vt0, rWS, soff=st0, flags=SC1)
    p.s("s_mov_b64", EXEC, -1)
    p.label(f"M_{name}_done")


aC4 = A(236, 4)


def slabw_issue(p, sslab):
    regs = V(128, 8)
    st0, so = st[0], st[2]
    vt0, vt1 = regs[0], regs[1]
    vd = regs[4:8]
    p.bload(aC4, vlin, rTMP2)
    p.v("v_lshrrev_b32", vt0, 2, vl)
    p.s("s_mov_b32", st0, 6144)
    p.v("v_mul_lo_u32", vt0, vt0, st0)
    p.v("v_and_b32", vt1, 3, vl)
    p.v("v_lshl_add_u32", vd[0], vt1, 4, vt0)
    for j in range(1, 4):
        p.v("v_add_u32", vd[j], j * (16 * 6144 - 1024), vd[0])
    p.s("s_lshl_b32", so, sslab, 6)
    for grp in range(8):
        p.s("s_mov_b32", M0, SH + grp * 4096)
        if grp:
            p.s("s_add_u32", so, so, 64 * 6144)
        else:
            p.nop(0)
        for j in range(4):
            p.dma(vd[j], rTMP, so, off=1024 * j, tag=("slab", grp))


def slabw_finish(p, T, sslab, name):
    regs = V(136, 64) if name == "slab0" else mreg
    st0, st1 = st[0], st[1]
    vt0, vt1, vt2, vtr_, vb = regs[0], regs[1], regs[2], regs[3], regs[4]
    cs, es, pk = regs[8:16], regs[16:24], regs[24:28]
    for i in range(4):
        p.v("v_accvgpr_read_b32", vt0, aC4[i])
        p.v("v_lshlrev_b32", cs[2 * i], 16, vt0)
        p.v("v_and_b32", cs[2 * i + 1], sHi, vt0)
    for k in range(8):
        p.v("v_mul_f32", es[k], -1.4426950408889634, cs[k])
    for k in range(8):
        p.v("v_exp_f32", es[k], es[k])
    for k in range(8):
        p.v("v_add_f32", es[k], 1.0, es[k])
    for k in range(8):
        p.v("v_rcp_f32", es[k], es[k])
    for k in range(8):
        p.v("v_mul_f32", cs[k], cs[k], es[k])
    for i in range(4):
        p.v("v_cvt_pk_bf16_f32", pk[i], cs[2 * i], cs[2 * i + 1])
    p.v("v_add_u32", vt0, SIL, vlin)
    p.ds_write("ds_write_b128", vt0, pk, tag="sil")
    p.v("v_lshrrev_b32", vt1, 2, vl)
    p.v("v_lshlrev_b32", vt1, 6, vt1)
    p.v("v_and_b32", vt0, 3, vl)
    p.v("v_lshl_add_u32", vt0, vt0, 3, vt1)
    p.v("v_add_u32", vtr_, SH, vt0)
    p.v("v_lshrrev_b32", vb, 4, vl)
    p.v("v_lshlrev_b32", vb, 3, vb)
    p.v("v_add_u32", vb, SIL, vb)
    acc_ = regs[8:16]
    bf = regs[16:32]
    af = regs[32:64]
    for k4 in range(4):
        for kk in range(4):
            ks = 4 * k4 + kk
            b = bf[4 * kk:4 * kk + 4]
            p.ds_read("ds_read_b64", b[0:2], vb, off=64 * ks, dep="sil")
            p.ds_read("ds_read_b64", b[2:4], vb, off=64 * ks + 32, dep="sil")
            for t in range(2):
                a = af[8 * kk + 4 * t:8 * kk + 4 * t + 4]
                for h in range(2):
                    p.ds_read("ds_read_b64_tr_b16", a[2 * h:2 * h + 2], vtr_, off=ks * 2048 + 1024 * h + 32 * t,
                              dep=("slab", ks >> 1))
        for kk in range(4):
            ks = 4 * k4 + kk
            for t in range(2):
                d = acc_[4 * t:4 * t + 4]
                p.mfma16(d, af[8 * kk + 4 * t:8 * kk + 4 * t + 4], bf[4 * kk:4 * kk + 4], d if ks else 0)
    if name == "slab0":
        T("s_gemv")
    r4 = regs[16:20]
    x0, x1 = regs[20], regs[21]
    p.v("v_and_b32", vt0, 1, vl)
    p.v("v_cmp_eq_u32", VCC, 1, vt0)
    for t in range(2):
        p.v("v_cndmask_b32", regs[22 + 2 * t], acc_[4 * t], acc_[4 * t + 1])
        p.v("v_cndmask_b32", regs[23 + 2 * t], acc_[4 * t + 2], acc_[4 * t + 3])
    p.v("v_and_b32", vt0, 2, vl)
    p.v("v_cmp_eq_u32", VCC, 2, vt0)
    p.v("v_cndmask_b32", x0, regs[22], regs[23])
    p.v("v_cndmask_b32", x1, regs[24], regs[25])
    p.v("v_and_b32", vt0, 4, vl)
    p.v("v_cmp_eq_u32", VCC, 4, vt0)
    p.v("v_cndmask_b32", r4[0], x0, x1)
    p.v("v_lshlrev_b32", vt0, 2, vt0)
    p.v("v_lshrrev_b32", vt1, 4, vl)
    p.v("v_lshl_add_u32", vt0, vt1, 2, vt0)
    p.v("v_and_b32", vt1, 3, vl)
    p.v("v_add_u32", vt0, vt0, vt1)
    p.v("v_lshlrev_b32", vt0, 2, vt0)
    bf16_round_hi(p, r4[0], r4[0])
    p.v("v_add_f32", r4[1], 1.0, r4[0])
    bf16_round_hi(p, r4[1], r4[1])
    p.s("s_lshr_b32", st0, sslab, 4)
    p.s("s_cmp_eq_u32", st0, 1)
    p.s("s_cselect_b32", st1, 1, 0)
    p.s("s_cmp_eq_u32", st0, 4)
    p.s("s_cselect_b32", st1, 1, st1)
    p.v("v_mov_b32", vt2, st1)
    p.v("v_cmp_eq_u32", VCC, 1, vt2)
    p.v("v_cndmask_b32", r4[0], r4[0], r4[1])
    p.s("s_cmp_lt_u32", st0, 2)
    p.s("s_mov_b32", st1, QSCALE)
    p.s("s_cselect_b32", st1, st1, 1.0)
    p.v("v_mul_f32", r4[0], st1, r4[0])
    if name == "slab0":
        get_tag(p)
        p.v("v_mov_b32", r4[1], sTag)
        p.v("v_lshlrev_b32", vt0, 1, vt0)
    p.raw("s_mov_b32 exec_lo, 0x00ff00ff")
    p.raw("s_mov_b32 exec_hi, 0x00ff00ff")
    if name == "slab0":
        p.s("s_lshl_b32", st0, sslab, 8)
        p.s("s_add_u32", st0, st0, WS_MODG)
        p.bstore(r4[0:2], vt0, rWS, soff=st0, flags=SC1)
        T("s_st")
    else:
        p.s("s_lshl_b32", st0, sslab, 7)
        p.s("s_add_u32", st0, st0, WS_MOD)
        p.bstore(r4[0], vt0, rWS, soff=st0, flags=SC1)
    p.s("s_mov_b64", EXEC, -1)


def late_signals(p):
    p.s("s_cmp_lg_u32", sw, 3)
    p.branch("s_cbranch_scc1", "M_late_done")
    if CODEPF >= 2:
        code_prefetch_tail(p)
    p.wait(vm=0)
    add_one(p, rDBG, DBG_CLR)
    p.s("s_sub_u32", sp0, sSlab, N_MOD0)
    p.s("s_cmp_ge_u32", sp0, N_MOD1)
    p.branch("s_cbranch_scc1", "M_late_done")
    add_one(p, rDBG, DBG_MOD1)
    p.label("M_late_done")


R_LDS = SH + 65536 - 512


rVg, rVq, rVf, rVfr, rVxo, rVmo = V(2), V(3), V(4), V(8), V(9), V(10)
rVx, rX1p, rH2p = V(12, 8), V(20, 8), V(48, 8)
rVp = [V(64, 32), V(96, 32)]
rA, rXf, rVm = V(128, 16), V(144, 16), V(160, 48)
sRqt, sRhalf, sRb0 = S(66), S(67), S(68)


def r_addr(p):
    st0, st1 = st[0], st[1]
    vt0, vt1, vt2 = V(5), V(6), V(7)
    p.v("v_and_b32", rVq, 7, vl)
    p.v("v_lshrrev_b32", rVg, 3, vl)
    p.v("v_and_b32", rVg, 3, rVg)
    p.v("v_lshrrev_b32", rVf, 5, vl)
    p.s("s_lshr_b32", sRqt, shg, 1)
    p.s("s_and_b32", sRhalf, shg, 1)
    p.v("v_lshlrev_b32", vt0, 4, rVg)
    p.v("v_add_u32", vt0, vt0, rVq)
    p.s("s_lshl_b32", st0, sRhalf, 3)
    p.v("v_add_u32", vt0, st0, vt0)
    p.v("v_lshlrev_b32", vt0, 4, vt0)
    p.v("v_lshlrev_b32", vt1, 12, rVf)
    p.v("v_add_u32", rVfr, vt0, vt1)
    p.s("s_mul_i32", sRb0, srb, PART_BLK)
    p.s("s_lshl_b32", st0, sw, 14)
    p.s("s_add_u32", sRb0, sRb0, st0)
    p.s("s_lshl_b32", st0, sRqt, 10)
    p.s("s_add_u32", sRb0, sRb0, st0)
    p.s("s_add_u32", sRb0, sRb0, WS_PART)


def r_partial_loads(p, i):
    for hg in range(8):
        p.s("s_add_u32", st[0], sRb0, hg * 32 * PART_BLK + i * 8192)
        p.bload(rVp[i][4 * hg:4 * hg + 4], rVfr, rWS, soff=st[0], flags=SC1)


def r_side_loads(p):
    st0, st1 = st[0], st[1]
    vt0, vt1, vt2 = V(5), V(6), V(7)
    p.s("s_lshl_b32", st0, srb, 6)
    p.s("s_lshl_b32", st1, sRqt, 4)
    p.s("s_add_u32", st0, st0, st1)
    p.s("s_lshl_b32", st1, sRhalf, 3)
    p.s("s_add_u32", st0, st0, st1)
    p.v("v_add_u32", vt0, st0, rVq)
    p.v("v_lshlrev_b32", vt0, 10, vt0)
    p.v("v_lshlrev_b32", vt1, 6, rVf)
    p.v("v_lshlrev_b32", vt2, 3, rVg)
    p.v("v_add3_u32", rVxo, vt0, vt1, vt2)
    p.s("s_lshl_b32", st0, sw, 8)
    for i in range(2):
        for h in range(2):
            p.bload(rVx[4 * i + 2 * h:4 * i + 2 * h + 2], rVxo, rX, soff=st0, off=128 * i + 32 * h)
    p.v("v_lshlrev_b32", vt1, 7, rVf)
    p.v("v_lshlrev_b32", vt2, 4, rVg)
    p.v("v_add_u32", rVmo, vt1, vt2)
    r_mod_loads(p, (0, 1))


def r_mod_loads(p, which):
    st0, st1 = st[0], st[1]
    p.s("s_lshl_b32", st0, sw, 9)
    for k in which:
        vec = 2 + k
        p.s("s_add_u32", st1, st0, WS_MOD + vec * 2048)
        for i in range(2):
            for h in range(2):
                o = 16 * k + 8 * i + 4 * h
                p.bload(rVm[o:o + 4], rVmo, rWS, soff=st1, off=256 * i + 64 * h, flags=SC1)


rSel = V(208, 6)


def r_sel_setup(p):
    t0, t1, t2 = V(5), V(6), V(7)
    p.v("v_and_b32", t0, 15, vl)
    p.v("v_lshrrev_b32", t1, 2, t0)
    p.v("v_lshrrev_b32", t2, 4, vl)
    p.v("v_cmp_eq_u32", VCC, t1, t2)
    p.v("v_mov_b32", t1, 0x3F80)
    p.v("v_cndmask_b32", t1, 0, t1)
    p.v("v_and_b32", t2, 1, t0)
    p.v("v_lshlrev_b32", t2, 4, t2)
    p.v("v_lshlrev_b32", t1, t2, t1)
    p.v("v_and_b32", t0, 2, t0)
    p.v("v_cmp_eq_u32", VCC, 0, t0)
    for k in (0, 1, 4, 5):
        p.v("v_mov_b32", rSel[k], 0)
    p.v("v_cndmask_b32", rSel[2], 0, t1)
    p.v("v_sub_u32", rSel[3], t1, rSel[2])


def r_sum(p, i):
    if RMFMA:
        for hg in range(8):
            src = rVp[i][4 * hg:4 * hg + 4]
            for half, sel in ((0, rSel[2:6]), (1, rSel[0:4])):
                d = rA[8 * i + 4 * half:8 * i + 4 * half + 4]
                p.mfma16(d, sel, src, d if hg else 0)
        return
    slo, shi = st[1], sp1
    p.s("s_mov_b32", slo, 0x00003F80)
    p.s("s_mov_b32", shi, 0x3F800000)
    for hg in range(8):
        for r in range(4):
            src = rVp[i][4 * hg + r]
            for hi, sel in ((0, slo), (1, shi)):
                d = rA[8 * i + 2 * r + hi]
                p.v("v_dot2_f32_bf16", d, src, sel, d if hg else 0)


def phase_r_compute(p, T):
    st0, so = st[0], st[5]
    vt0, vt1 = V(5), V(6)
    a, xf, vm, vx, x1p = rA, rXf, rVm, rVx, rX1p
    for i in range(2):
        for h in range(2):
            for j in range(2):
                src = vx[4 * i + 2 * h + j]
                p.v("v_lshlrev_b32", xf[8 * i + 4 * h + 2 * j], 16, src)
                p.v("v_and_b32", xf[8 * i + 4 * h + 2 * j + 1], sHi, src)
    for k in range(16):
        p.v("v_fmac_f32", xf[k], a[k], vm[k])
    for i in range(2):
        for j in range(4):
            p.v("v_cvt_pk_bf16_f32", x1p[4 * i + j], xf[8 * i + 2 * j], xf[8 * i + 2 * j + 1])
    p.s("s_lshl_b32", so, srb, 16)
    p.s("s_lshl_b32", st0, sw, 14)
    p.s("s_add_u32", so, so, st0)
    p.s("s_lshl_b32", st0, sRqt, 10)
    p.s("s_add_u32", so, so, st0)
    for i in range(2):
        p.s("s_add_u32", st0, so, WS_X1 + i * 8192)
        p.bstore(x1p[4 * i:4 * i + 4], rVfr, rWS, soff=st0, flags=SC1)
    for i in range(2):
        for j in range(4):
            p.v("v_lshlrev_b32", xf[8 * i + 2 * j], 16, x1p[4 * i + j])
            p.v("v_and_b32", xf[8 * i + 2 * j + 1], sHi, x1p[4 * i + j])
    s1, s2 = V(28), V(29)
    p.v("v_add_f32", s1, xf[0], xf[1])
    p.v("v_mul_f32", s2, xf[0], xf[0])
    p.v("v_fmac_f32", s2, xf[1], xf[1])
    for k in range(2, 16):
        p.v("v_add_f32", s1, s1, xf[k])
        p.v("v_fmac_f32", s2, xf[k], xf[k])
    for s_ in (s1, s2):
        p.v("v_add_f32_dpp", s_, s_, s_, mods="row_ror:8 row_mask:0xf bank_mask:0xf")
    for op in ("v_permlane16_swap_b32", "v_permlane32_swap_b32"):
        for s_, t_ in ((s1, vt0), (s2, vt1)):
            p.v("v_mov_b32", t_, s_)
        for s_, t_ in ((s1, vt0), (s2, vt1)):
            p.v(op, s_, t_)
        for s_, t_ in ((s1, vt0), (s2, vt1)):
            p.v("v_add_f32", s_, s_, t_)
    p.v("v_lshlrev_b32", vt0, 3, rVq)
    p.v("v_add_u32", vt0, R_LDS, vt0)
    p.s("s_lshl_b32", st0, sw, 6)
    p.v("v_add_u32", vt1, st0, vt0)
    s12 = V(30, 2)
    p.v("v_mov_b32", s12[0], s1)
    p.v("v_mov_b32", s12[1], s2)
    p.ds_write("ds_write_b64", vt1, s12)
    p.barrier()
    rr = V(32, 8)
    for w in range(4):
        p.ds_read("ds_read_b64", rr[2 * w:2 * w + 2], vt0, off=64 * w)
    p.v("v_add_f32", s1, rr[0], rr[2])
    p.v("v_add_f32", s2, rr[1], rr[3])
    p.v("v_add_f32", rr[4], rr[4], rr[6])
    p.v("v_add_f32", rr[5], rr[5], rr[7])
    p.v("v_add_f32", s1, s1, rr[4])
    p.v("v_add_f32", s2, s2, rr[5])
    mu, rs2, nm2 = V(40), V(42, 2), V(44, 2)
    p.v("v_mul_f32", mu, 1.0 / 512, s1)
    p.v("v_mul_f32", s2, 1.0 / 512, s2)
    p.v("v_fma_f32", s2, Neg(mu), mu, s2)
    p.v("v_max_f32", s2, 0, s2)
    p.v("v_add_f32", s2, 1e-5, s2)
    p.v("v_rsq_f32", rs2[0], s2)
    p.v("v_mul_f32_e64", nm2[0], Neg(mu), rs2[0])
    p.v("v_mov_b32", rs2[1], rs2[0])
    p.v("v_mov_b32", nm2[1], nm2[0])
    for k in range(8):
        p.v("v_pk_fma_f32", xf[2 * k:2 * k + 2], xf[2 * k:2 * k + 2], rs2, nm2)
    for k in range(8):
        p.v("v_pk_fma_f32", xf[2 * k:2 * k + 2], xf[2 * k:2 * k + 2], vm[32 + 2 * k:34 + 2 * k], vm[16 + 2 * k:18 + 2 * k])
    h2p = rH2p
    for i in range(2):
        for j in range(4):
            p.v("v_cvt_pk_bf16_f32", h2p[4 * i + j], xf[8 * i + 2 * j], xf[8 * i + 2 * j + 1])
        p.s("s_add_u32", st0, so, WS_H2 + i * 8192)
        p.bstore(h2p[4 * i:4 * i + 4], rVfr, rWS, soff=st0, flags=SC1)


aF1 = A(250)


def check_mod1(p):
    p.v("v_accvgpr_read_b32", V(62), aEarly[0])
    p.v("v_readfirstlane_b32", sp0, V(62))
    p.s("s_cmp_ge_u32", sp0, N_MOD1)
    p.branch("s_cbranch_scc1", "C_mod1_ok")
    spin(p, rDBG, DBG_MOD1, N_MOD1, "mod1")
    p.label("C_mod1_ok")


def o2_hooks():
    h = {}
    q = Prog()
    q.v("v_mov_b32", V(62), sTag)
    q.s("s_lshl_b32", S(47), S(2), 7)
    q.s("s_add_u32", S(47), S(47), WS_FLAG + F_PART1 * 256 * 128)
    pre = q.ins
    q = Prog()
    q.need("part1")
    q.barrier(drain_lds=False)
    q.bstore(V(62), vpoll, rWS, soff=S(47), flags=SC1)
    h[12] = {6: pre, 9: q.ins}
    q = Prog()
    q.v("v_min_u32", V(45), 7, vl)
    q.v("v_lshlrev_b32", V(45), 7, V(45))
    q.s("s_lshl_b32", S(47), srb, 10)
    q.s("s_add_u32", S(47), S(47), WS_FLAG + F_PART1 * 256 * 128)
    pre = q.ins
    q = Prog()
    q.bload(aF1, V(45), rWS, soff=S(47), flags=SC1)
    h[14] = {2: pre, 6: q.ins}

    def before_last(p):
        r_addr(p)
        check_mod1(p)
        r_side_loads(p)
        p.v("v_accvgpr_read_b32", V(62), aF1)
        p.s("s_mov_b32", sp1, 0)
        p.label("P_part1")
        p.v("v_cmp_eq_u32", VCC, sTag, V(62))
        p.add(I("s_cmp_eq_u64 vcc, exec", "salu", (), units(VCC)))
        p.branch("s_cbranch_scc1", "P_part1_done")
        p.bload(V(62), V(45), rWS, soff=S(47), flags=SC1)
        p.wait(vm=0)
        p.s("s_add_u32", sp1, sp1, 1)
        p.s("s_cmp_lt_u32", sp1, 0x40000)
        p.add(I("s_cbranch_scc1 P_part1", "salu"))
        p.label("P_part1_done")
        r_partial_loads(p, 0)

    h["before_last_stores"] = before_last
    return h


ROWB = 2752
sDrb, sDcg, sDact, sDH = S(40 + 12), S(40 + 13), S(40 + 14), S(40 + 15)
sErb, sEcb, sEact, sEwd = S(56), S(57), S(58), S(59)
sDrot = S(91)


def d_ids(p):
    st0, st1 = st[0], st[1]
    p.s("s_and_b32", st0, shg, 1)
    p.s("s_lshl_b32", st0, st0, 2)
    p.s("s_and_b32", st1, srb, 3)
    p.s("s_add_u32", sDrb, st0, st1)
    p.s("s_lshr_b32", st0, shg, 1)
    p.s("s_mul_i32", st1, st0, 7)
    p.s("s_add_u32", st1, st1, 1)
    p.s("s_cmp_eq_u32", st0, 0)
    p.s("s_cselect_b32", sDcg, 0, st1)
    p.s("s_cselect_b32", st0, 8, 7)
    p.s("s_lshr_b32", st1, srb, 2)
    p.s("s_add_u32", sDcg, sDcg, st1)
    p.s("s_cmp_lt_u32", st1, st0)
    p.s("s_cselect_b32", sDact, 1, 0)
    p.s("s_lshl_b32", sDrot, st1, 1)


def d_weights(p, drain=True):
    st0, st1 = st[0], st[1]
    vt_ = V(216, 5)
    vd = V(224, 3)
    smag = S(61)
    p.s("s_cmp_eq_u32", sw, 0)
    p.branch("s_cbranch_scc1", "M_dw_done")
    p.s("s_mov_b32", smag, 0xAAAB)
    p.s("s_mov_b32", st0, ROWB)
    for k in range(3):
        p.v("v_add_u32", vt_[0], 64 * k, vl)
        p.v("v_mul_lo_u32", vt_[1], vt_[0], smag)
        p.v("v_lshrrev_b32", vt_[1], 18, vt_[1])
        p.v("v_mul_u32_u24", vt_[2], 6, vt_[1])
        p.v("v_sub_u32", vt_[2], vt_[0], vt_[2])
        p.v("v_lshlrev_b32", vt_[2], 4, vt_[2])
        p.v("v_mul_lo_u32", vt_[1], vt_[1], st0)
        p.v("v_add_u32", vd[k], vt_[1], vt_[2])
        if k:
            p.v("v_subrev_u32", vd[k], 1024 * k, vd[k])
    sPos, sCol = S(62), S(63)
    p.s("s_mul_i32", sCol, sDcg, 96)
    p.s("s_sub_u32", sPos, sw, 1)
    p.label("M_dw_loop")
    p.s("s_add_u32", st0, sPos, sDrot)
    p.s("s_and_b32", st0, st0, 15)
    p.s("s_mul_i32", st0, st0, 32 * ROWB)
    p.s("s_add_u32", st0, st0, sCol)
    p.s("s_mul_i32", st1, sPos, 3072)
    for m, r_ in enumerate((rG, rU)):
        p.s("s_add_u32", M0, st1, m * 49152)
        p.nop(0)
        for k in range(3):
            p.dma(vd[k], r_, st0, off=1024 * k, tag="dw")
    p.s("s_add_u32", sPos, sPos, 3)
    p.s("s_cmp_lt_u32", sPos, 16)
    p.add(I("s_cbranch_scc1 M_dw_loop", "salu"))
    if drain:
        p.wait(vm=0)
    p.label("M_dw_done")


E_RING = SH
E_NSLOT = 4


def phase_d(p, T, e_prefetch):
    st0, st1 = st[0], st[1]
    sH, sAct = st[2], st[3]
    vlin_ = V(2)
    vt_ = V(3, 5)
    vtr_ = V(12, 2)
    p.v("v_lshlrev_b32", vlin_, 4, vl)
    p.s("s_lshl_b32", sH, sDrb, 2)
    p.s("s_add_u32", sH, sH, sw)
    p.s("s_mul_i32", sAct, sH, ACT_RB)
    p.s("s_lshl_b32", sH, sH, 16)
    p.s("s_add_u32", sH, sH, WS_H2)
    p.s("s_mul_i32", st0, sDcg, 6144)
    p.s("s_add_u32", sAct, sAct, st0)
    p.s("s_add_u32", sAct, sAct, WS_ACT)
    NB = 4
    vB_ = V(128, 16 * NB)

    def bfr(ks, qt):
        o = 16 * (ks % NB) + 4 * qt
        return vB_[o:o + 4]

    sK_ = S(63)

    def load_b(ks):
        q = Prog()
        if ks == 0:
            q.s("s_lshl_b32", sK_, sDrot, 12)
        else:
            q.s("s_add_u32", sK_, sK_, 4096)
            q.s("s_and_b32", sK_, sK_, 0xFFFF)
        q.s("s_add_u32", st1, sH, sK_)
        for qt in range(4):
            q.bload(bfr(ks, qt), vlin_, rWS, soff=st1, off=1024 * qt, flags=SC1)
        return q.ins

    p.v("v_lshrrev_b32", vt_[0], 2, vl)
    p.v("v_mul_u32_u24", vt_[0], 96, vt_[0])
    p.v("v_and_b32", vt_[1], 3, vl)
    p.v("v_lshlrev_b32", vt_[1], 3, vt_[1])
    p.v("v_add_u32", vtr_[0], vt_[0], vt_[1])
    p.v("v_add_u32", vtr_[1], 49152, vtr_[0])
    accd = V(16, 96)
    vA = V(112, 16)
    vz_ = V(196, 4)
    for i in range(4):
        p.v("v_mov_b32", vz_[i], 0)
    if EARLYW:
        e_early(p, "d")
    else:
        d_weights(p)
    p.s("s_lshl_b32", st[4], sDrb, 5)
    poll_flags(p, F_H2, st[4], 32, "h2")
    T("d_go")
    for ks in range(NB - 1 if DROLL else NB):
        for x in load_b(ks):
            p.add(x)
    for i in range(6):
        zero16(p, accd[16 * i:16 * i + 16], vz_)

    def accr(m, t, qt):
        o = 48 * m + 16 * t + 4 * qt
        return accd[o:o + 4]

    def afr(i):
        return vA[4 * (i % 4):4 * (i % 4) + 4]

    def rd_a(ks, f, base):
        q = Prog()
        m, t = f // 3, f % 3
        for h in range(2):
            q.ds_read("ds_read_b64_tr_b16", afr(6 * ks + f)[2 * h:2 * h + 2], vtr_[m],
                      off=(ks - base) * 3072 + 1536 * h + 32 * t)
        return q.ins

    for f in range(2):
        for x in rd_a(0, f, 0):
            p.add(x)
    for it in range(4):
        mark(p, "gd", it)
        for ks in range(4 * it, 4 * it + 4):
            mf = []
            for f in range(6):
                m, t = f // 3, f % 3
                for qt in range(4):
                    def mm(m=m, t=t, qt=qt, f=f, ks=ks):
                        d = accr(m, t, qt)
                        x = p.mfma16(d, afr(6 * ks + f), bfr(ks, qt), d)
                        if ILV and f == 0 and qt == 0:
                            also(x, [bfr(ks, k) for k in range(4)])
                    mf.append(mm)
            sc = Sched(mf)
            for f in range(6):
                nf, nks = (f + 2) % 6, ks + (f + 2) // 6
                if nks < 16 or DROLL:
                    r = rd_a(nks, nf, 4 * it)
                    sc.fixed(4 * f, r[:1])
                    sc.fixed(4 * f + 1, r[1:])
            if ILV:
                if DROLL or (ks >= 1 and ks - 1 + NB < 16):
                    ld = load_b(ks - 1 + NB)
                    sal = [x for x in ld if x.kind == "salu"]
                    vm_ = [x for x in ld if x.kind != "salu"]
                    for i, x in enumerate(sal):
                        sc.fixed(i, [x])
                    for i, x in enumerate(vm_):
                        sc.fixed(6 + 4 * i, [x])
            elif ks + NB < 16:
                sc.fixed(23, load_b(ks + NB))
            sc.emit(p)
        if it < 3 or DROLL:
            p.v("v_add_u32", vtr_[0], 4 * 3072, vtr_[0])
            p.v("v_add_u32", vtr_[1], 4 * 3072, vtr_[1])
        loop_dec(p)
        loop_branch(p)
    mark(p, "gd", None)
    T("d_mma")
    o = V(200, 32)
    for qt in range(4):
        for t in range(3):
            g_, u_ = accr(0, t, qt), accr(1, t, qt)
            for r in range(4):
                p.v("v_mul_f32", g_[r], g_[r], u_[r])
        full = o[8 * qt:8 * qt + 4]
        half = o[8 * qt + 4:8 * qt + 6]
        for t in range(3):
            g_ = accr(0, t, qt)
            dst = full[2 * t:2 * t + 2] if t < 2 else half
            p.v("v_cvt_pk_bf16_f32", dst[0], g_[0], g_[1])
            p.v("v_cvt_pk_bf16_f32", dst[1], g_[2], g_[3])
        p.bstore(full, vlin_, rWS, soff=sAct, off=1024 * qt, flags=SC1)
    vh = vt_[0]
    p.v("v_lshlrev_b32", vh, 3, vl)
    p.s("s_add_u32", st0, sAct, 4096)
    p.s("s_cmp_eq_u32", sDcg, 28)
    p.branch("s_cbranch_scc1", "D_skip_half")
    for qt in range(4):
        p.bstore(o[8 * qt + 4:8 * qt + 6], vh, rWS, soff=st0, off=512 * qt, flags=SC1)
    p.label("D_skip_half")
    p.s("s_lshl_b32", st[4], sDrb, 5)
    p.s("s_add_u32", st[4], st[4], sDcg)
    signal(p, F_ACT, st[4], "act")


eRing, eSa, eSd = S(60), S(61), S(62)
eSet = S(55)
ePA, ePW = S(70, 3), S(73, 3)
eVd, eVtr, eLin, eLin8 = V(232, 2), V(234, 4), V(238), V(239)
eAcc, eA, eB = V(16, 64), V(80, 16), V(96, 16 * E_NSLOT)


def e_setup(p):
    st0, st1 = st[0], st[1]
    vt_ = V(240, 4)
    p.v("v_lshlrev_b32", eLin, 4, vl)
    p.v("v_lshlrev_b32", eLin8, 3, vl)
    p.s("s_lshl_b32", st0, shg, 2)
    p.s("s_lshr_b32", st1, S(2), 6)
    p.s("s_add_u32", sErb, st0, st1)
    p.s("s_and_b32", sEcb, srb, 7)
    p.s("s_lshl_b32", eRing, sw, 14)
    p.s("s_add_u32", eRing, eRing, E_RING)
    p.v("v_lshrrev_b32", vt_[0], 3, vl)
    p.v("v_lshlrev_b32", vt_[1], 10, vt_[0])
    p.v("v_lshrrev_b32", vt_[0], 1, vt_[0])
    p.v("v_and_b32", vt_[0], 3, vt_[0])
    p.v("v_lshlrev_b32", vt_[0], 1, vt_[0])
    p.v("v_and_b32", vt_[2], 7, vl)
    p.v("v_xor_b32", vt_[0], vt_[0], vt_[2])
    p.v("v_lshlrev_b32", vt_[0], 4, vt_[0])
    p.v("v_add_u32", eVd[0], vt_[0], vt_[1])
    p.v("v_add_u32", eVd[1], 8 * 1024 - 1024, eVd[0])
    p.v("v_lshrrev_b32", vt_[0], 2, vl)
    p.v("v_lshlrev_b32", vt_[1], 7, vt_[0])
    p.v("v_lshrrev_b32", vt_[0], 1, vt_[0])
    p.v("v_and_b32", vt_[0], 3, vt_[0])
    p.v("v_lshlrev_b32", vt_[0], 1, vt_[0])
    p.v("v_and_b32", vt_[2], 3, vl)
    p.v("v_lshrrev_b32", vt_[3], 1, vt_[2])
    p.v("v_xor_b32", vt_[0], vt_[0], vt_[3])
    p.v("v_lshlrev_b32", vt_[0], 4, vt_[0])
    p.v("v_and_b32", vt_[2], 1, vt_[2])
    p.v("v_lshlrev_b32", vt_[2], 3, vt_[2])
    p.v("v_add3_u32", eVtr[0], vt_[0], vt_[1], vt_[2])
    p.v("v_add_u32", eVtr[0], eRing, eVtr[0])
    for t in range(1, 4):
        p.v("v_xor_b32", eVtr[t], t << 5, eVtr[0])
    if EROT:
        p.s("s_add_u32", eSet, sw, sEcb)
        p.s("s_and_b32", eSet, eSet, 3)
        p.s("s_lshr_b32", st1, sEcb, 2)
    else:
        p.s("s_mov_b32", eSet, sw)
        p.s("s_mov_b32", st1, 0)
    for i in range(3):
        p.s("s_add_u32", st0, st1, i)
        p.s("s_cmp_ge_u32", st0, 3)
        p.s("s_cselect_b32", ePA[i], 3, 0)
        p.s("s_sub_u32", st0, st0, ePA[i])
        p.s("s_mul_i32", ePA[i], st0, 8 * 6144)
        p.s("s_mul_i32", ePW[i], st0, 4 * 96 * 1024)
    p.s("s_mul_i32", sEact, sErb, ACT_RB)
    p.s("s_mul_i32", st0, eSet, 2 * 6144)
    p.s("s_add_u32", sEact, sEact, st0)
    p.s("s_add_u32", sEact, sEact, WS_ACT)
    p.s("s_mul_i32", sEwd, eSet, 96 * 1024)
    p.s("s_lshl_b32", st0, sEcb, 7)
    p.s("s_add_u32", sEwd, sEwd, st0)
    if EBAL:
        e_extra_setup(p)


def e_issue_w(q, n, kind, pair_off, rotated=True):
    rot = rotated and pair_off < 3
    doff = 0 if rot else pair_off * 4 * 96 * 1024
    slot = (n % E_NSLOT) * 4096
    if kind < 2:
        rows = [doff + (48 * kind) * 1024, doff + (48 * kind + 16) * 1024]
    else:
        rows = [doff + 32 * 1024, doff + (48 + 32) * 1024]
    for hf in range(2):
        q.s("s_add_u32", eSd, sEwd, rows[hf])
        if rot:
            q.s("s_add_u32", eSd, eSd, ePW[pair_off])
        q.s("s_add_u32", M0, eRing, slot + 2048 * hf)
        q.nop(0)
        for j in range(2):
            q.dma(eVd[j], rD, eSd, off=1024 * j, tag=("e", n), ovw=("e", n - E_NSLOT))


eA9, eA10, eW9, eW10 = S(76), S(77), S(78), S(79)


def e_extra_setup(p):
    t0, t1 = st[0], st[1]
    p.s("s_mul_i32", t0, sErb, ACT_RB)
    p.s("s_add_u32", t0, t0, WS_ACT)
    p.s("s_lshl_b32", t1, eSet, 1)
    p.s("s_add_u32", t1, t1, 24)
    p.s("s_cmp_eq_u32", eSet, 3)
    p.s("s_cselect_b32", t1, 28, t1)
    p.s("s_mul_i32", eA9, t1, 6144)
    p.s("s_add_u32", eA9, eA9, t0)
    p.s("s_add_u32", eA10, eA9, 6144)
    p.s("s_mul_i32", eW9, t1, 48 * 1024)
    p.s("s_lshl_b32", t0, sEcb, 7)
    p.s("s_add_u32", eW9, eW9, t0)
    p.s("s_add_u32", eW10, eW9, 48 * 1024)
    p.s("s_cmp_eq_u32", eSet, 3)
    p.s("s_cselect_b32", eA10, 0x7FFF0000, eA10)
    p.s("s_cselect_b32", eW10, 0x7FFF0000, eW10)


def e_issue_at(q, n, kind, sact, swd, aoffs, rows):
    slot = (n % E_NSLOT) * 4096
    for hf in range(2):
        q.s("s_add_u32", eSd, swd, rows[hf] * 1024)
        q.s("s_add_u32", M0, eRing, slot + 2048 * hf)
        q.nop(0)
        for j in range(2):
            q.dma(eVd[j], rD, eSd, off=1024 * j, tag=("e", n), ovw=("e", n - E_NSLOT))
    if kind < 2:
        q.s("s_add_u32", eSa, sact, aoffs[0])
        for qt in range(4):
            q.bload(e_bfr(n, qt), eLin, rWS, soff=eSa, off=1024 * qt, flags=SC1)
    else:
        for hf in range(2):
            q.s("s_add_u32", eSa, sact, aoffs[hf])
            for qt in range(4):
                q.bload(e_bfr(n, qt)[2 * hf:2 * hf + 2], eLin8, rWS, soff=eSa, off=512 * qt, flags=SC1)


def e_early(p, name):
    sJob, sOwn, sN, sT0, sT1, sT2 = S(62), st[0], st[1], S(61), S(63), S(69)
    eSa2 = S(47)
    p.s("s_cmp_eq_u32", sw, 0)
    p.branch("s_cbranch_scc1", f"M_ee_done_{name}")
    p.s("s_sub_u32", sJob, sw, 1)
    p.label(f"M_ee_loop_{name}")
    p.s("s_lshr_b32", sOwn, sJob, 2)
    p.s("s_and_b32", sN, sJob, 3)
    p.s("s_lshl_b32", sT0, sJob, 12)
    p.s("s_add_u32", sT0, sT0, E_RING)
    p.s("s_mul_i32", sT1, sN, 48)
    p.s("s_cmp_eq_u32", sN, 2)
    p.s("s_cselect_b32", sT1, 32, sT1)
    p.s("s_cselect_b32", sT2, 48, 16)
    p.s("s_cmp_eq_u32", sN, 3)
    p.s("s_cselect_b32", sT1, 0, sT1)
    p.s("s_cselect_b32", eSa2, ePW[1], ePW[0])
    if EROT:
        p.s("s_add_u32", sOwn, sOwn, sEcb)
        p.s("s_and_b32", sOwn, sOwn, 3)
    p.s("s_mul_i32", sOwn, sOwn, 96)
    p.s("s_add_u32", sT1, sT1, sOwn)
    p.s("s_add_u32", sT2, sT2, sT1)
    p.s("s_lshl_b32", sN, sEcb, 7)
    p.s("s_add_u32", sN, sN, eSa2)
    for hf, sr in enumerate((sT1, sT2)):
        p.s("s_lshl_b32", sr, sr, 10)
        p.s("s_add_u32", sr, sr, sN)
        p.s("s_add_u32", M0, sT0, 2048 * hf)
        p.nop(0)
        for j in range(2):
            p.dma(eVd[j], rD, sr, off=1024 * j, tag="ee")
    p.s("s_add_u32", sJob, sJob, 3)
    p.s("s_cmp_lt_u32", sJob, 16)
    p.add(I(f"s_cbranch_scc1 M_ee_loop_{name}", "salu"))
    p.label(f"M_ee_done_{name}")


def e_bfr(n, qt):
    o = 16 * (n % E_NSLOT) + 4 * qt
    return eB[o:o + 4]


def e_issue_b(q, n, kind, pair_off, rotated=True):
    rot = rotated and pair_off < 3
    aoff = 0 if rot else pair_off * 8 * 6144
    if kind < 2:
        q.s("s_add_u32", eSa, sEact, aoff + kind * 6144)
        if rot:
            q.s("s_add_u32", eSa, eSa, ePA[pair_off])
        for qt in range(4):
            q.bload(e_bfr(n, qt), eLin, rWS, soff=eSa, off=1024 * qt, flags=SC1)
    else:
        for hf in range(2):
            q.s("s_add_u32", eSa, sEact, aoff + hf * 6144 + 4096)
            if rot:
                q.s("s_add_u32", eSa, eSa, ePA[pair_off])
            for qt in range(4):
                q.bload(e_bfr(n, qt)[2 * hf:2 * hf + 2], eLin8, rWS, soff=eSa, off=512 * qt, flags=SC1)


def phase_e(p, T):
    st0, st1 = st[0], st[1]
    vt_ = V(240, 4)

    def accr(t, qt):
        return eAcc[16 * t + 4 * qt:16 * t + 4 * qt + 4]

    def afr(i):
        return eA[4 * (i % 4):4 * (i % 4) + 4]

    def rd_a(n, t):
        q = Prog()
        for h in range(2):
            q.ds_read("ds_read_b64_tr_b16", afr(4 * n + t)[2 * h:2 * h + 2], eVtr[t],
                      off=(n % E_NSLOT) * 4096 + 2048 * h, dep=("e", n))
        return q.ins

    def step(n, first, nxt, have_next):
        mf = []
        for t in range(4):
            for qt in range(4):
                def mm(t=t, qt=qt):
                    d = accr(t, qt)
                    x = p.mfma16(d, afr(4 * n + t), e_bfr(n, qt), d if not first else 0)
                    if ILV and t == 0 and qt == 0:
                        also(x, [e_bfr(n, k) for k in range(4)])
                mf.append(mm)
        sc = Sched(mf)
        tg = []
        for t in range(4):
            tn, nn = (t + 2) % 4, n + (t + 2) // 4
            if nn == n or have_next:
                r = rd_a(nn, tn)
                sc.fixed(4 * t, r[:1])
                sc.fixed(4 * t + 1, r[1:])
        if ILV and nxt:
            free = [g for g in range(16) if g % 4 >= 2]
            g, k = 0, 0
            pend = []
            for x in nxt:
                if x.kind in ("salu",):
                    pend.append(x)
                elif x.kind == "nop":
                    continue
                elif k < len(free):
                    gap = free[k]
                    for y in pend:
                        sc.fixed(gap - 1, [y])
                    pend = []
                    sc.fixed(gap, [x])
                    k += 1
                else:
                    sc.oth[15] += pend + [x]
                    pend = []
            sc.oth[15] += pend
        else:
            sc.fixed(15, nxt)
        sc.emit(p)

    x1 = V(160, 8)
    gb = V(168, 16)
    p.s("s_lshl_b32", st[4], shg, 5)
    poll_flags(p, F_ACT, st[4], 29, "act")
    T("e_go")
    for n in range(E_NSLOT):
        e_issue_b(p, n, n % 3, n // 3)
    p.s("s_lshl_b32", st0, sErb, 16)
    p.s("s_lshl_b32", st1, sEcb, 13)
    p.s("s_add_u32", st0, st0, st1)
    p.s("s_lshl_b32", st1, sw, 10)
    p.s("s_add_u32", st0, st0, st1)
    p.s("s_add_u32", st0, st0, WS_X1)
    p.bload(x1[0:4], eLin, rWS, soff=st0, flags=SC1)
    p.s("s_add_u32", st0, st0, 4096)
    p.bload(x1[4:8], eLin, rWS, soff=st0, flags=SC1)
    p.v("v_lshrrev_b32", vt_[1], 4, vl)
    p.v("v_lshlrev_b32", vt_[1], 4, vt_[1])
    p.s("s_lshl_b32", st0, sEcb, 8)
    p.s("s_add_u32", st0, st0, WS_MOD + 5 * 2048)
    for t in range(4):
        p.bload(gb[4 * t:4 * t + 4], vt_[1], rWS, soff=st0, off=64 * t, flags=SC1)
    for t in range(2):
        for x in rd_a(0, t):
            p.add(x)
    if EBAL:
        assert ILV

        def normal(n):
            q = Prog()
            m = n - 1 + E_NSLOT
            if E_NSLOT <= m < 9:
                e_issue_w(q, m, m % 3, m // 3)
                e_issue_b(q, m, m % 3, m // 3)
            return q.ins

        for n in range(6):
            step(n, n == 0, normal(n), True)
        T("e_main")
        p.s("s_cmp_eq_u32", eSet, 2)
        p.branch("s_cbranch_scc1", "E_split")
        for variant in ("full", "split"):
            if variant == "split":
                p.label("E_split")
            for n in range(6, 11):
                q = Prog()
                m = n - 1 + E_NSLOT
                if m in (9, 10):
                    if variant == "full":
                        e_issue_at(q, m, 0, eA9 if m == 9 else eA10, eW9 if m == 9 else eW10, [0], [0, 16])
                    else:
                        pair = 12 + (m - 9)
                        a0 = (2 * pair) * 6144 + 4096 - 2 * 2 * 6144
                        r0 = 96 * pair - 2 * 96
                        e_issue_at(q, m, 2, sEact, sEwd, [a0, a0 + 6144], [r0 + 32, r0 + 80])
                step(n, False, q.ins, n < 10)
            if variant == "full":
                p.branch("s_branch", "E_red")
    else:
        for n in range(9):
            q = Prog()
            m = n - 1 + E_NSLOT if ILV else n + E_NSLOT
            if m < 9 and m >= E_NSLOT:
                e_issue_w(q, m, m % 3, m // 3)
                e_issue_b(q, m, m % 3, m // 3)
            step(n, n == 0, q.ins, n < 8)
        T("e_main")
        p.s("s_cmp_lt_u32", eSet, 2)
        p.branch("s_cbranch_scc1", "E_four")
        p.s("s_cmp_eq_u32", eSet, 3)
        p.branch("s_cbranch_scc1", "E_red")
        n = 9
        p.s("s_sub_u32", sEact, sEact, 2 * 2 * 6144 - 28 * 6144)
        p.s("s_sub_u32", sEwd, sEwd, 2 * 96 * 1024 - 1344 * 1024)
        e_issue_w(p, n, 0, 0, rotated=False)
        e_issue_b(p, n, 0, 0, rotated=False)
        for t in range(2):
            for x in rd_a(n, t):
                p.add(x)
        step(n, False, [], False)
        p.branch("s_branch", "E_red")
        p.label("E_four")
        for n in range(9, 12):
            e_issue_w(p, n, n % 3, 3)
            e_issue_b(p, n, n % 3, 3)
        for t in range(2):
            for x in rd_a(9, t):
                p.add(x)
        for n in range(9, 12):
            step(n, False, [], n < 11)
    p.label("E_red")
    T("e_tail")
    p.wait(vm=0, lgkm=0)
    p.s("s_lshl_b32", st0, sw, 12)
    p.v("v_add_u32", vt_[0], st0, eLin)
    for qt in range(4):
        for t in range(4):
            p.ds_write("ds_write_b128", vt_[0], accr(t, qt), off=qt * 16384 + t * 1024)
    p.barrier()
    red = V(96, 64)
    p.s("s_lshl_b32", st0, sw, 14)
    p.v("v_add_u32", vt_[0], st0, eLin)
    for w in range(4):
        for t in range(4):
            p.ds_read("ds_read_b128", red[16 * w + 4 * t:16 * w + 4 * t + 4], vt_[0], off=w * 4096 + t * 1024)
    for k in range(8):
        p.v("v_pk_add_f32", red[2 * k:2 * k + 2], red[2 * k:2 * k + 2], red[16 + 2 * k:18 + 2 * k])
        p.v("v_pk_add_f32", red[32 + 2 * k:34 + 2 * k], red[32 + 2 * k:34 + 2 * k], red[48 + 2 * k:50 + 2 * k])
    for k in range(8):
        p.v("v_pk_add_f32", red[2 * k:2 * k + 2], red[2 * k:2 * k + 2], red[32 + 2 * k:34 + 2 * k])
    xf = V(184, 16)
    for j in range(2):
        for h in range(2):
            for i in range(2):
                src = x1[4 * j + 2 * h + i]
                k = 8 * j + 4 * h + 2 * i
                p.v("v_lshlrev_b32", xf[k], 16, src)
                p.v("v_and_b32", xf[k + 1], sHi, src)
    for k in range(16):
        p.v("v_fmac_f32", xf[k], red[k], gb[k])
    op = V(200, 8)
    for k in range(8):
        p.v("v_cvt_pk_bf16_f32", op[k], xf[2 * k], xf[2 * k + 1])
    p.v("v_and_b32", vt_[0], 15, vl)
    p.v("v_lshlrev_b32", vt_[0], 10, vt_[0])
    p.v("v_lshrrev_b32", vt_[1], 4, vl)
    p.v("v_lshlrev_b32", vt_[1], 3, vt_[1])
    p.v("v_add_u32", vt_[0], vt_[0], vt_[1])
    p.s("s_lshl_b32", st0, sErb, 6)
    p.s("s_lshl_b32", st1, sw, 4)
    p.s("s_add_u32", st0, st0, st1)
    p.s("s_lshl_b32", st0, st0, 10)
    p.s("s_lshl_b32", st1, sEcb, 7)
    p.s("s_add_u32", st0, st0, st1)
    for t in range(4):
        p.bstore(op[2 * t:2 * t + 2], vt_[0], rOut, soff=st0, off=32 * t, flags=SC1)


aTouch = A(240, 8)


CODE_LINES = 24


def code_prefetch_tail(p):
    sPC = S(92, 2)
    p.add(I(f"s_getpc_b64 {sPC}", "salu", units(sPC), ()))
    p.label("M_pc2")
    p.add(I(f"s_add_u32 {sPC[0]}, {sPC[0]}, B_norm-M_pc2", "salu", units(sPC[0]), units(sPC[0])))
    p.add(I(f"s_addc_u32 {sPC[1]}, {sPC[1]}, 0", "salu", units(sPC[1]), units(sPC[1])))
    p.s("s_mul_i32", st[1], srb, 10)
    p.v("v_min_u32", vt[0], 9, vl)
    p.v("v_add_u32", vt[0], st[1], vt[0])
    p.v("v_lshlrev_b32", vt[0], 6, vt[0])
    p.v("v_min_u32", vt[0], "(B_end-B_norm)", vt[0])
    p.add(I(f"global_load_dword {A(254)}, {vt[0]}, {sPC}", "vload", units(A(254)), units(vt[0], sPC)))


def code_prefetch(p):
    p.s("s_cmp_lg_u32", sw, 1)
    p.branch("s_cbranch_scc1", "M_no_codepf")
    sPC = S(92, 2)
    p.add(I(f"s_getpc_b64 {sPC}", "salu", units(sPC), ()))
    p.label("M_pc")
    p.add(I(f"s_sub_u32 {sPC[0]}, {sPC[0]}, M_pc-{KNAME}", "salu", units(sPC[0]), units(sPC[0])))
    p.add(I(f"s_subb_u32 {sPC[1]}, {sPC[1]}, 0", "salu", units(sPC[1]), units(sPC[1])))
    p.s("s_mul_i32", st[1], srb, CODE_LINES)
    p.v("v_min_u32", vt[0], CODE_LINES - 1, vl)
    p.v("v_add_u32", vt[0], st[1], vt[0])
    p.v("v_lshlrev_b32", vt[0], 6, vt[0])
    p.v("v_min_u32", vt[0], f"(B_end-{KNAME})", vt[0])
    p.add(I(f"global_load_dword {A(254)}, {vt[0]}, {sPC}", "vload", units(A(254)), units(vt[0], sPC)))
    p.label("M_no_codepf")


def get_tag(p):
    p.v("v_accvgpr_read_b32", V(62), aT)
    p.v("v_readfirstlane_b32", sTag, V(62))
    p.s("s_add_u32", sTag, sTag, 1)


sTch = S(69)


def bg_touch():
    q = Prog()
    q.bload(aTouch[0], vlin, rTMP, soff=sTch)
    q.s("s_add_u32", sTch, sTch, 1024)
    return q.ins


def bg_q_setup(p):
    p.s("s_cmp_lt_u32", srb, 16)
    for h in range(4):
        p.s("s_cselect_b32", rTMP[h], rK[h], rV[h])
    p.s("s_lshl_b32", sTch, srot, 13)


def bg_q(n):
    if n < 12 and n % 3 < 2:
        return {9: bg_touch()}
    return None


def bg_att_setup(p, ptr2):
    for k, name in enumerate(("wg", "wu", "wd")):
        for h in range(2):
            if k == 0:
                p.s("s_mov_b32", rTMP[h], ptr2[name][h])
            else:
                p.s("s_cmp_eq_u32", sw, k + 1)
                p.s("s_cselect_b32", rTMP[h], ptr2[name][h], rTMP[h])
    p.s("s_cmp_eq_u32", sw, 0)
    p.s("s_cselect_b32", rTMP[2], 0, SZ["wd"])
    p.s("s_mul_i32", sTch, S(2), 5504)


def bg_att(t):
    if t % 2 == 0 and t < 12:
        return {12: bg_touch()}
    return None


def touch_mlp_window(p, ptr2):
    p.s("s_cmp_lt_u32", S(2), N_MOD0 + N_MOD1)
    p.branch("s_cbranch_scc1", "M_no_win")
    p.s("s_cmp_eq_u32", sw, 0)
    p.branch("s_cbranch_scc1", "M_no_win")
    vo = vt[6]
    p.v("v_lshlrev_b32", vo, 6, vl)
    for k, name in enumerate(("wg", "wu", "wd")):
        for h in range(2):
            if k == 0:
                p.s("s_mov_b32", rTMP[h], ptr2[name][h])
            else:
                p.s("s_cmp_eq_u32", sw, k + 1)
                p.s("s_cselect_b32", rTMP[h], ptr2[name][h], rTMP[h])
    p.s("s_mov_b32", rTMP[2], SZ["wd"])
    p.s("s_mov_b32", rTMP[3], 0x20000)
    p.s("s_sub_u32", st[2], S(2), N_MOD0 + N_MOD1)
    p.s("s_lshl_b32", st[2], st[2], 12)
    for i in range(3):
        p.bload(aTouch[i], vo, rTMP, soff=st[2])
        if i < 2:
            p.s("s_add_u32", st[2], st[2], 160 * 4096)
    p.label("M_no_win")


def touch_all(p, ptr2):
    vo = vt[6]
    p.v("v_lshlrev_b32", vo, 6, vl)
    p.s("s_cmp_lt_u32", srb, 16)
    for h in range(4):
        p.s("s_cselect_b32", rTMP[h], rK[h], rV[h])
    p.s("s_lshl_b32", st[2], srot, 13)
    p.bload(aTouch[0], vo, rTMP, soff=st[2])
    p.s("s_add_u32", st[2], st[2], 4096)
    p.bload(aTouch[1], vo, rTMP, soff=st[2])
    for k, name in enumerate(("wg", "wu", "wd")):
        for h in range(2):
            if k == 0:
                p.s("s_mov_b32", rTMP[h], ptr2[name][h])
            else:
                p.s("s_cmp_eq_u32", sw, k + 1)
                p.s("s_cselect_b32", rTMP[h], ptr2[name][h], rTMP[h])
    p.s("s_mov_b32", rTMP[2], SZ["wd"])
    p.s("s_lshl_b32", st[2], S(2), 12)
    p.s("s_cmp_eq_u32", sw, 0)
    p.s("s_cselect_b32", st[2], SZ["wd"], st[2])
    p.bload(aTouch[3], vo, rTMP, soff=st[2])
    p.s("s_add_u32", st[2], st[2], 256 * 4096)
    p.bload(aTouch[4], vo, rTMP, soff=st[2])


def touch_streams(p, ptr2, all_waves=False):
    if all_waves:
        return touch_all(p, ptr2)
    p.s("s_cmp_eq_u32", sw, 0)
    p.branch("s_cbranch_scc1", "M_no_touch")
    vo = vt[6]
    p.v("v_lshlrev_b32", vo, 6, vl)
    p.s("s_cmp_lt_u32", srb, 16)
    p.s("s_cselect_b32", rTMP[0], ptr2["k"][0], ptr2["v"][0])
    p.s("s_cselect_b32", rTMP[1], ptr2["k"][1], ptr2["v"][1])
    p.s("s_lshl_b32", st[1], shg, 21)
    p.s("s_add_u32", st[1], st[1], 1536 * 256)
    p.s("s_add_u32", rTMP[0], rTMP[0], st[1])
    p.s("s_addc_u32", rTMP[1], rTMP[1], 0)
    p.s("s_mov_b32", rTMP[2], 4 << 19)
    p.s("s_mov_b32", rTMP[3], 0x20000)
    p.s("s_lshl_b32", st[2], srot, 13)
    for m in range(3 if KVTOUCH else 0):
        p.s("s_add_u32", st[1], sw, 3 * m - 1)
        p.s("s_lshr_b32", st[3], st[1], 1)
        p.s("s_lshl_b32", st[3], st[3], 19)
        p.s("s_and_b32", st[1], st[1], 1)
        p.s("s_lshl_b32", st[1], st[1], 12)
        p.s("s_add_u32", st[1], st[1], st[3])
        p.s("s_add_u32", st[1], st[1], st[2])
        p.bload(aTouch[m], vo, rTMP, soff=st[1])
    if MLPTOUCH == "wd":
        p.s("s_cmp_lg_u32", sw, 3)
        p.branch("s_cbranch_scc1", "M_no_touch")
    for k, name in enumerate(("wg", "wu", "wd")):
        for h in range(2):
            if k == 0:
                p.s("s_mov_b32", rTMP[h], ptr2[name][h])
            else:
                p.s("s_cmp_eq_u32", sw, k + 1)
                p.s("s_cselect_b32", rTMP[h], ptr2[name][h], rTMP[h])
    p.s("s_mov_b32", rTMP[2], SZ["wd"])
    p.s("s_lshl_b32", st[2], S(2), 12)
    p.bload(aTouch[3], vo, rTMP, soff=st[2])
    p.s("s_add_u32", st[2], st[2], 256 * 4096)
    p.bload(aTouch[4], vo, rTMP, soff=st[2])
    p.label("M_no_touch")


def touch_d_weights(p):
    p.s("s_cmp_eq_u32", sw, 0)
    p.branch("s_cbranch_scc1", "M_no_touch_d")
    p.s("s_cmp_eq_u32", sDact, 0)
    p.branch("s_cbranch_scc1", "M_no_touch_d")
    vo = V(170)
    p.v("v_lshrrev_b32", V(171), 1, vl)
    p.s("s_mov_b32", st[0], ROWB)
    p.v("v_mul_lo_u32", V(171), V(171), st[0])
    p.v("v_and_b32", vo, 1, vl)
    p.v("v_lshlrev_b32", vo, 6, vo)
    p.v("v_add_u32", vo, vo, V(171))
    p.s("s_and_b32", st[0], srb, 3)
    p.s("s_mul_i32", st[0], st[0], 128 * ROWB)
    p.s("s_mul_i32", st[1], sDcg, 96)
    p.s("s_add_u32", st[0], st[0], st[1])
    p.s("s_sub_u32", st[1], sw, 1)
    p.s("s_mul_i32", st[1], st[1], 32 * ROWB)
    p.s("s_add_u32", st[1], st[1], st[0])
    p.bload(aTouch[0], vo, rG, soff=st[1])
    p.bload(aTouch[1], vo, rU, soff=st[1])
    p.s("s_add_u32", st[1], st[0], 3 * 32 * ROWB)
    p.s("s_cmp_eq_u32", sw, 3)
    p.s("s_cselect_b32", st[1], st[1], SZ["wg"])
    p.bload(aTouch[2], vo, rG, soff=st[1])
    p.bload(aTouch[3], vo, rU, soff=st[1])
    p.label("M_no_touch_d")


DBGSTAMPS = ["rt0", "ln", "h_ready", "q_done", "att_loop", "o_done", "r_go", "r_done", "d_go", "d_mma", "e_go", "e_main", "rt1"]
DBGWG = 128


def gen_mega(diag=False):
    p = Prog()
    T = Stamps(p, diag, vreg=V(0), early=0, only=DBGSTAMPS if diag == "dbg" else None)
    p.s("s_cmp_ge_u32", S(2), 256)
    p.branch("s_cbranch_scc1", "B_end")
    p.v("v_mov_b32", vtid2, V(0))
    T("rt0", True)
    T("start")
    ptr = {k: S(52 + 2 * i, 2) for i, k in enumerate(["x", "ws", "dbg", "wmod", "c", "wq"])}
    for k in ptr:
        p.s_load(ptr[k], S(0, 2), ARG[k])
    p.v("v_lshrrev_b32", vt[0], 6, vtid2)
    p.v("v_and_b32", vl, 63, vtid2)
    p.v("v_readfirstlane_b32", sw, vt[0])
    p.s("s_and_b32", shg, S(2), 7)
    p.s("s_lshr_b32", srb, S(2), 3)
    if CODEPF and PFTOP:
        code_prefetch(p)
    p.s("s_and_b32", srot, srb, 15)
    p.s("s_lshl_b32", shead, shg, 2)
    p.s("s_mov_b32", sHi, 0xFFFF0000)
    vq, vg = vtmp[0], vtmp[1]
    p.v("v_and_b32", vq, 15, vl)
    p.v("v_lshrrev_b32", vg, 4, vl)
    p.v("v_lshlrev_b32", vlin, 4, vl)
    p.v("v_mov_b32", vpoll, 0)
    p.s("s_add_u32", shead, shead, sw)
    p.s("s_mul_i32", sMW, sw, WRING)
    p.s("s_lshl_b32", sMS, sw, 14)
    p.s("s_add_u32", sMS, sMS, SH)
    vxo = vtmp[2]
    p.s("s_lshl_b32", st[0], srb, 6)
    p.s("s_lshl_b32", st[1], sw, 4)
    p.s("s_add_u32", st[0], st[0], st[1])
    p.v("v_add_u32", vxo, st[0], vq)
    p.v("v_lshlrev_b32", vxo, 10, vxo)
    p.v("v_lshl_add_u32", vxo, vg, 4, vxo)
    p.wait(lgkm=0)
    srd(p, rX, ptr["x"], SZ["x"])
    srd(p, rWS, ptr["ws"], WS_DIAG_END if diag == "diag" else WS_END)
    srd(p, rDBG, ptr["dbg"], 256)
    srd(p, rWQ, ptr["wq"], SZ["wq"])
    ptr2 = {k: S(64 + 12 + 2 * i, 2) for i, k in enumerate(["k", "v", "wo", "wg", "wu", "wd", "out"])}
    for k in ptr2:
        p.s_load(ptr2[k], S(0, 2), ARG[k])
    p.s("s_mov_b32", st[0], WS_EPOCH)
    p.bload(aT, vpoll, rWS, soff=st[0], flags=SC1)
    if CODEPF and not PFTOP:
        code_prefetch(p)
    srd(p, rTMP, ptr["wmod"], SZ["wmod"])
    srd(p, rTMP2, ptr["c"], SZ["c"])
    slab_map(p)
    if SLABW:
        p.s("s_cmp_lt_u32", S(2), N_MOD0)
        p.s("s_cselect_b32", st[3], 0, 3)
        p.s("s_cmp_lg_u32", sw, st[3])
        p.branch("s_cbranch_scc1", "M_no_slab")
        p.s("s_cmp_ge_u32", S(2), N_MOD0 + N_MOD1)
        p.branch("s_cbranch_scc1", "M_no_slab")
        slabw_issue(p, S(2))
    else:
        p.s("s_cmp_ge_u32", sSlab, N_MOD0 + N_MOD1 if SLAB1EARLY else N_MOD0)
        p.branch("s_cbranch_scc1", "M_no_slab")
        slab_issue(p, sSlab)
    p.label("M_no_slab")
    T("s_iss")
    p.wait(lgkm=0)
    bc_setup(p, ptr2)
    if NOMEM:
        for r_ in (rK, rV, rWO, rWQ):
            p.s("s_mov_b32", r_[2], 0)
    vone, vz = vtmp[4:8], vtmp[8:12]
    dma_voffs(p, vdQ, 8192, "n8", 8)
    p.s("s_lshl_b32", sA, srot, 18)
    p.s("s_lshl_b32", st[1], shead, 8)
    p.s("s_add_u32", sA, sA, st[1])
    vX = V(64, 64)
    sX = S(91)

    def x_loads(lo, hi):
        for n in range(lo, hi):
            p.bload(vX[4 * n:4 * n + 4], vxo, rX, soff=sX)
            if n < 15:
                p.s("s_add_u32", sX, sX, 64)
                p.s("s_and_b32", sX, sX, 0x3FF)

    p.s("s_lshl_b32", sX, srot, 6)
    p.s("s_cmp_ge_u32", sSlab, N_MOD0)
    p.branch("s_cbranch_scc1", "M_no_slab_f")
    if SLABW:
        p.s("s_cmp_lg_u32", sw, 0)
        p.branch("s_cbranch_scc1", "M_no_slab_f")
        slabw_finish(p, T, S(2), "slab0")
    else:
        slab_finish(p, T, sSlab, "slab0")
        p.barrier()
    p.label("M_no_slab_f")
    x_loads(0, 16)
    if TOUCH == "early":
        p.s("s_cmp_lt_u32", S(2), N_MOD0 + N_MOD1)
        p.branch("s_cbranch_scc1", "M_skip_touch")
        touch_streams(p, ptr2)
        p.label("M_skip_touch")
    T("issued")
    if not SLAB1EARLY and not SLABW:
        p.s("s_sub_u32", st[5], sSlab, N_MOD0)
        p.s("s_cmp_ge_u32", st[5], N_MOD1)
        p.branch("s_cbranch_scc1", "M_no_slab1i")
        slab_issue(p, sSlab)
        p.label("M_no_slab1i")
    dma_now(p, "wq", 0)
    T("setup")

    gram, rsum = vtmp[12:16], A(232, 4)
    for n in range(16):
        xs = vX[4 * n:4 * n + 4]
        p.mfma16(gram, xs, xs, gram if n else 0)
        p.mfma16(rsum, vone, xs, rsum if n else 0)
    rs0 = vt[6]
    p.v("v_accvgpr_read_b32", rs0, rsum[0])
    mu, rs2, nm2 = vt[7], V(50, 2), V(52, 2)
    row_stats(p, gram, [rs0], vq, vg, mu, rs2[0], nm2[0], vt[0], vt[1])
    p.v("v_mov_b32", rs2[1], rs2[0])
    p.v("v_mov_b32", nm2[1], nm2[0])
    vY = V(128, 128)
    for n in range(16):
        xs = vX[4 * n:4 * n + 4]
        y = vY[8 * n:8 * n + 8]
        for i in range(4):
            p.v("v_lshlrev_b32", y[2 * i], 16, xs[i])
            p.v("v_and_b32", y[2 * i + 1], sHi, xs[i])
        for i in range(4):
            p.v("v_pk_fma_f32", y[2 * i:2 * i + 2], y[2 * i:2 * i + 2], rs2, nm2)
    T("ln")
    p.s("s_sub_u32", st[5], sSlab, N_MOD0)
    p.s("s_cmp_ge_u32", st[5], N_MOD1)
    p.branch("s_cbranch_scc1", "M_no_slab1")
    if SLABW:
        p.s("s_cmp_lg_u32", sw, 3)
        p.branch("s_cbranch_scc1", "M_no_slab1")
        slabw_finish(p, T, S(2), "slab1")
    else:
        slab_finish(p, T, sSlab, "slab1")
    p.label("M_no_slab1")
    vts = vt[5]
    p.s("s_lshl_b32", st[1], sw, 2)
    p.s("s_add_u32", st[1], st[1], srot)
    p.v("v_add_u32", vt[0], st[1], vg)
    p.v("v_and_b32", vt[0], 15, vt[0])
    p.v("v_lshlrev_b32", vt[0], 8, vt[0])
    p.v("v_lshrrev_b32", vt[1], 3, vq)
    p.v("v_lshl_add_u32", vt[0], vt[1], 12, vt[0])
    p.v("v_and_b32", vt[1], 7, vq)
    p.v("v_lshl_add_u32", vts, vt[1], 5, vt[0])
    if TOUCH in ("midq", "win", "bg"):
        dma_now(p, "wq", 1)
    if TOUCH == "win":
        touch_mlp_window(p, ptr2)
    get_tag(p)
    g8 = V(64, 8)
    p.s("s_mov_b32", sp1, 0)
    p.s("s_mov_b32", st[1], WS_MODG)
    p.label("P_modg")
    p.bload(g8[0:4], vts, rWS, soff=st[1], flags=SC1)
    p.bload(g8[4:8], vts, rWS, soff=st[1], off=16, flags=SC1)
    p.v("v_cmp_eq_u32", VCC, sTag, g8[1])
    p.s("s_mov_b64", sexec, VCC)
    for k in (3, 5, 7):
        p.v("v_cmp_eq_u32", VCC, sTag, g8[k])
        p.s("s_and_b64", sexec, sexec, VCC)
    p.add(I(f"s_cmp_eq_u64 {sexec}, exec", "salu", (), units(sexec)))
    p.branch("s_cbranch_scc1", "P_modg_done")
    p.s("s_add_u32", sp1, sp1, 1)
    p.s("s_cmp_lt_u32", sp1, 0x40000)
    p.raw(f"s_sleep {POLLSLEEP}") if POLLSLEEP else p.nop(0)
    p.add(I("s_cbranch_scc1 P_modg", "salu"))
    p.label("P_modg_done")
    T("mod0")
    if TOUCH == "v1":
        dma_now(p, "wq", 1)
        touch_streams(p, ptr2)
    p.v("v_mov_b32", g8[1], g8[2])
    p.v("v_mov_b32", g8[2], g8[4])
    p.v("v_mov_b32", g8[3], g8[6])
    p.s("s_lshl_b32", st[1], sw, 10)
    p.s("s_add_u32", st[1], st[1], TAB)
    p.v("v_add_u32", vt[4], st[1], vlin)
    p.ds_write("ds_write_b128", vt[4], g8[0:4])
    vtab, vhw = vt[2], vt[3]
    p.v("v_lshlrev_b32", vtab, 5, vg)
    p.v("v_add_u32", vtab, TAB, vtab)
    p.s("s_lshl_b32", st[1], sw, 10)
    p.s("s_add_u32", st[1], st[1], SH)
    p.v("v_add_u32", vhw, st[1], vlin)
    p.barrier()
    T("tab")
    if TOUCH not in ("v1", "midq", "win", "bg"):
        dma_now(p, "wq", 1)
    if TOUCH == "aftertab":
        touch_streams(p, ptr2)

    def rd_tab(n):
        tb = V(64 + 16 * (n % 3), 16)
        for i, o in enumerate((0, 16, 128, 144)):
            p.ds_read("ds_read_b128", tb[4 * i:4 * i + 4], vtab, off=n * 256 + o)

    rd_tab(0)
    rd_tab(1)
    for n in range(16):
        tb = V(64 + 16 * (n % 3), 16)
        y = vY[8 * n:8 * n + 8]
        o4 = V(112 + 4 * (n & 3), 4)
        if n + 2 < 16:
            rd_tab(n + 2)
        for i in range(4):
            p.v("v_pk_fma_f32", y[2 * i:2 * i + 2], y[2 * i:2 * i + 2], tb[8 + 2 * i:10 + 2 * i], tb[2 * i:2 * i + 2])
        for i in range(4):
            p.v("v_cvt_pk_bf16_f32", o4[i], y[2 * i], y[2 * i + 1])
        p.ds_write("ds_write_b128", vhw, o4, off=n * 4096)
        if n == 7:
            T("h_half")
    T("h_tr")
    for i in range(8):
        zero16(p, vACC[16 * i:16 * i + 16], vz)
    if TOUCH == "bg":
        bg_q_setup(p)
    T("h_zero")
    p.barrier()
    T("h_ready")

    bc_main(p, T, store_flags=SC1, at_q_done=late_signals, before_norm=early_sample,
            o2_hooks=o2_hooks() if TWOPASS else None,
            mid_q={1: lambda q: touch_streams(q, ptr2, all_waves=True)} if TOUCH == "midq" else None,
            bg_q=bg_q if TOUCH == "bg" else None, bg_att=bg_att if TOUCH == "bg" else None,
            before_att=(lambda q: bg_att_setup(q, ptr2)) if TOUCH == "bg" else None)
    T("o_done")

    ptr3 = ptr2
    srd(p, rG, ptr3["wg"], SZ["wg"])
    srd(p, rU, ptr3["wu"], SZ["wu"])
    srd(p, rD, ptr3["wd"], SZ["wd"])
    srd(p, rOut, ptr3["out"], SZ["out"])
    d_ids(p)
    if not TWOPASS:
        r_addr(p)
        check_mod1(p)
        r_side_loads(p)
        r_mod_loads(p, (2,))
        if RMFMA:
            r_sel_setup(p)
    signal(p, F_PART, S(2), "part", pre=confirm_early, T=T)
    T("part_sig")
    if EARLYW:
        p.s("s_cmp_eq_u32", sDact, 0)
        p.branch("s_cbranch_scc1", "M_no_dw_early")
        d_weights(p, drain=False)
        p.label("M_no_dw_early")
    if TWOPASS:
        r_mod_loads(p, (2,))
        r_sum(p, 0)
        T("r_sum0")
    p.s("s_lshl_b32", st[5], srb, 3)
    poll_flags(p, F_PART, st[5], 8, "part")
    T("r_go")
    if not TWOPASS:
        for hg in range(8):
            for i in range(2):
                p.s("s_add_u32", st[0], sRb0, hg * 32 * PART_BLK + i * 8192)
                p.bload(rVp[i][4 * hg:4 * hg + 4], rVfr, rWS, soff=st[0], flags=SC1)
    else:
        r_partial_loads(p, 1)
    if not TWOPASS and RMFMA:
        for hg in range(8):
            for i in range(2):
                src = rVp[i][4 * hg:4 * hg + 4]
                for half, sel in ((0, rSel[2:6]), (1, rSel[0:4])):
                    d = rA[8 * i + 4 * half:8 * i + 4 * half + 4]
                    p.mfma16(d, sel, src, d if hg else 0)
    elif not TWOPASS:
        r_sum(p, 0)
        r_sum(p, 1)
    else:
        r_sum(p, 1)
    T("r_sum")
    phase_r_compute(p, T)
    signal(p, F_H2, S(2), "h2")
    T("r_done")
    e_setup(p)

    def e_prefetch():
        for n in range(E_NSLOT):
            e_issue_w(p, n, n % 3, n // 3)

    p.s("s_cmp_eq_u32", sDact, 0)
    p.branch("s_cbranch_scc1", "M_no_d")
    phase_d(p, T, e_prefetch)
    if EARLYW:
        p.branch("s_branch", "M_e")
        p.label("M_no_d")
        e_early(p, "n")
        p.wait(vm=0)
        p.label("M_e")
    else:
        p.label("M_no_d")
        e_prefetch()
    T("d_done")
    phase_e(p, T)
    T("e_done")
    if diag:
        p.wait(vm=0)
    T("rt1", True)
    if diag == "dbg":
        p.s("s_cmp_lg_u32", S(2), DBGWG)
        p.branch("s_cbranch_scc1", "M_dbg_done")
        p.s("s_cmp_lg_u32", sw, 0)
        p.branch("s_cbranch_scc1", "M_dbg_done")
        p.v("v_readlane_b32", S(100), V(0), 0)
        p.v("v_subrev_u32", V(0), S(100), V(0))
        p.v("v_mbcnt_lo_u32_b32", vt[1], -1, 0)
        p.v("v_mbcnt_hi_u32_b32", vt[1], -1, vt[1])
        p.v("v_lshlrev_b32", vt[1], 2, vt[1])
        p.v("v_add_u32", vt[1], 12, vt[1])
        p.s("s_mov_b64", EXEC, 0x1FFE)
        p.bstore(V(0), vt[1], rDBG, soff=0)
        p.s("s_mov_b64", EXEC, -1)
        p.label("M_dbg_done")
    else:
        T.flush(rWS, sw, 1, vt[0], vt[1])
    gen_mega.stamp_names = T.names
    p.branch("s_branch", "B_end")
    slow_attention(p)
    p.label("B_end")
    resolve_ovw(p.ins)
    return finalize(p, {"gq": sLoop, "ga": sLoop, "go": sLoop, "gd": sLoop}, verbose=4, name="MEGA")


DESCRIPTION = """;
;   2. Q projection, attention over the 512-key window, output projection partial [64 x 512] (bf16, write-through)
; Hand-offs between workgroups: sc1 stores, drained, then a flag (or {value, tag} granules); sc1 loads after the poll.
;
"""


def assemble_mega(diag=False):
    from build import HEAD
    body = gen_mega(diag)
    s = HEAD + DESCRIPTION + f"; @launch grid=(256,1,1) block=(256,1,1) lds={M_LDS}\n"
    s += '.amdgcn_target "amdgcn-amd-amdhsa--gfx950"\n'
    s += kernel_text(KNAME, body, 512, 256)
    return s


if __name__ == "__main__":
    import sys
    diag = len(sys.argv) > 2 and sys.argv[2] in ("diag", "dbg") and sys.argv[2]
    for a in sys.argv[3:]:
        k, v = a.split("=")
        globals()[k] = int(v) if v.isdigit() else v
        if k == "EXP":
            kb2.EXP = v
        if k == "DMAC":
            kb2.DMA_COST = int(v)
        if k == "OROLL":
            kb2.OROLL = int(v)
        if k == "TRIM":
            kb2.TRIM = int(v)
        if k == "QNAT":
            kb2.QNAT = int(v)
        if k == "NEWS":
            kb2.NEWS = int(v)
        if k == "DIST":
            kb2.DIST = int(v)
        if k == "ALIGN":
            import asmlib
            asmlib.ALIGN_LOOPS = int(v)
    txt = assemble_mega(diag)
    open(sys.argv[1], "w").write(txt)
    print("wrote", sys.argv[1], len(txt))
    if diag:
        print(",".join(gen_mega.stamp_names))
```
